```python
import torch

def _softmax(x, axis=-1):
    return torch.softmax(x, dim=axis)
def _gelu(x):
    return torch.nn.functional.gelu(x, approximate="tanh")
def _silu(x):
    return torch.nn.functional.silu(x)
def _sigmoid(x):
    return torch.sigmoid(x)
def _layernorm(x, axis=-1, eps=1e-5):
    m = x.mean(dim=axis, keepdim=True)
    v = x.var(dim=axis, keepdim=True, unbiased=False)
    return (x - m) / torch.sqrt(v + eps)
def _scatter_add(tgt, idx, src, axis=0):
    return tgt.clone().index_add_(axis, idx, src)
def _segment_sum(src, seg, n):
    out = torch.zeros((n,) + src.shape[1:], dtype=src.dtype)
    return out.index_add_(0, seg, src)
def _pad(x, pw):
    flat = tuple(v for pair in reversed(pw) for v in pair)
    return torch.nn.functional.pad(x, flat)

kernel_name = 'parallel_sum__spectral_fnet__glu_gated_glu__prompt'

def setup_inputs():

    _w = (lambda a: (lambda t: t.to(torch.bfloat16) if t.is_floating_point() else t)(torch.as_tensor(a)))
    def _A_setup():
        B, S, D = 1, 2048, 512
        ns = torch.arange(S)[:, None] * torch.arange(S)[None, :]
        nd = torch.arange(D)[:, None] * torch.arange(D)[None, :]
        Ws_re = torch.cos(-2.0 * torch.pi * ns / S).to(float)
        Ws_im = torch.sin(-2.0 * torch.pi * ns / S).to(float)
        Wd_re = torch.cos(-2.0 * torch.pi * nd / D).to(float)
        Wd_im = torch.sin(-2.0 * torch.pi * nd / D).to(float)
        return {
            "x": _w((lambda *s: torch.randn(*s, dtype=torch.bfloat16) * 0.05)(B, S, D)),
            "dft_seq_re": _w(Ws_re),
            "dft_seq_im": _w(Ws_im),
            "dft_hid_re": _w(Wd_re),
            "dft_hid_im": _w(Wd_im),
        }
    _A_in = _A_setup()

    def _B_setup():
        B, S, D, F = 1, 2048, 512, 1792
        return {
            "x": _w((lambda *s: torch.randn(*s, dtype=torch.bfloat16) * 0.05)(B, S, D)),
            "w_gate": _w((lambda *s: torch.randn(*s, dtype=torch.bfloat16) * 1.6)(D, F)),
            "w_up": _w((lambda *s: torch.randn(*s, dtype=torch.bfloat16) * 0.8)(D, F)),
            "w_down": _w((lambda *s: torch.randn(*s, dtype=torch.bfloat16) * 0.8)(F, D)),
        }
    _B_in = _B_setup()

    return {
        "A_x": _A_in["x"],
        "A_dft_seq_re": _A_in["dft_seq_re"],
        "A_dft_seq_im": _A_in["dft_seq_im"],
        "A_dft_hid_re": _A_in["dft_hid_re"],
        "A_dft_hid_im": _A_in["dft_hid_im"],
        "B_x": _B_in["x"],
        "B_w_gate": _B_in["w_gate"],
        "B_w_up": _B_in["w_up"],
        "B_w_down": _B_in["w_down"],
    }

def reference(A_x, A_dft_seq_re, A_dft_seq_im, A_dft_hid_re, A_dft_hid_im, B_x, B_w_gate, B_w_up, B_w_down):
    def _A_ref(x, dft_seq_re, dft_seq_im, dft_hid_re, dft_hid_im):
        a = torch.einsum("bsd,ed->bse", x, dft_hid_re)
        b = torch.einsum("bsd,ed->bse", x, dft_hid_im)
        y = torch.einsum("ts,bse->bte", dft_seq_re, a) - torch.einsum("ts,bse->bte", dft_seq_im, b)
        return y

    def _B_ref(x, w_gate, w_up, w_down):
        g = torch.einsum("bsd,df->bsf", x, w_gate)
        u = torch.einsum("bsd,df->bsf", x, w_up)
        h = _sigmoid(g) * u
        return torch.einsum("bsf,fd->bsd", h, w_down)

    x = A_x
    xn = _layernorm(x, axis=-1)
    return x + _A_ref(xn, A_dft_seq_re, A_dft_seq_im, A_dft_hid_re, A_dft_hid_im) + _B_ref(xn, B_w_gate, B_w_up, B_w_down)
```

```python
import re

def regs(tok):
    tok = tok.strip()
    tok = tok.lstrip('-')
    if tok.startswith('abs(') : tok = tok[4:-1]
    if tok.startswith('|'): tok = tok.strip('|')
    m = re.fullmatch(r'([vas])\[(\d+):(\d+)\]', tok)
    if m: return [(m.group(1), i) for i in range(int(m.group(2)), int(m.group(3))+1)]
    m = re.fullmatch(r'([vas])(\d+)', tok)
    if m: return [(m.group(1), int(m.group(2)))]
    if tok == 'vcc': return [('s', 'vcc')]
    if tok == 'm0': return [('s', 'm0')]
    if tok == 'exec': return [('s', 'exec')]
    return []

TRANS = ('v_exp_f32','v_log_f32','v_rcp_f32','v_rsq_f32','v_sqrt_f32','v_sin_f32','v_cos_f32')

class Ins:
    def __init__(self, text):
        self.text = text
        t = text.split(';')[0].strip()
        self.op = t.split()[0] if t else ''
        rest = t[len(self.op):].strip()
        ops = [o.strip() for o in rest.split(',')] if rest else []
        self.mods = ''
        if ops:
            parts = ops[-1].split()
        rest2 = re.sub(r'(op_sel|op_sel_hi|neg_lo|neg_hi|quad_perm):\[[^\]]*\]', '', rest)
        ops = [o.strip() for o in rest2.split(',')] if rest2.strip() else []
        if ops:
            parts = ops[-1].split()
            ops[-1] = parts[0] if parts else ''
            self.mods = ' '.join(parts[1:])
        self.ops = ops
        op = self.op
        self.kind = 'other'
        self.w = []; self.r = []
        R = lambda i: regs(ops[i]) if i < len(ops) else []
        if op.startswith('v_mfma'):
            self.kind = 'mfma'; self.w = R(0); self.ra = R(1); self.rb = R(2); self.rc = R(3); self.r = self.ra+self.rb+self.rc
            self.passes = 8 if '32x32' in op else (4 if '16x16' in op else 2)
        elif op.startswith('ds_read') or op.startswith('ds_bpermute') or op.startswith('ds_swizzle'):
            self.kind = 'lds'; self.w = R(0); self.r = sum([R(i) for i in range(1,len(ops))], [])
        elif op.startswith('ds_write'):
            self.kind = 'lds'; self.r = sum([R(i) for i in range(len(ops))], [])
        elif op.startswith('buffer_load') or op.startswith('global_load'):
            self.kind = 'vmem'
            if ' lds' in ' '+self.mods:
                self.r = sum([R(i) for i in range(len(ops))], []) + [('s','m0')]; self.dma = True
            else:
                self.w = R(0); self.r = sum([R(i) for i in range(1,len(ops))], [])
        elif op.startswith('buffer_store') or op.startswith('buffer_atomic'):
            self.kind = 'vmem'; self.r = sum([R(i) for i in range(len(ops))], []); self.data = R(0)
            if op.startswith('buffer_atomic') and 'sc0' in self.mods: self.w = R(0)
        elif op.startswith('global_store'):
            self.kind = 'vmem'; self.r = sum([R(i) for i in range(len(ops))], []); self.data = R(1)
        elif op.startswith('s_load') or op.startswith('s_memtime') or op.startswith('s_memrealtime'):
            self.kind = 'smem'; self.w = R(0); self.r = R(1)
        elif op.startswith('v_'):
            self.kind = 'valu'
            self.w = R(0); self.r = sum([R(i) for i in range(1,len(ops))], [])
            if op.startswith('v_cmp'): pass
            if op.startswith(('v_fmac','v_dot2c','v_permlane','v_writelane')) or 'dpp' in op and 'bound_ctrl' not in self.mods: self.r += R(0)
            if op.startswith('v_permlane') and 'swap' in op: self.w += R(1)
            if op.startswith(('v_add_co','v_addc_co','v_sub_co')): self.w += R(1)
        elif op.startswith('s_'):
            self.kind = 'salu'
            if op.startswith(('s_cmp','s_waitcnt','s_barrier','s_nop','s_branch','s_cbranch','s_endpgm','s_setprio','s_sleep','s_bitcmp')):
                self.r = sum([R(i) for i in range(len(ops))], [])
            else:
                self.w = R(0); self.r = sum([R(i) for i in range(1,len(ops))], [])
        self.trans = op.replace('_e32','').replace('_e64','') in TRANS
        self.dot = op.startswith('v_dot')

class Asm:
    def __init__(self):
        self.lines = []
        self.hist = []
        self.lgkm = []
        self.vm = []
        self.smem_out = False
        self.nnop = 0
    def raw(self, s): self.lines.append(s)
    def label(self, s):
        self.lines.append(s+':')
    def comment(self, s): self.lines.append('    ; '+s)
    def snapshot(self): return (list(self.hist), list(self.lgkm), list(self.vm), self.smem_out)
    def restore(self, st): self.hist, self.lgkm, self.vm, self.smem_out = list(st[0]), list(st[1]), list(st[2]), st[3]
    def _emit(self, ins):
        self.lines.append('    '+ins.text)
        n = 1
        if ins.op == 's_nop': n = int(ins.ops[0])+1
        self.hist.append((ins, n))
        if len(self.hist) > 40: self.hist.pop(0)
    def wait(self, vm=None, lgkm=None):
        parts = []
        if vm is not None and len(self.vm) > vm:
            assert vm <= 63
            parts.append(f'vmcnt({vm})'); self.vm = self.vm[len(self.vm)-vm:] if vm else []
        if lgkm is not None and (len(self.lgkm) > lgkm or (lgkm == 0 and self.smem_out)):
            lg = min(lgkm, 15)
            parts.append(f'lgkmcnt({lg})'); self.lgkm = self.lgkm[len(self.lgkm)-lg:] if lg else []
            if lg == 0: self.smem_out = False
        if parts: self._emit(Ins('s_waitcnt '+' '.join(parts)))
    def wait_vm_for(self, ins):
        if ins in self.vm:
            n = len(self.vm)-1-self.vm.index(ins)
            self.wait(vm=min(n,63))
    def wait_lgkm_for(self, ins):
        if ins in self.lgkm:
            n = len(self.lgkm)-1-self.lgkm.index(ins)
            self.wait(lgkm=n)
    def need(self, ins):
        need = 0; dist = 0
        rs, ws = set(ins.r), set(ins.w)
        for p, n in reversed(self.hist):
            pw = set(p.w); req = 0
            if p.kind == 'valu':
                vw = {x for x in pw if x[0] in 'va'}; sw = {x for x in pw if x[0] == 's'}
                if ins.kind == 'mfma' and vw & rs: req = max(req, 3 if p.dot else 2)
                if p.trans and ins.kind == 'valu' and vw & rs: req = max(req, 1)
                if p.trans and ins.kind in ('vmem','lds') and vw & rs: req = max(req, 1)
                if p.dot and (vw & (rs|ws)):
                    if ins.op == p.op and not (vw & set(sum([regs(o) for o in ins.ops[1:3]],[]))): pass
                    else: req = max(req, 3)
                if ins.op.startswith('v_permlane') and vw & rs: req = max(req, 2)
                if 'dpp' in ins.op and vw & rs: req = max(req, 2)
                if ins.op.startswith(('v_readlane','v_readfirstlane')) and vw & rs: req = max(req, 1)
                if sw & rs:
                    if ins.kind == 'vmem': req = max(req, 5)
                    elif ins.kind == 'valu': req = max(req, 4 if ins.op.startswith(('v_readlane','v_writelane')) else 2)
                    elif ins.kind in ('salu','smem'): req = max(req, 2)
                if 'sdwa' in p.op or 'op_sel:' in p.text:
                    if ins.kind == 'valu' and vw & (rs|ws): req = max(req, 1)
            if p.kind == 'salu' and ('s','m0') in pw and getattr(ins,'dma',False): req = max(req, 1)
            if p.kind == 'mfma':
                k = {2:0,4:1,8:2,16:3}[p.passes]
                if ins.kind == 'mfma':
                    if pw & set(ins.ra+ins.rb): req = max(req, [5,8,12,20][k])
                    if pw & set(ins.rc):
                        if p.w == ins.rc and p.passes == ins.passes: req = max(req, [2,0,0,0][k])
                        else: req = max(req, [4,6,10,18][k])
                    elif pw & ws and p.w != ins.w: req = max(req, [5,8,12,20][k])
                elif ins.kind in ('valu','vmem','lds'):
                    if pw & (rs|ws): req = max(req, [5,8,12,20][k])
                    if ins.kind == 'valu' and set(p.rc) & ws: req = max(req, [1,3,7,15][k])
            if p.kind == 'vmem' and len(getattr(p,'data',[])) > 2 and set(p.data) & ws: req = max(req, 2)
            if p.kind == 'lds' and p.op.startswith('ds_write') and len(p.r) > 3 and set(p.r[1:]) & ws and ins.kind=='valu': req = max(req, 2)
            need = max(need, req - dist)
            dist += n
            if dist > 24: break
        return need
    def __call__(self, text):
        ins = Ins(text)
        touched = set(ins.r) | set(ins.w)
        for q, name in ((self.lgkm,'lgkm'), (self.vm,'vm')):
            last = None
            for idx, o in enumerate(q):
                if set(o.w) & touched: last = idx
            if last is not None:
                n = len(q)-1-last
                if name == 'lgkm':
                    if self.smem_out: n = 0
                    self.wait(lgkm=n)
                else: self.wait(vm=min(n,63))
        nd = self.need(ins)
        while nd > 0:
            k = min(nd, 16)
            self._emit(Ins(f's_nop {k-1}')); nd -= k; self.nnop += 1
        self._emit(ins)
        if ins.kind == 'lds': self.lgkm.append(ins)
        elif ins.kind == 'smem': self.lgkm.append(ins); self.smem_out = True
        elif ins.kind == 'vmem':
            self.vm.append(ins)
            assert len(self.vm) <= 63, 'vmcnt overflow'
        return ins
    def text(self): return '\n'.join(self.lines)

def vr(b, n=1, f='v'):
    return f'{f}{b}' if n == 1 else f'{f}[{b}:{b+n-1}]'
def ar(b, n=1): return vr(b, n, 'a')
def sr(b, n=1): return vr(b, n, 's')
```

```python
import sys, struct
from asmlib import *

NAME = 'parallel_sum__spectral_fnet__glu_gated_glu__prompt'
H_OFF = 0
G_OFF = 0x800000
WS_BYTES = 0xA00000
def f2u(x): return struct.unpack('<I', struct.pack('<f', x))[0]
LOG2E = 1.4426950408889634

sX, sG, sU, sWS, sWD, sOUT = 20, 24, 28, 32, 36, 40
sW, sI, sJ = 44, 45, 46
sT = 48
sM0X, sM0G, sM0U = 64, 65, 66
sKX, sKW = 67, 68
sONE = 69

def srd(a, d, ptr, nbytes):
    a(f's_mov_b32 s{d}, s{ptr}')
    a(f's_and_b32 s{d+1}, s{ptr+1}, 0xffff')
    a(f's_mov_b32 s{d+2}, {nbytes}')
    a(f's_mov_b32 s{d+3}, 0x20000')

def load_args(a):
    a('s_load_dwordx2 s[4:5], s[0:1], 0')
    a('s_load_dwordx4 s[8:11], s[0:1], 24')
    a('s_load_dwordx4 s[12:15], s[0:1], 48')
    a('s_load_dwordx8 s[72:79], s[0:1], 64')

def code_prefetch(a, lab_from, nbytes, vtmp, vdst):
    a.raw(f'    s_getpc_b64 s[80:81]')
    a.hist.append((Ins('s_getpc_b64 s[80:81]'),1))
    a(f'v_lshlrev_b32 v{vtmp}, 7, v0')
    a(f'v_min_u32 v{vtmp}, {nbytes-4}, v{vtmp}')
    return a(f'global_load_dword v{vdst}, v{vtmp}, s[80:81]')

vXA, vWGA, vWUA, vXD, vWD = 32, 48, 49, 50, 54
vSX, vSQ, vCG, vCU = 58, 59, 60, 61
vLANE, vN, vHALF = 1, 2, 3
vFR = 64
vACC = 128
LX, LG, LU, LST = 0, 49152, 98304, 147456
def fWG(p): return vFR+24*p
def fWU(p): return vFR+24*p+4
def fX(p,b): return vFR+24*p+8+4*b
def fS(p): return 112+4*p
def acc(b,m): return vACC+32*b+16*m

def dma_stage(s, pitch):
    sb = s % 3
    out = []
    for (m0reg, vad, srdr, sk, kval) in ((sM0X, vXD, sX, sKX, s*128), (sM0G, vWD, sG, sKW, s*64*pitch), (sM0U, vWD, sU, sKW, None)):
        for q in range(4):
            g = []
            if q == 0:
                g.append(f's_add_u32 m0, s{m0reg}, {sb*16384}')
                if kval is not None: g.append(f's_mov_b32 s{sk}, {kval}')
            g.append(f'buffer_load_dwordx4 v{vad+q}, s[{srdr}:{srdr+3}], s{sk} offen offset:{q*1024} lds')
            out.append(g)
    return out

def frag_reads(g, dft):
    s, ks, p = g >> 2, g & 3, g & 1
    sb = s % 3
    o = sb*16384
    def xa(b): return (vXA+ks, o+4096*b) if dft else (vXA+4*ks+b, o)
    r = []
    r.append(f'ds_read_b64_tr_b16 {vr(fWG(p),2)}, v{vWGA} offset:{o+ks*4096}')
    r.append(f'ds_read_b64_tr_b16 {vr(fWG(p)+2,2)}, v{vWGA} offset:{o+ks*4096+1024}')
    r.append(f'ds_read_b128 {vr(fX(p,0),4)}, v{xa(0)[0]} offset:{xa(0)[1]}')
    r.append(f'ds_read_b64_tr_b16 {vr(fWU(p),2)}, v{vWUA} offset:{o+ks*4096}')
    r.append(f'ds_read_b64_tr_b16 {vr(fWU(p)+2,2)}, v{vWUA} offset:{o+ks*4096+1024}')
    for b in (1,2,3): r.append(f'ds_read_b128 {vr(fX(p,b),4)}, v{xa(b)[0]} offset:{xa(b)[1]}')
    if dft: r.append(f'ds_read_b128 {vr(fS(p),4)}, v{vXA+4+ks} offset:{o}')
    return r

def phaseA_setup(a, dft):
    pitch = 1024 if dft else 3584
    if dft:
        a(f's_and_b32 s{sT}, s{sW}, 1')
        a(f's_lshl_b32 s{sT}, s{sT}, 5')
        a(f's_lshr_b32 s{sT+1}, s{sW}, 1')
        a(f's_add_u32 s{sT}, s{sT}, s{sT+1}')
        a(f's_lshl_b32 s{sT+1}, s{sI}, 1')
        a(f's_add_u32 s{sT}, s{sT}, s{sT+1}')
        a(f's_sub_u32 s{sT+4}, s{sJ}, 12')
        a(f's_lshl_b32 s{sT+4}, s{sT+4}, 8')
    else:
        a(f's_sub_u32 s{sT+1}, 32, s{sI}')
        a(f's_cmp_eq_u32 s{sI}, 0')
        a(f's_cselect_b32 s{sT+1}, 16, s{sT+1}')
        a(f's_bitcmp1_b32 s{sW}, 1')
        a(f's_cselect_b32 s{sT}, s{sT+1}, s{sI}')
        a(f's_sub_u32 s{sT+1}, 64, s{sT}')
        a(f's_cmp_eq_u32 s{sT}, 0')
        a(f's_cselect_b32 s{sT+1}, 32, s{sT+1}')
        a(f's_bitcmp1_b32 s{sW}, 0')
        a(f's_cselect_b32 s{sT}, s{sT+1}, s{sT}')
        a(f's_lshl_b32 s{sT+4}, s{sJ}, 8')
    a(f's_lshl_b32 s{sT}, s{sT}, 10')
    a(f'v_lshrrev_b32 v4, 3, v{vLANE}')
    a(f'v_lshlrev_b32 v4, 16, v4')
    a(f'v_add_u32 v4, s{sT}, v4')
    a(f'v_lshrrev_b32 v5, 4, v{vLANE}')
    a(f'v_and_b32 v6, 7, v{vLANE}')
    a(f'v_xor_b32 v6, v6, v5')
    a(f'v_lshl_add_u32 v{vXD}, v6, 4, v4')
    a(f'v_xor_b32 v7, 64, v{vXD}')
    a(f'v_add_u32 v{vXD+1}, {524288-1024}, v7')
    a(f'v_add_u32 v{vXD+2}, {2*(524288-1024)}, v{vXD}')
    a(f'v_add_u32 v{vXD+3}, {3*(524288-1024)}, v7')
    a(f's_mul_i32 s{sT+1}, s{sW}, {16*pitch}')
    a(f's_add_u32 s{sT+1}, s{sT+1}, s{sT+4}')
    a(f'v_mul_u32_u24 v4, {pitch}, v5')
    a(f'v_add_u32 v4, s{sT+1}, v4')
    a(f'v_and_b32 v6, 15, v{vLANE}')
    a(f'v_lshlrev_b32 v7, 2, v5')
    a(f'v_xor_b32 v6, v6, v7')
    a(f'v_lshl_add_u32 v{vWD}, v6, 4, v4')
    for q in (1,2,3): a(f'v_add_u32 v{vWD+q}, {q*(4*pitch-1024)}, v{vWD}')
    a(f's_lshl_b32 s{sM0X}, s{sW}, 12')
    a(f's_add_u32 s{sM0G}, s{sM0X}, {LG}')
    a(f's_add_u32 s{sM0U}, s{sM0X}, {LU}')
    a.wait(lgkm=0)
    srd(a, sX, 4, 2048*1024)
    if dft:
        srd(a, sG, 8, 512*1024); srd(a, sU, 10, 512*1024)
    else:
        srd(a, sG, 12, 512*3584); srd(a, sU, 14, 512*3584)
    srd(a, sWS, 78, WS_BYTES)

def phaseA_setup2(a, dft):
    a(f'v_lshrrev_b32 v4, 1, v{vN}')
    a(f'v_and_b32 v4, 7, v4')
    a(f'v_xor_b32 v4, v4, v{vHALF}')
    a(f'v_lshlrev_b32 v4, 4, v4')
    a(f'v_lshl_add_u32 v4, v{vN}, 7, v4')
    if dft:
        for ks in range(4): a(f'v_xor_b32 v{vXA+ks}, {ks*32}, v4')
        for ks in range(4): a(f'v_add_u32 v{vXA+4+ks}, s{sM0X}, v{vXA+ks}')
    else:
        a(f'v_add_u32 v4, s{sM0X}, v4')
        for ks in range(4):
            for b in range(4): a(f'v_xor_b32 v{vXA+4*ks+b}, {ks*32+b*4096}, v4')
    a(f'v_bfe_u32 v4, v{vLANE}, 2, 2')
    a(f'v_xor_b32 v5, s{sW}, v4')
    a(f'v_lshlrev_b32 v5, 6, v5')
    a(f'v_lshl_add_u32 v5, v4, 8, v5')
    a(f'v_lshl_add_u32 v5, v{vHALF}, 11, v5')
    a(f'v_bfe_u32 v4, v{vLANE}, 4, 1')
    a(f'v_lshl_add_u32 v5, v4, 5, v5')
    a(f'v_and_b32 v4, 3, v{vLANE}')
    a(f'v_lshl_add_u32 v5, v4, 3, v5')
    a(f'v_add_u32 v{vWGA}, {LG}, v5')
    a(f'v_add_u32 v{vWUA}, {LU}, v5')
    for r in (vSX, vSQ, vCG, vCU): a(f'v_mov_b32 v{r}, 0')
    a(f's_mov_b32 s{sONE}, 0x3f803f80')
    if dft:
        for jb in range(2):
            a(f'v_lshrrev_b32 v4, 1, v{vN}')
            a(f'v_add_u32 v4, {16*jb}, v4')
            a(f'v_and_b32 v5, 1, v{vN}')
            if jb == 0:
                a(f'v_cmp_eq_u32 vcc, 1, v{vN}')
                a(f'v_mov_b32 v6, 32')
                a(f'v_cndmask_b32 v4, v4, v6, vcc')
                a(f'v_mov_b32 v6, 0')
                a(f'v_cndmask_b32 v5, v5, v6, vcc')
            a(f'v_cvt_f32_u32 v4, v4')
            a(f'v_cvt_f32_u32 v5, v5')
            a(f'v_cvt_f32_u32 v6, v{vHALF}')
            a(f'v_mul_f32 v4, {f2u(1/64):#x}, v4')
            a(f'v_mul_f32 v5, {f2u(-0.25):#x}, v5')
            a(f'v_mul_f32 v6, {f2u(8.0):#x}, v6')
            a(f'v_fma_f32 v5, v6, v4, v5')
            for q in range(2):
                for u in range(2):
                    for e in range(8):
                        s1 = 2*(16*u+8*(e>>2)+(e&3))+q
                        a(f'v_fmamk_f32 v{8+e}, v4, {f2u(float(s1)):#x}, v5')
                    for e in range(8): a(f'v_cos_f32 v{8+e}, v{8+e}')
                    for d in range(4): a(f'v_cvt_pk_bf16_f32 v{16+d}, v{8+2*d}, v{9+2*d}')
                    for d in range(4): a(f'v_accvgpr_write_b32 a{16*jb+8*q+4*u+d}, v{16+d}')

def phaseA_main(a, dft):
    pitch = 1024 if dft else 3584
    last_dma = {}
    def issue(group, s):
        for t in group: ins = a(t)
        last_dma[s] = ins
    for s in (0, 1):
        for grp in dma_stage(s, pitch): issue(grp, s)
    phaseA_setup2(a, dft)
    a.wait_vm_for(last_dma[0])
    a('s_barrier')
    for t in frag_reads(0, dft): a(t)
    pend = [(2, g) for g in dma_stage(2, pitch)]
    for g in range(32):
        s, ks, p = g >> 2, g & 3, g & 1
        reads = frag_reads(g+1, dft) if g < 31 else []
        for mi in range(8):
            b, m = mi >> 1, mi & 1
            wf = vr(fWU(p) if m else fWG(p), 4); xf = vr(fX(p,b), 4)
            c = vr(acc(b,m),16)
            src = f'{xf}, {wf}' if dft else f'{wf}, {xf}'
            a(f'v_mfma_f32_32x32x16_bf16 {c}, {src}, {c if g else 0}')
            if mi == 0 and ks == 3 and s < 7:
                a.wait(lgkm=0)
                a.wait_vm_for(last_dma[s+1])
                a('s_barrier')
                if s+3 < 8: pend += [(s+3, gr) for gr in dma_stage(s+3, pitch)]
            if mi < 4:
                k = 3 if (dft and mi == 3) else 2
                for t in reads[:k]: a(t)
                reads = reads[k:]
            elif pend and (mi < 7 or g < 3):
                st, gr = pend.pop(0); issue(gr, st)
        sf = fS(p) if dft else fX(p,0)
        for d in range(4):
            a(f'v_dot2c_f32_bf16 v{vSX}, s{sONE}, v{sf+d}')
            a(f'v_dot2c_f32_bf16 v{vSQ}, v{sf+d}, v{sf+d}')
            if not dft:
                a(f'v_dot2c_f32_bf16 v{vCG}, s{sONE}, v{fWG(p)+d}')
                a(f'v_dot2c_f32_bf16 v{vCU}, s{sONE}, v{fWU(p)+d}')
    assert not pend

def stats_finish(a):
    a(f'v_mov_b32 v4, v{vSX}')
    a(f'v_mov_b32 v5, v{vSQ}')
    a(f'v_permlane32_swap_b32 v4, v{vSX}')
    a(f'v_permlane32_swap_b32 v5, v{vSQ}')
    a(f'v_add_f32 v4, v4, v{vSX}')
    a(f'v_add_f32 v5, v5, v{vSQ}')
    a(f'v_mul_f32 v8, {f2u(1/512):#x}, v4')
    a(f'v_mul_f32 v5, {f2u(1/512):#x}, v5')
    a(f'v_fma_f32 v5, -v8, v8, v5')
    a(f'v_max_f32 v5, 0, v5')
    a(f'v_add_f32 v5, {f2u(1e-5):#x}, v5')
    a(f'v_sqrt_f32 v9, v5')
    a(f'v_rsq_f32 v10, v5')

def glu_epilogue(a, stflags=''):
    stats_finish(a)
    a(f's_lshl_b32 s{sT}, s{sW}, 9')
    a(f's_add_u32 s{sT}, s{sT}, {LST}')
    a(f'v_lshl_add_u32 v6, v{vN}, 4, s{sT}')
    a(f'v_mul_f32 v10, {f2u(-LOG2E):#x}, v10')
    a(f'v_cvt_pk_bf16_f32 v12, -v8, -v8')
    a(f'v_lshlrev_b32 v4, 16, v12')
    a(f'v_sub_f32 v4, -v8, v4')
    a(f'v_cvt_pk_bf16_f32 v13, v4, 0')
    a(f'v_mov_b32 v14, v9')
    a(f'v_mov_b32 v15, v10')
    a(f'ds_write_b128 v6, v[12:15]')
    for (src, dst) in ((vCG,16),(vCU,18)):
        a(f'v_cvt_pk_bf16_f32 v{dst+1}, v{src}, 0')
        a(f'v_lshlrev_b32 v4, 16, v{dst+1}')
        a(f'v_sub_f32 v4, v{src}, v4')
        a(f'v_cvt_pk_bf16_f32 v{dst}, v{src}, v4')
    for b in (1,2,3): a(f'v_xor_b32 v{6+b}, {512*b}, v6')
    a(f's_lshl_b32 s{sT}, s{sI}, 2')
    a(f's_lshl_b32 s{sT+1}, s{sJ}, 2')
    a(f's_add_u32 s{sT+1}, s{sT+1}, s{sW}')
    a(f's_lshl_b32 s{sT+1}, s{sT+1}, 11')
    for b in range(4):
        a(f's_xor_b32 s{sT+2}, s{sW}, {b}')
        a(f's_add_u32 s{sT+2}, s{sT+2}, s{sT}')
        a(f's_mul_i32 s{sT+2}, s{sT+2}, {112*1024}')
        a(f's_add_u32 s{sT+4+b}, s{sT+2}, s{sT+1}')
    a(f'v_lshlrev_b32 v5, 4, v{vLANE}')
    a.wait(lgkm=0)
    a('s_barrier')
    ST = {0:12, 1:20, 2:24, 3:28}
    for b in (1,2,3): a(f'ds_read_b128 {vr(ST[b],4)}, v{6+b}')
    for b in range(4):
        for m in range(2):
            c = vr(acc(b,m),16)
            a(f'v_mfma_f32_32x32x8_bf16 {c}, {vr(16+2*m,2)}, {vr(ST[b],2)}, {c}')
    for b in range(4):
        st = vr(ST[b]+2, 2)
        G, U = acc(b,0), acc(b,1)
        hb = vFR+8*(b&1)
        for r in range(0,16,2): a(f'v_pk_mul_f32 {vr(G+r,2)}, {vr(G+r,2)}, {st} op_sel:[0,1] op_sel_hi:[1,1]')
        for r in range(16): a(f'v_exp_f32 v{G+r}, v{G+r}')
        for r in range(0,16,2): a(f'v_pk_fma_f32 {vr(G+r,2)}, {vr(G+r,2)}, {st}, {st} op_sel_hi:[1,0,0]')
        for r in range(16): a(f'v_rcp_f32 v{G+r}, v{G+r}')
        for r in range(0,16,2): a(f'v_pk_mul_f32 {vr(U+r,2)}, {vr(U+r,2)}, {vr(G+r,2)}')
        for u in range(2):
            for d in range(4): a(f'v_cvt_pk_bf16_f32 v{hb+4*u+d}, v{U+8*u+2*d}, v{U+8*u+2*d+1}')
            a(f'buffer_store_dwordx4 {vr(hb+4*u,4)}, v5, s[{sWS}:{sWS+3}], s{sT+4+b} offen offset:{1024*u} {stflags}')

def dft_epilogue(a, stflags=''):
    stats_finish(a)
    a(f's_lshl_b32 s{sT}, s{sW}, 7')
    a(f's_add_u32 s{sT}, s{sT}, {LST}')
    a(f'v_lshl_add_u32 v6, v{vN}, 2, s{sT}')
    a(f'ds_write_b32 v6, v10')
    a(f'v_lshlrev_b32 v7, 4, v{vHALF}')
    a(f'v_add_u32 v7, {LST}, v7')
    a(f's_lshl_b32 s{sT}, s{sI}, 12')
    a(f's_sub_u32 s{sT+1}, s{sJ}, 14')
    a(f's_lshl_b32 s{sT+1}, s{sT+1}, 11')
    a(f's_add_u32 s{sT}, s{sT}, s{sT+1}')
    a(f's_lshl_b32 s{sT+1}, s{sW}, 9')
    a(f's_add_u32 s{sT}, s{sT}, s{sT+1}')
    a(f'v_lshl_add_u32 v5, v{vN}, 4, s{sT}')
    a(f'v_lshl_add_u32 v5, v{vHALF}, 17, v5')
    a.wait(lgkm=0)
    a('s_barrier')
    RS = (12, 32)
    def rd(b):
        for rq in range(4): a(f'ds_read_b128 {vr(RS[b&1]+4*rq,4)}, v7 offset:{128*b+32*rq}')
    rd(0)
    Z = lambda b,m,u: 64+16*b+8*m+4*u
    for b in range(4):
        if b < 3: rd(b+1)
        for m in range(2):
            A = acc(b,m)
            for r in range(0,16,2): a(f'v_pk_mul_f32 {vr(A+r,2)}, {vr(A+r,2)}, {vr(RS[b&1]+r,2)}')
            for d in range(8): a(f'v_cvt_pk_bf16_f32 v{Z(b,m,0)+d}, v{A+2*d}, v{A+2*d+1}')
    D2 = lambda jb,z,m: 128+64*jb+32*z+16*m
    def stores(jb):
        out = []
        for rp in range(8):
            t = 12+4*(rp&3)
            g = []
            for z in range(2):
                for m in range(2): g.append(f'v_cvt_pk_bf16_f32 v{t+2*z+m}, v{D2(jb,z,m)+2*rp}, v{D2(jb,z,m)+2*rp+1}')
            g.append(f's_mov_b32 s{sT+2}, {G_OFF+(16*jb+4*(rp>>1)+(rp&1))*65536}')
            g.append(f'buffer_store_dwordx4 {vr(t,4)}, v5, s[{sWS}:{sWS+3}], s{sT+2} offen {stflags}')
            out.append(g)
        return out
    pend = []
    for jb in range(2):
        n = 0
        for q in range(2):
            for u in range(2):
                for z in range(2):
                    for m in range(2):
                        c = vr(D2(jb,z,m),16)
                        a(f'v_mfma_f32_32x32x16_bf16 {c}, {ar(16*jb+8*q+4*u,4)}, {vr(Z(2*z+q,m,u),4)}, {c if (q or u) else 0}')
                        n += 1
                        if pend and n >= 3:
                            for t in pend.pop(0): a(t)
        pend = stores(jb)
    for g in pend:
        for t in g: a(t)

def common_ids(a):
    a(f'v_and_b32 v{vLANE}, 63, v0')
    a(f'v_lshrrev_b32 v4, 6, v0')
    a(f'v_and_b32 v{vN}, 31, v0')
    a(f'v_readfirstlane_b32 s{sW}, v4')
    a(f'v_bfe_u32 v{vHALF}, v0, 5, 1')

def kernelA(a):
    a('s_cmp_ge_u32 s2, 256')
    a('s_cbranch_scc1 LA_end')
    load_args(a)
    code_prefetch(a, None, 32768, 62, 63)
    common_ids(a)
    a(f's_and_b32 s{sT}, s2, 1')
    a(f's_lshl_b32 s{sT}, s{sT}, 3')
    a(f's_bfe_u32 s{sI}, s2, {3|(3<<16)}')
    a(f's_add_u32 s{sI}, s{sI}, s{sT}')
    a(f's_bfe_u32 s{sT}, s2, {1|(2<<16)}')
    a(f's_lshl_b32 s{sT}, s{sT}, 2')
    a(f's_lshr_b32 s{sJ}, s2, 6')
    a(f's_add_u32 s{sJ}, s{sJ}, s{sT}')
    a(f's_cmp_ge_u32 s{sJ}, 14')
    a('s_cbranch_scc1 LA_dft')
    st = a.snapshot()
    phaseA_setup(a, False); phaseA_main(a, False); glu_epilogue(a)
    a('s_endpgm')
    a.restore(st)
    a.raw('.p2align 3')
    a.label('LA_dft')
    phaseA_setup(a, True); phaseA_main(a, True); dft_epilogue(a)
    a.label('LA_end')
    a('s_endpgm')

sR, sCB, sP = 45, 46, 47
sT1 = 70
def kernelB(a):
    a('s_cmp_ge_u32 s2, 256')
    a('s_cbranch_scc1 LB_end')
    load_args(a)
    common_ids(a)
    a(f's_and_b32 s{sR}, s2, 7')
    a(f's_lshl_b32 s{sR}, s{sR}, 2')
    a(f's_bfe_u32 s{sT}, s2, {3|(2<<16)}')
    a(f's_add_u32 s{sR}, s{sR}, s{sT}')
    a(f's_lshr_b32 s{sCB}, s2, 5')
    a(f's_lshr_b32 s{sT}, s{sR}, 1')
    a(f's_sub_u32 s{sT+1}, 32, s{sT}')
    a(f's_cmp_eq_u32 s{sT}, 0')
    a(f's_cselect_b32 s{sT+1}, 16, s{sT+1}')
    a(f's_bitcmp1_b32 s{sR}, 0')
    a(f's_cselect_b32 s{sP}, s{sT+1}, s{sT}')
    a(f's_mov_b32 s{sT1}, s{sP}')
    a(f's_sub_u32 s{sT1+1}, 64, s{sP}')
    a(f's_cmp_eq_u32 s{sP}, 0')
    a(f's_cselect_b32 s{sT1+1}, 32, s{sT1+1}')
    vD, vTR, vHA = 8, 12, 14
    a(f's_mul_i32 s{sT}, s{sW}, {448*1024}')
    a(f's_lshl_b32 s{sT+1}, s{sCB}, 7')
    a(f's_add_u32 s{sT}, s{sT}, s{sT+1}')
    a(f'v_lshrrev_b32 v4, 3, v{vLANE}')
    a(f'v_lshl_add_u32 v4, v4, 10, s{sT}')
    a(f'v_and_b32 v5, 7, v{vLANE}')
    a(f'v_bfe_u32 v6, v{vLANE}, 4, 1')
    a(f'v_lshlrev_b32 v6, 2, v6')
    a(f'v_xor_b32 v5, v5, v6')
    a(f'v_lshl_add_u32 v{vD}, v5, 4, v4')
    for q in (1,2,3): a(f'v_add_u32 v{vD+q}, {q*7168}, v{vD}')
    a(f's_mul_i32 s{sM0X}, s{sW}, 40960')
    a.wait(lgkm=0)
    srd(a, sWD, 72, 1792*1024)
    srd(a, sWS, 78, WS_BYTES)
    srd(a, sX, 4, 2048*1024)
    srd(a, sOUT, 74, 2048*1024)
    dm = {}
    def dma(d):
        q = d & 3
        if q == 0:
            a(f's_add_u32 m0, s{sM0X}, {(d%40)*1024}')
            a(f's_mov_b32 s{sKW}, {d*8192}')
        dm[d] = a(f'buffer_load_dwordx4 v{vD+q}, s[{sWD}:{sWD+3}], s{sKW} offen offset:{q*1024} lds')
    for d in range(40): dma(d)
    a(f'v_bfe_u32 v4, v{vLANE}, 2, 2')
    a(f'v_lshrrev_b32 v5, 1, v4')
    a(f'v_lshlrev_b32 v5, 6, v5')
    a(f'v_lshl_add_u32 v5, v4, 7, v5')
    a(f'v_lshl_add_u32 v5, v{vHALF}, 9, v5')
    a(f'v_bfe_u32 v4, v{vLANE}, 4, 1')
    a(f'v_lshl_add_u32 v5, v4, 5, v5')
    a(f'v_and_b32 v4, 3, v{vLANE}')
    a(f'v_lshl_add_u32 v5, v4, 3, v5')
    a(f'v_add_u32 v{vTR}, s{sM0X}, v5')
    a(f'v_xor_b32 v{vTR+1}, 64, v{vTR}')
    a(f'v_lshlrev_b32 v{vHA}, 4, v{vLANE}')
    a(f's_cmp_ge_u32 s{sCB}, 4')
    a(f's_cselect_b32 s{sT+8}, 1.0, -1.0')
    a(f's_lshl_b32 s{sT}, s{sW}, 3')
    a(f'v_lshl_add_u32 v4, v{vHALF}, 1, s{sT}')
    a(f'v_cvt_f32_u32 v4, v4')
    for tbi in range(2):
        a(f's_cmp_eq_u32 s{sP}, 0')
        if tbi == 0:
            a(f's_mov_b32 s{sT+9}, 1.0'); a(f's_cselect_b32 s{sT+10}, 0, -1.0'); a(f's_mov_b32 s{sT+11}, 0')
        else:
            a(f's_cselect_b32 s{sT+9}, 0, 1.0'); a(f's_cselect_b32 s{sT+10}, 0, 1.0'); a(f's_cselect_b32 s{sT+11}, 1.0, 0')
        a(f'v_lshl_add_u32 v5, v{vN}, 6, s{sT1+tbi}')
        a(f'v_cvt_f32_u32 v5, v5')
        a(f'v_mul_f32 v5, {f2u(1/2048):#x}, v5')
        for kp in range(2):
            for z in range(2):
                a(f'v_add_f32 v6, {f2u(float(4*kp+z)):#x}, v4')
                a(f'v_mul_f32 v6, v6, v5')
                a(f'v_cos_f32 v32, v6')
                a(f'v_sin_f32 v33, v6')
                a(f'v_mul_f32 v34, s{sT+9}, v32')
                a(f'v_mul_f32 v35, s{sT+11}, v32')
                a(f'v_fma_f32 v35, s{sT+10}, v33, v35')
                a(f'v_mul_f32 v36, s{sT+9}, v33')
                a(f'v_mul_f32 v36, s{sT+8}, v36')
                a(f'v_mul_f32 v37, s{sT+11}, v33')
                a(f'v_fma_f32 v37, -v32, s{sT+10}, v37')
                a(f'v_mul_f32 v37, s{sT+8}, v37')
                a(f'v_cvt_pk_bf16_f32 v{16+8*tbi+4*kp+2*z}, v34, v35')
                a(f'v_cvt_pk_bf16_f32 v{16+8*tbi+4*kp+2*z+1}, v36, v37')
    a(f's_lshl_b32 s{sT}, s{sP}, 16')
    a(f's_lshl_b32 s{sT+1}, s{sW}, 14')
    a(f's_add_u32 s{sT}, s{sT}, s{sT+1}')
    a(f's_add_u32 s{sT}, s{sT}, {G_OFF}')
    a(f'v_lshl_add_u32 v4, v{vHALF}, 12, s{sT}')
    a(f's_lshl_b32 s{sT+1}, s{sCB}, 6')
    a(f'v_mov_b32 v7, 0x7f000000')
    for cbk in range(2):
        a(f'v_add_u32 v5, s{sT+1}, v{vN}')
        a(f'v_add_u32 v5, {32*cbk-256}, v5')
        a(f'v_sub_u32 v6, 0, v5')
        a(f'v_max_i32 v5, v5, v6')
        a(f'v_cmp_gt_u32 vcc, 0x100, v5')
        a(f'v_lshl_add_u32 v5, v5, 4, v4')
        a(f'v_cndmask_b32 v{32+cbk}, v7, v5, vcc')
    a(f'v_lshrrev_b32 v4, 3, v0')
    a(f'v_lshlrev_b32 v4, 16, v4')
    a(f'v_and_b32 v5, 7, v0')
    a(f'v_lshl_add_u32 v4, v5, 4, v4')
    a(f's_lshl_b32 s{sT+1}, s{sCB}, 7')
    for it in range(2):
        a(f's_lshl_b32 s{sT}, s{sT1+it}, 10')
        a(f's_add_u32 s{sT}, s{sT}, s{sT+1}')
        a(f'v_add_u32 v{34+it}, s{sT}, v4')
    rd = {}
    for ks in range(28):
        a.wait_vm_for(dm[2*ks+1])
        for cbk in range(2):
            for u in range(2):
                rd[ks] = a(f'ds_read_b64_tr_b16 {ar(8*ks+4*cbk+2*u,2)}, v{vTR+cbk} offset:{((2*ks+u)%40)*1024}')
        if ks >= 2 and ks % 2 == 0 and 40+2*(ks-2) < 56:
            a.wait_lgkm_for(rd[ks-1])
            for d in range(40+2*(ks-2), 44+2*(ks-2)): dma(d)
    vXR, vH, NH, vAC = 36, 44, 37, 192
    for it in range(2): a(f'buffer_load_dwordx4 {vr(vXR+4*it,4)}, v{34+it}, s[{sX}:{sX+3}], 0 offen')
    a(f's_mov_b32 s{sT+2}, 8192')
    for kp in range(2):
        for cbk in range(2):
            a(f'buffer_load_dwordx4 {ar(224+8*kp+4*cbk,4)}, v{32+cbk}, s[{sWS}:{sWS+3}], {"s%d"%(sT+2) if kp else 0} offen')
    a(f's_mul_i32 s{sT}, s{sR}, {2*112*1024}')
    a(f's_mul_i32 s{sT+1}, s{sW}, {28*1024}')
    a(f's_add_u32 s{sKX}, s{sT}, s{sT+1}')
    seq = [(tbi, ks) for tbi in range(2) for ks in range(28)]
    def hload(n):
        tbi, ks = seq[n]
        if ks & 3 == 0: a(f's_add_u32 s{sKW}, s{sKX}, {tbi*112*1024+ks*1024}')
        a(f'buffer_load_dwordx4 {vr(vH+4*(n%NH),4)}, v{vHA}, s[{sWS}:{sWS+3}], s{sKW} offen offset:{(ks&3)*1024}')
    for n in range(NH): hload(n)
    AC = lambda tbi,cbk: vAC+32*tbi+16*cbk
    for kp in range(2):
        for tbi in range(2):
            for cbk in range(2):
                c = vr(AC(tbi,cbk),16)
                a(f'v_mfma_f32_32x32x16_bf16 {c}, {ar(224+8*kp+4*cbk,4)}, {vr(16+8*tbi+4*kp,4)}, {c if kp else 0}')
    a(f'v_and_b32 v4, 7, v{vN}')
    a(f'v_xor_b32 v4, v4, v{vHALF}')
    a(f'v_lshlrev_b32 v4, 4, v4')
    a(f'v_lshl_add_u32 v4, v{vN}, 8, v4')
    a(f'v_add_u32 v4, s{sM0X}, v4')
    a(f'v_lshrrev_b32 v5, 3, v0')
    a(f'v_and_b32 v6, 7, v0')
    a(f'v_lshlrev_b32 v6, 1, v6')
    a(f'v_and_b32 v7, 7, v5')
    a(f'v_xor_b32 v6, v6, v7')
    a(f'v_lshlrev_b32 v6, 4, v6')
    a(f'v_lshl_add_u32 v5, v5, 8, v6')
    for rq in range(4): a(f'v_xor_b32 v{8+rq}, {32*rq}, v4')
    for n in range(56):
        tbi, ks = seq[n]
        for cbk in range(2):
            c = vr(AC(tbi,cbk),16)
            a(f'v_mfma_f32_32x32x16_bf16 {c}, {ar(8*ks+4*cbk,4)}, {vr(vH+4*(n%NH),4)}, {c}')
        if n+NH < 56: hload(n+NH)
        if 30 <= n < 38:
            k = n-30; cbk, rq = k >> 2, k & 3
            a(f'ds_write_b128 v{8+rq}, {vr(AC(0,cbk)+4*rq,4)} offset:{128*cbk}')
    a(f'v_xor_b32 v6, 16, v5')
    a(f'v_add_u32 v7, {2*40960}, v5')
    a(f'v_add_u32 v4, {2*40960}, v6')
    for cbk in range(2):
        for rq in range(4): a(f'ds_write_b128 v{8+rq}, {vr(AC(1,cbk)+4*rq,4)} offset:{8192+128*cbk}')
    a.wait(lgkm=0)
    a('s_barrier')
    RA = {(0,0):5,(0,1):6,(1,0):7,(1,1):4}
    P = lambda it,wp,z: 64+32*it+8*wp+4*z
    for it in range(2):
        for wp in range(4):
            for z in range(2):
                a(f'ds_read_b128 {vr(P(it,wp,z),4)}, v{RA[(wp>>1,z)]} offset:{(wp&1)*40960+8192*it}')
    for it in range(2):
        for d in range(4):
            a(f'v_lshlrev_b32 v{128+2*d}, 16, v{vXR+4*it+d}')
            a(f'v_and_b32 v{129+2*d}, 0xffff0000, v{vXR+4*it+d}')
        for wp in range(4):
            for d in range(4): a(f'v_pk_add_f32 {vr(128+2*d,2)}, {vr(128+2*d,2)}, {vr(P(it,wp,0)+2*d,2)}')
        for d in range(4): a(f'v_cvt_pk_bf16_f32 v{136+4*it+d}, v{128+2*d}, v{129+2*d}')
        a(f'buffer_store_dwordx4 {vr(136+4*it,4)}, v{34+it}, s[{sOUT}:{sOUT+3}], 0 offen')
    a.label('LB_end')
    a('s_endpgm')

def kd(name, vg=512, acc=256):
    return f'''.amdhsa_kernel {name}
  .amdhsa_next_free_vgpr {vg}
  .amdhsa_next_free_sgpr 96
  .amdhsa_accum_offset {acc}
  .amdhsa_group_segment_fixed_size 0
  .amdhsa_kernarg_size 96
  .amdhsa_user_sgpr_count 2
  .amdhsa_user_sgpr_kernarg_segment_ptr 1
  .amdhsa_system_sgpr_workgroup_id_x 1
.end_amdhsa_kernel
'''
def build(extra_launch='', extra_code='', extra_kd='', pre=True):
    out = []
    if pre: out.append(extra_launch) if extra_launch else None
    out.append('; @launch kernel=pa_kernel grid=(256,1,1) block=(256,1,1) lds=163840')
    out.append('; @launch kernel=pb_kernel grid=(256,1,1) block=(256,1,1) lds=163840')
    if not pre: out.append(extra_launch) if extra_launch else None
    out.append('.amdgcn_target "amdgcn-amd-amdhsa--gfx950"')
    out.append('.text')
    for nm, fn in (('pa_kernel', kernelA), ('pb_kernel', kernelB)):
        a = Asm(); fn(a)
        out += [f'.globl {nm}', '.p2align 8', f'.type {nm},@function', f'{nm}:', a.text()]
        print(nm, 'lines', len(a.lines), 'nops', a.nnop, file=sys.stderr)
    out.append(extra_code)
    out.append('.p2align 8')
    out.append('.fill 2048, 4, 0xbf800000')
    out.append('.section .rodata,"a"')
    out.append('.p2align 6')
    out.append(kd('pa_kernel')); out.append('.p2align 6'); out.append(kd('pb_kernel'))
    out.append(extra_kd)
    return '\n'.join(out)
if __name__ == '__main__':
    open(sys.argv[1], 'w').write(build())
```

```python
import sys, struct
from asmlib import *

NAME = 'parallel_sum__spectral_fnet__glu_gated_glu__prompt'
G_OFF = 0x800000
FL_OFF = 0xA00000
WS_BYTES = 0xA01000
STAMP_OFF = 0xC00000
OOB = 0x7f000000
def f2u(x): return struct.unpack('<I', struct.pack('<f', x))[0]
LOG2E = 1.4426950408889634
MF = 'v_mfma_f32_16x16x32_bf16'

class Cfg:
    stamps = 0
    rot = 1
    touch = 1
    hrot = 1
    epi_dma = 1
    pre_ack = 8
    look = 8
    nostats = 0
C = Cfg()

sX, sG, sU, sWS, sWD, sOUT, sDBG = 20, 24, 28, 32, 36, 40, 16
sW, sI, sJ, sP = 44, 45, 46, 47
sT = 48
sM0, sKX, sKW, sPITCH = 64, 65, 66, 67
sKCX, sKCW = 68, 69
sT1 = 70
sR, sCB, sMSK = 6, 7, 3
sM1, sM2, sM3, sMV = 88, 90, 92, 94
vLANE, vN, vG = 1, 2, 3
vXD, vWD, vD, vXA, vOA, vWA, vTR, vDBG, vSTAMP = 16, 20, 22, 26, 28, 30, 34, 46, 47
vXR, vWF, vOWN, vCS = 48, 64, 96, 104
vACC = 128
aR, aGF = 224, 224
UN = 16384
LST = 1*UN
def acc(tf, wf): return vACC+16*tf+4*wf
def fW(p, wf): return vWF+16*p+4*wf
def fX(k): return vXR+4*(k & 3)

class St: n = 0
def stamp(a):
    if not C.stamps: return
    a(f's_memtime s[82:83]')
    a(f's_memrealtime s[84:85]')
    a.wait(lgkm=0)
    a(f'v_writelane_b32 v{vSTAMP}, s82, {St.n}')
    a(f'v_writelane_b32 v{vSTAMP}, s84, {32+St.n}')
    St.n += 1
def stamp_flush(a):
    if not C.stamps: return
    a.wait(vm=0)
    stamp(a)
    a(f's_mov_b32 s{sWS+2}, 0x1000000')
    a(f's_lshl_b32 s82, s2, 2')
    a(f's_add_u32 s82, s82, s{sW}')
    a(f's_lshl_b32 s82, s82, 8')
    a(f's_add_u32 s82, s82, {STAMP_OFF}')
    a(f'v_lshlrev_b32 v4, 2, v{vLANE}')
    a(f'buffer_store_dword v{vSTAMP}, v4, s[{sWS}:{sWS+3}], s82 offen')

def srd(a, d, ptr, nbytes, bias=0):
    if bias:
        a(f's_sub_u32 s{d}, s{ptr}, {bias}')
        a(f's_subb_u32 s{d+1}, s{ptr+1}, 0')
    else:
        a(f's_mov_b64 s[{d}:{d+1}], s[{ptr}:{ptr+1}]')
    a(f's_mov_b32 s{d+2}, {nbytes+bias}')
    a(f's_mov_b32 s{d+3}, 0x20000')

def dma_X(s):
    out = []
    for q in range(4):
        pre = []
        if q == 0: pre = [f's_add_u32 m0, s{sM0}, {(s % 4)*UN}', f's_lshl_b32 s{sKX}, s{sKCX}, 7']
        if q == 1: pre = [f's_add_u32 s{sKCX}, s{sKCX}, 1', f's_and_b32 s{sKCX}, s{sKCX}, 7']
        out.append((('X', s), pre, f'buffer_load_dwordx4 v{vXD+q}, s[{sX}:{sX+3}], s{sKX} offen offset:{q*1024} lds'))
    return out
def dma_W(n):
    out = []
    for q in range(4):
        pre = []
        if q == 0: pre = [f's_add_u32 m0, s{sM0}, {(4+n % 6)*UN}', f's_mul_i32 s{sKW}, s{sKCW}, s{sPITCH}']
        if q == 1: pre = [f's_add_u32 s{sKCW}, s{sKCW}, 1', f's_and_b32 s{sKCW}, s{sKCW}, 15']
        r = sU if q >> 1 else sG
        out.append((('W', n), pre, f'buffer_load_dwordx4 v{vWD+(q&1)}, s[{r}:{r+3}], s{sKW} offen offset:{q*1024} lds'))
    return out
WD_UNITS = [0, 8, 9, 4, 5, 2, 6, 7, 3, 0, 8, 9, 4, 5]
def dma_D(u):
    out = []
    for q in range(4):
        pre = []
        if q == 0: pre = [f's_add_u32 m0, s{sM0}, {WD_UNITS[u]*UN}', f's_mov_b32 s{sKW}, {u*32768}']
        out.append((('D', u), pre, f'buffer_load_dwordx4 v{vD+q}, s[{sWD}:{sWD+3}], s{sKW} offen offset:{q*1024} lds'))
    return out
def wd_reads(u):
    un = WD_UNITS[u]
    return [f'ds_read_b64_tr_b16 {ar(16*u+4*cbk+2*u2,2)}, v{vTR+4*(un>>2)+cbk} offset:{(un&3)*UN+2048*u2}' for cbk in range(4) for u2 in range(2)]

class Q:
    def __init__(self, a): self.a = a; self.pend = []; self.last = {}; self.predone = False; self.nD = 0; self.nR = 0; self.rd = {}
    def pre(self):
        if self.pend and not self.predone:
            tag = self.pend[0][0]
            if tag[0] == 'D' and tag[1] >= 9 and self.pend[0][1]:
                assert self.nR > tag[1]-9
                self.a.wait_lgkm_for(self.rd[tag[1]-9])
            for t in self.pend[0][1]: self.a(t)
            self.predone = True
    def issue(self, n=1):
        for _ in range(n):
            if not self.pend: return
            self.pre()
            tag, _, t = self.pend.pop(0)
            self.last[tag] = self.a(t); self.predone = False
    def addD(self, upto):
        while self.nD < upto: self.pend += dma_D(self.nD); self.nD += 1
    def need(self, tag):
        assert not [1 for t in self.pend if t[0] == tag], ('not issued', tag)
        self.a.wait_vm_for(self.last[tag])
    def readD(self):
        u = self.nR
        self.need(('D', u))
        for t in wd_reads(u): ins = self.a(t)
        self.rd[u] = ins; self.nR += 1

def x_read(k):
    n, tf = k >> 3, k & 7
    return f'ds_read_b128 {vr(fX(k),4)}, v{vXA+(n&1)} offset:{((n>>1) % 4)*UN+tf*2048}'
def own_read(n, o):
    return f'ds_read_b128 {vr(vOWN+4*o,4)}, v{vOA+(n&1)} offset:{((n>>1) % 4)*UN+o*2048}'
def w_reads(n):
    un = n % 6
    return [f'ds_read_b64_tr_b16 {vr(fW(n&1,wf)+2*u,2)}, v{vWA+2*(un>>2)+(wf&1)} offset:{(un&3)*UN+(wf>>1)*2048+u*1024}' for wf in range(4) for u in range(2)]

def statmap(dft):
    if dft: return dict(ones=vr(120,4), sx=lambda o: ('v',vCS+4*o), sq=lambda o: vCS+8+4*o)
    return dict(ones=ar(232,4), sx=lambda o: ('a',224+4*o), sq=lambda o: 120+4*o)

def phaseA_setup(a, dft):
    pitch = 1024 if dft else 3584
    a(f's_sub_u32 s{sT+1}, 32, s{sI}')
    a(f's_cmp_eq_u32 s{sI}, 0')
    a(f's_cselect_b32 s{sT+1}, 16, s{sT+1}')
    a(f's_bitcmp1_b32 s{sW}, 1')
    a(f's_cselect_b32 s{sT}, s{sT+1}, s{sI}')
    if dft:
        a(f's_add_u32 s{sT+1}, s{sT}, 32')
        a(f's_sub_u32 s{sT+4}, s{sJ}, 12')
        a(f's_lshl_b32 s{sT+4}, s{sT+4}, 8')
    else:
        a(f's_sub_u32 s{sT+1}, 64, s{sT}')
        a(f's_cmp_eq_u32 s{sT}, 0')
        a(f's_cselect_b32 s{sT+1}, 32, s{sT+1}')
        a(f's_lshl_b32 s{sT+4}, s{sJ}, 8')
    a(f's_bitcmp1_b32 s{sW}, 0')
    a(f's_cselect_b32 s{sT}, s{sT+1}, s{sT}')
    a(f's_cselect_b32 s{sT+5}, 8, 0')
    a(f's_lshl_b32 s{sT}, s{sT}, 10')
    a(f'v_lshrrev_b32 v4, 3, v{vLANE}')
    a(f'v_lshl_add_u32 v4, v4, 16, s{sT}')
    a(f'v_and_b32 v6, 7, v{vLANE}')
    a(f'v_xor_b32 v6, v6, v{vG}')
    a(f'v_lshl_add_u32 v{vXD}, v6, 4, v4')
    a(f'v_xor_b32 v7, 64, v{vXD}')
    a(f'v_add_u32 v{vXD+1}, {524288-1024}, v7')
    a(f'v_add_u32 v{vXD+2}, {2*(524288-1024)}, v{vXD}')
    a(f'v_add_u32 v{vXD+3}, {3*(524288-1024)}, v7')
    a(f's_mul_i32 s{sT+1}, s{sW}, {8*pitch}')
    a(f's_add_u32 s{sT+1}, s{sT+1}, s{sT+4}')
    a(f'v_mul_u32_u24 v4, {pitch}, v{vG}')
    a(f'v_add_u32 v4, s{sT+1}, v4')
    a(f'v_lshl_add_u32 v7, v{vG}, 1, s{sT+5}')
    a(f'v_xor_b32 v6, v{vN}, v7')
    a(f'v_lshl_add_u32 v{vWD}, v6, 4, v4')
    a(f'v_add_u32 v{vWD+1}, {4*pitch-1024}, v{vWD}')
    a(f's_lshl_b32 s{sM0}, s{sW}, 12')
    a(f's_mov_b32 s{sPITCH}, {32*pitch}')
    a(f's_lshl_b32 s{sKCW}, s{sKCX}, 1')
    a.wait(lgkm=0)
    srd(a, sX, 4, 2048*1024)

def phaseA_setup1b(a, dft):
    if dft:
        srd(a, sG, 8, 512*1024); srd(a, sU, 10, 512*1024, 2048)
    else:
        srd(a, sG, 12, 512*3584); srd(a, sU, 14, 512*3584, 2048)

def phaseA_setup2(a, dft):
    srd(a, sWS, 78, WS_BYTES)
    a(f's_cmp_eq_u32 s2, 0')
    a(f's_cselect_b32 s{sT+1}, 32, 0')
    a(f's_cselect_b32 s{sT+2}, 1, 0')
    a(f'v_mov_b32 v10, {OOB}')
    a(f'v_lshlrev_b32 v8, 7, v0')
    a(f'v_cmp_gt_u32 vcc, s{sT+1}, v0')
    a(f'v_mov_b32 v11, 0')
    a(f'v_mov_b32 v12, 1')
    a(f'v_cndmask_b32 v8, v10, v8, vcc')
    a(f'v_cmp_gt_u32 vcc, s{sT+2}, v0')
    a(f's_mov_b32 s{sT+3}, {FL_OFF}')
    z = a(f'buffer_store_dword v11, v8, s[{sWS}:{sWS+3}], s{sT+3} offen sc1')
    a(f'v_cndmask_b32 v9, v10, v11, vcc')
    srd(a, sWD, 72, 1792*1024)
    srd(a, sOUT, 74, 2048*1024)
    srd(a, sDBG, 76, 256)
    a(f'v_lshrrev_b32 v4, 1, v{vN}')
    a(f'v_xor_b32 v4, v4, v{vG}')
    a(f'v_lshlrev_b32 v4, 4, v4')
    a(f'v_lshl_add_u32 v{vXA}, v{vN}, 7, v4')
    a(f'v_xor_b32 v{vXA+1}, 64, v{vXA}')
    a(f'v_add_u32 v{vOA}, s{sM0}, v{vXA}')
    a(f'v_add_u32 v{vOA+1}, s{sM0}, v{vXA+1}')
    a(f'v_bfe_u32 v4, v{vLANE}, 2, 2')
    a(f'v_and_b32 v7, 3, v{vLANE}')
    a(f'v_lshlrev_b32 v7, 3, v7')
    a(f'v_and_b32 v5, 1, v{vG}')
    a(f'v_lshl_add_u32 v5, v5, 2, v4')
    a(f's_lshl_b32 s{sT}, s{sW}, 1')
    a(f'v_xor_b32 v5, s{sT}, v5')
    a(f'v_lshl_add_u32 v5, v5, 5, v7')
    a(f'v_lshl_add_u32 v5, v4, 8, v5')
    a(f'v_lshl_add_u32 v5, v{vG}, 12, v5')
    a(f'v_add_u32 v{vWA}, {4*UN}, v5')
    a(f'v_xor_b32 v{vWA+1}, 32, v{vWA}')
    a(f'v_add_u32 v{vWA+2}, {4*UN}, v{vWA}')
    a(f'v_add_u32 v{vWA+3}, {4*UN}, v{vWA+1}')
    a(f'v_bfe_u32 v5, v{vLANE}, 3, 2')
    a(f'v_lshl_add_u32 v5, v5, 5, v7')
    a(f'v_lshrrev_b32 v6, 2, v{vLANE}')
    a(f'v_lshl_add_u32 v5, v6, 7, v5')
    a(f'v_add_u32 v{vTR}, s{sM0}, v5')
    for c in (1,2,3): a(f'v_xor_b32 v{vTR+c}, {32*c}, v{vTR}')
    for wnd in (1,2):
        for c in range(4): a(f'v_add_u32 v{vTR+4*wnd+c}, {wnd*4*UN}, v{vTR+c}')
    a(f's_and_b32 s{sR}, s2, 7')
    a(f's_lshl_b32 s{sR}, s{sR}, 2')
    a(f's_bfe_u32 s{sT}, s2, {3|(2<<16)}')
    a(f's_add_u32 s{sR}, s{sR}, s{sT}')
    a(f's_lshr_b32 s{sCB}, s2, 5')
    a(f's_mul_i32 s{sT}, s{sW}, {448*1024}')
    a(f's_lshl_b32 s{sT+1}, s{sCB}, 7')
    a(f's_add_u32 s{sT}, s{sT}, s{sT+1}')
    a(f'v_lshrrev_b32 v4, 3, v{vLANE}')
    a(f'v_lshl_add_u32 v4, v4, 10, s{sT}')
    a(f'v_and_b32 v5, 7, v{vLANE}')
    a(f'v_lshlrev_b32 v6, 1, v{vG}')
    a(f'v_xor_b32 v5, v5, v6')
    a(f'v_lshl_add_u32 v{vD}, v5, 4, v4')
    for q in (1,2,3): a(f'v_add_u32 v{vD+q}, {q*7168}, v{vD}')
    a(f's_mov_b32 s{sMSK}, 0xffff0000')
    a(f's_lshl_b32 s{sT}, s2, 2')
    a(f's_add_u32 s{sT}, s{sT}, s{sW}')
    a(f's_mul_i32 s{sT}, s{sT}, {14*128}')
    a(f'v_min_u32 v13, 13, v{vLANE}')
    a(f'v_lshl_add_u32 v13, v13, 7, s{sT}')
    a(f'v_and_b32 v4, 3, v{vLANE}')
    a(f'v_cmp_eq_u32 s[{sM1}:{sM1+1}], 1, v4')
    a(f'v_cmp_eq_u32 s[{sM2}:{sM2+1}], 2, v4')
    a(f'v_cmp_eq_u32 s[{sM3}:{sM3+1}], 3, v4')
    a(f'v_lshrrev_b32 v4, 2, v{vN}')
    a(f'v_cmp_eq_u32 s[{sMV}:{sMV+1}], v4, v{vG}')
    a(f'v_mov_b32 v4, 0x3f803f80')
    for d in range(4):
        a(f'v_mov_b32 v{120+d}, v4' if dft else f'v_accvgpr_write_b32 a{232+d}, v4')
    return z

def dft_R_ops():
    r = []; a = r.append
    T = vACC
    for jb in range(4):
        a(f'v_lshrrev_b32 v14, 1, v{vN}')
        a(f'v_add_u32 v14, {8*jb}, v14')
        a(f'v_and_b32 v15, 1, v{vN}')
        if jb == 0:
            a(f'v_cmp_eq_u32 vcc, 1, v{vN}')
            a(f'v_mov_b32 v4, 32')
            a(f'v_cvt_f32_u32 v5, v{vG}')
            a(f'v_cndmask_b32 v14, v14, v4, vcc')
            a(f'v_cndmask_b32 v15, v15, v11, vcc')
            a(f'v_mul_f32 v5, {f2u(8.0):#x}, v5')
        a(f'v_cvt_f32_u32 v14, v14')
        a(f'v_cvt_f32_u32 v15, v15')
        a(f'v_mul_f32 v14, {f2u(1/64):#x}, v14')
        a(f'v_mul_f32 v15, {f2u(-0.25):#x}, v15')
        a(f'v_fma_f32 v15, v5, v14, v15')
        for q in range(2):
            for e in range(8):
                s1 = 2*(16*(e>>2)+(e&3))+q
                a(f'v_fmamk_f32 v{T+e}, v14, {f2u(float(s1)):#x}, v15')
            for e in range(8): a(f'v_cos_f32 v{T+e}, v{T+e}')
            for d in range(4): a(f'v_cvt_pk_bf16_f32 v{T+8+d}, v{T+2*d}, v{T+1+2*d}')
            for d in range(4): a(f'v_accvgpr_write_b32 a{aR+8*jb+4*q+d}, v{T+8+d}')
    return r

def stats_finish_ops(dft):
    sm = statmap(dft); r = []; a = r.append
    a(f's_lshl_b32 s{sT}, s{sW}, {7 if dft else 9}')
    a(f's_add_u32 s{sT}, s{sT}, {LST}')
    a(f'v_lshl_add_u32 v14, v{vN}, {2 if dft else 4}, s{sT}')
    a(f'v_mov_b32 v15, {LST+4096}')
    a(f'v_cndmask_b32 v14, v15, v14, s[{sMV}:{sMV+1}]')
    for o in range(2):
        f, sx = sm['sx'](o); sq = sm['sq'](o); R = 4+4*o
        if f == 'a': a(f'v_accvgpr_read_b32 v{R}, a{sx}'); a(f'v_mul_f32 v{R}, {f2u(-1/512):#x}, v{R}')
        else: a(f'v_mul_f32 v{R}, {f2u(-1/512):#x}, v{sx}')
        a(f'v_cndmask_b32 v{sq}, v{sq}, v{sq+1}, s[{sM1}:{sM1+1}]')
        a(f'v_cndmask_b32 v{sq}, v{sq}, v{sq+2}, s[{sM2}:{sM2+1}]')
        a(f'v_cndmask_b32 v{sq}, v{sq}, v{sq+3}, s[{sM3}:{sM3+1}]')
        a(f'v_mul_f32 v{sq}, {f2u(1/512):#x}, v{sq}')
        a(f'v_fma_f32 v{sq}, -v{R}, v{R}, v{sq}')
        a(f'v_max_f32 v{sq}, 0, v{sq}')
        a(f'v_add_f32 v{sq}, {f2u(1e-5):#x}, v{sq}')
        a(f'v_rsq_f32 v{R+3}, v{sq}')
        if dft:
            a(f's_nop 0')
            a(f'ds_write_b32 v14, v{R+3} offset:{64*o}')
        else:
            a(f'v_sqrt_f32 v{R+1}, v{sq}')
            a(f'v_mul_f32 v{R+2}, {f2u(-LOG2E):#x}, v{R+3}')
            a(f'ds_write_b128 v14, {vr(R,4)} offset:{256*o}')
    if dft: a(f'v_lshlrev_b32 v15, 4, v{vG}')
    else: a(f'v_lshlrev_b32 v15, 4, v{vN}')
    return r
vREC = vWF
def rec(tf): return (vWF+4*tf) if tf < 4 else (vWF+4*tf)
def rec_read(tf, dft):
    return f'ds_read_b128 {vr(rec(tf),4)}, v15 offset:{LST+(64 if dft else 256)*tf}'

def phaseA_main(a, dft, q):
    sm = statmap(dft)
    q.pend = dma_X(0); q.issue(4)
    phaseA_setup1b(a, dft)
    q.pend = dma_W(0) + dma_W(1); q.issue(6)
    stamp(a)
    z = phaseA_setup2(a, dft)
    if dft:
        for t in dft_R_ops(): a(t)
    q.pend += dma_X(1) + dma_W(2) + dma_W(3)
    if C.touch: q.pend.append((('T',0), [], f'buffer_load_dword v14, v13, s[{sWD}:{sWD+3}], 0 offen'))
    q.pend += dma_X(2) + dma_W(4) + dma_W(5)
    q.issue(4)
    stamp(a)
    q.need(('W',0))
    a('s_barrier')
    stamp(a)
    wr = w_reads(0)
    a(wr[0]); a(wr[1]); a(x_read(0))
    for t in wr[2:]: a(t)
    a(x_read(1)); a(x_read(2)); a(own_read(0,0)); a(own_read(0,1))
    q.issue(2)
    for n in range(16):
        s, p = n >> 1, n & 1
        wr = w_reads(n+1) if n < 15 else []
        ownr = [own_read(n+1, o) for o in range(2)] if n < 15 else []
        fin = stats_finish_ops(dft) if n == 15 else []
        bar_tf = {0: 2}.get(n, 0 if p else None)
        sts = []
        for o in range(2):
            f, sx = sm['sx'](o); c = vr(sx,4,f); sts.append(f'{MF} {c}, {sm["ones"]}, {vr(vOWN+4*o,4)}, {c if n else 0}')
            c = vr(sm['sq'](o),4); sts.append(f'{MF} {c}, {vr(vOWN+4*o,4)}, {vr(vOWN+4*o,4)}, {c if n else 0}')
        if not dft:
            for wf in range(4):
                c = vr(vCS+4*wf,4); sts.append(f'{MF} {c}, {vr(fW(p,wf),4)}, {sm["ones"]}, {c if n else 0}')
        if C.nostats and 0 < n < 15: sts = []
        def fill(k):
            for _ in range(k):
                if fin: a(fin.pop(0))
        for tf in range(8):
            k = 8*n+tf
            can_w = bar_tf is None or tf > bar_tf
            for wf in range(4):
                c = vr(acc(tf,wf),4); wfr = vr(fW(p,wf),4); xf = vr(fX(k),4)
                src = f'{xf}, {wfr}' if dft else f'{wfr}, {xf}'
                a(f'{MF} {c}, {src}, {c if n else 0}')
                if wf == 0:
                    if k+3 < 128: a(x_read(k+3))
                    if can_w and wr: a(wr.pop(0))
                    elif tf >= 2: fill(1)
                elif wf == 1:
                    if q.pend and q.pend[0][1]: q.pre()
                    elif can_w and wr: a(wr.pop(0))
                    elif tf >= 5 and ownr: a(ownr.pop(0))
                    elif tf >= 2: fill(2)
                elif wf == 2:
                    if q.pend: q.issue(1)
                    elif tf >= 2: fill(2)
                else:
                    if tf == bar_tf and n < 15:
                        if n == 0:
                            q.need(('W',1)); a.wait_vm_for(z)
                            a('s_barrier')
                            a(f'buffer_store_dword v12, v9, s[{sDBG}:{sDBG+3}], 0 offen sc1')
                        else:
                            while [1 for t in q.pend if t[0] in (('X',s+1),('W',n+1),('W',n+2))]: q.issue(1)
                            q.need(('X',s+1)); q.need(('W',n+1)); q.need(('W',n+2))
                            a('s_barrier')
                            if s in (0,1,3,5,6): stamp(a)
                            if s+3 < 8: q.pend += dma_X(s+3) + dma_W(n+5) + dma_W(n+6)
                            if s == 4: q.pend.append((('F',0), [], f'buffer_load_dword v{vDBG}, v11, s[{sDBG}:{sDBG+3}], 0 offen sc1'))
                            if s == 5: q.addD(3)
                            if s == 6: q.addD(5)
                    elif can_w and wr: a(wr.pop(0))
                    elif tf >= 5 and ownr: a(ownr.pop(0))
                    elif tf >= 2: fill(1)
                    if tf < 2 and sts:
                        for t in sts[:4]:
                            a(t)
                            if tf == 1: fill(2)
                        sts = sts[4:]
            if n == 15 and tf == 6:
                fill(99)
                a.wait(lgkm=0)
                a('s_barrier')
                for t4 in range(4): a(rec_read(t4, dft))
                q.addD(9)
        assert not wr and not ownr and not sts, (n, wr, ownr, sts)
    for t4 in range(4, 8): a(rec_read(t4, dft))

def glu_epilogue(a, q):
    a(f's_lshl_b32 s{sT}, s{sI}, 3')
    a(f's_mul_i32 s{sT}, s{sT}, {56*1024}')
    a(f's_lshl_b32 s{sT+1}, s{sJ}, 2')
    a(f's_add_u32 s{sT+1}, s{sT+1}, s{sW}')
    a(f's_lshl_b32 s{sT+1}, s{sT+1}, 10')
    a(f's_add_u32 s{sT+4}, s{sT}, s{sT+1}')
    a(f'v_lshlrev_b32 v5, 4, v{vLANE}')
    for tf in range(8):
        R = rec(tf); G = acc(tf,0); U = acc(tf,2); hb = vXR+4*(tf&3)
        ms = vr(R,2); ar_ = vr(R+2,2)
        for r in range(0,8,2): a(f'v_pk_fma_f32 {vr(G+r,2)}, {vr(vCS+r,2)}, {ms}, {vr(G+r,2)} op_sel_hi:[1,0,1]')
        for r in range(0,8,2): a(f'v_pk_mul_f32 {vr(G+r,2)}, {vr(G+r,2)}, {ar_} op_sel_hi:[1,0]')
        for r in range(8): a(f'v_exp_f32 v{G+r}, v{G+r}')
        for r in range(0,8,2): a(f'v_pk_fma_f32 {vr(U+r,2)}, {vr(vCS+8+r,2)}, {ms}, {vr(U+r,2)} op_sel_hi:[1,0,1]')
        for r in range(0,8,2): a(f'v_pk_fma_f32 {vr(G+r,2)}, {vr(G+r,2)}, {ms}, {ms} op_sel:[0,1,1] op_sel_hi:[1,1,1]')
        q.issue(C.epi_dma)
        for r in range(8): a(f'v_rcp_f32 v{G+r}, v{G+r}')
        if tf: a(f's_add_u32 s{sT+4}, s{sT+4}, {56*1024}')
        for r in range(0,8,2): a(f'v_pk_mul_f32 {vr(U+r,2)}, {vr(U+r,2)}, {vr(G+r,2)}')
        for d in range(4): a(f'v_cvt_pk_bf16_f32 v{hb+d}, v{U+2*d}, v{U+2*d+1}')
        last = a(f'buffer_store_dwordx4 {vr(hb,4)}, v5, s[{sWS}:{sWS+3}], s{sT+4} offen sc1')
    a(f's_lshl_b32 s{sT+12}, s{sI}, 7')
    a(f's_add_u32 s{sT+12}, s{sT+12}, {FL_OFF}')
    a(f'v_cmp_eq_u32 vcc, 0, v0')
    a(f'v_mov_b32 v10, {OOB}')
    a(f'v_mov_b32 v11, 0')
    a(f'v_cndmask_b32 v16, v10, v11, vcc')
    return last

def dft_epilogue(a, q):
    a(f's_lshl_b32 s{sT}, s{sI}, 12')
    a(f's_sub_u32 s{sT+1}, s{sJ}, 14')
    a(f's_lshl_b32 s{sT+1}, s{sT+1}, 11')
    a(f's_add_u32 s{sT}, s{sT}, s{sT+1}')
    a(f's_lshl_b32 s{sT+1}, s{sW}, 9')
    a(f's_add_u32 s{sT}, s{sT}, s{sT+1}')
    a(f'v_lshl_add_u32 v5, v{vN}, 4, s{sT}')
    a(f'v_lshl_add_u32 v5, v{vG}, 17, v5')
    ZB = [96, 112, 48, 64]
    Z = lambda b, wf: ZB[b]+4*wf
    for tf in range(8):
        for wf in range(4):
            A = acc(tf,wf)
            for r in (0,2): a(f'v_pk_mul_f32 {vr(A+r,2)}, {vr(A+r,2)}, {vr(rec(tf)+r,2)}')
        for wf in range(4):
            A = acc(tf,wf)
            for d in range(2): a(f'v_cvt_pk_bf16_f32 v{Z(tf>>1,wf)+2*(tf&1)+d}, v{A+2*d}, v{A+2*d+1}')
        q.issue(C.epi_dma)
    D2 = lambda jb,z,wf: vACC+32*jb+16*z+4*wf
    def stores(jb):
        out = []
        for rp in range(2):
            for fb in range(2):
                t = 80+4*(2*rp+fb)
                for z in range(2):
                    for m in range(2): out.append(f'v_cvt_pk_bf16_f32 v{t+2*z+m}, v{D2(jb,z,2*m+fb)+2*rp}, v{D2(jb,z,2*m+fb)+2*rp+1}')
                if fb == 0: out.append(f's_mov_b32 s{sT+2}, {G_OFF+(8*jb+rp)*65536}')
                out.append(f'buffer_store_dwordx4 {vr(t,4)}, v5, s[{sWS}:{sWS+3}], s{sT+2} offen offset:{256*fb} sc1')
        return out
    pend = []
    for jb in range(4):
        n = 0
        for qq in range(2):
            for z in range(2):
                for wf in range(4):
                    c = vr(D2(jb,z,wf),4)
                    a(f'{MF} {c}, {ar(aR+8*jb+4*qq,4)}, {vr(Z(2*z+qq,wf),4)}, {c if qq else 0}')
                    n += 1
                    if n >= 4:
                        for t in pend[:2]: a(t)
                        pend = pend[2:]
        assert not pend
        pend = stores(jb)
    for t in pend: last = a(t)
    a(f's_add_u32 s{sT+12}, s{sJ}, 2')
    a(f's_lshl_b32 s{sT+12}, s{sT+12}, 7')
    a(f's_add_u32 s{sT+12}, s{sT+12}, {FL_OFF}')
    a(f'v_cmp_gt_u32 vcc, 8, v0')
    a(f'v_mov_b32 v10, {OOB}')
    a(f'v_lshlrev_b32 v11, 8, v0')
    a(f'v_cndmask_b32 v16, v10, v11, vcc')
    return last

def spin(a, tag, load, test, cnt):
    a(f's_mov_b32 s{cnt}, 0')
    a.label(f'L{tag}_spin')
    for t in [load, f's_add_u32 s{cnt}, s{cnt}, 1', 's_waitcnt vmcnt(0)'] + test + [f's_cbranch_scc1 L{tag}_ok', 's_sleep 2', f's_cmp_lt_u32 s{cnt}, 0x100000', f's_cbranch_scc1 L{tag}_spin']:
        a.raw('    '+t)
    a.label(f'L{tag}_ok')

def phaseB(a, q, last):
    vHA, vPW, vPR, vGA, vOA2 = 14, 15, 18, 26, 30
    vCF, vXS, vH, NH, vPS, vAC = 48, 64, 128, 16, 80, 192
    stamp(a)
    q.issue(C.pre_ack)
    for _ in range(5): q.readD()
    q.addD(14)
    a(f'v_readfirstlane_b32 s{sT+13}, v{vDBG}')
    a(f'v_mov_b32 v11, 0')
    a(f'v_mov_b32 v17, 1')
    a(f's_cmp_lg_u32 s{sT+13}, 0')
    a(f's_cbranch_scc1 Li_ok')
    spin(a, 'i', f'buffer_load_dword v{vDBG}, v11, s[{sDBG}:{sDBG+3}], 0 offen sc1',
         [f'v_readfirstlane_b32 s{sT+13}, v{vDBG}', 's_nop 3', f's_cmp_lg_u32 s{sT+13}, 0'], sT+14)
    a(f's_lshr_b32 s{sT}, s{sR}, 1')
    a(f's_sub_u32 s{sT+1}, 32, s{sT}')
    a(f's_cmp_eq_u32 s{sT}, 0')
    a(f's_cselect_b32 s{sT+1}, 16, s{sT+1}')
    a(f's_bitcmp1_b32 s{sR}, 0')
    a(f's_cselect_b32 s{sP}, s{sT+1}, s{sT}')
    a(f's_mov_b32 s{sT1}, s{sP}')
    a(f's_sub_u32 s{sT1+1}, 64, s{sP}')
    a(f's_cmp_eq_u32 s{sP}, 0')
    a(f's_cselect_b32 s{sT1+1}, 32, s{sT1+1}')
    a(f's_lshl_b32 s{sT+15}, s{sT}, 7')
    a(f's_add_u32 s{sT+15}, s{sT+15}, {FL_OFF}')
    a(f's_lshr_b32 s{sKX}, s{sR}, 2')
    a(f's_lshl_b32 s{sKX}, s{sKX}, 8')
    a(f's_add_u32 s{sKX}, s{sKX}, {FL_OFF+2048}')
    a(f'v_and_b32 v8, 1, v{vLANE}')
    a(f'v_lshlrev_b32 v8, 7, v8')
    sOWN = sI
    a(f's_and_b32 s{sOWN}, s{sCB}, {1 if C.hrot else 0}')
    a(f's_lshl_b32 s{sOWN}, s{sOWN}, 1')
    a(f's_xor_b32 s{sOWN}, s{sOWN}, s{sW}')
    a(f'v_lshlrev_b32 v{vHA}, 4, v{vLANE}')
    a.wait_vm_for(last)
    stamp(a)
    a('s_barrier')
    a(f'buffer_atomic_add v17, v16, s[{sWS}:{sWS+3}], s{sT+12} offen sc1')
    q.issue(4)
    a(f's_cmp_ge_u32 s{sCB}, 4')
    a(f's_cselect_b32 s{sT+8}, 1.0, -1.0')
    a(f's_lshl_b32 s{sT}, s{sW}, 2')
    a(f'v_add_u32 v4, s{sT}, v{vG}')
    a(f'v_sub_u32 v5, 32, v4')
    a(f'v_cmp_eq_u32 vcc, 0, v4')
    a(f'v_mov_b32 v6, 16')
    a(f'v_cvt_f32_u32 v12, v4')
    a(f'v_cndmask_b32 v5, v5, v6, vcc')
    a(f'v_mul_f32 v12, {f2u(1/2048):#x}, v12')
    a(f'v_cvt_f32_u32 v13, v5')
    a(f'v_mul_f32 v13, {f2u(1/2048):#x}, v13')
    T = vH
    for sl in range(4):
        a(f's_xor_b32 s{sT}, s{sOWN}, {3-sl}')
        a(f's_lshl_b32 s{sT+1}, s{sR}, 2')
        a(f's_add_u32 s{sT+1}, s{sT+1}, s{sT}')
        a(f's_lshl_b32 s{sT+1}, s{sT+1}, 2')
        a(f's_add_u32 s{sT+1}, s{sT+1}, s{sW}')
        a(f's_mul_i32 s{sT+4+sl}, s{sT+1}, {14*1024}')
        if sl < 3:
            a(f's_mul_i32 s{sT+1}, s{sT}, {3*4096}')
            a(f's_add_u32 s{sT+1}, s{sT+1}, {sl*4096}')
            a(f'v_add_u32 v{vPW+sl}, s{sT+1}, v{vHA}') if sl == 0 else a(f'v_add_u32 v{19+sl}, s{sT+1}, v{vHA}')
        else:
            a(f's_mul_i32 s{sT+1}, s{sT}, {3*4096}')
            a(f'v_add_u32 v{vPR}, s{sT+1}, v{vHA}')
        a(f's_bitcmp1_b32 s{sT}, 1')
        a(f's_cselect_b32 s{sT+2}, s{sT1+1}, s{sT1}')
        a(f's_cmp_lt_u32 s{sT+2}, 32')
        a(f's_cselect_b32 s{sT+10}, -1.0, 1.0')
        a(f's_cmp_eq_u32 s{sP}, 0')
        a(f's_cselect_b32 s{sT+10}, 0, s{sT+10}')
        a(f's_cmp_eq_u32 s{sT+2}, 32')
        a(f's_cselect_b32 s{sT+9}, 0, 1.0')
        a(f's_cselect_b32 s{sT+11}, 1.0, 0')
        a(f's_and_b32 s{sT}, s{sT}, 1')
        a(f's_lshl_b32 s{sT}, s{sT}, 10')
        a(f's_add_u32 s{sT+2}, s{sT+2}, s{sT}')
        a(f'v_lshl_add_u32 v7, v{vN}, 6, s{sT+2}')
        a(f'v_cvt_f32_u32 v5, v7')
        for z in range(2):
            a(f'v_mul_f32 v6, v{12+z}, v5')
            a(f'v_cos_f32 v{T}, v6')
            a(f'v_sin_f32 v{T+1}, v6')
            a(f'v_mul_f32 v{T+2}, s{sT+9}, v{T}')
            a(f'v_mul_f32 v{T+3}, s{sT+11}, v{T}')
            a(f'v_fma_f32 v{T+3}, s{sT+10}, v{T+1}, v{T+3}')
            a(f'v_mul_f32 v{T+4}, s{sT+9}, v{T+1}')
            a(f'v_mul_f32 v{T+4}, s{sT+8}, v{T+4}')
            a(f'v_mul_f32 v{T+5}, s{sT+11}, v{T+1}')
            a(f'v_fma_f32 v{T+5}, -v{T}, s{sT+10}, v{T+5}')
            a(f'v_mul_f32 v{T+5}, s{sT+8}, v{T+5}')
            a(f'v_cvt_pk_bf16_f32 v{vCF+4*sl+2*z}, v{T+2}, v{T+3}')
            a(f'v_cvt_pk_bf16_f32 v{vCF+4*sl+2*z+1}, v{T+4}, v{T+5}')
        q.issue(4)
        if q.nR < 9: q.readD()
    PW = [vPW, 20, 21]
    a(f's_lshl_b32 s{sT+1}, s{sCB}, 7')
    a(f'v_lshl_add_u32 v7, v7, 10, s{sT+1}')
    a(f'v_and_b32 v5, 1, v{vG}')
    a(f'v_lshl_add_u32 v7, v5, 5, v7')
    a(f'v_lshrrev_b32 v5, 1, v{vG}')
    a(f'v_lshl_add_u32 v{vOA2}, v5, 4, v7')
    q.issue(99)
    for pr in range(2): a(f'buffer_load_dwordx4 {vr(vPS+4*pr,4)}, v{vOA2}, s[{sX}:{sX+3}], 0 offen offset:{64*pr}')
    a(f's_lshl_b32 s{sT}, s{sP}, 16')
    a(f's_add_u32 s{sT}, s{sT}, {G_OFF}')
    a(f'v_lshl_add_u32 v4, v4, 12, s{sT}')
    a(f's_lshl_b32 s{sT+1}, s{sCB}, 6')
    a(f'v_mov_b32 v7, {OOB}')
    for cbk in range(4):
        a(f'v_add_u32 v5, s{sT+1}, v{vN}')
        a(f'v_add_u32 v5, {16*cbk-256}, v5')
        a(f'v_sub_u32 v6, 0, v5')
        a(f'v_max_i32 v5, v5, v6')
        a(f'v_cmp_gt_u32 vcc, 0x100, v5')
        a(f'v_lshl_add_u32 v5, v5, 4, v4')
        a(f'v_cndmask_b32 v{vGA+cbk}, v7, v5, vcc')
    stamp(a)
    while q.nR < 14: q.readD()
    for pr in range(2):
        for d in range(2): a(f'v_permlane16_swap_b32 v{vPS+4*pr+d}, v{vPS+4*pr+2+d}')
    for k in range(8):
        a(f'v_lshlrev_b32 v{vXS+2*k}, 16, v{vPS+k}')
        a(f'v_and_b32 v{vXS+2*k+1}, s{sMSK}, v{vPS+k}')
    a.wait(vm=0, lgkm=0)
    stamp(a)
    a(f's_cmp_lg_u32 s{sW}, 0')
    a(f's_cbranch_scc1 Lh_ok')
    spin(a, 'h', f'buffer_load_dword v10, v11, s[{sWS}:{sWS+3}], s{sT+15} offen sc1',
         [f'v_readfirstlane_b32 s{sT+13}, v10', 's_nop 3', f's_cmp_eq_u32 s{sT+13}, 14'], sT+14)
    a('s_barrier')
    stamp(a)
    seq = [(sl, ks) for sl in range(4) for ks in range(14)]
    def hpre(n):
        sl, ks = seq[n]
        if ks & 3 == 0 and ks: a(f's_add_u32 s{sT+4+sl}, s{sT+4+sl}, 4096')
    def hload(n):
        sl, ks = seq[n]
        a(f'buffer_load_dwordx4 {vr(vH+4*(n%NH),4)}, v{vHA}, s[{sWS}:{sWS+3}], s{sT+4+sl} offen offset:{(ks&3)*1024} sc1')
    LOOK = C.look
    gpoll = f'buffer_load_dword v10, v8, s[{sWS}:{sWS+3}], s{sKX} offen sc1'
    for n in range(LOOK):
        hpre(n); hload(n)
        if n == 3: a(gpoll)
    AC = lambda sl,cbk: vAC+16*sl+4*cbk
    gl = [f'buffer_load_dwordx4 {ar(aGF+4*cbk,4)}, v{vGA+cbk}, s[{sWS}:{sWS+3}], 0 offen sc1' for cbk in range(4)]
    nl = LOOK
    fillers = []
    for n in range(56):
        sl, ks = seq[n]
        for cbk in range(4):
            c = vr(AC(sl,cbk),4)
            a(f'{MF} {c}, {ar(16*ks+4*cbk,4)}, {vr(vH+4*(n%NH),4)}, {c if ks else (vr(vXS+4*cbk,4) if sl == 3 else 0)}')
            if cbk == 0:
                if nl < 56: hpre(nl)
                if n == 4:
                    a(f'v_cmp_ne_u32 vcc, 16, v10')
                    a(f's_cmp_eq_u64 vcc, 0')
                    a(f's_cbranch_scc1 Lg_ok')
                    spin(a, 'g', gpoll, ['v_cmp_ne_u32 vcc, 16, v10', 's_nop 3', 's_cmp_eq_u64 vcc, 0'], sT+14)
            elif cbk == 1:
                if nl < 56: hload(nl); nl += 1
                elif fillers: a(fillers.pop(0))
            elif cbk == 2 and 4 <= n < 8: a(gl[n-4])
            elif cbk == 2 and sl and 1 <= ks < 5:
                a(f'ds_write_b128 v{PW[sl-1]}, {vr(AC(sl-1,ks-1),4)} offset:{1024*(ks-1)}')
            elif cbk == 2 and sl == 3 and ks == 6:
                a.wait(lgkm=0); a('s_barrier')
                fillers = [f'ds_read_b128 {vr(vPS+4*k,4)}, v{vPR} offset:{1024*k}' for k in range(12)]
                fillers += [f'v_add_f32 v{vPS+k}, v{vPS+k}, v{vPS+16+k}' for k in range(16)]
                fillers += [f'v_add_f32 v{vPS+k}, v{vPS+k}, v{vPS+32+k}' for k in range(16)]
            else:
                for t in fillers[:2]: a(t)
                fillers = fillers[2:]
        if n == 0: stamp(a)
        if ks == (13 if sl == 0 else 0):
            for cbk in range(4):
                c = vr(AC(sl,cbk),4)
                a(f'{MF} {c}, {ar(aGF+4*cbk,4)}, {vr(vCF+4*sl,4)}, {c}')
    for t in fillers: a(t)
    stamp(a)
    for pr in range(2):
        for k in range(4*pr, 4*pr+4): a(f'v_pk_add_f32 {vr(vPS+2*k,2)}, {vr(vPS+2*k,2)}, {vr(AC(3,0)+2*k,2)}')
        for k in range(4*pr, 4*pr+4): a(f'v_cvt_pk_bf16_f32 v{vXS+k}, v{vPS+2*k}, v{vPS+2*k+1}')
        for d in range(2): a(f'v_permlane16_swap_b32 v{vXS+4*pr+d}, v{vXS+4*pr+2+d}')
        a(f'buffer_store_dwordx4 {vr(vXS+4*pr,4)}, v{vOA2}, s[{sOUT}:{sOUT+3}], 0 offen offset:{64*pr}')
    stamp(a)

CODE_LINES_PER_WG = 10
def kernel(a):
    a('s_cmp_ge_u32 s2, 256')
    a('s_cbranch_scc1 L_end')
    a('s_load_dwordx2 s[4:5], s[0:1], 0')
    a('s_load_dwordx4 s[8:11], s[0:1], 24')
    a('s_load_dwordx4 s[12:15], s[0:1], 48')
    a('s_load_dwordx8 s[72:79], s[0:1], 64')
    St.n = 0
    if C.stamps:
        a('s_memrealtime s[84:85]'); a('s_memtime s[86:87]')
    a.raw(f'    s_getpc_b64 s[80:81]'); a.hist.append((Ins('s_getpc_b64 s[80:81]'),1))
    a(f's_lshr_b32 s{sT}, s2, 3')
    a(f's_mul_i32 s{sT}, s{sT}, {CODE_LINES_PER_WG*128}')
    a(f'v_min_u32 v4, {CODE_LINES_PER_WG-1}, v0')
    a(f'v_lshl_add_u32 v4, v4, 7, s{sT}')
    a(f'global_load_dword v{vDBG}, v4, s[80:81]')
    a(f'v_and_b32 v{vLANE}, 63, v0')
    a(f'v_lshrrev_b32 v4, 6, v0')
    a(f'v_and_b32 v{vN}, 15, v0')
    a(f'v_readfirstlane_b32 s{sW}, v4')
    a(f'v_bfe_u32 v{vG}, v0, 4, 2')
    a(f's_and_b32 s{sT}, s2, 1')
    a(f's_lshl_b32 s{sT}, s{sT}, 3')
    a(f's_bfe_u32 s{sI}, s2, {3|(3<<16)}')
    a(f's_add_u32 s{sI}, s{sI}, s{sT}')
    a(f's_bfe_u32 s{sT}, s2, {1|(2<<16)}')
    a(f's_lshl_b32 s{sT}, s{sT}, 2')
    a(f's_lshr_b32 s{sJ}, s2, 6')
    a(f's_add_u32 s{sJ}, s{sJ}, s{sT}')
    if C.rot:
        a(f's_xor_b32 s{sT}, s{sI}, s{sJ}')
        a(f's_and_b32 s{sT}, s{sT}, 1')
        a(f's_lshl_b32 s{sKCX}, s{sT}, 2')
        if C.rot == 1:
            a(f's_lshr_b32 s{sT}, s2, 1')
            a(f's_xor_b32 s{sT}, s{sT}, s2')
            a(f's_and_b32 s{sT}, s{sT}, 1')
            a(f's_lshl_b32 s{sT}, s{sT}, 1')
            a(f's_add_u32 s{sKCX}, s{sKCX}, s{sT}')
    else:
        a(f's_mov_b32 s{sKCX}, 0')
    if C.stamps:
        a.wait(lgkm=0)
        a(f'v_writelane_b32 v{vSTAMP}, s84, 32'); a(f'v_writelane_b32 v{vSTAMP}, s86, 0'); St.n = 1
    a(f's_cmp_ge_u32 s{sJ}, 14')
    a('s_cbranch_scc1 L_dft')
    st = a.snapshot(); n0 = St.n
    q = Q(a)
    phaseA_setup(a, False); phaseA_main(a, False, q); stamp(a)
    last = glu_epilogue(a, q)
    a.wait(lgkm=0)
    a.label('L_phaseB')
    def state(): return ([t[2] for t in q.pend], q.predone, q.nD, q.nR, St.n)
    def after(tag): return None if q.last[tag] not in a.vm else len(a.vm)-1-a.vm.index(q.last[tag])
    join = state(); jvm = {t: after(t) for t in q.last if t[0] in 'DF'}
    assert a.vm[-1] is last
    a.hist = []
    a('s_nop 0')
    phaseB(a, q, last)
    stamp_flush(a)
    a.label('L_end')
    a('s_endpgm')
    a.restore(st); St.n = n0
    a.raw('.p2align 3')
    a.label('L_dft')
    q = Q(a)
    phaseA_setup(a, True); phaseA_main(a, True, q); stamp(a)
    last = dft_epilogue(a, q)
    assert join == state(), (join, state())
    assert a.vm[-1] is last
    for t, v in jvm.items():
        w = after(t)
        assert w is None or (v is not None and w >= v), (t, v, w)
    a.wait(lgkm=0)
    a('s_branch L_phaseB')

def build():
    out = ['; @launch grid=(256,1,1) block=(256,1,1) lds=163840',
           '.amdgcn_target "amdgcn-amd-amdhsa--gfx950"', '.text']
    nm = NAME+'_kernel'
    a = Asm(); kernel(a)
    out += [f'.globl {nm}', '.p2align 8', f'.type {nm},@function', f'{nm}:', a.text()]
    print('lines', len(a.lines), 'nops', a.nnop, file=sys.stderr)
    out.append('L_code_end:')
    out.append(f'.fill ({32*CODE_LINES_PER_WG*128+256} - (L_code_end - {nm}))/4, 4, 0xbf800000')
    out.append('.section .rodata,"a"')
    out.append('.p2align 6')
    out.append(f'''.amdhsa_kernel {nm}
  .amdhsa_next_free_vgpr 512
  .amdhsa_next_free_sgpr 96
  .amdhsa_accum_offset 256
  .amdhsa_group_segment_fixed_size 0
  .amdhsa_kernarg_size 96
  .amdhsa_user_sgpr_count 2
  .amdhsa_user_sgpr_kernarg_segment_ptr 1
  .amdhsa_system_sgpr_workgroup_id_x 1
.end_amdhsa_kernel
''')
    return '\n'.join(out)
if __name__ == '__main__':
    for kv in sys.argv[2:]:
        k, v = kv.split('='); assert hasattr(C, k); setattr(C, k, int(v))
    open(sys.argv[1], 'w').write(build())
```

```python
import re

def regs(tok):
    tok = tok.strip()
    tok = tok.lstrip('-')
    if tok.startswith('abs(') : tok = tok[4:-1]
    if tok.startswith('|'): tok = tok.strip('|')
    m = re.fullmatch(r'([vas])\[(\d+):(\d+)\]', tok)
    if m: return [(m.group(1), i) for i in range(int(m.group(2)), int(m.group(3))+1)]
    m = re.fullmatch(r'([vas])(\d+)', tok)
    if m: return [(m.group(1), int(m.group(2)))]
    if tok == 'vcc': return [('s', 'vcc')]
    if tok == 'm0': return [('s', 'm0')]
    if tok == 'exec': return [('s', 'exec')]
    return []

TRANS = ('v_exp_f32','v_log_f32','v_rcp_f32','v_rsq_f32','v_sqrt_f32','v_sin_f32','v_cos_f32')

class Ins:
    def __init__(self, text):
        self.text = text
        t = text.split(';')[0].strip()
        self.op = t.split()[0] if t else ''
        rest = t[len(self.op):].strip()
        ops = [o.strip() for o in rest.split(',')] if rest else []
        self.mods = ''
        if ops:
            parts = ops[-1].split()
        rest2 = re.sub(r'(op_sel|op_sel_hi|neg_lo|neg_hi|quad_perm):\[[^\]]*\]', '', rest)
        ops = [o.strip() for o in rest2.split(',')] if rest2.strip() else []
        if ops:
            parts = ops[-1].split()
            ops[-1] = parts[0] if parts else ''
            self.mods = ' '.join(parts[1:])
        self.ops = ops
        op = self.op
        self.kind = 'other'
        self.w = []; self.r = []
        R = lambda i: regs(ops[i]) if i < len(ops) else []
        if op.startswith('v_mfma'):
            self.kind = 'mfma'; self.w = R(0); self.ra = R(1); self.rb = R(2); self.rc = R(3); self.r = self.ra+self.rb+self.rc
            self.passes = 8 if '32x32' in op else (4 if '16x16' in op else 2)
        elif op.startswith('ds_read') or op.startswith('ds_bpermute') or op.startswith('ds_swizzle'):
            self.kind = 'lds'; self.w = R(0); self.r = sum([R(i) for i in range(1,len(ops))], [])
        elif op.startswith('ds_write'):
            self.kind = 'lds'; self.r = sum([R(i) for i in range(len(ops))], [])
        elif op.startswith('buffer_load') or op.startswith('global_load'):
            self.kind = 'vmem'
            if ' lds' in ' '+self.mods:
                self.r = sum([R(i) for i in range(len(ops))], []) + [('s','m0')]; self.dma = True
            else:
                self.w = R(0); self.r = sum([R(i) for i in range(1,len(ops))], [])
        elif op.startswith('buffer_store') or op.startswith('buffer_atomic'):
            self.kind = 'vmem'; self.r = sum([R(i) for i in range(len(ops))], []); self.data = R(0)
            if op.startswith('buffer_atomic') and 'sc0' in self.mods: self.w = R(0)
        elif op.startswith('global_store'):
            self.kind = 'vmem'; self.r = sum([R(i) for i in range(len(ops))], []); self.data = R(1)
        elif op.startswith('s_load') or op.startswith('s_memtime') or op.startswith('s_memrealtime'):
            self.kind = 'smem'; self.w = R(0); self.r = R(1)
        elif op.startswith('v_'):
            self.kind = 'valu'
            self.w = R(0); self.r = sum([R(i) for i in range(1,len(ops))], [])
            if op.startswith('v_cmp'): pass
            if op.startswith(('v_fmac','v_dot2c','v_permlane','v_writelane')) or 'dpp' in op and 'bound_ctrl' not in self.mods: self.r += R(0)
            if op.startswith('v_permlane') and 'swap' in op: self.w += R(1)
            if op.startswith(('v_add_co','v_addc_co','v_sub_co')): self.w += R(1)
        elif op.startswith('s_'):
            self.kind = 'salu'
            if op.startswith(('s_cmp','s_waitcnt','s_barrier','s_nop','s_branch','s_cbranch','s_endpgm','s_setprio','s_sleep','s_bitcmp')):
                self.r = sum([R(i) for i in range(len(ops))], [])
            else:
                self.w = R(0); self.r = sum([R(i) for i in range(1,len(ops))], [])
        self.trans = op.replace('_e32','').replace('_e64','') in TRANS
        self.dot = op.startswith('v_dot')

class Asm:
    def __init__(self):
        self.lines = []
        self.hist = []
        self.lgkm = []
        self.vm = []
        self.smem_out = False
        self.nnop = 0
    def raw(self, s): self.lines.append(s)
    def label(self, s):
        self.lines.append(s+':')
    def comment(self, s): self.lines.append('    ; '+s)
    def snapshot(self): return (list(self.hist), list(self.lgkm), list(self.vm), self.smem_out)
    def restore(self, st): self.hist, self.lgkm, self.vm, self.smem_out = list(st[0]), list(st[1]), list(st[2]), st[3]
    def _emit(self, ins):
        self.lines.append('    '+ins.text)
        n = 1
        if ins.op == 's_nop': n = int(ins.ops[0])+1
        self.hist.append((ins, n))
        if len(self.hist) > 40: self.hist.pop(0)
    def wait(self, vm=None, lgkm=None):
        parts = []
        if vm is not None and len(self.vm) > vm:
            assert vm <= 63
            parts.append(f'vmcnt({vm})'); self.vm = self.vm[len(self.vm)-vm:] if vm else []
        if lgkm is not None and (len(self.lgkm) > lgkm or (lgkm == 0 and self.smem_out)):
            lg = min(lgkm, 14)
            parts.append(f'lgkmcnt({lg})'); self.lgkm = self.lgkm[len(self.lgkm)-lg:] if lg else []
            if lg == 0: self.smem_out = False
        if parts: self._emit(Ins('s_waitcnt '+' '.join(parts)))
    def wait_vm_for(self, ins):
        if ins in self.vm:
            n = len(self.vm)-1-self.vm.index(ins)
            self.wait(vm=min(n,62))
    def wait_lgkm_for(self, ins):
        if ins in self.lgkm:
            n = len(self.lgkm)-1-self.lgkm.index(ins)
            self.wait(lgkm=n)
    def need(self, ins):
        need = 0; dist = 0
        rs, ws = set(ins.r), set(ins.w)
        for p, n in reversed(self.hist):
            pw = set(p.w); req = 0
            if p.kind == 'valu':
                vw = {x for x in pw if x[0] in 'va'}; sw = {x for x in pw if x[0] == 's'}
                if ins.kind == 'mfma' and vw & rs: req = max(req, 3 if p.dot else 2)
                if p.trans and ins.kind == 'valu' and vw & rs: req = max(req, 1)
                if p.trans and ins.kind in ('vmem','lds') and vw & rs: req = max(req, 1)
                if p.dot and (vw & (rs|ws)):
                    if ins.op == p.op and not (vw & set(sum([regs(o) for o in ins.ops[1:3]],[]))): pass
                    else: req = max(req, 3)
                if ins.op.startswith('v_permlane') and vw & rs: req = max(req, 2)
                if 'dpp' in ins.op and vw & rs: req = max(req, 2)
                if ins.op.startswith(('v_readlane','v_readfirstlane')) and vw & rs: req = max(req, 1)
                if sw & rs:
                    if ins.kind == 'vmem': req = max(req, 5)
                    elif ins.kind == 'valu': req = max(req, 4 if ins.op.startswith(('v_readlane','v_writelane')) else 2)
                    elif ins.kind in ('salu','smem'): req = max(req, 2)
                if 'sdwa' in p.op or 'op_sel:' in p.text:
                    if ins.kind == 'valu' and vw & (rs|ws): req = max(req, 1)
            if p.kind == 'salu' and ('s','m0') in pw and getattr(ins,'dma',False): req = max(req, 1)
            if p.kind == 'mfma':
                k = {2:0,4:1,8:2,16:3}[p.passes]
                if ins.kind == 'mfma':
                    if pw & set(ins.ra+ins.rb): req = max(req, [5,8,12,20][k])
                    if pw & set(ins.rc):
                        if p.w == ins.rc and p.passes == ins.passes: req = max(req, [2,0,0,0][k])
                        else: req = max(req, [4,6,10,18][k])
                    elif pw & ws and p.w != ins.w: req = max(req, [5,8,12,20][k])
                elif ins.kind in ('valu','vmem','lds'):
                    if pw & (rs|ws): req = max(req, [5,8,12,20][k])
                    if ins.kind == 'valu' and set(p.rc) & ws: req = max(req, [1,3,7,15][k])
            if p.kind == 'vmem' and len(getattr(p,'data',[])) > 2 and set(p.data) & ws: req = max(req, 2)
            if p.kind == 'lds' and p.op.startswith('ds_write') and len(p.r) > 3 and set(p.r[1:]) & ws and ins.kind=='valu': req = max(req, 2)
            need = max(need, req - dist)
            dist += n
            if dist > 24: break
        return need
    def __call__(self, text):
        ins = Ins(text)
        touched = set(ins.r) | set(ins.w)
        for q, name in ((self.lgkm,'lgkm'), (self.vm,'vm')):
            last = None
            tch = set(ins.r) if (name == 'vm' and ins.kind == 'vmem') else touched
            for idx, o in enumerate(q):
                if set(o.w) & tch: last = idx
            if last is not None:
                n = len(q)-1-last
                if name == 'lgkm':
                    if self.smem_out: n = 0
                    self.wait(lgkm=n)
                else: self.wait(vm=min(n,62))
        nd = self.need(ins)
        while nd > 0:
            k = min(nd, 16)
            self._emit(Ins(f's_nop {k-1}')); nd -= k; self.nnop += 1
        self._emit(ins)
        if ins.kind == 'lds': self.lgkm.append(ins)
        elif ins.kind == 'smem': self.lgkm.append(ins); self.smem_out = True
        elif ins.kind == 'vmem':
            self.vm.append(ins)
            assert len(self.vm) <= 63, 'vmcnt overflow'
        return ins
    def text(self): return '\n'.join(self.lines)

def vr(b, n=1, f='v'):
    return f'{f}{b}' if n == 1 else f'{f}[{b}:{b+n-1}]'
def ar(b, n=1): return vr(b, n, 'a')
def sr(b, n=1): return vr(b, n, 's')

import subprocess, os
_PROMO = ('v_exp_f32','v_rcp_f32','v_add_f32','v_mul_f32','v_sub_f32','v_fmac_f32','v_mov_b32','v_and_b32','v_xor_b32','v_or_b32','v_lshlrev_b32','v_lshrrev_b32',
          'v_add_u32','v_sub_u32','v_cvt_f32_u32','v_cos_f32','v_sin_f32','v_rsq_f32','v_sqrt_f32','v_max_f32','v_min_u32','v_max_i32')
def sizes_of(lines):
    src = '.amdgcn_target "amdgcn-amd-amdhsa--gfx950"\n.text\n' + '\n'.join(l for l in lines if not l.strip().startswith('.')) + '\n'
    t = f'_al_{os.getpid()}'
    open(t+'.s','w').write(src)
    subprocess.run(['clang','-x','assembler','-target','amdgcn-amd-amdhsa','-mcpu=gfx950','-c',t+'.s','-o',t+'.o'],check=True)
    d = subprocess.run(['llvm-objdump','-d','--mcpu=gfx950',t+'.o'],capture_output=True,text=True).stdout
    return [4*len(l.split(':')[-1].split('<')[0].split()) for l in d.split('\n') if '//' in l]
def align_pass(lines, nop=False):
    sz = sizes_of(lines)
    idx = [i for i,l in enumerate(lines) if l.startswith('    ') and not l.strip().startswith((';','.'))]
    assert len(idx) == len(sz), (len(idx), len(sz))
    size = dict(zip(idx, sz))
    out = list(lines); addr = 0; cand = None; fixed = left = 0; ins = {}
    for i,l in enumerate(lines):
        if l.startswith('.p2align 3'): addr = (addr+7)//8*8; cand = None; continue
        if i not in size: continue
        s = size[i]
        if s == 8 and addr % 8 == 4:
            if cand is not None:
                op = out[cand].split()[0]
                out[cand] = out[cand].replace(op, op+'_e64', 1); addr += 4; fixed += 1
            elif addr % 32 == 28: left += 1
        if s == 8: cand = None
        elif l.split()[0] in _PROMO and addr % 8 == 0: cand = i
        elif addr % 8 == 0: pass
        addr += s
    return out, fixed, left
```

```python
import sys, struct
from asmlib import *

NAME = 'parallel_sum__spectral_fnet__glu_gated_glu__prompt'
G_OFF = 0x800000
FL_OFF = 0xA00000
FLG_OFF = FL_OFF+64*128
FLS_OFF = FL_OFF+80*128
XS_OFF = 0xA10000
CS_OFF = 0xA50000
WS_BYTES = 0xA90000
STAMP_OFF = 0xC00000
OOB = 0x7f000000
def f2u(x): return struct.unpack('<I', struct.pack('<f', x))[0]
LOG2E = 1.4426950408889634
MF = 'v_mfma_f32_16x16x32_bf16'

class Cfg:
    stamps = 0
    rot = 1
    touch = 1
    hrot = 0
    epi_dma = 1
    epi_pre = 4
    look = 12
    nostats = 0
    cap = 8
    fine = 15
    bar = 2
    bar2 = 0
    bal = 1
    align = 1
    outsc = 0
    ncoef1 = 2
    l2s = 0
    bmap = 1
    drot = 1
    spoll = 8
    log = 0
    dlag = 10
    capn = 6
    dleft = 16
    rd0 = 5
    look0 = 8
    gp = 20
    delay = 0
    rd1 = 9
    infl = 2
    pgap = 5
    hsc = 1
    l2w = 1
C = Cfg()

sX, sG, sU, sWS, sWD, sOUT, sDBG = 20, 24, 28, 32, 36, 40, 16
sW, sI, sJ, sP = 44, 45, 46, 47
sT = 48
sM0, sKX, sKW, sPITCH = 64, 65, 66, 67
sKCX, sKCW = 68, 69
sT1 = 70
sR, sCB, sMSK = 6, 7, 3
sM1, sM2, sM3, sMV = 88, 90, 92, 94
sL, sXS, sCS, sSET = 70, 71, 81, 80
aSW, aSX, aONE = 0, 16, 24
vLANE, vN, vG = 1, 2, 3
vXD, vWD, vD, vXA, vOA, vWA, vTR, vDBG, vSTAMP = 16, 20, 22, 26, 28, 30, 34, 46, 47
vXR, vWF, vOWN, vCS = 48, 64, 96, 104
vACC = 128
aR, aCF = 192, 240
vOUT = 13
sOWN, sROT = 86, 87
UN = 16384
LST = 1*UN
def acc(tf, wf): return vACC+16*tf+4*wf
def fW(p, wf): return vWF+16*p+4*wf
def fX(k): return vXR+4*(k & 3)

class St: n = 0
def stamp(a, grp=1):
    if not (C.stamps & grp): return
    a(f's_memtime s[82:83]')
    a(f's_memrealtime s[84:85]')
    a.wait(lgkm=0)
    a(f'v_writelane_b32 v{vSTAMP}, s82, {St.n}')
    a(f'v_writelane_b32 v{vSTAMP}, s84, {32+St.n}')
    St.n += 1
def stamp_flush(a):
    if not C.stamps: return
    a.wait(vm=0)
    stamp(a, 255)
    a(f's_mov_b32 s{sWS+2}, 0x1000000')
    a(f's_lshl_b32 s82, s2, 2')
    a(f's_add_u32 s82, s82, s{sW}')
    a(f's_lshl_b32 s82, s82, 8')
    a(f's_add_u32 s82, s82, {STAMP_OFF}')
    a(f'v_lshlrev_b32 v4, 2, v{vLANE}')
    a(f'buffer_store_dword v{vSTAMP}, v4, s[{sWS}:{sWS+3}], s82 offen')

def srd(a, d, ptr, nbytes, bias=0):
    if bias:
        a(f's_sub_u32 s{d}, s{ptr}, {bias}')
        a(f's_subb_u32 s{d+1}, s{ptr+1}, 0')
    else:
        a(f's_mov_b64 s[{d}:{d+1}], s[{ptr}:{ptr+1}]')
    a(f's_mov_b32 s{d+2}, {nbytes+bias}')
    a(f's_mov_b32 s{d+3}, 0x20000')

def dma_X(s):
    out = []
    for q in range(4):
        pre = []
        if q == 0: pre = [f's_add_u32 m0, s{sM0}, {(s % 4)*UN}', f's_lshl_b32 s{sKX}, s{sKCX}, 7']
        if q == 1: pre = [f's_add_u32 s{sKCX}, s{sKCX}, 1', f's_and_b32 s{sKCX}, s{sKCX}, 7']
        out.append((('X', s), pre, f'buffer_load_dwordx4 v{vXD+q}, s[{sX}:{sX+3}], s{sKX} offen offset:{q*1024} lds'))
    return out
def dma_W(n):
    out = []
    for q in range(4):
        pre = []
        if q == 0: pre = [f's_add_u32 m0, s{sM0}, {(4+n % 6)*UN}', f's_mul_i32 s{sKW}, s{sKCW}, s{sPITCH}']
        if q == 1: pre = [f's_add_u32 s{sKCW}, s{sKCW}, 1', f's_and_b32 s{sKCW}, s{sKCW}, 15']
        r = sU if q >> 1 else sG
        out.append((('W', n), pre, f'buffer_load_dwordx4 v{vWD+(q&1)}, s[{r}:{r+3}], s{sKW} offen offset:{q*1024} lds'))
    return out
WD_UNITS = [0, 8, 9, 4, 5, 0, 6, 2, 8, 7, 3, 9, 4, 5]
WD_AVAIL = {10:2, 11:3, 12:4, 13:6, 14:9}
WD_PREV = {5:0, 8:1, 11:2, 12:3, 13:4}
def dma_D(u):
    out = []
    for q in range(4):
        pre = []
        if q == 0: pre = [f's_add_u32 m0, s{sM0}, {WD_UNITS[u]*UN}', (f's_add_u32 s{sKW}, s{sROT}, {u*32768}' if u < 7 else f's_sub_u32 s{sKW}, {u*32768}, s{sROT}')]
        out.append((('D', u), pre, f'buffer_load_dwordx4 v{vD+q}, s[{sWD}:{sWD+3}], s{sKW} offen offset:{q*1024} lds'))
    return out
def wd_reads(u):
    un = WD_UNITS[u]
    return [f'ds_read_b64_tr_b16 {ar(16*u+4*cbk+2*u2,2)}, v{vTR+4*(un>>2)+cbk} offset:{(un&3)*UN+2048*u2}' for cbk in range(4) for u2 in range(2)]

class Q:
    def __init__(self, a):
        self.a = a; self.pend = []; self.last = {}; self.predone = False; self.nD = 0; self.rd = {}
        self.rq = [(u, t) for u in range(14) for t in wd_reads(u)]; self.issued = 0; self.limit = 10**9; self.log = []; self.pos = -1
    def ready(self):
        if not self.pend or self.issued >= self.limit: return False
        tag = self.pend[0][0]
        if tag[0] == 'D' and tag[1] in WD_PREV and self.rq and self.rq[0][0] <= WD_PREV[tag[1]]: return False
        return True
    def haspre(self): return self.ready() and self.pend[0][1] and not self.predone
    def pre(self):
        if self.ready() and not self.predone:
            for t in self.pend[0][1]: self.a(t)
            self.predone = True
    def issue(self, n=1):
        for _ in range(n):
            if not self.ready(): return
            self.pre()
            tag, pf, t = self.pend.pop(0)
            if tag[0] == 'D' and tag[1] in WD_PREV: self.a.wait_lgkm_for(self.rd[WD_PREV[tag[1]]])
            self.last[tag] = self.a(t); self.predone = False; self.issued += 1; self.log.append((tag, self.pos))
    def addD(self, upto):
        while self.nD < upto: self.pend += dma_D(self.nD); self.nD += 1
    def need(self, tag):
        assert tag in self.last and not [1 for t in self.pend if t[0] == tag], ('not issued', tag)
        self.a.wait_vm_for(self.last[tag])
    def read1(self, upto):
        if not self.rq or self.rq[0][0] >= upto: return False
        u, t = self.rq.pop(0)
        self.need(('D', u))
        self.rd[u] = self.a(t)
        return True
    def readD(self, upto):
        while self.read1(upto): pass

def x_read(k):
    n, tf = k >> 3, k & 7
    return f'ds_read_b128 {vr(fX(k),4)}, v{vXA+(n&1)} offset:{((n>>1) % 4)*UN+tf*2048}'
def own_read(n, o):
    return f'ds_read_b128 {vr(vOWN+4*o,4)}, v{vOA+(n&1)} offset:{((n>>1) % 4)*UN+o*2048}'
def w_reads(n):
    un = n % 6
    return [f'ds_read_b64_tr_b16 {vr(fW(n&1,wf)+2*u,2)}, v{vWA+2*(un>>2)+(wf&1)} offset:{(un&3)*UN+(wf>>1)*2048+u*1024}' for wf in range(4) for u in range(2)]

def statmap(dft):
    if dft: return dict(ones=vr(120,4), sx=lambda o: ('v',vCS+4*o), sq=lambda o: vCS+8+4*o)
    return dict(ones=ar(232,4), sx=lambda o: ('a',224+4*o), sq=lambda o: 120+4*o)

def phaseA_setup(a, dft):
    pitch = 1024 if dft else 3584
    a(f's_sub_u32 s{sT+1}, 32, s{sI}')
    a(f's_cmp_eq_u32 s{sI}, 0')
    a(f's_cselect_b32 s{sT+1}, 16, s{sT+1}')
    a(f's_bitcmp1_b32 s{sW}, 1')
    a(f's_cselect_b32 s{sT}, s{sT+1}, s{sI}')
    if dft:
        a(f's_add_u32 s{sT+1}, s{sT}, 32')
        a(f's_sub_u32 s{sT+4}, s{sJ}, 12')
        a(f's_lshl_b32 s{sT+4}, s{sT+4}, 8')
    else:
        a(f's_sub_u32 s{sT+1}, 64, s{sT}')
        a(f's_cmp_eq_u32 s{sT}, 0')
        a(f's_cselect_b32 s{sT+1}, 32, s{sT+1}')
        a(f's_lshl_b32 s{sT+4}, s{sJ}, 8')
    a(f's_bitcmp1_b32 s{sW}, 0')
    a(f's_cselect_b32 s{sT}, s{sT+1}, s{sT}')
    a(f's_cselect_b32 s{sT+5}, 8, 0')
    a(f's_lshl_b32 s{sT}, s{sT}, 10')
    a(f'v_lshrrev_b32 v4, 3, v{vLANE}')
    a(f'v_lshl_add_u32 v4, v4, 16, s{sT}')
    a(f'v_and_b32 v6, 7, v{vLANE}')
    a(f'v_xor_b32 v6, v6, v{vG}')
    a(f'v_lshl_add_u32 v{vXD}, v6, 4, v4')
    a(f'v_xor_b32 v7, 64, v{vXD}')
    a(f'v_add_u32 v{vXD+1}, {524288-1024}, v7')
    a(f'v_add_u32 v{vXD+2}, {2*(524288-1024)}, v{vXD}')
    a(f'v_add_u32 v{vXD+3}, {3*(524288-1024)}, v7')
    a(f's_mul_i32 s{sT+1}, s{sW}, {8*pitch}')
    a(f's_add_u32 s{sT+1}, s{sT+1}, s{sT+4}')
    a(f'v_mul_u32_u24 v4, {pitch}, v{vG}')
    a(f'v_add_u32 v4, s{sT+1}, v4')
    a(f'v_lshl_add_u32 v7, v{vG}, 1, s{sT+5}')
    a(f'v_xor_b32 v6, v{vN}, v7')
    a(f'v_lshl_add_u32 v{vWD}, v6, 4, v4')
    a(f'v_add_u32 v{vWD+1}, {4*pitch-1024}, v{vWD}')
    a(f's_lshl_b32 s{sM0}, s{sW}, 12')
    a(f's_mov_b32 s{sPITCH}, {32*pitch}')
    a(f's_lshl_b32 s{sKCW}, s{sKCX}, 1')
    a(f's_lshl_b32 s{sL}, s{sKCX}, 7')
    a.wait(lgkm=0)
    srd(a, sX, 4, 2048*1024)

def phaseA_setup1b(a, dft):
    if dft:
        srd(a, sG, 8, 512*1024); srd(a, sU, 10, 512*1024, 2048)
    else:
        srd(a, sG, 12, 512*3584); srd(a, sU, 14, 512*3584, 2048)

def phaseA_setup2(a, dft):
    srd(a, sWS, 78, WS_BYTES)
    a(f's_cmp_eq_u32 s2, 0')
    a(f's_cselect_b32 s{sT+1}, 208, 0')
    a(f's_cselect_b32 s{sT+2}, 1, 0')
    a(f'v_mov_b32 v10, {OOB}')
    a(f'v_lshlrev_b32 v8, 7, v0')
    a(f'v_cmp_gt_u32 vcc, s{sT+1}, v0')
    a(f'v_mov_b32 v11, 0')
    a(f'v_mov_b32 v12, 1')
    a(f'v_cndmask_b32 v8, v10, v8, vcc')
    a(f'v_cmp_gt_u32 vcc, s{sT+2}, v0')
    a(f's_mov_b32 s{sT+3}, {FL_OFF}')
    z = a(f'buffer_store_dword v11, v8, s[{sWS}:{sWS+3}], s{sT+3} offen sc1')
    a(f'v_cndmask_b32 v9, v10, v11, vcc')
    srd(a, sWD, 72, 1792*1024)
    srd(a, sOUT, 74, 2048*1024)
    srd(a, sDBG, 76, 256)
    a(f'v_lshrrev_b32 v4, 1, v{vN}')
    a(f'v_xor_b32 v4, v4, v{vG}')
    a(f'v_lshlrev_b32 v4, 4, v4')
    a(f'v_lshl_add_u32 v{vXA}, v{vN}, 7, v4')
    a(f'v_xor_b32 v{vXA+1}, 64, v{vXA}')
    a(f'v_bfe_u32 v4, v{vLANE}, 2, 2')
    a(f'v_and_b32 v7, 3, v{vLANE}')
    a(f'v_lshlrev_b32 v7, 3, v7')
    a(f'v_and_b32 v5, 1, v{vG}')
    a(f'v_lshl_add_u32 v5, v5, 2, v4')
    a(f's_lshl_b32 s{sT}, s{sW}, 1')
    a(f'v_xor_b32 v5, s{sT}, v5')
    a(f'v_lshl_add_u32 v5, v5, 5, v7')
    a(f'v_lshl_add_u32 v5, v4, 8, v5')
    a(f'v_lshl_add_u32 v5, v{vG}, 12, v5')
    a(f'v_add_u32 v{vWA}, {4*UN}, v5')
    a(f'v_xor_b32 v{vWA+1}, 32, v{vWA}')
    a(f'v_add_u32 v{vWA+2}, {4*UN}, v{vWA}')
    a(f'v_add_u32 v{vWA+3}, {4*UN}, v{vWA+1}')
    a(f'v_bfe_u32 v5, v{vLANE}, 3, 2')
    a(f'v_lshl_add_u32 v5, v5, 5, v7')
    a(f'v_lshrrev_b32 v6, 2, v{vLANE}')
    a(f'v_lshl_add_u32 v5, v6, 7, v5')
    a(f'v_add_u32 v{vTR}, s{sM0}, v5')
    for c in (1,2,3): a(f'v_xor_b32 v{vTR+c}, {32*c}, v{vTR}')
    for wnd in (1,2):
        for c in range(4): a(f'v_add_u32 v{vTR+4*wnd+c}, {wnd*4*UN}, v{vTR+c}')
    if C.bmap == 0:
        a(f's_and_b32 s{sR}, s2, 7')
        a(f's_lshl_b32 s{sR}, s{sR}, 2')
        a(f's_bfe_u32 s{sT}, s2, {3|(2<<16)}')
        a(f's_add_u32 s{sR}, s{sR}, s{sT}')
        a(f's_lshr_b32 s{sCB}, s2, 5')
    else:
        a(f's_bfe_u32 s{sR}, s2, {1|(2<<16)}')
        a(f's_lshl_b32 s{sR}, s{sR}, 3')
        a(f's_bfe_u32 s{sT}, s2, {3|(3<<16)}')
        a(f's_add_u32 s{sR}, s{sR}, s{sT}')
        a(f's_lshr_b32 s{sCB}, s2, 6')
        a(f's_and_b32 s{sT}, s2, 1')
        a(f's_lshl_b32 s{sT}, s{sT}, 2')
        a(f's_add_u32 s{sCB}, s{sCB}, s{sT}')
        a(f's_add_u32 s{sCB}, s{sCB}, 6')
        a(f's_and_b32 s{sCB}, s{sCB}, 7')
    a(f's_mul_i32 s{sT}, s{sW}, {448*1024}')
    a(f's_lshl_b32 s{sT+1}, s{sCB}, 7')
    a(f's_add_u32 s{sT}, s{sT}, s{sT+1}')
    a(f'v_lshrrev_b32 v4, 3, v{vLANE}')
    a(f'v_lshl_add_u32 v4, v4, 10, s{sT}')
    a(f'v_and_b32 v5, 7, v{vLANE}')
    a(f'v_lshlrev_b32 v6, 1, v{vG}')
    a(f'v_xor_b32 v5, v5, v6')
    a(f'v_lshl_add_u32 v{vD}, v5, 4, v4')
    for q in (1,2,3): a(f'v_add_u32 v{vD+q}, {q*7168}, v{vD}')
    a(f's_mov_b32 s{sMSK}, 0xffff0000')
    a(f's_lshl_b32 s{sT}, s2, 2')
    a(f's_add_u32 s{sT}, s{sT}, s{sW}')
    a(f's_mul_i32 s{sT}, s{sT}, {14*128}')
    a(f'v_min_u32 v8, 13, v{vLANE}')
    a(f'v_lshl_add_u32 v8, v8, 7, s{sT}')
    if C.l2s:
        a(f's_mul_i32 s{sT}, s{sW}, {448*1024}')
        a(f's_lshr_b32 s{sT+1}, s2, 3')
        a(f's_lshl_b32 s{sT+1}, s{sT+1}, 11')
        a(f's_add_u32 s{sT}, s{sT}, s{sT+1}')
        a(f'v_lshl_add_u32 v15, v{vN}, 7, s{sT}')
        if C.l2w > 1:
            a(f'v_and_b32 v4, {C.l2w-1}, v{vG}')
            a(f'v_lshl_add_u32 v15, v4, 16, v15')
        a(f'v_mov_b32 v10, v15')
    a(f'v_and_b32 v4, 3, v{vLANE}')
    a(f'v_cmp_eq_u32 s[{sM1}:{sM1+1}], 1, v4')
    a(f'v_cmp_eq_u32 s[{sM2}:{sM2+1}], 2, v4')
    a(f'v_cmp_eq_u32 s[{sM3}:{sM3+1}], 3, v4')
    a(f'v_lshrrev_b32 v4, 2, v{vN}')
    a(f'v_cmp_eq_u32 s[{sMV}:{sMV+1}], v4, v{vG}')
    a(f'v_mov_b32 v4, 0x3f803f80')
    for d in range(4): a(f'v_accvgpr_write_b32 a{aONE+d}, v4')
    a(f'v_add_u32 v{vOA}, s{sM0}, v{vXA}')
    a(f'v_add_u32 v{vOA+1}, s{sM0}, v{vXA+1}')
    a(f's_lshr_b32 s{sT}, s2, 3')
    a(f's_xor_b32 s{sT}, s{sT}, s2')
    a(f's_bfe_u32 s{sT+1}, s{sT}, {4|(1<<16)}')
    a(f's_bfe_u32 s{sT}, s{sT}, {2|(1<<16)}')
    a(f's_lshl_b32 s{sT+1}, s{sT+1}, 1')
    a(f's_add_u32 s{sSET}, s{sT}, s{sT+1}')
    a(f's_lshl_b32 s{sT+2}, s{sSET}, 10')
    a(f's_mov_b32 s{sT}, s{sW}')
    if dft:
        a(f's_lshl_b32 s{sT+1}, s{sW}, 1')
        a(f's_and_b32 s{sT+1}, s{sT+1}, 2')
        a(f's_xor_b32 s{sT+1}, s{sT+1}, s{sW}')
        a(f's_cmp_eq_u32 s{sI}, 0')
        a(f's_cselect_b32 s{sT}, s{sW}, s{sT+1}')
    a(f's_lshl_b32 s{sXS}, s{sI}, 2')
    a(f's_add_u32 s{sXS}, s{sXS}, s{sT}')
    a(f's_lshl_b32 s{sXS}, s{sXS}, 12')
    a(f's_add_u32 s{sXS}, s{sXS}, s{sT+2}')
    a(f's_add_u32 s{sXS}, s{sXS}, {XS_OFF}')
    a(f's_lshl_b32 s{sCS}, s{sJ}, 14')
    a(f's_add_u32 s{sCS}, s{sCS}, s{sM0}')
    a(f's_add_u32 s{sCS}, s{sCS}, s{sT+2}')
    a(f's_add_u32 s{sCS}, s{sCS}, {CS_OFF}')
    return z

def coef_ops():
    r = []; a = r.append
    T = vACC+16
    a(f's_lshr_b32 s{sT}, s{sR}, 1')
    a(f's_sub_u32 s{sT+1}, 32, s{sT}')
    a(f's_cmp_eq_u32 s{sT}, 0')
    a(f's_cselect_b32 s{sT+1}, 16, s{sT+1}')
    a(f's_bitcmp1_b32 s{sR}, 0')
    a(f's_cselect_b32 s{sP}, s{sT+1}, s{sT}')
    a(f's_sub_u32 s{sT+1}, 64, s{sP}')
    a(f's_cmp_eq_u32 s{sP}, 0')
    a(f's_cselect_b32 s{sT+1}, 32, s{sT+1}')
    a(f's_and_b32 s{sOWN}, s{sCB}, {1 if C.hrot else 0}')
    a(f's_lshl_b32 s{sOWN}, s{sOWN}, 1')
    a(f's_xor_b32 s{sOWN}, s{sOWN}, s{sW}')
    a(f's_bitcmp1_b32 s{sOWN}, 1')
    a(f's_cselect_b32 s{sT+2}, s{sT+1}, s{sP}')
    a(f's_cselect_b32 s{sT+10}, 1.0, -1.0')
    a(f's_cmp_eq_u32 s{sP}, 0')
    a(f's_cselect_b32 s{sT+10}, 0, s{sT+10}')
    a(f's_cmp_eq_u32 s{sT+2}, 32')
    a(f's_cselect_b32 s{sT+9}, 0, 1.0')
    a(f's_cselect_b32 s{sT+11}, 1.0, 0')
    a(f's_cmp_ge_u32 s{sCB}, 4')
    a(f's_cselect_b32 s{sT+8}, 0, 0x80008000')
    a(f's_and_b32 s{sT}, s{sOWN}, 1')
    a(f's_lshl_b32 s{sT}, s{sT}, 10')
    a(f's_add_u32 s{sT+2}, s{sT+2}, s{sT}')
    a(f'v_lshl_add_u32 v7, v{vN}, 6, s{sT+2}')
    a(f'v_cvt_f32_u32 v5, v7')
    a(f'v_cvt_f32_u32 v4, v{vG}')
    a(f'v_mul_f32 v5, {f2u(1/2048):#x}, v5')
    a(f'v_cmp_eq_u32 vcc, 0, v{vG}')
    a(f's_lshl_b32 s{sT+1}, s{sCB}, 7')
    a(f'v_lshl_add_u32 v7, v7, 10, s{sT+1}')
    a(f'v_and_b32 v6, 1, v{vG}')
    a(f'v_lshl_add_u32 v7, v6, 5, v7')
    a(f'v_lshrrev_b32 v6, 1, v{vG}')
    a(f'v_lshl_add_u32 v{vOUT}, v6, 4, v7')
    a(f'v_mov_b32 v7, {f2u(16.0):#x}')
    for kp in range(4):
        for z in range(2):
            if z == 0: a(f'v_add_f32 v6, {f2u(4.0*kp):#x}, v4')
            else:
                a(f'v_sub_f32 v6, {f2u(32.0-4*kp):#x}, v4')
                if kp == 0: a(f'v_cndmask_b32 v6, v6, v7, vcc')
            a(f'v_mul_f32 v6, v6, v5')
            a(f'v_cos_f32 v{T}, v6')
            a(f'v_sin_f32 v{T+1}, v6')
            a(f'v_mul_f32 v{T+2}, s{sT+9}, v{T}')
            a(f'v_mul_f32 v{T+3}, s{sT+11}, v{T}')
            a(f'v_fmac_f32 v{T+3}, s{sT+10}, v{T+1}')
            a(f'v_mul_f32 v{T+4}, s{sT+9}, v{T+1}')
            a(f'v_mul_f32 v{T+5}, s{sT+11}, v{T+1}')
            a(f'v_fma_f32 v{T+5}, -v{T}, s{sT+10}, v{T+5}')
            a(f'v_cvt_pk_bf16_f32 v{T+2}, v{T+2}, v{T+3}')
            a(f'v_cvt_pk_bf16_f32 v{T+4}, v{T+4}, v{T+5}')
            a(f'v_accvgpr_write_b32 a{aCF+4*kp+2*z}, v{T+2}')
            a(f'v_xor_b32 v{T+4}, s{sT+8}, v{T+4}')
            a(f'v_accvgpr_write_b32 a{aCF+4*kp+2*z+1}, v{T+4}')
    if C.drot: a(f's_and_b32 s{sROT}, s{sR}, 1'); a(f's_mul_i32 s{sROT}, s{sROT}, {7*32768}')
    else: a(f's_mov_b32 s{sROT}, 0')
    return r

def dft_R_ops():
    rr = []
    T = 104
    for jb in range(4):
        r = []; a = r.append; rr.append(r)
        a(f'v_lshrrev_b32 v6, 1, v{vN}')
        a(f'v_add_u32 v6, {8*jb}, v6')
        a(f'v_and_b32 v7, 1, v{vN}')
        if jb == 0:
            a(f'v_cmp_eq_u32 vcc, 1, v{vN}')
            a(f'v_mov_b32 v4, 32')
            a(f'v_cvt_f32_u32 v5, v{vG}')
            a(f'v_cndmask_b32 v6, v6, v4, vcc')
            a(f'v_cndmask_b32 v7, v7, v11, vcc')
            a(f'v_mul_f32 v5, {f2u(8.0):#x}, v5')
        a(f'v_cvt_f32_u32 v6, v6')
        a(f'v_cvt_f32_u32 v7, v7')
        a(f'v_mul_f32 v6, {f2u(1/64):#x}, v6')
        a(f'v_mul_f32 v7, {f2u(-0.25):#x}, v7')
        a(f'v_fma_f32 v7, v5, v6, v7')
        for q in range(2):
            for e in range(8):
                s1 = 2*(16*(e>>2)+(e&3))+q
                a(f'v_fmamk_f32 v{T+e}, v6, {f2u(float(s1)):#x}, v7')
            for e in range(8): a(f'v_cos_f32 v{T+e}, v{T+e}')
            for d in range(4): a(f'v_cvt_pk_bf16_f32 v{T+8+d}, v{T+2*d}, v{T+1+2*d}')
            for d in range(4): a(f'v_accvgpr_write_b32 a{aR+8*jb+4*q+d}, v{T+8+d}')
    return rr

vSXo, vSQo = 96, 120
def stats_reads(n):
    return [f'ds_read_b128 {ar(aSX+4*o,4)}, v{vOA+(n&1)} offset:{(n>>1)*UN+o*2048}' for o in range(2)]
def stats_mfma(dft, n):
    r = []
    def mf(c, x, y): r.append(f'{MF} {vr(c,4)}, {x}, {y}, {vr(c,4) if n else 0}')
    for o in range(2):
        mf(vSXo+4*o, ar(aONE,4), ar(aSX+4*o,4))
        mf(vSQo+4*o, ar(aSX+4*o,4), ar(aSX+4*o,4))
    if not dft:
        for wf in range(4): mf(vCS+4*wf, ar(aONE,4), vr(fW(n&1,wf),4))
    return r
def stats_pack_ops(dft):
    r = []; a = r.append
    a(f'v_lshlrev_b32 v4, 4, v{vN}')
    a(f'v_mov_b32 v10, {OOB}')
    a(f'v_mov_b32 v{vSXo+2}, v{vSXo+4}')
    a(f'v_cndmask_b32 v4, v10, v4, s[{sMV}:{sMV+1}]')
    for o in range(2):
        sq = vSQo+4*o
        a(f'v_cndmask_b32 v{sq}, v{sq}, v{sq+1}, s[{sM1}:{sM1+1}]')
        a(f'v_cndmask_b32 v{sq}, v{sq}, v{sq+2}, s[{sM2}:{sM2+1}]')
        a(f'v_cndmask_b32 v{vSXo+1+2*o}, v{sq}, v{sq+3}, s[{sM3}:{sM3+1}]')
    if not dft:
        a(f'v_lshlrev_b32 v5, 2, v{vLANE}')
        for g, m in ((1,sM1),(2,sM2),(3,sM3)): a(f'v_cmp_eq_u32 s[{m}:{m+1}], {g}, v{vG}')
        for g, m in ((1,sM1),(2,sM2),(3,sM3)): a(f'v_cndmask_b32 v{vCS}, v{vCS}, v{vCS+4*g}, s[{m}:{m+1}]')
    a(f's_add_u32 s{sT+6}, s{sXS}, s{sL}')
    a(f's_add_u32 s{sT+7}, s{sCS}, s{sL}')
    return r
def stats_addr_ops():
    r = []; a = r.append
    a(f's_add_u32 s{sT}, s{sJ}, 16')
    a(f's_lshl_b32 s{sT+8}, s{sSET}, 7')
    a(f'v_mov_b32 v7, s{sI}')
    a(f'v_and_b32 v6, 1, v0')
    a(f'v_cmp_eq_u32 vcc, 1, v6')
    a(f'v_mov_b32 v6, s{sT}')
    a(f's_add_u32 s{sT+8}, s{sT+8}, {FLS_OFF}')
    a(f'v_cndmask_b32 v7, v7, v6, vcc')
    a(f'v_cmp_gt_u32 vcc, 2, v0')
    a(f'v_lshlrev_b32 v7, 9, v7')
    a(f'v_lshlrev_b32 v15, 4, v{vLANE}')
    a(f'v_cndmask_b32 v6, v10, v7, vcc')
    return r
def stats_reduce_ops(dft):
    r = []; a = r.append
    a(f's_lshl_b32 s{sT}, s{sW}, {7 if dft else 9}')
    a(f's_add_u32 s{sT}, s{sT}, {LST}')
    a(f'v_permlane32_swap_b32 v96, v98')
    a(f'v_permlane32_swap_b32 v97, v99')
    if not dft:
        a(f'v_permlane32_swap_b32 v112, v114')
        a(f'v_permlane32_swap_b32 v113, v115')
    a(f'v_add_f32 v100, v96, v98')
    a(f'v_add_f32 v101, v97, v99')
    a(f'v_add_f32 v96, v96, v98')
    a(f'v_add_f32 v97, v97, v99')
    if not dft:
        a(f'v_add_f32 v112, v112, v114')
        a(f'v_add_f32 v113, v113, v115')
    a(f'v_lshrrev_b32 v14, 1, v{vG}')
    a(f'v_lshl_add_u32 v14, v14, 4, v{vN}')
    a(f'v_permlane16_swap_b32 v96, v100')
    a(f'v_permlane16_swap_b32 v97, v101')
    if not dft: a(f'v_permlane16_swap_b32 v112, v113')
    a(f'v_lshl_add_u32 v14, v14, {2 if dft else 4}, s{sT}')
    a(f'v_add_f32 v96, v96, v100')
    a(f'v_add_f32 v97, v97, v101')
    if not dft:
        a(f'v_add_f32 v98, v112, v113')
        a(f's_lshl_b32 s{sT}, s{sW}, 8')
        a(f's_add_u32 s{sT}, s{sT}, {LST+4096}')
        a(f'v_lshl_add_u32 v8, v{vN}, 2, v{vG}')
        a(f'v_lshl_add_u32 v8, v8, 2, s{sT}')
        a(f'v_lshl_add_u32 v9, v{vG}, 4, s{sT}')
    a(f'v_mul_f32 v4, {f2u(-1/512):#x}, v96')
    a(f'v_mul_f32 v97, {f2u(1/512):#x}, v97')
    a(f'v_fma_f32 v97, -v4, v4, v97')
    a(f'v_max_f32 v97, 0, v97')
    a(f'v_add_f32 v97, {f2u(1e-5):#x}, v97')
    a(f'v_rsq_f32 v7, v97')
    if dft: a(f'v_lshlrev_b32 v15, 4, v{vG}')
    else:
        a(f'v_sqrt_f32 v5, v97')
        a(f'v_mul_f32 v6, {f2u(-LOG2E):#x}, v7')
        a(f'v_lshlrev_b32 v15, 4, v{vN}')
    w = []
    if dft: w.append(f'ds_write_b32 v14, v7')
    else:
        w.append(f'ds_write_b32 v8, v98')
        w.append(f'ds_write_b128 v14, v[4:7]')
        w += [f'ds_read_b128 {vr(vCS+4*wf,4)}, v9 offset:{64*wf}' for wf in range(4)]
    return r, w
vREC = vWF
def rec(tf): return (vWF+4*tf) if tf < 4 else (vWF+4*tf)
def rec_read(tf, dft):
    return f'ds_read_b128 {vr(rec(tf),4)}, v15 offset:{LST+(64 if dft else 256)*tf}'

def phaseA_main(a, dft, q):
    tag = 'd' if dft else 'g'
    assert C.rot == 1 and C.fine >= 4
    master = []
    for n in range(16):
        if n % 2 == 0: master.append(('X', n >> 1))
        master.append(('W', n))
        if n == 3 and C.touch: master.append(('T', 0))
        if n == 5: master.append(('F', 0))
    dbgld = f'buffer_load_dword v{vDBG}, v11, s[{sDBG}:{sDBG+3}], 0 offen sc1'
    def items(t):
        if t[0] == 'X': return dma_X(t[1])
        if t[0] == 'W': return dma_W(t[1])
        if t[0] == 'T': return [(t, [], f'buffer_load_dword v14, v8, s[{sWD}:{sWD+3}], 0 offen')]
        return [(t, [], dbgld)]
    cnt = {}; c = 0
    for t in master: c += len(items(t)); cnt[t] = c
    def enqueue(nb):
        while master:
            t = master[0]
            if t[0] == 'W' and t[1]-6 > nb: break
            if t[0] == 'X' and t[1] >= 4 and t[1]-4 > (nb >> 1)-1: break
            q.pend += items(master.pop(0))
    def front(its):
        k = 1 if q.predone else 0
        q.pend[k:k] = its; q.limit += len(its)
        for t in cnt: cnt[t] += len(its)
    bars = {n: C.bar for n in range(C.fine)}
    bars.update({n: C.bar2 for n in range(C.fine, 15) if n & 1})
    def upto(n):
        m = n+1
        while m < 15 and m not in bars: m += 1
        return m
    def setlimit(n):
        q.limit = cnt[('W', upto(n))] + C.cap if (n in bars and n < C.capn) else 10**9
    enqueue(-1)
    q.issue(4)
    phaseA_setup1b(a, dft)
    q.issue(6)
    stamp(a)
    z = phaseA_setup2(a, dft)
    for t in coef_ops(): a(t)
    rops = dft_R_ops() if dft else [[]]*4
    q.issue(C.cap-2)
    stamp(a)
    q.need(('W',0))
    a('s_barrier')
    stamp(a)
    setlimit(0)
    wr = w_reads(0)
    a(wr[0]); a(wr[1]); a(x_read(0))
    for t in wr[2:]: a(t)
    a(x_read(1)); a(x_read(2))
    for t in stats_reads(0): a(t)
    fq = []
    red, redw = stats_reduce_ops(dft)
    spoll = f'buffer_load_dword v{vDBG}, v7, s[{sWS}:{sWS+3}], s{sT+8} offen sc1'
    for n in range(16):
        s, p = n >> 1, n & 1
        wr = w_reads(n+1) if n < 15 else []
        bar_tf = bars.get(n)
        if n == 0: fq += rops[0] + rops[1]
        if n == 1: fq += rops[2] + rops[3]
        if n == C.spoll: front([(('P',0), [], spoll)])
        if n == 11: fq += red
        for tf in range(8):
            k = 8*n+tf; q.pos = k
            can_w = bar_tf is None or tf > bar_tf
            dmax = min(C.rd0, len([1 for u in range(14) if [pp for t,pp in q.log if t == ('D',u)][3:] and [pp for t,pp in q.log if t == ('D',u)][3]+C.dlag <= k]))
            def other(cnt_):
                for _ in range(cnt_):
                    if can_w and wr: a(wr.pop(0))
                    elif fq: a(fq.pop(0))
                    elif q.read1(dmax): pass
            def flush():
                while fq: a(fq.pop(0))
            if n == 4 and tf == 0:
                flush()
                its = [(('S',0), [], f'buffer_store_dwordx4 {vr(vSXo,4)}, v4, s[{sWS}:{sWS+3}], s{sT+6} offen sc1')]
                if not dft: its.append((('S',0), [], f'buffer_store_dword v{vCS}, v5, s[{sWS}:{sWS+3}], s{sT+7} offen sc1'))
                front(its)
                fq += stats_addr_ops()
            for wf in range(4):
                c = vr(acc(tf,wf),4); wfr = vr(fW(p,wf),4); xf = vr(fX(k),4)
                src = f'{xf}, {wfr}' if dft else f'{wfr}, {xf}'
                a(f'{MF} {c}, {src}, {c if n else 0}')
                if wf == 0:
                    if k+3 < 128: a(x_read(k+3)); other(1)
                    else: other(2)
                elif wf == 1:
                    if q.haspre(): q.pre()
                    else: other(2)
                elif wf == 2:
                    if q.ready() and not q.haspre(): q.issue(1)
                    else: other(2)
                elif tf != bar_tf: other(1)
                else:
                    m = upto(n)
                    q.limit = 10**9
                    while [1 for t in q.pend if t[0] == ('W', m)]: q.issue(1)
                    if n in (0, 1, 3, 5): flush()
                    if n < 4:
                        for t in stats_mfma(dft, n): a(t)
                    q.need(('W', m))
                    if n == 5:
                        q.need(('S',0))
                        a(f'v_readfirstlane_b32 s{sT+13}, v{vDBG}')
                        a(f's_cmp_lg_u32 s{sT+13}, 0')
                        a(f's_cbranch_scc1 L{tag}i_ok')
                        spin(a, tag+'i', dbgld, [f'v_readfirstlane_b32 s{sT+13}, v{vDBG}', 's_nop 3', f's_cmp_lg_u32 s{sT+13}, 0'], sT+14)
                    if n == 9:
                        q.need(('P',0))
                        a(f'v_cmp_ne_u32 vcc, 4, v{vDBG}')
                        a(f's_cmp_eq_u64 vcc, 0')
                        a(f's_cbranch_scc1 L{tag}s_ok')
                        spin(a, tag+'s', spoll, [f'v_cmp_ne_u32 vcc, 4, v{vDBG}', 's_nop 3', 's_cmp_eq_u64 vcc, 0'], sT+14)
                    a('s_barrier')
                    if n == 0:
                        assert z not in a.vm
                        a(f'buffer_store_dword v12, v9, s[{sDBG}:{sDBG+3}], 0 offen sc1')
                    if n == 5: a(f'buffer_atomic_add v12, v6, s[{sWS}:{sWS+3}], s{sT+8} offen sc1')
                    if n in (1,3,7,11,13): stamp(a)
                    enqueue(n); setlimit(m)
                    if n < 3: wr += stats_reads(n+1)
                    if n == 3: fq += stats_pack_ops(dft)
                    if n == 9:
                        g = [(('A',0), [], f'buffer_load_dwordx4 {vr(96+4*c4,4)}, v15, s[{sWS}:{sWS+3}], s{sXS} offen offset:{1024*c4} sc1') for c4 in range(1)]
                        if not dft: g += [(('A',0), [], f'buffer_load_dwordx4 {vr(112+4*c4,4)}, v15, s[{sWS}:{sWS+3}], s{sCS} offen offset:{1024*c4} sc1') for c4 in range(1)]
                        front(g)
                    for nn, up in WD_AVAIL.items():
                        if nn <= n and not master: q.addD(up)
                    if n == 13: fq += redw
            if n == 10 and tf == 0: assert not [1 for t in q.pend if t[0] == ('A',0)]
            if n == 15 and tf == 6:
                flush()
                a.wait(lgkm=0)
                a('s_barrier')
                for t4 in range(4): a(rec_read(t4, dft))
                q.addD(14)
        assert not wr, (n, wr)
    for t4 in range(4, 8): a(rec_read(t4, dft))
    q.pos = 128
    if C.log: print(tag, ' '.join(f'{t[0]}{t[1]}@{p//8}.{p%8}' for t,p in q.log), 'reads left', len(q.rq), file=sys.stderr)
    q.readD(C.rd0)
    assert len(q.rq) == 8*(14-C.rd0)
    while len(q.pend) > C.dleft: q.issue(1)
    assert len(q.pend) == C.dleft, len(q.pend)

def glu_epilogue(a, q):
    a(f's_lshl_b32 s{sT}, s{sI}, 3')
    a(f's_mul_i32 s{sT}, s{sT}, {56*1024}')
    a(f's_lshl_b32 s{sT+1}, s{sJ}, 2')
    a(f's_add_u32 s{sT+1}, s{sT+1}, s{sW}')
    a(f's_lshl_b32 s{sT+1}, s{sT+1}, 10')
    a(f's_add_u32 s{sT+4}, s{sT}, s{sT+1}')
    a(f'v_lshlrev_b32 v5, 4, v{vLANE}')
    for tf in range(8):
        R = rec(tf); G = acc(tf,0); U = acc(tf,2); hb = vOWN+4*(tf&1)
        ms = vr(R,2); ar_ = vr(R+2,2)
        for r in range(0,8,2): a(f'v_pk_fma_f32 {vr(G+r,2)}, {vr(vCS+r,2)}, {ms}, {vr(G+r,2)} op_sel_hi:[1,0,1]')
        for r in range(0,8,2): a(f'v_pk_mul_f32 {vr(G+r,2)}, {vr(G+r,2)}, {ar_} op_sel_hi:[1,0]')
        for r in range(8):
            a(f'v_exp_f32 v{G+r}, v{G+r}')
            if tf == 0 and r == 5: a.wait(lgkm=0)
        for r in range(0,8,2): a(f'v_pk_fma_f32 {vr(U+r,2)}, {vr(vCS+8+r,2)}, {ms}, {vr(U+r,2)} op_sel_hi:[1,0,1]')
        for r in range(0,8,2): a(f'v_pk_fma_f32 {vr(G+r,2)}, {vr(G+r,2)}, {ms}, {ms} op_sel:[0,1,1] op_sel_hi:[1,1,1]')
        q.issue(C.epi_dma)
        for r in range(8): a(f'v_rcp_f32 v{G+r}, v{G+r}')
        if tf: a(f's_add_u32 s{sT+4}, s{sT+4}, {56*1024}')
        for r in range(0,8,2): a(f'v_pk_mul_f32 {vr(U+r,2)}, {vr(U+r,2)}, {vr(G+r,2)}')
        for d in range(4): a(f'v_cvt_pk_bf16_f32 v{hb+d}, v{U+2*d}, v{U+2*d+1}')
        last = a(f'buffer_store_dwordx4 {vr(hb,4)}, v5, s[{sWS}:{sWS+3}], s{sT+4} offen sc1')
    a(f's_lshl_b32 s{sT+12}, s{sI}, 9')
    a(f's_add_u32 s{sT+12}, s{sT+12}, {FL_OFF}')
    a(f'v_cmp_gt_u32 vcc, 4, v0')
    a(f'v_mov_b32 v10, {OOB}')
    a(f'v_lshlrev_b32 v11, 7, v0')
    a(f'v_cndmask_b32 v16, v10, v11, vcc')
    return last

def dft_epilogue(a, q):
    a(f's_lshl_b32 s{sT}, s{sI}, 12')
    a(f's_sub_u32 s{sT+1}, s{sJ}, 14')
    a(f's_lshl_b32 s{sT+1}, s{sT+1}, 11')
    a(f's_add_u32 s{sT}, s{sT}, s{sT+1}')
    a(f's_lshl_b32 s{sT+1}, s{sW}, 9')
    a(f's_add_u32 s{sT}, s{sT}, s{sT+1}')
    a(f'v_lshl_add_u32 v5, v{vN}, 4, s{sT}')
    a(f'v_lshl_add_u32 v5, v{vG}, 17, v5')
    ZB = [96, 112, 48, 64]
    Z = lambda b, wf: ZB[b]+4*wf
    for tf in range(8):
        for wf in range(4):
            A = acc(tf,wf)
            for r in (0,2): a(f'v_pk_mul_f32 {vr(A+r,2)}, {vr(A+r,2)}, {vr(rec(tf)+r,2)}')
        for wf in range(4):
            A = acc(tf,wf)
            for d in range(2): a(f'v_cvt_pk_bf16_f32 v{Z(tf>>1,wf)+2*(tf&1)+d}, v{A+2*d}, v{A+2*d+1}')
        if tf == 0: a.wait(lgkm=0); a('s_nop 0')
        q.issue(C.epi_dma)
    D2 = lambda jb,z,wf: vACC+32*jb+16*z+4*wf
    def stores(jb):
        out = []
        for rp in range(2):
            for fb in range(2):
                t = 80+4*(2*rp+fb)
                for z in range(2):
                    for m in range(2): out.append(f'v_cvt_pk_bf16_f32 v{t+2*z+m}, v{D2(jb,z,2*m+fb)+2*rp}, v{D2(jb,z,2*m+fb)+2*rp+1}')
                if fb == 0: out.append(f's_mov_b32 s{sT+2}, {G_OFF+(8*jb+rp)*65536}')
                out.append(f'buffer_store_dwordx4 {vr(t,4)}, v5, s[{sWS}:{sWS+3}], s{sT+2} offen offset:{256*fb} sc1')
        return out
    pend = []
    for jb in range(4):
        n = 0
        for qq in range(2):
            for z in range(2):
                for wf in range(4):
                    c = vr(D2(jb,z,wf),4)
                    a(f'{MF} {c}, {ar(aR+8*jb+4*qq,4)}, {vr(Z(2*z+qq,wf),4)}, {c if qq else 0}')
                    n += 1
                    if n >= 4:
                        for t in pend[:2]: a(t)
                        pend = pend[2:]
        assert not pend
        pend = stores(jb)
    for t in pend: last = a(t)
    a(f's_lshl_b32 s{sT+12}, s{sJ}, 7')
    a(f's_add_u32 s{sT+12}, s{sT+12}, {FLG_OFF-14*128}')
    a(f'v_cmp_gt_u32 vcc, 8, v0')
    a(f'v_mov_b32 v10, {OOB}')
    a(f'v_lshlrev_b32 v11, 8, v0')
    a(f'v_cndmask_b32 v16, v10, v11, vcc')
    return last

def spin(a, tag, load, test, cnt):
    a(f's_mov_b32 s{cnt}, 0')
    a.label(f'L{tag}_spin')
    for t in [load, f's_add_u32 s{cnt}, s{cnt}, 1', 's_waitcnt vmcnt(0)'] + test + [f's_cbranch_scc1 L{tag}_ok', 's_sleep 2', f's_cmp_lt_u32 s{cnt}, 0x100000', f's_cbranch_scc1 L{tag}_spin']:
        a.raw('    '+t)
    a.label(f'L{tag}_ok')

def phaseB(a, q, last):
    vHA, vPR, vGA = 14, 18, 26
    PW = [15, 20, 21]
    vXS, vH, NH, vPS, vAC = 64, 128, 16, 80, 192
    LGF = 3*UN
    stamp(a)
    q.issue(99)
    assert not q.pend
    for pr in range(2): a(f'buffer_load_dwordx4 {vr(48+4*pr,4)}, v{vOUT}, s[{sX}:{sX+3}], 0 offen offset:{64*pr}')
    q.readD(C.rd1)
    a(f'v_mov_b32 v11, 0')
    a(f'v_mov_b32 v17, 1')
    a(f's_lshr_b32 s{sT}, s{sR}, 1')
    a(f's_lshl_b32 s{sT}, s{sT}, 2')
    a(f's_and_b32 s{sT+1}, s{sCB}, 3')
    a(f's_add_u32 s{sT}, s{sT}, s{sT+1}')
    a(f's_lshl_b32 s{sT+15}, s{sT}, 7')
    a(f's_add_u32 s{sT+15}, s{sT+15}, {FL_OFF}')
    a(f'v_cmp_eq_u32 vcc, 0, v0')
    a(f'v_mov_b32 v7, {OOB}')
    a(f'v_cndmask_b32 v9, v7, v11, vcc')
    a(f's_and_b32 s{sKX}, s2, 7')
    a(f's_lshl_b32 s{sKX}, s{sKX}, 8')
    a(f's_add_u32 s{sKX}, s{sKX}, {FLG_OFF}')
    a(f'v_and_b32 v8, 1, v{vLANE}')
    a(f'v_lshlrev_b32 v8, 7, v8')
    a(f'v_lshlrev_b32 v{vHA}, 4, v{vLANE}')
    a(f's_lshr_b32 s{sT+8}, s{sROT}, 5')
    a(f's_lshl_b32 s{sT+9}, s{sT+8}, 1')
    a(f's_sub_u32 s{sT+9}, {3*1024}, s{sT+9}')
    for sl in range(4):
        a(f's_xor_b32 s{sT}, s{sOWN}, {3-sl}')
        a(f's_lshl_b32 s{sT+1}, s{sR}, 2')
        a(f's_add_u32 s{sT+1}, s{sT+1}, s{sT}')
        a(f's_lshl_b32 s{sT+1}, s{sT+1}, 2')
        a(f's_add_u32 s{sT+1}, s{sT+1}, s{sW}')
        a(f's_mul_i32 s{sT+1}, s{sT+1}, {14*1024}')
        a(f's_add_u32 s{sT+4+sl}, s{sT+1}, s{sT+8}')
        a(f's_mul_i32 s{sT+1}, s{sT}, {3*4096}')
        if sl in (1, 2): a(f's_add_u32 s{sT+1}, s{sT+1}, {sl*4096}')
        a(f'v_add_u32 v{(PW+[vPR])[sl]}, s{sT+1}, v{vHA}')
    a(f's_lshl_b32 s{sT}, s{sP}, 16')
    a(f's_lshl_b32 s{sT+1}, s{sW}, 14')
    a(f's_add_u32 s{sT}, s{sT}, s{sT+1}')
    a(f's_add_u32 s{sT}, s{sT}, {G_OFF}')
    a(f'v_lshl_add_u32 v4, v{vG}, 12, s{sT}')
    a(f's_lshl_b32 s{sT+1}, s{sCB}, 6')
    a(f'v_mov_b32 v7, {OOB}')
    for cbk in range(4):
        a(f'v_add_u32 v5, s{sT+1}, v{vN}')
        a(f'v_add_u32 v5, {16*cbk-256}, v5')
        a(f'v_sub_u32 v6, 0, v5')
        a(f'v_max_i32 v5, v5, v6')
        a(f'v_cmp_gt_u32 vcc, 0x100, v5')
        a(f'v_lshl_add_u32 v5, v5, 4, v4')
        a(f'v_subrev_u32 v4, 0x400, v4')
        a(f'v_cndmask_b32 v{vGA+cbk}, v7, v5, vcc')
    a(f's_add_u32 m0, s{sM0}, {LGF}')
    stamp(a)
    a.wait_vm_for(last)
    stamp(a)
    a('s_barrier')
    a(f'buffer_atomic_add v17, v16, s[{sWS}:{sWS+3}], s{sT+12} offen sc1')
    q.readD(14)
    for pr in range(2):
        for d in range(2): a(f'v_permlane16_swap_b32 v{48+4*pr+d}, v{48+4*pr+2+d}')
    for k in range(8):
        a(f'v_lshlrev_b32 v{vXS+2*k}, 16, v{48+k}')
        a(f'v_and_b32 v{vXS+2*k+1}, s{sMSK}, v{48+k}')
    a.wait(lgkm=0)
    stamp(a)
    a(f's_cmp_lg_u32 s{sW}, 0')
    a(f's_cbranch_scc1 Lh_ok')
    def pl(k):
        a.raw(f'    v_mov_b32 v{56+k}, 0')
        a.raw(f'    buffer_atomic_add v{56+k}, v9, s[{sWS}:{sWS+3}], s{sT+15} offen sc0 sc1')
    a(f's_mov_b32 s{sT+14}, 0')
    for k in range(C.infl-1):
        pl(k); a.raw(f'    s_sleep {C.pgap}')
    a.label('Lh_spin')
    for k in range(C.infl):
        pl((k+C.infl-1) % C.infl)
        for t in [f's_waitcnt vmcnt({C.infl-1})', f'v_readfirstlane_b32 s{sT+13}, v{56+k}', f's_add_u32 s{sT+14}, s{sT+14}, 1', 's_nop 2',
                  f's_cmp_eq_u32 s{sT+13}, 14', 's_cbranch_scc1 Lh_ok']: a.raw('    '+t)
    a.raw(f'    s_cmp_lt_u32 s{sT+14}, 0x100000')
    a.raw(f'    s_cbranch_scc1 Lh_spin')
    a.label('Lh_ok')
    a('s_barrier')
    stamp(a, 3)
    seq = [(sl, ks) for sl in range(4) for ks in range(14)]
    def hpre(n):
        sl, ks = seq[n]
        if ks in (4, 11): a(f's_add_u32 s{sT+4+sl}, s{sT+4+sl}, 4096')
        if ks == 7: a(f's_add_u32 s{sT+4+sl}, s{sT+4+sl}, s{sT+9}')
    def hload(n):
        sl, ks = seq[n]
        a(f'buffer_load_dwordx4 {vr(vH+4*(n%NH),4)}, v{vHA}, s[{sWS}:{sWS+3}], s{sT+4+sl} offen offset:{((ks%7)&3)*1024} sc1')
    gpoll = f'buffer_load_dword v10, v8, s[{sWS}:{sWS+3}], s{sKX} offen sc1'
    for n in range(C.look0): hpre(n); hload(n)
    AC = lambda sl,cbk: vAC+16*sl+4*cbk
    gl = [f'buffer_load_dwordx4 v{vGA+cbk}, s[{sWS}:{sWS+3}], 0 offen offset:{1024*cbk} sc1 lds' for cbk in range(4)]
    nl = C.look0
    fillers = []
    def fill(k):
        for _ in range(k):
            if fillers: a(fillers.pop(0))
    gchk = C.gp + C.look
    assert gchk+4 <= 44
    for n in range(56):
        sl, ks = seq[n]
        for cbk in range(4):
            c = vr(AC(sl,cbk),4)
            a(f'{MF} {c}, {ar(16*ks+4*cbk,4)}, {vr(vH+4*(n%NH),4)}, {c if ks else (vr(vXS+4*cbk,4) if sl == 3 else 0)}')
            if cbk == 0:
                if nl < 56: hpre(nl)
                else: fill(2)
                if n == gchk:
                    a(f'v_cmp_ne_u32 vcc, 16, v10')
                    a(f's_cmp_eq_u64 vcc, 0')
                    a(f's_cbranch_scc1 Lg_ok')
                    spin(a, 'g', gpoll, ['v_cmp_ne_u32 vcc, 16, v10', 's_nop 3', 's_cmp_eq_u64 vcc, 0'], sT+14)
            elif cbk == 1:
                if nl < 56: hload(nl); nl += 1
                else: fill(2)
            elif cbk == 2 and sl and 1 <= ks < 5:
                a(f'ds_write_b128 v{PW[sl-1]}, {vr(AC(sl-1,ks-1),4)} offset:{1024*(ks-1)}')
            elif cbk == 2 and sl == 3 and ks == 6:
                a.wait_vm_for(gdone); a.wait(lgkm=0); a('s_barrier')
                fillers = [f'ds_read_b128 {vr(vPS+4*k,4)}, v{vPR} offset:{1024*k}' for k in range(12)]
                fillers += [f'ds_read_b128 {ar(4*k,4)}, v{vHA} offset:{LGF+1024*k}' for k in range(16)]
                fillers += [f'v_add_f32 v{vPS+k}, v{vPS+k}, v{vPS+16+k}' for k in range(16)]
                fillers += [f'v_add_f32 v{vPS+k}, v{vPS+k}, v{vPS+32+k}' for k in range(16)]
            elif cbk == 3 and n == C.gp: a(gpoll)
            elif cbk == 3 and gchk <= n < gchk+4: gdone = a(gl[n-gchk])
            elif cbk == 3 and nl < 56 and nl-n-1 < C.look:
                hpre(nl); hload(nl); nl += 1
            else: fill(2 if cbk == 2 else 1)
        if n == 0: stamp(a, 3)
        if n in (7,14,21,28,35,42,49): stamp(a, 2)
    for kp in range(4):
        for cbk in range(4):
            c = vr(AC(3,cbk),4)
            a(f'{MF} {c}, {ar(16*kp+4*cbk,4)}, {ar(aCF+4*kp,4)}, {c}')
            fill(2)
    assert not fillers
    stamp(a, 3)
    for pr in range(2):
        for k in range(4*pr, 4*pr+4): a(f'v_pk_add_f32 {vr(vPS+2*k,2)}, {vr(vPS+2*k,2)}, {vr(AC(3,0)+2*k,2)}')
        for k in range(4*pr, 4*pr+4): a(f'v_cvt_pk_bf16_f32 v{vXS+k}, v{vPS+2*k}, v{vPS+2*k+1}')
        for d in range(2): a(f'v_permlane16_swap_b32 v{vXS+4*pr+d}, v{vXS+4*pr+2+d}')
        a(f'buffer_store_dwordx4 {vr(vXS+4*pr,4)}, v{vOUT}, s[{sOUT}:{sOUT+3}], 0 offen offset:{64*pr} {("","sc1","nt","sc0 sc1")[C.outsc]}')
    stamp(a)

CODE_LINES_PER_WG = 10
def kernel(a):
    a('s_cmp_ge_u32 s2, 256')
    a('s_cbranch_scc1 L_end')
    a('s_load_dwordx2 s[4:5], s[0:1], 0')
    a('s_load_dwordx4 s[8:11], s[0:1], 24')
    a('s_load_dwordx4 s[12:15], s[0:1], 48')
    a('s_load_dwordx8 s[72:79], s[0:1], 64')
    St.n = 0
    if C.stamps:
        a('s_memrealtime s[84:85]'); a('s_memtime s[82:83]')
    a.raw(f'    s_getpc_b64 s[80:81]'); a.hist.append((Ins('s_getpc_b64 s[80:81]'),1))
    a(f's_lshr_b32 s{sT}, s2, 3')
    a(f's_mul_i32 s{sT}, s{sT}, {CODE_LINES_PER_WG*128}')
    a(f'v_min_u32 v4, {CODE_LINES_PER_WG-1}, v0')
    a(f'v_lshl_add_u32 v4, v4, 7, s{sT}')
    a(f'global_load_dword v{vDBG}, v4, s[80:81]')
    a(f'v_and_b32 v{vLANE}, 63, v0')
    a(f'v_lshrrev_b32 v4, 6, v0')
    a(f'v_and_b32 v{vN}, 15, v0')
    a(f'v_readfirstlane_b32 s{sW}, v4')
    a(f'v_bfe_u32 v{vG}, v0, 4, 2')
    a(f's_and_b32 s{sT}, s2, 1')
    a(f's_lshl_b32 s{sT}, s{sT}, 3')
    a(f's_bfe_u32 s{sI}, s2, {3|(3<<16)}')
    a(f's_add_u32 s{sI}, s{sI}, s{sT}')
    a(f's_bfe_u32 s{sT}, s2, {1|(2<<16)}')
    a(f's_lshr_b32 s{sT+1}, s2, 6')
    if C.bal:
        a(f's_mul_i32 s{sJ}, s{sT}, 3')
        a(f's_add_u32 s{sJ}, s{sJ}, s{sT+1}')
        a(f's_lshr_b32 s{sT+2}, s2, 4')
        a(f's_xor_b32 s{sT+2}, s{sT+2}, s2')
        a(f's_and_b32 s{sT+2}, s{sT+2}, 2')
        a(f's_lshr_b32 s{sT}, s{sT}, 1')
        a(f's_add_u32 s{sT}, s{sT}, s{sT+2}')
        a(f's_add_u32 s{sT}, s{sT}, 12')
        a(f's_cmp_eq_u32 s{sT+1}, 3')
        a(f's_cselect_b32 s{sJ}, s{sT}, s{sJ}')
    else:
        a(f's_lshl_b32 s{sT}, s{sT}, 2')
        a(f's_add_u32 s{sJ}, s{sT+1}, s{sT}')
    if C.rot:
        a(f's_xor_b32 s{sT}, s{sI}, s{sT+1}')
        a(f's_and_b32 s{sT}, s{sT}, 1')
        a(f's_lshl_b32 s{sKCX}, s{sT}, 2')
        if C.rot == 1:
            a(f's_lshr_b32 s{sT}, s2, 1')
            a(f's_xor_b32 s{sT}, s{sT}, s2')
            a(f's_and_b32 s{sT}, s{sT}, 1')
            a(f's_lshl_b32 s{sT}, s{sT}, 1')
            a(f's_add_u32 s{sKCX}, s{sKCX}, s{sT}')
    else:
        a(f's_mov_b32 s{sKCX}, 0')
    if C.stamps:
        a.wait(lgkm=0)
        a(f'v_writelane_b32 v{vSTAMP}, s84, 32'); a(f'v_writelane_b32 v{vSTAMP}, s82, 0'); St.n = 1
    a(f's_cmp_ge_u32 s{sJ}, 14')
    a('s_cbranch_scc1 L_dft')
    st = a.snapshot(); n0 = St.n
    q = Q(a)
    phaseA_setup(a, False); phaseA_main(a, False, q); stamp(a)
    last = glu_epilogue(a, q)
    a.wait(lgkm=0)
    a.label('L_phaseB')
    def state(): return ([t[2] for t in q.pend], q.predone, q.nD, len(q.rq), St.n)
    def after(tag): return None if q.last[tag] not in a.vm else len(a.vm)-1-a.vm.index(q.last[tag])
    join = state(); jvm = {t: after(t) for t in q.last if t[0] in 'D'}
    assert a.vm[-1] is last
    a.hist = []
    a('s_nop 0')
    phaseB(a, q, last)
    stamp_flush(a)
    a.label('L_end')
    a('s_endpgm')
    a.restore(st); St.n = n0
    a.raw('.p2align 3')
    a.label('L_dft')
    q = Q(a)
    phaseA_setup(a, True); phaseA_main(a, True, q); stamp(a)
    last = dft_epilogue(a, q)
    assert join == state(), (join, state())
    assert a.vm[-1] is last
    for t, v in jvm.items():
        w = after(t)
        assert w is None or (v is not None and w >= v), (t, v, w)
    a.wait(lgkm=0)
    a('s_branch L_phaseB')

def build():
    out = ['; @launch grid=(256,1,1) block=(256,1,1) lds=163840', '; '+' '.join(sys.argv[2:]),
           '.amdgcn_target "amdgcn-amd-amdhsa--gfx950"', '.text']
    nm = NAME+'_kernel'
    a = Asm(); kernel(a)
    if C.align:
        a.lines, fx, lf = align_pass(a.lines); print('align fixed', fx, 'left', lf, file=sys.stderr)
    out += [f'.globl {nm}', '.p2align 8', f'.type {nm},@function', f'{nm}:', a.text()]
    print('lines', len(a.lines), 'nops', a.nnop, file=sys.stderr)
    out.append('L_code_end:')
    out.append(f'.fill ({32*CODE_LINES_PER_WG*128+256} - (L_code_end - {nm}))/4, 4, 0xbf800000')
    out.append('.section .rodata,"a"')
    out.append('.p2align 6')
    out.append(f'''.amdhsa_kernel {nm}
  .amdhsa_next_free_vgpr 512
  .amdhsa_next_free_sgpr 96
  .amdhsa_accum_offset 256
  .amdhsa_group_segment_fixed_size 0
  .amdhsa_kernarg_size 96
  .amdhsa_user_sgpr_count 2
  .amdhsa_user_sgpr_kernarg_segment_ptr 1
  .amdhsa_system_sgpr_workgroup_id_x 1
.end_amdhsa_kernel
''')
    return '\n'.join(out)
if __name__ == '__main__':
    for kv in sys.argv[2:]:
        k, v = kv.split('='); assert hasattr(C, k); setattr(C, k, int(v))
    open(sys.argv[1], 'w').write(build())
```

```python
import re

def regs(tok):
    tok = tok.strip()
    tok = tok.lstrip('-')
    if tok.startswith('abs(') : tok = tok[4:-1]
    if tok.startswith('|'): tok = tok.strip('|')
    m = re.fullmatch(r'([vas])\[(\d+):(\d+)\]', tok)
    if m: return [(m.group(1), i) for i in range(int(m.group(2)), int(m.group(3))+1)]
    m = re.fullmatch(r'([vas])(\d+)', tok)
    if m: return [(m.group(1), int(m.group(2)))]
    if tok == 'vcc': return [('s', 'vcc')]
    if tok == 'm0': return [('s', 'm0')]
    if tok == 'exec': return [('s', 'exec')]
    return []

TRANS = ('v_exp_f32','v_log_f32','v_rcp_f32','v_rsq_f32','v_sqrt_f32','v_sin_f32','v_cos_f32')

class Ins:
    def __init__(self, text):
        self.text = text
        t = text.split(';')[0].strip()
        self.op = t.split()[0] if t else ''
        rest = t[len(self.op):].strip()
        ops = [o.strip() for o in rest.split(',')] if rest else []
        self.mods = ''
        if ops:
            parts = ops[-1].split()
        rest2 = re.sub(r'(op_sel|op_sel_hi|neg_lo|neg_hi|quad_perm):\[[^\]]*\]', '', rest)
        ops = [o.strip() for o in rest2.split(',')] if rest2.strip() else []
        if ops:
            parts = ops[-1].split()
            ops[-1] = parts[0] if parts else ''
            self.mods = ' '.join(parts[1:])
        self.ops = ops
        op = self.op
        self.kind = 'other'
        self.w = []; self.r = []
        R = lambda i: regs(ops[i]) if i < len(ops) else []
        if op.startswith('v_mfma'):
            self.kind = 'mfma'; self.w = R(0); self.ra = R(1); self.rb = R(2); self.rc = R(3); self.r = self.ra+self.rb+self.rc
            self.passes = 8 if '32x32' in op else (4 if '16x16' in op else 2)
        elif op.startswith('ds_read') or op.startswith('ds_bpermute') or op.startswith('ds_swizzle'):
            self.kind = 'lds'; self.w = R(0); self.r = sum([R(i) for i in range(1,len(ops))], [])
        elif op.startswith('ds_write'):
            self.kind = 'lds'; self.r = sum([R(i) for i in range(len(ops))], [])
        elif op.startswith('buffer_load') or op.startswith('global_load'):
            self.kind = 'vmem'
            if ' lds' in ' '+self.mods:
                self.r = sum([R(i) for i in range(len(ops))], []) + [('s','m0')]; self.dma = True
            else:
                self.w = R(0); self.r = sum([R(i) for i in range(1,len(ops))], [])
        elif op.startswith('buffer_store') or op.startswith('buffer_atomic'):
            self.kind = 'vmem'; self.r = sum([R(i) for i in range(len(ops))], []); self.data = R(0)
            if op.startswith('buffer_atomic') and 'sc0' in self.mods: self.w = R(0)
        elif op.startswith('global_store'):
            self.kind = 'vmem'; self.r = sum([R(i) for i in range(len(ops))], []); self.data = R(1)
        elif op.startswith('s_load') or op.startswith('s_memtime') or op.startswith('s_memrealtime'):
            self.kind = 'smem'; self.w = R(0); self.r = R(1)+R(2)
        elif op.startswith('s_atomic'):
            self.kind = 'smem'; self.w = R(0) if 'glc' in self.mods else []; self.r = R(0)+R(1)+R(2)
        elif op.startswith('v_'):
            self.kind = 'valu'
            self.w = R(0); self.r = sum([R(i) for i in range(1,len(ops))], [])
            if op.startswith('v_cmp'): pass
            if op.startswith(('v_fmac','v_dot2c','v_permlane','v_writelane')) or 'dpp' in op and 'bound_ctrl' not in self.mods: self.r += R(0)
            if op.startswith('v_permlane') and 'swap' in op: self.w += R(1)
            if op.startswith(('v_add_co','v_addc_co','v_sub_co')): self.w += R(1)
        elif op.startswith('s_'):
            self.kind = 'salu'
            if op.startswith(('s_cmp','s_waitcnt','s_barrier','s_nop','s_branch','s_cbranch','s_endpgm','s_setprio','s_sleep','s_bitcmp')):
                self.r = sum([R(i) for i in range(len(ops))], [])
            else:
                self.w = R(0); self.r = sum([R(i) for i in range(1,len(ops))], [])
        self.trans = op.replace('_e32','').replace('_e64','') in TRANS
        self.dot = op.startswith('v_dot')

class Asm:
    def __init__(self):
        self.lines = []
        self.hist = []
        self.lgkm = []
        self.vm = []
        self.smem_out = []
        self.nnop = 0; self.blocked = []
    def raw(self, s): self.lines.append(s)
    def label(self, s):
        self.lines.append(s+':')
    def comment(self, s): self.lines.append('    ; '+s)
    def snapshot(self): return (list(self.hist), list(self.lgkm), list(self.vm), list(self.smem_out))
    def restore(self, st): self.hist, self.lgkm, self.vm, self.smem_out = list(st[0]), list(st[1]), list(st[2]), list(st[3])
    def _emit(self, ins):
        self.lines.append('    '+ins.text)
        n = 1
        if ins.op == 's_nop': n = int(ins.ops[0])+1
        self.hist.append((ins, n))
        if len(self.hist) > 40: self.hist.pop(0)
    def wait(self, vm=None, lgkm=None, smem=True):
        parts = []
        if vm is not None and len(self.vm) > vm:
            assert vm <= 63
            parts.append(f'vmcnt({vm})'); self.vm = self.vm[len(self.vm)-vm:] if vm else []
        if lgkm is not None and (len(self.lgkm) > lgkm or (lgkm == 0 and smem and self.smem_out)):
            lg = min(lgkm, 14)
            parts.append(f'lgkmcnt({lg})'); self.lgkm = self.lgkm[len(self.lgkm)-lg:] if lg else []
            if lg < len(self.smem_out) and not smem: self.blocked.append(len(self.lines))
            if lg == 0: self.smem_out = []
        if parts: self._emit(Ins('s_waitcnt '+' '.join(parts)))
    def wait_vm_for(self, ins):
        if ins in self.vm:
            n = len(self.vm)-1-self.vm.index(ins)
            self.wait(vm=min(n,62))
    def wait_lgkm_for(self, ins):
        if ins in self.lgkm:
            n = len(self.lgkm)-1-self.lgkm.index(ins)
            self.wait(lgkm=n, smem=False)
    def need(self, ins):
        need = 0; dist = 0
        rs, ws = set(ins.r), set(ins.w)
        for p, n in reversed(self.hist):
            pw = set(p.w); req = 0
            if p.kind == 'valu':
                vw = {x for x in pw if x[0] in 'va'}; sw = {x for x in pw if x[0] == 's'}
                if ins.kind == 'mfma' and vw & rs: req = max(req, 3 if p.dot else 2)
                if p.trans and ins.kind == 'valu' and vw & rs: req = max(req, 1)
                if p.trans and ins.kind in ('vmem','lds') and vw & rs: req = max(req, 1)
                if p.dot and (vw & (rs|ws)):
                    if ins.op == p.op and not (vw & set(sum([regs(o) for o in ins.ops[1:3]],[]))): pass
                    else: req = max(req, 3)
                if ins.op.startswith('v_permlane') and vw & rs: req = max(req, 2)
                if 'dpp' in ins.op and vw & rs: req = max(req, 2)
                if ins.op.startswith(('v_readlane','v_readfirstlane')) and vw & rs: req = max(req, 1)
                if sw & rs:
                    if ins.kind == 'vmem': req = max(req, 5)
                    elif ins.kind == 'valu': req = max(req, 4 if ins.op.startswith(('v_readlane','v_writelane')) else 2)
                    elif ins.kind in ('salu','smem'): req = max(req, 2)
                if 'sdwa' in p.op or 'op_sel:' in p.text:
                    if ins.kind == 'valu' and vw & (rs|ws): req = max(req, 1)
            if p.kind == 'salu' and ('s','m0') in pw and getattr(ins,'dma',False): req = max(req, 1)
            if p.kind == 'mfma':
                k = {2:0,4:1,8:2,16:3}[p.passes]
                if ins.kind == 'mfma':
                    if pw & set(ins.ra+ins.rb): req = max(req, [5,8,12,20][k])
                    if pw & set(ins.rc):
                        if p.w == ins.rc and p.passes == ins.passes: req = max(req, [2,0,0,0][k])
                        else: req = max(req, [4,6,10,18][k])
                    elif pw & ws and p.w != ins.w: req = max(req, [5,8,12,20][k])
                elif ins.kind in ('valu','vmem','lds'):
                    if pw & (rs|ws): req = max(req, [5,8,12,20][k])
                    if ins.kind == 'valu' and set(p.rc) & ws: req = max(req, [1,3,7,15][k])
            if p.kind == 'vmem' and len(getattr(p,'data',[])) > 2 and set(p.data) & ws: req = max(req, 2)
            if p.kind == 'lds' and p.op.startswith('ds_write') and len(p.r) > 3 and set(p.r[1:]) & ws and ins.kind=='valu': req = max(req, 2)
            need = max(need, req - dist)
            dist += n
            if dist > 24: break
        return need
    def __call__(self, text):
        ins = Ins(text)
        touched = set(ins.r) | set(ins.w)
        if any(set(o.w) & touched for o in self.smem_out): self.wait(lgkm=0)
        for q, name in ((self.lgkm,'lgkm'), (self.vm,'vm')):
            last = None
            tch = set(ins.r) if (name == 'vm' and ins.kind == 'vmem') else touched
            for idx, o in enumerate(q):
                if set(o.w) & tch: last = idx
            if last is not None:
                n = len(q)-1-last
                if name == 'lgkm': self.wait(lgkm=n, smem=False)
                else: self.wait(vm=min(n,62))
        nd = self.need(ins)
        while nd > 0:
            k = min(nd, 16)
            self._emit(Ins(f's_nop {k-1}')); nd -= k; self.nnop += 1
        self._emit(ins)
        if ins.kind == 'lds': self.lgkm.append(ins)
        elif ins.kind == 'smem': self.smem_out.append(ins)
        elif ins.kind == 'vmem':
            self.vm.append(ins)
            assert len(self.vm) <= 63, 'vmcnt overflow'
        return ins
    def text(self): return '\n'.join(self.lines)

def vr(b, n=1, f='v'):
    return f'{f}{b}' if n == 1 else f'{f}[{b}:{b+n-1}]'
def ar(b, n=1): return vr(b, n, 'a')
def sr(b, n=1): return vr(b, n, 's')

import subprocess, os
_PROMO = ('v_exp_f32','v_rcp_f32','v_add_f32','v_mul_f32','v_sub_f32','v_fmac_f32','v_mov_b32','v_and_b32','v_xor_b32','v_or_b32','v_lshlrev_b32','v_lshrrev_b32',
          'v_add_u32','v_sub_u32','v_cvt_f32_u32','v_cos_f32','v_sin_f32','v_rsq_f32','v_sqrt_f32','v_max_f32','v_min_u32','v_max_i32')
def sizes_of(lines):
    src = '.amdgcn_target "amdgcn-amd-amdhsa--gfx950"\n.text\n' + '\n'.join(l for l in lines if not l.strip().startswith('.')) + '\n'
    t = f'_al_{os.getpid()}'
    open(t+'.s','w').write(src)
    subprocess.run(['clang','-x','assembler','-target','amdgcn-amd-amdhsa','-mcpu=gfx950','-c',t+'.s','-o',t+'.o'],check=True)
    d = subprocess.run(['llvm-objdump','-d','--mcpu=gfx950',t+'.o'],capture_output=True,text=True).stdout
    return [4*len(l.split(':')[-1].split('<')[0].split()) for l in d.split('\n') if '//' in l]
def align_pass(lines, nop=False):
    sz = sizes_of(lines)
    idx = [i for i,l in enumerate(lines) if l.startswith('    ') and not l.strip().startswith((';','.'))]
    assert len(idx) == len(sz), (len(idx), len(sz))
    size = dict(zip(idx, sz))
    out = list(lines); addr = 0; cand = None; fixed = left = 0; ins = {}
    for i,l in enumerate(lines):
        if l.startswith('.p2align 3'): addr = (addr+7)//8*8; cand = None; continue
        if i not in size: continue
        s = size[i]
        if s == 8 and addr % 8 == 4:
            if cand is not None:
                op = out[cand].split()[0]
                out[cand] = out[cand].replace(op, op+'_e64', 1); addr += 4; fixed += 1
            elif addr % 32 == 28: left += 1
        if s == 8: cand = None
        elif l.split()[0] in _PROMO and addr % 8 == 0: cand = i
        elif addr % 8 == 0: pass
        addr += s
    return out, fixed, left
PROMO = _PROMO
```

```python
import sys, struct
from asmlib import *

NAME = 'parallel_sum__spectral_fnet__glu_gated_glu__prompt'
HP = 56*1024+128
GP = 65536+128
G_OFF = 0x790000
FL_OFF = 0xA00000
FLG_OFF = FL_OFF+64*128
FLS_OFF = FL_OFF+80*128
NFL = 208
XS_OFF = 0xA10000
CS_OFF = 0xA50000
WS_BYTES = 0xA90000
STAMP_OFF = 0xC00000
OOB = 0x7f000000
def f2u(x): return struct.unpack('<I', struct.pack('<f', x))[0]
LOG2E = 1.4426950408889634
MF = 'v_mfma_f32_16x16x32_bf16'

class Cfg:
    stamps = 0; log = 0; align = 1
    touch = 0
    tlb = 0
    pads = 1
    shift = 0
    hrot = 0; bmap = 1; drot = 2
    cap0 = 8; cap = 8; capn = 6; bar = 2
    rate = 8; drate = 8; dslow = 0
    spoll = 8; dlag = 10; rd0 = 5; rd1 = 9; rd2 = 11
    dleft = 20; epi_dma = 0; post = 12
    look = 10; look0 = 8; gp = 16; gc = 23; gb = 36; xb = 6; dlate = 0; full = 0; skipb = 0; gsl = 6
    infl = 2; pgap = 5
    outsc = 1; tpos = 3; tfl = 0; rmask = 6
    hpad = 0; gpad = 0
C = Cfg()

sMSK, sR, sCB = 3, 6, 7
sPO = 8
sDBG, sX, sG, sU, sWS, sWD, sOUT = 16, 20, 24, 28, 32, 36, 40
sW, sI, sJ, sP = 44, 45, 46, 47
sT = 48
sM0, sKX, sKW, sPITCH, sKCX, sKCW, sL, sXS = 64, 65, 66, 67, 68, 69, 70, 71
sSET, sCS, sOWN, sONE, sFV = 80, 81, 86, 87, 4
sM1, sM2, sM3, sMV = 88, 90, 92, 94
vLANE, vN, vG, vOUT = 1, 2, 3, 13
vXD, vWD, vD, vXA, vOA, vWA, vTR, vDBG, vSTAMP = 16, 20, 22, 26, 28, 30, 34, 46, 47
vXR, vWF, vSXo, vCS, vSQo, vACC = 48, 64, 96, 104, 120, 128
aSX, aONE, aR, aCF = 16, 24, 192, 240
UN = 16384
LST = 1*UN
def acc(tf, wf): return vACC+16*tf+4*wf
def fW(p, wf): return vWF+16*p+4*wf
def fX(k): return vXR+4*(k & 3)
def S(r): return f's[{r}:{r+3}]'

class St: n = 0
def stamp(a, grp=1):
    if not (C.stamps & grp): return
    a(f's_memtime s[82:83]')
    a(f's_memrealtime s[84:85]')
    a.wait(lgkm=0)
    a(f'v_writelane_b32 v{vSTAMP}, s82, {St.n}')
    a(f'v_writelane_b32 v{vSTAMP}, s84, {32+St.n}')
    St.n += 1
def stamp_flush(a):
    if not C.stamps: return
    a.wait(vm=0)
    stamp(a, 255)
    a(f's_mov_b32 s{sWS+2}, 0x1000000')
    a(f's_lshl_b32 s82, s2, 2')
    a(f's_add_u32 s82, s82, s{sW}')
    a(f's_lshl_b32 s82, s82, 8')
    a(f's_add_u32 s82, s82, {STAMP_OFF}')
    a(f'v_lshlrev_b32 v4, 2, v{vLANE}')
    a(f'buffer_store_dword v{vSTAMP}, v4, {S(sWS)}, s82 offen')

def srd(a, d, ptr, nbytes):
    a(f's_mov_b64 s[{d}:{d+1}], s[{ptr}:{ptr+1}]')
    a(f's_mov_b32 s{d+2}, {nbytes}')
    a(f's_mov_b32 s{d+3}, 0x20000')

def dma_X(s):
    pre = {0: [f's_add_u32 m0, s{sM0}, {(s % 4)*UN}', f's_lshl_b32 s{sKX}, s{sKCX}, 7'],
           1: [f's_add_u32 s{sKCX}, s{sKCX}, 1', f's_and_b32 s{sKCX}, s{sKCX}, 7']}
    return [(('X', s), pre.get(q, []), f'buffer_load_dwordx4 v{vXD+q}, {S(sX)}, s{sKX} offen offset:{q*1024} lds') for q in range(4)]
def dma_W(n):
    pre = {0: [f's_add_u32 m0, s{sM0}, {(4+n % 6)*UN}', f's_mul_i32 s{sKW}, s{sKCW}, s{sPITCH}'],
           1: [f's_add_u32 s{sKCW}, s{sKCW}, 1', f's_and_b32 s{sKCW}, s{sKCW}, 15']}
    return [(('W', n), pre.get(q, []), f'buffer_load_dwordx4 v{vWD+(q&1)}, {S(sU if q >> 1 else sG)}, s{sKW} offen offset:{q*1024} lds') for q in range(4)]
WD_UNITS = [0, 8, 9, 4, 5, 0, 6, 2, 8, 7, 3, 9, 4, 5]
WD_AVAIL = {10:2, 11:3, 12:4, 13:6, 14:9}
WD_PREV = {5:0, 8:1, 11:2, 12:3, 13:4}
def dma_D(u):
    pre = {0: [f's_add_u32 m0, s{sM0}, {WD_UNITS[u]*UN}',
               f's_add_u32 s{sKW}, s{sKW}, 32768' if u & 1 else f's_lshl_b32 s{sKW}, s{sPO+(u>>1)}, 5']}
    return [(('D', u), pre.get(q, []), f'buffer_load_dwordx4 v{vD+q}, {S(sWD)}, s{sKW} offen offset:{q*1024} lds') for q in range(4)]
def wd_reads(u):
    un = WD_UNITS[u]
    return [f'ds_read_b64_tr_b16 {ar(16*u+4*cbk+2*u2,2)}, v{vTR+4*(un>>2)+cbk} offset:{(un&3)*UN+2048*u2}' for cbk in range(4) for u2 in range(2)]

class Q:
    def __init__(self, a):
        self.a = a; self.pend = []; self.last = {}; self.predone = False; self.nD = 0; self.rd = {}
        self.rq = [(u, t) for u in range(14) for t in wd_reads(u)]; self.issued = 0; self.limit = 10**9; self.log = []; self.pos = -1
    def clone(self):
        q = Q(self.a); q.pend = list(self.pend); q.last = dict(self.last); q.predone = self.predone; q.issued = self.issued; q.log = list(self.log)
        return q
    def ready(self):
        if not self.pend or self.issued >= self.limit: return False
        tag = self.pend[0][0]
        if tag[0] == 'D' and tag[1] in WD_PREV and self.rq and self.rq[0][0] <= WD_PREV[tag[1]]: return False
        return True
    def haspre(self): return self.ready() and self.pend[0][1] and not self.predone
    def pre(self):
        if self.ready() and not self.predone:
            for t in self.pend[0][1]: self.a(t)
            self.predone = True
    def issue(self, n=1):
        for _ in range(n):
            if not self.ready(): return
            self.pre()
            tag, pf, t = self.pend.pop(0)
            if tag[0] == 'D' and tag[1] in WD_PREV: self.a.wait_lgkm_for(self.rd[WD_PREV[tag[1]]])
            self.last[tag] = self.a(t); self.predone = False; self.issued += 1; self.log.append((tag, self.pos))
    def addD(self, upto):
        while self.nD < upto: self.pend += dma_D(self.nD); self.nD += 1
    def has(self, tag): return [1 for t in self.pend if t[0] == tag]
    def need(self, tag):
        assert tag in self.last and not self.has(tag), ('not issued', tag)
        self.a.wait_vm_for(self.last[tag])
    def read1(self, upto):
        if not self.rq or self.rq[0][0] >= upto: return False
        u, t = self.rq.pop(0)
        self.need(('D', u))
        self.rd[u] = self.a(t)
        return True
    def readD(self, upto):
        while self.read1(upto): pass

def x_read(k):
    n, tf = k >> 3, k & 7
    return f'ds_read_b128 {vr(fX(k),4)}, v{vXA+(n&1)} offset:{((n>>1) % 4)*UN+tf*2048}'
def w_reads(n):
    un = n % 6
    return [f'ds_read_b64_tr_b16 {vr(fW(n&1,wf)+2*u,2)}, v{vWA+2*(un>>2)+(wf&1)} offset:{(un&3)*UN+(wf>>1)*2048+u*1024}' for wf in range(4) for u in range(2)]

def master_list():
    m = []
    for n in range(16):
        if n % 2 == 0: m.append(('X', n >> 1))
        m.append(('W', n))
        if n == C.tpos and C.touch: m.append(('T', 0))
        if n == 3 and C.tlb: m.append(('T', 1))
    return m
def items(t):
    if t[0] == 'X': return dma_X(t[1])
    if t[0] == 'W': return dma_W(t[1])
    if t == ('T', 0): return [(t, [], f'buffer_load_dword v14, v8, {S(sWD)}, 0 offen {("","nt","sc1","sc0 sc1")[C.tfl]}')]
    if t == ('T', 1): return [(t, [], f'buffer_load_dword v14, v15, {S(sWS)}, 0 offen'), (t, [], f'buffer_load_dword v14, v10, {S(sOUT)}, 0 offen')]

CODE_LINES_PER_WG = 10
def prologue(a, q):
    a('s_cmp_ge_u32 s2, 256')
    a('s_cbranch_scc1 L_end')
    a('s_load_dwordx2 s[4:5], s[0:1], 0')
    a('s_load_dwordx4 s[8:11], s[0:1], 24')
    a('s_load_dwordx4 s[12:15], s[0:1], 48')
    a('s_load_dwordx8 s[72:79], s[0:1], 64')
    St.n = 0
    if C.stamps: a('s_memrealtime s[84:85]'); a('s_memtime s[82:83]')
    a.raw(f'    s_getpc_b64 s[80:81]'); a.hist.append((Ins('s_getpc_b64 s[80:81]'),1))
    a(f's_lshr_b32 s{sT}, s2, 3')
    a(f's_mul_i32 s{sT}, s{sT}, {CODE_LINES_PER_WG*128}')
    a(f'v_min_u32 v4, {CODE_LINES_PER_WG-1}, v0')
    a(f'v_lshl_add_u32 v4, v4, 7, s{sT}')
    a(f'global_load_dword v{vDBG}, v4, s[80:81]')
    a(f'v_and_b32 v{vLANE}, 63, v0')
    a(f'v_lshrrev_b32 v4, 6, v0')
    a(f'v_and_b32 v{vN}, 15, v0')
    a(f'v_readfirstlane_b32 s{sW}, v4')
    a(f'v_bfe_u32 v{vG}, v0, 4, 2')
    a(f's_and_b32 s{sT}, s2, 1')
    a(f's_lshl_b32 s{sT}, s{sT}, 3')
    a(f's_bfe_u32 s{sI}, s2, {3|(3<<16)}')
    a(f's_add_u32 s{sI}, s{sI}, s{sT}')
    a(f's_bfe_u32 s{sT}, s2, {1|(2<<16)}')
    a(f's_lshr_b32 s{sT+1}, s2, 6')
    a(f's_mul_i32 s{sJ}, s{sT}, 3')
    a(f's_add_u32 s{sJ}, s{sJ}, s{sT+1}')
    a(f's_lshr_b32 s{sT+2}, s2, 4')
    a(f's_xor_b32 s{sT+2}, s{sT+2}, s2')
    a(f's_and_b32 s{sT+2}, s{sT+2}, 2')
    a(f's_lshr_b32 s{sT}, s{sT}, 1')
    a(f's_add_u32 s{sT}, s{sT}, s{sT+2}')
    a(f's_add_u32 s{sT}, s{sT}, 12')
    a(f's_cmp_eq_u32 s{sT+1}, 3')
    a(f's_cselect_b32 s{sJ}, s{sT}, s{sJ}')
    a(f's_xor_b32 s{sT}, s{sI}, s{sT+1}')
    a(f's_and_b32 s{sT}, s{sT}, 1')
    a(f's_lshl_b32 s{sKCX}, s{sT}, 2')
    a(f's_lshl_b32 s{sT}, s2, 1')
    a(f's_xor_b32 s{sT}, s{sT}, s2')
    a(f's_and_b32 s{sT}, s{sT}, 2')
    a(f's_add_u32 s{sKCX}, s{sKCX}, s{sT}')
    a(f's_lshl_b32 s{sL}, s{sKCX}, 7')
    if C.rmask != 6: a(f's_and_b32 s{sKCX}, s{sKCX}, {C.rmask}')
    a(f's_lshl_b32 s{sKCW}, s{sKCX}, 1')
    a(f's_sub_u32 s{sT+1}, 32, s{sI}')
    a(f's_cmp_eq_u32 s{sI}, 0')
    a(f's_cselect_b32 s{sT+1}, 16, s{sT+1}')
    a(f's_bitcmp1_b32 s{sW}, 1')
    a(f's_cselect_b32 s{sT}, s{sT+1}, s{sI}')
    a(f's_sub_u32 s{sT+1}, 64, s{sT}')
    a(f's_cmp_eq_u32 s{sT}, 0')
    a(f's_cselect_b32 s{sT+1}, 32, s{sT+1}')
    a(f's_add_u32 s{sT+2}, s{sT}, 32')
    a(f's_movk_i32 s{sT+6}, 3584')
    a(f's_cmp_ge_u32 s{sJ}, 14')
    a(f's_cselect_b32 s{sT+1}, s{sT+2}, s{sT+1}')
    a(f's_cselect_b32 s{sT+6}, 1024, s{sT+6}')
    a(f's_cselect_b32 s{sT+4}, 12, 0')
    a(f's_sub_u32 s{sT+4}, s{sJ}, s{sT+4}')
    a(f's_lshl_b32 s{sT+4}, s{sT+4}, 8')
    a(f's_bitcmp1_b32 s{sW}, 0')
    a(f's_cselect_b32 s{sT}, s{sT+1}, s{sT}')
    a(f's_cselect_b32 s{sT+5}, 8, 0')
    a(f's_lshl_b32 s{sT}, s{sT}, 10')
    a(f'v_lshrrev_b32 v4, 3, v{vLANE}')
    a(f'v_lshl_add_u32 v4, v4, 16, s{sT}')
    a(f'v_and_b32 v6, 7, v{vLANE}')
    a(f'v_xor_b32 v6, v6, v{vG}')
    a(f'v_lshl_add_u32 v{vXD}, v6, 4, v4')
    a(f'v_xor_b32 v7, 64, v{vXD}')
    a(f'v_add_u32 v{vXD+1}, {524288-1024}, v7')
    a(f'v_add_u32 v{vXD+2}, {2*(524288-1024)}, v{vXD}')
    a(f'v_add_u32 v{vXD+3}, {3*(524288-1024)}, v7')
    a(f's_lshl_b32 s{sM0}, s{sW}, 12')
    a(f's_lshl_b32 s{sPITCH}, s{sT+6}, 5')
    a(f's_mov_b32 s{sX+2}, {2048*1024}')
    a(f's_mov_b32 s{sX+3}, 0x20000')
    q.pend = items(('X',0)); q.pre()
    a.wait(lgkm=0)
    a(f's_mov_b64 s[{sX}:{sX+1}], s[4:5]')
    if C.stamps:
        a(f'v_writelane_b32 v{vSTAMP}, s84, 32'); a(f'v_writelane_b32 v{vSTAMP}, s82, 0'); St.n = 1
    q.issue(2)
    a(f's_lshl_b32 s{sT+1}, s{sW}, 3')
    a(f'v_add_u32 v4, s{sT+1}, v{vG}')
    a(f'v_mul_u32_u24 v4, s{sT+6}, v4')
    a(f'v_add_u32 v4, s{sT+4}, v4')
    a(f'v_lshl_add_u32 v7, v{vG}, 1, s{sT+5}')
    a(f'v_xor_b32 v6, v{vN}, v7')
    a(f'v_lshl_add_u32 v{vWD}, v6, 4, v4')
    q.issue(1)
    a(f's_lshl_b32 s{sT+1}, s{sT+6}, 2')
    a(f's_sub_u32 s{sT+1}, s{sT+1}, 1024')
    a(f'v_add_u32 v{vWD+1}, s{sT+1}, v{vWD}')
    a(f's_cmp_ge_u32 s{sJ}, 14')
    a(f's_cselect_b64 s[{sG}:{sG+1}], s[8:9], s[12:13]')
    a(f's_cselect_b64 s[{sU}:{sU+1}], s[10:11], s[14:15]')
    q.issue(1)
    a(f's_lshl_b32 s{sG+2}, s{sT+6}, 9')
    a(f's_mov_b32 s{sG+3}, 0x20000')
    a(f's_sub_u32 s{sU}, s{sU}, 2048')
    a(f's_subb_u32 s{sU+1}, s{sU+1}, 0')
    a(f's_add_u32 s{sU+2}, s{sG+2}, 2048')
    a(f's_mov_b32 s{sU+3}, 0x20000')

def setup2(a):
    srd(a, sWS, 78, WS_BYTES)
    a(f's_cmp_eq_u32 s2, 0')
    a(f's_cselect_b32 s{sT+1}, {NFL}, 0')
    a(f's_mov_b32 s{sONE}, 1')
    a(f'v_mov_b32 v10, {OOB}')
    a(f'v_lshlrev_b32 v8, 7, v0')
    a(f'v_cmp_gt_u32 vcc, s{sT+1}, v0')
    a(f'v_mov_b32 v11, 0')
    a(f's_mov_b32 s{sT+3}, {FL_OFF}')
    a(f'v_cndmask_b32 v8, v10, v8, vcc')
    z = a(f'buffer_store_dword v11, v8, {S(sWS)}, s{sT+3} offen sc1')
    srd(a, sWD, 72, 1792*1024)
    srd(a, sOUT, 74, 2048*1024)
    a(f'v_lshrrev_b32 v4, 1, v{vN}')
    a(f'v_xor_b32 v4, v4, v{vG}')
    a(f'v_lshlrev_b32 v4, 4, v4')
    a(f'v_lshl_add_u32 v{vXA}, v{vN}, 7, v4')
    a(f'v_xor_b32 v{vXA+1}, 64, v{vXA}')
    a(f'v_add_u32 v{vOA}, s{sM0}, v{vXA}')
    a(f'v_add_u32 v{vOA+1}, s{sM0}, v{vXA+1}')
    a(f'v_bfe_u32 v4, v{vLANE}, 2, 2')
    a(f'v_and_b32 v7, 3, v{vLANE}')
    a(f'v_cmp_eq_u32 s[{sM1}:{sM1+1}], 1, v7')
    a(f'v_cmp_eq_u32 s[{sM2}:{sM2+1}], 2, v7')
    a(f'v_cmp_eq_u32 s[{sM3}:{sM3+1}], 3, v7')
    a(f'v_cmp_eq_u32 s[{sMV}:{sMV+1}], v4, v{vG}')
    a(f'v_lshlrev_b32 v7, 3, v7')
    a(f'v_and_b32 v5, 1, v{vG}')
    a(f'v_lshl_add_u32 v5, v5, 2, v4')
    a(f's_lshl_b32 s{sT}, s{sW}, 1')
    a(f'v_xor_b32 v5, s{sT}, v5')
    a(f'v_lshl_add_u32 v5, v5, 5, v7')
    a(f'v_lshl_add_u32 v5, v4, 8, v5')
    a(f'v_lshl_add_u32 v5, v{vG}, 12, v5')
    a(f'v_add_u32 v{vWA}, {4*UN}, v5')
    a(f'v_xor_b32 v{vWA+1}, 32, v{vWA}')
    a(f'v_add_u32 v{vWA+2}, {4*UN}, v{vWA}')
    a(f'v_add_u32 v{vWA+3}, {4*UN}, v{vWA+1}')
    a(f'v_mov_b32 v4, 0x3f803f80')
    for d in range(4): a(f'v_accvgpr_write_b32 a{aONE+d}, v4')
    if C.bmap == 0:
        a(f's_and_b32 s{sR}, s2, 7')
        a(f's_lshl_b32 s{sR}, s{sR}, 2')
        a(f's_bfe_u32 s{sT}, s2, {3|(2<<16)}')
        a(f's_add_u32 s{sR}, s{sR}, s{sT}')
        a(f's_lshr_b32 s{sCB}, s2, 5')
    else:
        a(f's_bfe_u32 s{sR}, s2, {1|(2<<16)}')
        a(f's_lshl_b32 s{sR}, s{sR}, 3')
        a(f's_bfe_u32 s{sT}, s2, {3|(3<<16)}')
        a(f's_add_u32 s{sR}, s{sR}, s{sT}')
        a(f's_lshr_b32 s{sCB}, s2, 6')
        a(f's_and_b32 s{sT}, s2, 1')
        a(f's_lshl_b32 s{sT}, s{sT}, 2')
        a(f's_add_u32 s{sCB}, s{sCB}, s{sT}')
        a(f's_add_u32 s{sCB}, s{sCB}, 6')
        a(f's_and_b32 s{sCB}, s{sCB}, 7')
    a(f's_lshl_b32 s{sT}, s2, 2')
    a(f's_add_u32 s{sT}, s{sT}, s{sW}')
    a(f's_mul_i32 s{sT}, s{sT}, {14*128 if C.touch < 2 else 128}')
    a(f'v_min_u32 v8, 13, v{vLANE}')
    a(f'v_lshl_add_u32 v8, v8, {7 if C.touch < 2 else 17}, s{sT}')
    return z

def late_setup_ops():
    r = []; a = r.append
    a(f'v_and_b32 v{vTR+1}, 3, v{vLANE}')
    a(f'v_bfe_u32 v{vTR}, v{vLANE}, 3, 2')
    a(f'v_lshl_add_u32 v{vTR}, v{vTR}, 2, v{vTR+1}')
    a(f'v_lshrrev_b32 v{vTR+1}, 2, v{vLANE}')
    a(f'v_lshl_add_u32 v{vTR}, v{vTR+1}, 4, v{vTR}')
    a(f'v_lshl_add_u32 v{vTR}, v{vTR}, 3, s{sM0}')
    for c in (1,2,3): a(f'v_xor_b32 v{vTR+c}, {32*c}, v{vTR}')
    for wnd in (1,2):
        for c in range(4): a(f'v_add_u32 v{vTR+4*wnd+c}, {wnd*4*UN}, v{vTR+c}')
    a(f's_mul_i32 s{sT}, s{sW}, {448*1024}')
    a(f's_lshl_b32 s{sT+1}, s{sCB}, 7')
    a(f's_add_u32 s{sT}, s{sT}, s{sT+1}')
    a(f'v_lshrrev_b32 v{vD+1}, 3, v{vLANE}')
    a(f'v_lshl_add_u32 v{vD+1}, v{vD+1}, 10, s{sT}')
    a(f'v_and_b32 v{vD}, 7, v{vLANE}')
    a(f'v_lshlrev_b32 v{vD+2}, 1, v{vG}')
    a(f'v_xor_b32 v{vD}, v{vD}, v{vD+2}')
    a(f'v_lshl_add_u32 v{vD}, v{vD}, 4, v{vD+1}')
    for q in (1,2,3): a(f'v_add_u32 v{vD+q}, {q*7168}, v{vD}')
    a(f's_mov_b32 s{sMSK}, 0xffff0000')
    return r

def coef_ops():
    r = []; a = r.append
    T = vACC+16
    a(f's_lshr_b32 s{sT}, s{sR}, 1')
    a(f's_sub_u32 s{sT+1}, 32, s{sT}')
    a(f's_cmp_eq_u32 s{sT}, 0')
    a(f's_cselect_b32 s{sT+1}, 16, s{sT+1}')
    a(f's_bitcmp1_b32 s{sR}, 0')
    a(f's_cselect_b32 s{sP}, s{sT+1}, s{sT}')
    a(f's_sub_u32 s{sT+1}, 64, s{sP}')
    a(f's_cmp_eq_u32 s{sP}, 0')
    a(f's_cselect_b32 s{sT+1}, 32, s{sT+1}')
    a(f's_and_b32 s{sOWN}, s{sCB}, {1 if C.hrot else 0}')
    a(f's_lshl_b32 s{sOWN}, s{sOWN}, 1')
    a(f's_xor_b32 s{sOWN}, s{sOWN}, s{sW}')
    a(f's_bitcmp1_b32 s{sOWN}, 1')
    a(f's_cselect_b32 s{sT+2}, s{sT+1}, s{sP}')
    a(f's_cselect_b32 s{sT+10}, 1.0, -1.0')
    a(f's_cmp_eq_u32 s{sP}, 0')
    a(f's_cselect_b32 s{sT+10}, 0, s{sT+10}')
    a(f's_cmp_eq_u32 s{sT+2}, 32')
    a(f's_cselect_b32 s{sT+9}, 0, 1.0')
    a(f's_cselect_b32 s{sT+11}, 1.0, 0')
    a(f's_cmp_ge_u32 s{sCB}, 4')
    a(f's_cselect_b32 s{sT+8}, 0, 0x80008000')
    a(f's_and_b32 s{sT}, s{sOWN}, 1')
    a(f's_lshl_b32 s{sT}, s{sT}, 10')
    a(f's_add_u32 s{sT+2}, s{sT+2}, s{sT}')
    a(f'v_lshl_add_u32 v7, v{vN}, 6, s{sT+2}')
    a(f'v_cvt_f32_u32 v5, v7')
    a(f'v_cvt_f32_u32 v4, v{vG}')
    a(f'v_mul_f32 v5, {f2u(1/2048):#x}, v5')
    a(f'v_cmp_eq_u32 vcc, 0, v{vG}')
    a(f's_lshl_b32 s{sT+1}, s{sCB}, 7')
    a(f'v_lshl_add_u32 v7, v7, 10, s{sT+1}')
    a(f'v_and_b32 v6, 1, v{vG}')
    a(f'v_lshl_add_u32 v7, v6, 5, v7')
    a(f'v_lshrrev_b32 v6, 1, v{vG}')
    a(f'v_lshl_add_u32 v{vOUT}, v6, 4, v7')
    a(f'v_mov_b32 v7, {f2u(16.0):#x}')
    for kp in range(4):
        for z in range(2):
            if z == 0: a(f'v_add_f32 v6, {f2u(4.0*kp):#x}, v4')
            else:
                a(f'v_sub_f32 v6, {f2u(32.0-4*kp):#x}, v4')
                if kp == 0: a(f'v_cndmask_b32 v6, v6, v7, vcc')
            a(f'v_mul_f32 v6, v6, v5')
            a(f'v_cos_f32 v{T}, v6')
            a(f'v_sin_f32 v{T+1}, v6')
            a(f'v_mul_f32 v{T+2}, s{sT+9}, v{T}')
            a(f'v_mul_f32 v{T+3}, s{sT+11}, v{T}')
            a(f'v_fmac_f32 v{T+3}, s{sT+10}, v{T+1}')
            a(f'v_mul_f32 v{T+4}, s{sT+9}, v{T+1}')
            a(f'v_mul_f32 v{T+5}, s{sT+11}, v{T+1}')
            a(f'v_fma_f32 v{T+5}, -v{T}, s{sT+10}, v{T+5}')
            a(f'v_cvt_pk_bf16_f32 v{T+2}, v{T+2}, v{T+3}')
            a(f'v_cvt_pk_bf16_f32 v{T+4}, v{T+4}, v{T+5}')
            a(f'v_accvgpr_write_b32 a{aCF+4*kp+2*z}, v{T+2}')
            a(f'v_xor_b32 v{T+4}, s{sT+8}, v{T+4}')
            a(f'v_accvgpr_write_b32 a{aCF+4*kp+2*z+1}, v{T+4}')
    if C.tlb:
        a(f's_lshl_b32 s{sT}, s{sI}, 3')
        a(f's_lshl_b32 s{sT+1}, s{sR}, 2')
        a(f's_sub_u32 s{sT+1}, s{sT+1}, 8')
        a(f'v_mov_b32 v4, s{sT}')
        a(f'v_mov_b32 v5, s{sT+1}')
        a(f'v_cmp_gt_u32 vcc, 8, v{vLANE}')
        a(f's_cmp_ge_u32 s{sJ}, 14')
        a(f's_cselect_b32 s{sT+2}, 31, 0')
        a(f'v_cndmask_b32 v4, v5, v4, vcc')
        a(f'v_add_u32 v4, v4, v{vLANE}')
        a(f'v_mul_u32_u24 v4, {HP}, v4')
        a(f'v_add_u32 v4, {HP-128}, v4')
        a(f'v_and_b32 v5, s{sT+2}, v{vLANE}')
        a(f'v_xor_b32 v5, s{sP}, v5')
        a(f'v_cmp_gt_u32 vcc, 12, v{vLANE}')
        a(f'v_mul_u32_u24 v5, {GP}, v5')
        a(f'v_add_u32 v5, {G_OFF+GP-128}, v5')
        a(f'v_cndmask_b32 v4, v5, v4, vcc')
        a(f'v_cmp_eq_u32 vcc, 12, v{vLANE}')
        a(f'v_mov_b32 v5, {FL_OFF+255*128}')
        a(f's_cmp_eq_u32 s{sW}, 3')
        a(f'v_cndmask_b32 v4, v4, v5, vcc')
        a(f's_cselect_b64 vcc, -1, 0')
        a(f'v_cndmask_b32 v15, v10, v4, vcc')
        a(f'v_cndmask_b32 v10, v10, v{vOUT}, vcc')
    return r

def scalar_late(a):
    a(f's_lshr_b32 s{sT}, s2, 3')
    a(f's_xor_b32 s{sT}, s{sT}, s2')
    a(f's_bfe_u32 s{sT+1}, s{sT}, {4|(1<<16)}')
    a(f's_bfe_u32 s{sT}, s{sT}, {2|(1<<16)}')
    a(f's_lshl_b32 s{sT+1}, s{sT+1}, 1')
    a(f's_add_u32 s{sSET}, s{sT}, s{sT+1}')
    a(f's_lshl_b32 s{sT+2}, s{sSET}, 10')
    a(f's_lshl_b32 s{sT+1}, s{sW}, 1')
    a(f's_and_b32 s{sT+1}, s{sT+1}, 2')
    a(f's_xor_b32 s{sT+1}, s{sT+1}, s{sW}')
    a(f's_cmp_eq_u32 s{sI}, 0')
    a(f's_cselect_b32 s{sT}, s{sW}, s{sT+1}')
    a(f's_cmp_ge_u32 s{sJ}, 14')
    a(f's_cselect_b32 s{sT}, s{sT}, s{sW}')
    a(f's_lshl_b32 s{sXS}, s{sI}, 2')
    a(f's_add_u32 s{sXS}, s{sXS}, s{sT}')
    a(f's_lshl_b32 s{sXS}, s{sXS}, 12')
    a(f's_add_u32 s{sXS}, s{sXS}, s{sT+2}')
    a(f's_add_u32 s{sXS}, s{sXS}, {XS_OFF}')
    a(f's_lshl_b32 s{sCS}, s{sJ}, 14')
    a(f's_add_u32 s{sCS}, s{sCS}, s{sM0}')
    a(f's_add_u32 s{sCS}, s{sCS}, s{sT+2}')
    a(f's_add_u32 s{sCS}, s{sCS}, {CS_OFF}')
    a(f's_add_u32 s{sT}, s{sJ}, 16')
    a(f's_bitcmp1_b32 s{sW}, 0')
    a(f's_cselect_b32 s{sT}, s{sT}, s{sI}')
    a(f's_lshl_b32 s{sT}, s{sT}, 2')
    a(f's_add_u32 s{sT}, s{sT}, s{sSET}')
    a(f's_lshl_b32 s{sT}, s{sT}, 7')
    a(f's_add_u32 s{sT+8}, s{sT}, {FLS_OFF}')
    if C.drot == 0: a(f's_mov_b32 s{sPO}, 0')
    elif C.drot == 1:
        a(f's_and_b32 s{sPO}, s{sR}, 1'); a(f's_lshl_b32 s{sPO}, s{sPO}, 13')
    else:
        a(f's_and_b32 s{sPO}, s{sR}, {3 if C.drot == 2 else 7}')
        a(f's_mul_i32 s{sPO}, s{sPO}, 7')
        a(f's_add_u32 s{sPO}, s{sPO}, 2')
        a(f's_lshr_b32 s{sPO}, s{sPO}, {C.drot}')
        a(f's_lshl_b32 s{sPO}, s{sPO}, 11')
    for k in range(1, 7):
        a(f's_add_u32 s{sPO+k}, s{sPO+k-1}, 2048')
        a(f's_cmp_eq_u32 s{sPO+k}, {7*2048}')
        a(f's_cselect_b32 s{sPO+k}, 0, s{sPO+k}')

def dft_R_ops():
    rr = []; T = vCS
    for jb in range(4):
        r = []; a = r.append; rr.append(r)
        a(f'v_lshrrev_b32 v6, 1, v{vN}')
        a(f'v_add_u32 v6, {8*jb}, v6')
        a(f'v_and_b32 v7, 1, v{vN}')
        if jb == 0:
            a(f'v_cmp_eq_u32 vcc, 1, v{vN}')
            a(f'v_mov_b32 v4, 32')
            a(f'v_cvt_f32_u32 v5, v{vG}')
            a(f'v_cndmask_b32 v6, v6, v4, vcc')
            a(f'v_cndmask_b32 v7, v7, v11, vcc')
            a(f'v_mul_f32 v5, {f2u(8.0):#x}, v5')
        a(f'v_cvt_f32_u32 v6, v6')
        a(f'v_cvt_f32_u32 v7, v7')
        a(f'v_mul_f32 v6, {f2u(1/64):#x}, v6')
        a(f'v_mul_f32 v7, {f2u(-0.25):#x}, v7')
        a(f'v_fma_f32 v7, v5, v6, v7')
        for q in range(2):
            for e in range(8):
                s1 = 2*(16*(e>>2)+(e&3))+q
                a(f'v_fmamk_f32 v{T+e}, v6, {f2u(float(s1)):#x}, v7')
            for e in range(8): a(f'v_cos_f32 v{T+e}, v{T+e}')
            for d in range(4): a(f'v_cvt_pk_bf16_f32 v{T+8+d}, v{T+2*d}, v{T+1+2*d}')
            for d in range(4): a(f'v_accvgpr_write_b32 a{aR+8*jb+4*q+d}, v{T+8+d}')
    return rr

def stats_reads(n):
    return [f'ds_read_b128 {ar(aSX+4*o,4)}, v{vOA+(n&1)} offset:{(n>>1)*UN+o*2048}' for o in range(2)]
def stats_mfma(dft, n):
    r = []
    def mf(c, x, y): r.append(f'{MF} {vr(c,4)}, {x}, {y}, {vr(c,4) if n else 0}')
    for o in range(2):
        mf(vSXo+4*o, ar(aONE,4), ar(aSX+4*o,4))
        mf(vSQo+4*o, ar(aSX+4*o,4), ar(aSX+4*o,4))
    if not dft:
        for wf in range(4): mf(vCS+4*wf, ar(aONE,4), vr(fW(n&1,wf),4))
    return r
def stats_pack_ops(dft):
    r = []; a = r.append
    a(f'v_lshlrev_b32 v4, 4, v{vN}')
    a(f'v_mov_b32 v10, {OOB}')
    a(f'v_mov_b32 v{vSXo+2}, v{vSXo+4}')
    a(f'v_cndmask_b32 v4, v10, v4, s[{sMV}:{sMV+1}]')
    for o in range(2):
        sq = vSQo+4*o
        a(f'v_cndmask_b32 v{sq}, v{sq}, v{sq+1}, s[{sM1}:{sM1+1}]')
        a(f'v_cndmask_b32 v{sq}, v{sq}, v{sq+2}, s[{sM2}:{sM2+1}]')
        a(f'v_cndmask_b32 v{vSXo+1+2*o}, v{sq}, v{sq+3}, s[{sM3}:{sM3+1}]')
    if not dft:
        a(f'v_lshlrev_b32 v5, 2, v{vLANE}')
        for g, m in ((1,sM1),(2,sM2),(3,sM3)): a(f'v_cmp_eq_u32 s[{m}:{m+1}], {g}, v{vG}')
        for g, m in ((1,sM1),(2,sM2),(3,sM3)): a(f'v_cndmask_b32 v{vCS}, v{vCS}, v{vCS+4*g}, s[{m}:{m+1}]')
    a(f's_add_u32 s{sT+6}, s{sXS}, s{sL}')
    a(f's_add_u32 s{sT+7}, s{sCS}, s{sL}')
    a(f'v_lshlrev_b32 v15, 4, v{vLANE}')
    return r
def stats_reduce_ops(dft):
    r = []; a = r.append
    a(f's_lshl_b32 s{sT}, s{sW}, {7 if dft else 9}')
    a(f's_add_u32 s{sT}, s{sT}, {LST}')
    a(f'v_permlane32_swap_b32 v96, v98')
    a(f'v_permlane32_swap_b32 v97, v99')
    if not dft:
        a(f'v_permlane32_swap_b32 v112, v114')
        a(f'v_permlane32_swap_b32 v113, v115')
    a(f'v_add_f32 v100, v96, v98')
    a(f'v_add_f32 v101, v97, v99')
    a(f'v_add_f32 v96, v96, v98')
    a(f'v_add_f32 v97, v97, v99')
    if not dft:
        a(f'v_add_f32 v112, v112, v114')
        a(f'v_add_f32 v113, v113, v115')
    a(f'v_lshrrev_b32 v14, 1, v{vG}')
    a(f'v_lshl_add_u32 v14, v14, 4, v{vN}')
    a(f'v_permlane16_swap_b32 v96, v100')
    a(f'v_permlane16_swap_b32 v97, v101')
    if not dft: a(f'v_permlane16_swap_b32 v112, v113')
    a(f'v_lshl_add_u32 v14, v14, {2 if dft else 4}, s{sT}')
    a(f'v_add_f32 v96, v96, v100')
    a(f'v_add_f32 v97, v97, v101')
    if not dft:
        a(f'v_add_f32 v98, v112, v113')
        a(f's_lshl_b32 s{sT}, s{sW}, 8')
        a(f's_add_u32 s{sT}, s{sT}, {LST+4096}')
        a(f'v_lshl_add_u32 v8, v{vN}, 2, v{vG}')
        a(f'v_lshl_add_u32 v8, v8, 2, s{sT}')
        a(f'v_lshl_add_u32 v9, v{vG}, 4, s{sT}')
    a(f'v_mul_f32 v4, {f2u(-1/512):#x}, v96')
    a(f'v_mul_f32 v97, {f2u(1/512):#x}, v97')
    a(f'v_fma_f32 v97, -v4, v4, v97')
    a(f'v_max_f32 v97, 0, v97')
    a(f'v_add_f32 v97, {f2u(1e-5):#x}, v97')
    a(f'v_rsq_f32 v7, v97')
    if dft: a(f'v_lshlrev_b32 v15, 4, v{vG}')
    else:
        a(f'v_sqrt_f32 v5, v97')
        a(f'v_mul_f32 v6, {f2u(-LOG2E):#x}, v7')
        a(f'v_lshlrev_b32 v15, 4, v{vN}')
    w = []
    if dft: w.append(f'ds_write_b32 v14, v7')
    else:
        w.append(f'ds_write_b32 v8, v98')
        w.append(f'ds_write_b128 v14, v[4:7]')
        w += [f'ds_read_b128 {vr(vCS+4*wf,4)}, v9 offset:{64*wf}' for wf in range(4)]
    return r, w
def rec(tf): return vWF+4*tf
def rec_read(tf, dft): return f'ds_read_b128 {vr(rec(tf),4)}, v15 offset:{LST+(64 if dft else 256)*tf}'
def epi_addr_ops(dft):
    r = []; a = r.append
    if dft:
        a(f's_lshl_b32 s{sT+2}, s{sI}, 12')
        a(f's_lshl_b32 s{sT+1}, s{sJ}, 11')
        a(f's_add_u32 s{sT+2}, s{sT+2}, s{sT+1}')
        a(f's_lshl_b32 s{sT+1}, s{sW}, 9')
        a(f's_add_u32 s{sT+2}, s{sT+2}, s{sT+1}')
        a(f'v_mul_u32_u24 v16, {2*GP}, v{vG}')
        a(f'v_lshl_add_u32 v17, v{vN}, 4, s{sT+2}')
        a(f'v_add_u32 v16, v16, v17')
        a(f's_lshr_b32 s{sT+12}, s{sI}, 2')
        a(f's_lshl_b32 s{sT+12}, s{sT+12}, 1')
        a(f's_add_u32 s{sT+12}, s{sT+12}, s{sJ}')
        a(f's_lshl_b32 s{sT+12}, s{sT+12}, 7')
        a(f's_add_u32 s{sT+12}, s{sT+12}, {FLG_OFF-14*128}')
    else:
        a(f's_mul_i32 s{sT+2}, s{sI}, {8*HP}')
        a(f's_lshl_b32 s{sT+1}, s{sJ}, 2')
        a(f's_add_u32 s{sT+1}, s{sT+1}, s{sW}')
        a(f's_mul_i32 s{sT+12}, s{sT+1}, 4682')
        a(f's_lshl_b32 s{sT+1}, s{sT+1}, 10')
        a(f's_add_u32 s{sT+4}, s{sT+2}, s{sT+1}')
        a(f'v_lshlrev_b32 v16, 4, v{vLANE}')
        a(f's_lshr_b32 s{sT+12}, s{sT+12}, 16')
        a(f's_lshl_b32 s{sT+1}, s{sI}, 2')
        a(f's_add_u32 s{sT+12}, s{sT+12}, s{sT+1}')
        a(f's_lshl_b32 s{sT+12}, s{sT+12}, 7')
        a(f's_add_u32 s{sT+12}, s{sT+12}, {FL_OFF}')
    return r

def spin(a, tag, load, test, cnt, sleep=2, first=True):
    if first:
        a.wait(lgkm=0)
        for t in test: a(t)
        a(f's_cbranch_scc1 L{tag}_ok')
    a(f's_mov_b32 s{cnt}, 0')
    a.label(f'L{tag}_spin')
    for t in load + [f's_add_u32 s{cnt}, s{cnt}, 1', 's_waitcnt lgkmcnt(0)'] + test + [f's_cbranch_scc1 L{tag}_ok'] + ([f's_sleep {sleep}'] if sleep else []) + [f's_cmp_lt_u32 s{cnt}, 0x100000', f's_cbranch_scc1 L{tag}_spin']:
        a.raw('    '+t)
    a.label(f'L{tag}_ok')
    if not first: a.lgkm = []; a.smem_out = []

def phaseA(a, dft, q, master, z):
    tag = 'd' if dft else 'g'
    cnt = {}; c = 0
    for t in master_list(): c += len(items(t)); cnt[t] = c
    def enqueue(nb):
        while master:
            t = master[0]
            if t[0] == 'W' and t[1]-6 > nb: break
            if t[0] == 'X' and t[1] >= 4 and t[1]-4 > (nb >> 1)-1: break
            q.pend += items(master.pop(0))
    def front(its):
        k = 1 if q.predone else 0
        q.pend[k:k] = its; q.limit += len(its)
        for t in cnt: cnt[t] += len(its)
    def setlimit(n):
        q.limit = cnt[('W', n+1)] + C.cap if n < C.capn else 10**9
    rops = dft_R_ops() if dft else [[]]*4
    q.need(('W',0))
    a('s_barrier')
    stamp(a)
    setlimit(0)
    wr = w_reads(0)
    a(wr[0]); a(wr[1]); a(x_read(0))
    for t in wr[2:]: a(t)
    a(x_read(1)); a(x_read(2))
    for t in stats_reads(0): a(t)
    fq = []
    red, redw = stats_reduce_ops(dft)
    spoll = f's_load_dword s{sFV}, s[78:79], s{sT+8} glc'
    dbgld = f's_load_dword s{sFV}, s[76:77], 0'
    for n in range(16):
        s, p = n >> 1, n & 1
        wr = w_reads(n+1) if n < 15 else []
        nob = lambda m: C.skipb and m >= C.skipb and m % 2 == 0 and m < 10
        bar_tf = C.bar if (n < 15 and not nob(n)) else None
        nW = n+2 if nob(n+1) else n+1
        if n == 0: fq += rops[0]
        if n == 1: fq += rops[1] + rops[2]
        if n == 2: fq += rops[3]
        if n == 6: fq += late_setup_ops()
        if n == C.spoll: fq.insert(0, spoll)
        if n == 3: fq.insert(0, dbgld)
        if n == 11: fq += red
        if n == 14: fq += epi_addr_ops(dft)
        for tf in range(8):
            k = 8*n+tf; q.pos = k
            can_w = bar_tf is None or tf > bar_tf
            dpos = [[pp for t,pp in q.log if t == ('D',u)] for u in range(14)]
            dmax = min(C.rd0, len([1 for d in dpos if len(d) == 4 and d[3]+C.dlag <= k]))
            rate = 8 if n < 5 else C.rate
            if q.pend and q.pend[0][0][0] == 'D': rate = C.drate if q.pend[0][0][1] >= C.dslow else 4
            slot = (tf*rate) % 8 < rate
            def other(cnt_):
                for _ in range(cnt_):
                    if can_w and wr: a(wr.pop(0))
                    elif fq: a(fq.pop(0))
                    elif q.read1(dmax): pass
            def flush():
                while fq: a(fq.pop(0))
            if n == 4 and tf == 0:
                flush()
                its = [(('S',0), [], f'buffer_store_dwordx4 {vr(vSXo,4)}, v4, {S(sWS)}, s{sT+6} offen sc1')]
                if not dft: its.append((('S',0), [], f'buffer_store_dword v{vCS}, v5, {S(sWS)}, s{sT+7} offen sc1'))
                front(its)
            for wf in range(4):
                c = vr(acc(tf,wf),4); wfr = vr(fW(p,wf),4); xf = vr(fX(k),4)
                src = f'{xf}, {wfr}' if dft else f'{wfr}, {xf}'
                a(f'{MF} {c}, {src}, {c if n else 0}')
                if wf == 0:
                    if k+3 < 128: a(x_read(k+3)); other(1)
                    else: other(2)
                elif wf == 1:
                    if slot and q.haspre(): q.pre()
                    else: other(2)
                elif wf == 2:
                    if slot and q.ready() and not q.haspre(): q.issue(1)
                    else: other(2)
                elif tf != bar_tf: other(1)
                else:
                    q.limit = 10**9
                    while q.has(('W', nW)): q.issue(1)
                    if n in (0, 1, 2, 5, 9): flush()
                    if n < 4:
                        for t in stats_mfma(dft, n): a(t)
                    if n == 0: scalar_late(a)
                    if n == 1 and C.pads: a.raw(f';WARM {tag}')
                    q.need(('W', nW))
                    if n == 5:
                        q.need(('S',0))
                        spin(a, tag+'i', [f'global_load_dword v{vDBG}, v11, s[76:77] sc1', 's_waitcnt vmcnt(0)', f'v_readfirstlane_b32 s{sFV}, v{vDBG}', 's_nop 3'], [f's_cmp_lg_u32 s{sFV}, 0'], sT+14)
                    if n == 9: spin(a, tag+'s', [spoll], [f's_cmp_eq_u32 s{sFV}, 8'], sT+14)
                    a('s_barrier')
                    if n == 0:
                        assert z not in a.vm
                        a(f's_or_b32 s{sT}, s2, s{sW}')
                        a(f's_cbranch_scc1 L{tag}_noinit')
                        a(f's_atomic_add s{sONE}, s[76:77], 0')
                        a.label(f'L{tag}_noinit')
                    if n == 2: a.smem_out = []
                    if n == 5: a(f's_atomic_add s{sONE}, s[78:79], s{sT+8}')
                    if n == 7: a.smem_out = []
                    if n in (1,3,7,11,13): stamp(a)
                    enqueue(n); setlimit(n+1)
                    if n < 3: wr += stats_reads(n+1)
                    if n == 3:
                        assert not q.has(('T',1))
                        fq += stats_pack_ops(dft)
                    if n == 9:
                        g = [(('A',0), [], f'buffer_load_dwordx4 {vr(96,4)}, v15, {S(sWS)}, s{sXS} offen sc1')]
                        if not dft: g += [(('A',0), [], f'buffer_load_dwordx4 {vr(112,4)}, v15, {S(sWS)}, s{sCS} offen sc1')]
                        front(g)
                    for nn, up in WD_AVAIL.items():
                        if nn <= n and not master: q.addD(up)
                    if n == 13: fq += redw
            if n == 10 and tf == 0: assert not q.has(('A',0))
            if n == 13 and tf == 7: assert not q.has(('X',7))
            if n == 15 and tf == 5:
                flush()
                a.wait(lgkm=0)
                a('s_barrier')
                fq += [rec_read(t4, dft) for t4 in range(4)]
                q.addD(14)
        assert not wr, (n, wr)
    assert not fq
    for t4 in range(4, 8): a(rec_read(t4, dft))
    q.pos = 128
    if C.log: print(tag, ' '.join(f'{t[0]}{t[1]}@{p//8}.{p%8}' for t,p in q.log), 'reads left', len(q.rq), 'dma left', len(q.pend), file=sys.stderr)
    q.readD(C.rd0)
    assert len(q.rq) == 8*(14-C.rd0)
    while len(q.pend) > C.dleft: q.issue(1)

def glu_epilogue(a, q):
    for tf in range(8):
        R = rec(tf); G = acc(tf,0); U = acc(tf,2); hb = vSXo+4*(tf&1)
        ms = vr(R,2); ar_ = vr(R+2,2)
        for r in range(0,8,2): a(f'v_pk_fma_f32 {vr(G+r,2)}, {vr(vCS+r,2)}, {ms}, {vr(G+r,2)} op_sel_hi:[1,0,1]')
        for r in range(0,8,2): a(f'v_pk_mul_f32 {vr(G+r,2)}, {vr(G+r,2)}, {ar_} op_sel_hi:[1,0]')
        for r in range(8):
            a(f'v_exp_f32 v{G+r}, v{G+r}')
            if tf == 0 and r == 5: a.wait(lgkm=0)
        for r in range(0,8,2): a(f'v_pk_fma_f32 {vr(U+r,2)}, {vr(vCS+8+r,2)}, {ms}, {vr(U+r,2)} op_sel_hi:[1,0,1]')
        for r in range(0,8,2): a(f'v_pk_fma_f32 {vr(G+r,2)}, {vr(G+r,2)}, {ms}, {ms} op_sel:[0,1,1] op_sel_hi:[1,1,1]')
        q.issue(C.epi_dma)
        for r in range(8): a(f'v_rcp_f32 v{G+r}, v{G+r}')
        if tf: a(f's_add_u32 s{sT+4}, s{sT+4}, {HP}')
        for r in range(0,8,2): a(f'v_pk_mul_f32 {vr(U+r,2)}, {vr(U+r,2)}, {vr(G+r,2)}')
        for d in range(4): a(f'v_cvt_pk_bf16_f32 v{hb+d}, v{U+2*d}, v{U+2*d+1}')
        last = a(f'buffer_store_dwordx4 {vr(hb,4)}, v16, {S(sWS)}, s{sT+4} offen sc1')
    return last

def dft_epilogue(a, q):
    ZB = [96, 112, 48, 64]
    Z = lambda b, wf: ZB[b]+4*wf
    for tf in range(8):
        for wf in range(4):
            A = acc(tf,wf)
            for r in (0,2): a(f'v_pk_mul_f32 {vr(A+r,2)}, {vr(A+r,2)}, {vr(rec(tf)+r,2)}')
        for wf in range(4):
            A = acc(tf,wf)
            for d in range(2): a(f'v_cvt_pk_bf16_f32 v{Z(tf>>1,wf)+2*(tf&1)+d}, v{A+2*d}, v{A+2*d+1}')
        if tf == 0: a.wait(lgkm=0); a('s_nop 0')
        q.issue(C.epi_dma)
    D2 = lambda jb,z,wf: vACC+32*jb+16*z+4*wf
    def stores(jb):
        out = []
        for rp in range(2):
            for fb in range(2):
                t = 80+4*(2*rp+fb)
                for z in range(2):
                    for m in range(2): out.append(f'v_cvt_pk_bf16_f32 v{t+2*z+m}, v{D2(jb,z,2*m+fb)+2*rp}, v{D2(jb,z,2*m+fb)+2*rp+1}')
                if fb == 0: out.append(f's_mov_b32 s{sT+2}, {G_OFF-14*2048+(8*jb+rp)*GP}')
                out.append(f'buffer_store_dwordx4 {vr(t,4)}, v16, {S(sWS)}, s{sT+2} offen offset:{256*fb} sc1')
        return out
    pend = []
    for jb in range(4):
        n = 0
        for qq in range(2):
            for z in range(2):
                for wf in range(4):
                    c = vr(D2(jb,z,wf),4)
                    a(f'{MF} {c}, {ar(aR+8*jb+4*qq,4)}, {vr(Z(2*z+qq,wf),4)}, {c if qq else 0}')
                    n += 1
                    if n >= 4:
                        for t in pend[:2]: a(t)
                        pend = pend[2:]
        assert not pend
        pend = stores(jb)
    for t in pend: last = a(t)
    return last

vHA, vGA, vHS, vPW, vXS, vH, NH, vPS, vAC = 14, 26, 30, 15, 64, 128, 16, 80, 192
PR = [18, 20, 21]
LPX = 4*UN
SEQ = [(sl, ks) for sl in range(4) for ks in range(14)]
def hload(a, n):
    sl, ks = SEQ[n]
    return a(f'buffer_load_dwordx4 {vr(vH+4*(n%NH),4)}, v{vHS+sl}, {S(sWS)}, s{sPO+(ks>>1)} offen offset:{(ks&1)*1024} sc1')
def presync(a, dft0, q, last):
    tag = 'd' if dft0 else 'g'
    dft = dft0 and C.dlate
    stamp(a)
    q.readD(5)
    post = 0 if dft else C.post
    while len(q.pend) > post: q.issue(1)
    for pr in range(2): a(f'buffer_load_dwordx4 {vr(48+4*pr,4)}, v{vOUT}, {S(sX)}, 0 offen offset:{64*pr}')
    q.readD(C.rd1)
    a(f's_lshr_b32 s{sT}, s{sR}, 1')
    a(f's_lshl_b32 s{sT}, s{sT}, 2')
    a(f's_add_u32 s{sT}, s{sT}, s{sW}')
    a(f's_lshl_b32 s{sT+15}, s{sT}, 7')
    a(f's_add_u32 s{sT+15}, s{sT+15}, {FL_OFF}')
    a(f'v_lshlrev_b32 v{vHA}, 4, v{vLANE}')
    a(f's_mul_i32 s{sT+2}, s{sR}, {4*HP}')
    a(f's_mul_i32 s{sT+1}, s{sW}, {14*1024}')
    a(f's_add_u32 s{sT+2}, s{sT+2}, s{sT+1}')
    for sl in range(4):
        a(f's_xor_b32 s{sT}, s{sOWN}, {3-sl}')
        a(f's_mul_i32 s{sT+1}, s{sT}, {HP}')
        a(f's_add_u32 s{sT+1}, s{sT+1}, s{sT+2}')
        a(f'v_add_u32 v{vHS+sl}, s{sT+1}, v{vHA}')
    def chores():
        a(f's_lshl_b32 s{sKX}, s{sW}, 8')
        a(f's_add_u32 s{sKX}, s{sKX}, {FLG_OFF}')
        a(f's_add_u32 s{sKCX}, s{sKX}, 128')
        if C.full:
            a(f'v_lshrrev_b32 v4, 3, v{vN}')
            a(f'v_mul_u32_u24 v4, {8*65536-64}, v4')
            a(f'v_sub_u32 v16, v{vOUT}, v4')
            a(f'v_add_u32 v17, {8*65536}, v16')
        a(f'v_add_u32 v{vHA}, {LPX}, v{vHA}')
        a(f'v_add_u32 v{vPW}, s{sM0}, v{vHA}')
        for sl in range(3): a(f'v_xor_b32 v{PR[sl]}, {(3-sl)*4096}, v{vPW}')
        a(f's_mul_i32 s{sT}, s{sP}, {GP}')
        a(f's_lshl_b32 s{sT+1}, s{sW}, 14')
        a(f's_add_u32 s{sT}, s{sT}, s{sT+1}')
        a(f's_add_u32 s{sT}, s{sT}, {G_OFF}')
        a(f'v_lshl_add_u32 v4, v{vG}, 12, s{sT}')
        a(f's_lshl_b32 s{sT+1}, s{sCB}, 6')
        for cbk in range(4):
            a(f'v_add_u32 v5, s{sT+1}, v{vN}')
            a(f'v_add_u32 v5, {16*cbk-256}, v5')
            a(f'v_sub_u32 v6, 0, v5')
            a(f'v_max_i32 v5, v5, v6')
            a(f'v_cmp_gt_u32 vcc, 0x100, v5')
            a(f'v_lshl_add_u32 v5, v5, 4, v4')
            a(f'v_subrev_u32 v4, 0x400, v4')
            a(f'v_cndmask_b32 v{vGA+cbk}, v10, v5, vcc')
    pub = f's_atomic_add s{sONE}, s[78:79], s{sT+12}'
    if not dft: chores()
    stamp(a)
    if not dft:
        a.wait_vm_for(last)
        a(pub)
    stamp(a)
    if not dft:
        q.issue(99)
        q.readD(C.rd2)
    assert not q.pend
    stamp(a)
    spin(a, tag+'h', [f's_mov_b32 s{sFV}, 0', f's_atomic_add s{sFV}, s[78:79], s{sT+15} glc'], [f's_cmp_eq_u32 s{sFV}, 14'], sT+14, sleep=0, first=False)
    stamp(a, 3)
    for n in range(C.look0): hload(a, n)
    if dft:
        chores()
        a.wait_vm_for(last)
        a(pub)
    a(f's_add_u32 m0, s{sM0}, {LPX+3*UN}')
    q.readD(14)
    for pr in range(2):
        for d in range(2): a(f'v_permlane16_swap_b32 v{48+4*pr+d}, v{48+4*pr+2+d}')
    for k in range(8):
        a(f'v_lshlrev_b32 v{vXS+2*k}, 16, v{48+k}')
        a(f'v_and_b32 v{vXS+2*k+1}, s{sMSK}, v{48+k}')
    a.wait(vm=C.look0)

def phaseB(a):
    gpoll = [f's_load_dword s{sFV}, s[78:79], s{sKX}', f's_load_dword s{sFV+1}, s[78:79], s{sKCX}']
    gpoll2 = [f'buffer_load_dword v6, v11, {S(sWS)}, s{sKX} offen sc1', f'buffer_load_dword v7, v11, {S(sWS)}, s{sKCX} offen sc1', 's_waitcnt vmcnt(0)',
              f'v_readfirstlane_b32 s{sFV}, v6', f'v_readfirstlane_b32 s{sFV+1}, v7', 's_nop 3']
    AC = lambda sl,cbk: vAC+16*sl+4*cbk
    GF = lambda k: vr(vPS+4*k,4) if k < 12 else ar(224+4*(k-12),4)
    gl = [f'buffer_load_dwordx4 v{vGA+cbk}, {S(sWS)}, 0 offen offset:{1024*cbk} sc1 lds' for cbk in range(4)]
    nl = C.look0
    fillers = []; gm = []; wq = []
    def fill(k):
        for _ in range(k):
            if fillers: a(fillers.pop(0))
    assert C.gb+6 <= 42
    for n in range(56):
        sl, ks = SEQ[n]
        for cbk in range(4):
            c = vr(AC(sl,cbk),4)
            a(f'{MF} {c}, {ar(16*ks+4*cbk,4)}, {vr(vH+4*(n%NH),4)}, {c if (ks or sl == 3) else 0}')
            if cbk == 0:
                if nl < 56: hload(a, nl); nl += 1
                else: fill(2)
            elif cbk == 1 and n == C.gp:
                a.wait(lgkm=0)
                for t in gpoll: a(t)
            elif cbk == 1 and n == C.gc:
                spin(a, 'g', gpoll2, [f's_add_u32 s{sFV}, s{sFV}, s{sFV+1}', f's_cmp_eq_u32 s{sFV}, 32'], sT+14, sleep=C.gsl)
            elif cbk == 1 and n == C.gb:
                a.wait_vm_for(gdone); a('s_barrier')
                fillers = [f'ds_read_b128 {GF(k)}, v{vHA} offset:{3*UN+1024*k}' for k in range(16)]
                gm = [f'{MF} {vr(AC(3,k&3),4)}, {GF(k)}, {ar(aCF+4*(k>>2),4)}, {vr(AC(3,k&3),4) if k>>2 else vr(vXS+4*k,4)}' for k in range(16)]
            elif cbk == 1 and sl and 1 <= ks and wq: a(wq.pop(0))
            elif cbk == 1 and sl == 3 and ks == C.xb:
                assert not wq and not gm and not fillers
                a.wait(lgkm=0); a('s_barrier')
                fillers = [f'ds_read_b128 {vr(vPS+4*k,4)}, v{PR[k>>2]} offset:{(k>>2)*UN+1024*(k&3)}' for k in range(12)]
                fillers += [f'v_add_f32 v{vPS+k}, v{vPS+k}, v{vPS+16+k}' for k in range(16)]
                fillers += [f'v_add_f32 v{vPS+k}, v{vPS+k}, v{vPS+32+k}' for k in range(16)]
            elif cbk == 2 and C.gc <= n < C.gc+4: gdone = a(gl[n-C.gc])
            elif cbk == 2 and nl < 56 and nl-n-1 < C.look:
                hload(a, nl); nl += 1
            else: fill(1 if cbk == 3 else 2)
        if gm and n >= C.gb+2:
            for t in gm[:4]: a(t); fill(2)
            gm = gm[4:]
        if ks == 13 and sl < 3:
            assert not wq
            wq = [f'ds_write_b128 v{vPW}, {vr(AC(sl,k),4)} offset:{sl*UN+1024*k}' for k in range(4)]
        if n == 0: stamp(a, 3)
        if n in (7,14,21,28,35,42,49): stamp(a, 2)
    fill(99)
    stamp(a, 3)
    for pr in range(2):
        for k in range(4*pr, 4*pr+4): a(f'v_pk_add_f32 {vr(vPS+2*k,2)}, {vr(vPS+2*k,2)}, {vr(AC(3,0)+2*k,2)}')
        for k in range(4*pr, 4*pr+4): a(f'v_cvt_pk_bf16_f32 v{vXS+k}, v{vPS+2*k}, v{vPS+2*k+1}')
        for d in range(2): a(f'v_permlane16_swap_b32 v{vXS+4*pr+d}, v{vXS+4*pr+2+d}')
        if not C.full: a(f'buffer_store_dwordx4 {vr(vXS+4*pr,4)}, v{vOUT}, {S(sOUT)}, 0 offen offset:{64*pr} {("","sc1","nt","sc0 sc1")[C.outsc]}')
        elif pr == 0:
            for d in range(4): a(f'v_mov_b32 v{vXS+8+d}, v{vXS+d}')
    if C.full:
        for d in range(4): a(f'v_mov_b32_dpp v{vXS+d}, v{vXS+4+d} row_ror:8 row_mask:0xf bank_mask:0xc')
        a(f'buffer_store_dwordx4 {vr(vXS,4)}, v16, {S(sOUT)}, 0 offen {("","sc1","nt","sc0 sc1")[C.outsc]}')
        for d in range(4): a(f'v_mov_b32_dpp v{vXS+4+d}, v{vXS+8+d} row_ror:8 row_mask:0xf bank_mask:0x3')
        a(f'buffer_store_dwordx4 {vr(vXS+4,4)}, v17, {S(sOUT)}, 0 offen {("","sc1","nt","sc0 sc1")[C.outsc]}')
    stamp(a)

def kernel(a):
    q = Q(a)
    prologue(a, q)
    master = master_list()[1:]
    while master[0] != ('W', 6): q.pend += items(master.pop(0))
    q.issue(6)
    stamp(a)
    z = setup2(a)
    for t in coef_ops(): a(t)
    q.issue(C.cap0-2)
    stamp(a)
    a(f's_cmp_ge_u32 s{sJ}, 14')
    a('s_cbranch_scc1 L_dft')
    st = a.snapshot(); n0 = St.n; q2 = q.clone()
    phaseA(a, False, q, list(master), z); stamp(a)
    presync(a, False, q, glu_epilogue(a, q))
    def state(): return ([i.text for i in a.vm], St.n)
    join = state(); jl = [i.text for i in a.lgkm]
    a.label('L_phaseB')
    a.raw(';PAD0') if C.pads else a('s_nop 0')
    phaseB(a)
    stamp_flush(a)
    a.label('L_end')
    a('s_endpgm')
    a.restore(st); St.n = n0; q = q2
    a.raw('.p2align 3')
    a.label('L_dft')
    phaseA(a, True, q, list(master), z); stamp(a)
    presync(a, True, q, dft_epilogue(a, q))
    assert join == state(), (join, state())
    a.wait(lgkm=min(len(jl), 14), smem=False)
    l2 = [i.text for i in a.lgkm]
    assert jl[len(jl)-len(l2):] == l2
    a('s_branch L_phaseB')
    if a.blocked: print('waits that block on smem at lines', a.blocked, file=sys.stderr)

def layout(lines, base):
    out = []
    for l in lines:
        if l.startswith(';WARM'):
            t = l.split()[1]
            out += ['    s_mov_b64 exec, 0']
            for w in range(3): out += [f'    s_cmp_eq_u32 s{sW}, {w}', f'    s_cbranch_scc1 @{t}{w}']
            out += [f'    s_branch @{t}3']
            if t == 'g': out += ['Ltramp:', f'    s_cmp_ge_u32 s{sJ}, 14', '    s_cbranch_scc1 Lret_d']
            out += [f'Lret_{t}:', '    s_mov_b64 exec, -1']
        elif l == ';PAD0': out += ['Lpad_s0:', '    s_cbranch_execz @next_s0']
        else: out.append(l)
    import re
    sz = sizes_of([re.sub(r'@\w+', 'L_end', l) for l in out])
    idx = [i for i,l in enumerate(out) if l.startswith('    ') and not l.strip().startswith((';','.'))]
    assert len(idx) == len(sz)
    size = dict(zip(idx, sz))
    res = []; addr = base; cand = None; fixed = left = 0; region = None; pads = {'g': [], 's': ['s0'], 'd': []}
    page = addr >> 12
    for i,l in enumerate(out):
        if l == 'Lret_g:': region = 'g'
        if l == 'L_phaseB:': region = 's'
        if l == 'L_end:': region = None
        if l == 'Lret_d:': region = 'd'
        if l.startswith('.p2align 3'): addr = (addr+7)//8*8; cand = None; res.append(l); continue
        if i not in size: res.append(l); continue
        if (addr >> 12) != page:
            page = addr >> 12
            if region and C.pads and 'exec' not in l:
                nm = f'{region}{len(pads[region])}'; pads[region].append(nm)
                res += [f'Lpad_{nm}:', f'    s_cbranch_execz @next_{nm}']; addr += 4
                if C.log: print('pad', nm, 'before line', i, l.strip()[:60], file=sys.stderr)
        s = size[i]
        if s == 8 and addr % 8 == 4:
            if cand is not None and C.align:
                op = res[cand].split()[0]; res[cand] = res[cand].replace(op, op+'_e64', 1); addr += 4; fixed += 1
            elif addr % 32 == 28: left += 1
        res.append(l)
        if s == 8: cand = None
        elif l.split()[0] in PROMO and addr % 8 == 0: cand = len(res)-1
        addr += s
    tgt = {}
    sp = pads['s']
    for k, nm in enumerate(sp): tgt[f'next_{nm}'] = f'Lpad_{sp[k+1]}' if k+1 < len(sp) else 'Ltramp'
    for t in 'gd':
        own = pads[t]
        for k, nm in enumerate(own): tgt[f'next_{nm}'] = f'Lpad_{own[k+3]}' if k+3 < len(own) else f'Lret_{t}'
        for w in range(3): tgt[f'{t}{w}'] = f'Lpad_{own[w]}' if w < len(own) else f'Lret_{t}'
        tgt[f'{t}3'] = f'Lpad_{sp[0 if t == "d" or len(sp) == 1 else 1]}'
    res = [re.sub(r'@(\w+)', lambda m: tgt[m.group(1)], l) for l in res]
    print('align fixed', fixed, 'left', left, 'pads', pads, 'bytes', addr-base, file=sys.stderr)
    assert addr-base <= 32*CODE_LINES_PER_WG*128
    return res

def build():
    out = ['; @launch grid=(256,1,1) block=(256,1,1) lds=163840', '; '+' '.join(sys.argv[2:]),
           '.amdgcn_target "amdgcn-amd-amdhsa--gfx950"', '.text', '.p2align 12']
    if C.shift: out.append(f'.fill {64*C.shift}, 4, 0xbf800000')
    nm = NAME+'_kernel'
    a = Asm(); kernel(a)
    lines = layout(a.lines, 0x300+256*C.shift)
    out += [f'.globl {nm}', '.p2align 8', f'.type {nm},@function', f'{nm}:', '\n'.join(lines)]
    out.append('L_code_end:')
    out.append(f'.fill ({32*CODE_LINES_PER_WG*128+256} - (L_code_end - {nm}))/4, 4, 0xbf800000')
    out.append('.section .rodata,"a"')
    out.append('.p2align 6')
    out.append(f'''.amdhsa_kernel {nm}
  .amdhsa_next_free_vgpr 512
  .amdhsa_next_free_sgpr 96
  .amdhsa_accum_offset 256
  .amdhsa_group_segment_fixed_size 0
  .amdhsa_kernarg_size 96
  .amdhsa_user_sgpr_count 2
  .amdhsa_user_sgpr_kernarg_segment_ptr 1
  .amdhsa_system_sgpr_workgroup_id_x 1
.end_amdhsa_kernel
''')
    return '\n'.join(out)
if __name__ == '__main__':
    for kv in sys.argv[2:]:
        k, v = kv.split('='); assert hasattr(C, k), k; setattr(C, k, int(v))
    HP = 56*1024+C.hpad; GP = 65536+C.gpad
    t = build()
    open(sys.argv[1], 'w').write(t)
```

```python
import sys, struct
from asmlib import *

NAME = 'parallel_sum__spectral_fnet__glu_gated_glu__prompt'
HP = 56*1024+128
GP = 65536+128
G_OFF = 0x790000
FL_OFF = 0xA00000
FLS_OFF = FL_OFF+128*128
FLG_OFF = FLS_OFF+4
NFL = 256
XS_OFF = 0xA10000
CS_OFF = 0xA50000
WS_BYTES = 0xA90000
STAMP_OFF = 0xC00000
OOB = 0x7f000000
def f2u(x): return struct.unpack('<I', struct.pack('<f', x))[0]
LOG2E = 1.4426950408889634
MF = 'v_mfma_f32_16x16x32_bf16'

class Cfg:
    stamps = 0; log = 0; align = 1
    touch = 0
    tlb = 0
    pads = 1
    shift = 0
    hrot = 0; bmap = 1; drot = 2
    cap0 = 6; cap = 6; capn = 3; bar = 2
    rate = 8; drate = 8; dslow = 0
    spoll = 8; dlag = 10; rd0 = 5; rd1 = 6
    dleft = 16; epi_dma = 0; post = 12
    look = 10; look0 = 8; gp = 18; gc = 24; gb = 36; xb = 6; skipb = 0; snake = 1; defer = 4; lp = 8; pre = 8; mid = 4; xoff = 0; dmap = 1; dstart = 5; ddrate = 4; ddlag = 16; dearly = 0; drotd = 2; dcap = 14; xord = 0; hoist = 1; gnew = 1; drd1 = 12; plate = 2; ftz = 0; gsl = 0
    infl = 2; pgap = 5
    outsc = 1; tpos = 3; tfl = 0; rmask = 6
    hpad = 0; gpad = 0
C = Cfg()

sMSK, sR, sCB = 3, 6, 7
sPO = 8
sDBG, sX, sG, sU, sWS, sWD, sOUT = 16, 20, 24, 28, 32, 36, 40
sW, sI, sJ, sP = 44, 45, 46, 47
sT = 48
sM0, sKX, sKW, sPITCH, sKCX, sKCW, sL, sXS = 64, 65, 66, 67, 68, 69, 70, 71
sSET, sCS, sOWN, sONE, sFV, sKD, sP2, sP7 = 80, 81, 86, 87, 4, 5, 15, 0
sM1, sM2, sM3, sMV = 88, 90, 92, 94
vLANE, vN, vG, vOUT = 1, 2, 3, 13
vXD, vWD, vD, vXA, vOA, vWA, vTR, vDBG, vSTAMP = 16, 20, 22, 26, 28, 30, 34, 46, 47
vXR, vWF, vSXo, vCS, vSQo, vACC = 48, 64, 96, 104, 120, 128
aSX, aONE, aR, aCL, aCF = 160, 168, 192, 224, 240
UN = 16384
LST = 1*UN
def acc(tf, wf): return vACC+16*tf+4*wf
def fW(p, wf): return vWF+16*p+4*wf
def fX(k): return vXR+4*(k & 3)
def S(r): return f's[{r}:{r+3}]'

class St: n = 0
def stamp(a, grp=1):
    if not (C.stamps & grp): return
    a(f's_memtime s[82:83]')
    a(f's_memrealtime s[84:85]')
    a.wait(lgkm=0)
    a(f'v_writelane_b32 v{vSTAMP}, s82, {St.n}')
    a(f'v_writelane_b32 v{vSTAMP}, s84, {32+St.n}')
    St.n += 1
LZ = [16, 18, 96, 98, 100]
def lazy(a, k):
    if C.stamps & 1: a.raw(f'    s_memrealtime s[{LZ[k]}:{LZ[k]+1}] ; s_memtime')
def lazy_flush(a, n):
    if not (C.stamps & 1): return
    a.raw('    s_waitcnt lgkmcnt(0)')
    for k in range(n):
        a(f'v_writelane_b32 v{vSTAMP}, s{LZ[k]}, {32+St.n}'); St.n += 1
def stamp_flush(a):
    if not C.stamps: return
    a.wait(vm=0)
    stamp(a, 255)
    a(f's_mov_b32 s{sWS+2}, 0x1000000')
    a(f's_lshl_b32 s82, s2, 2')
    a(f's_add_u32 s82, s82, s{sW}')
    a(f's_lshl_b32 s82, s82, 8')
    a(f's_add_u32 s82, s82, {STAMP_OFF}')
    a(f'v_lshlrev_b32 v4, 2, v{vLANE}')
    a(f'buffer_store_dword v{vSTAMP}, v4, {S(sWS)}, s82 offen')

def srd(a, d, ptr, nbytes):
    a(f's_mov_b64 s[{d}:{d+1}], s[{ptr}:{ptr+1}]')
    a(f's_mov_b32 s{d+2}, {nbytes}')
    a(f's_mov_b32 s{d+3}, 0x20000')

def dma_X(s):
    pre = {0: [f's_add_u32 m0, s{sM0}, {(s % 4)*UN}', f's_xor_b32 s{sKX}, s{sKX}, 512' if s & 1 else f's_lshl_b32 s{sKX}, s{sKCX}, 7']}
    if s & 1: pre[1] = [f's_add_u32 s{sKCX}, s{sKCX}, 1', f's_and_b32 s{sKCX}, s{sKCX}, 3'] + ([f's_or_b32 s{sKCX}, s{sKCX}, 4'] if C.xord else [])
    return [(('X', s), pre.get(q, []), f'buffer_load_dwordx4 v{vXD+q}, {S(sX)}, s{sKX} offen offset:{q*1024} lds') for q in range(4)]
def wunit(n, dft): return 4 + (((2 if n >> 2 == 1 else 0)+(n & 1)) if dft else n % 6)
def dma_W(n, dft):
    k = [f's_mul_i32 s{sKW}, s{sKCW}, s{sP2}', f's_add_u32 s{sKW}, s{sKW}, s{sPITCH}', f's_add_u32 s{sKW}, s{sKW}, s{sP7}', f's_add_u32 s{sKW}, s{sKW}, s{sPITCH}'][n & 3]
    pre = {0: [f's_add_u32 m0, s{sM0}, {wunit(n, dft)*UN}', k]}
    if n & 3 == 1: pre[1] = [f's_add_u32 s{sKCW}, s{sKCW}, 1', f's_and_b32 s{sKCW}, s{sKCW}, 3'] + ([f's_or_b32 s{sKCW}, s{sKCW}, 4'] if C.xord else [])
    return [(('W', n), pre.get(q, []), f'buffer_load_dwordx4 v{vWD+(q&1)}, {S(sU if q >> 1 else sG)}, s{sKW} offen offset:{q*1024} lds') for q in range(4)]
class Plan:
    def __init__(self, dft):
        if dft:
            self.units = [8, 9, 6, 7, 8, 9, 6, 7, 0, 8, 9, 6, 7, 4]
            assert C.dstart >= 5
            self.avail = {C.dstart:8, 10:13, 12:14}
        else:
            self.units = [0, 8, 9, 4, 5, 0, 6, 2, 8, 7, 3, 9, 4, 5]
            self.avail = {10:2, 11:3, 12:4, 13:6, 14:9}
        self.prev = {u: max(v for v in range(u) if self.units[v] == self.units[u]) for u in range(14) if self.units[u] in self.units[:u]}
    def dma(self, u):
        pre = {0: [f's_add_u32 m0, s{sM0}, {self.units[u]*UN}',
                   f's_add_u32 s{sKD}, s{sKD}, 32768' if u & 1 else f's_lshl_b32 s{sKD}, s{sPO+(u>>1)}, 5']}
        return [(('D', u), pre.get(q, []), f'buffer_load_dwordx4 v{vD+q}, {S(sWD)}, s{sKD} offen offset:{q*1024} lds') for q in range(4)]
    def reads(self, u):
        un = self.units[u]
        return [f'ds_read_b64_tr_b16 {ar(16*u+4*cbk+2*u2,2)}, v{vTR+4*(un>>2)+cbk} offset:{(un&3)*UN+2048*u2}' for cbk in range(4) for u2 in range(2)]

class Q:
    def __init__(self, a, dft=False):
        self.a = a; self.pend = []; self.last = {}; self.predone = False; self.nD = 0; self.maxD = 0; self.rd = {}
        self.plan = Plan(dft)
        self.rq = [(u, t) for u in range(14) for t in self.plan.reads(u)]; self.issued = 0; self.limit = 10**9; self.log = []; self.pos = -1
    def clone(self, dft):
        q = Q(self.a, dft); q.pend = list(self.pend); q.last = dict(self.last); q.predone = self.predone; q.issued = self.issued; q.log = list(self.log)
        return q
    def left(self): return len(self.pend) + 4*(14-self.nD)
    def ready(self):
        if not self.pend and self.nD < self.maxD:
            pv = self.plan.prev.get(self.nD)
            if pv is None or not self.rq or self.rq[0][0] > pv:
                self.pend += self.plan.dma(self.nD); self.nD += 1
        return bool(self.pend) and self.issued < self.limit
    def haspre(self): return self.ready() and self.pend[0][1] and not self.predone
    def pre(self):
        if self.ready() and not self.predone:
            for t in self.pend[0][1]: self.a(t)
            self.predone = True
    def issue(self, n=1):
        for _ in range(n):
            if not self.ready(): return
            self.pre()
            tag, pf, t = self.pend.pop(0)
            if tag[0] == 'D' and tag[1] in self.plan.prev: self.a.wait_lgkm_for(self.rd[self.plan.prev[tag[1]]])
            self.last[tag] = self.a(t); self.predone = False; self.issued += 1; self.log.append((tag, self.pos))
    def addD(self, upto): self.maxD = max(self.maxD, upto)
    def has(self, tag): return [1 for t in self.pend if t[0] == tag]
    def need(self, tag):
        assert tag in self.last and not self.has(tag), ('not issued', tag)
        self.a.wait_vm_for(self.last[tag])
    def read1(self, upto):
        if not self.rq or self.rq[0][0] >= upto: return False
        u, t = self.rq.pop(0)
        self.need(('D', u))
        self.rd[u] = self.a(t)
        return True
    def readD(self, upto):
        while self.read1(upto): pass

def x_read(k):
    n, tf = k >> 3, k & 7
    return f'ds_read_b128 {vr(fX(k),4)}, v{vXA+(n&1)} offset:{((n>>1) % 4)*UN+tf*2048}'
def w_reads(n, dft):
    if dft and n & 2:
        return [f'v_xor_b32 v{fW(n&1,0)+k}, v12, v{fW(n&1,0)+k}' for k in range(16)]
    un = wunit(n, dft)-4
    return [f'ds_read_b64_tr_b16 {vr(fW(n&1,wf)+2*u,2)}, v{vWA+2*(un>>2)+(wf&1)} offset:{(un&3)*UN+(wf>>1)*2048+u*1024}' for wf in range(4) for u in range(2)]

def master_list(dft):
    m = []
    for n in range(16):
        if n % 2 == 0: m.append(('X', n >> 1))
        if not (dft and n & 2): m.append(('W', n))
    return m
def items(t, dft=False): return dma_X(t[1]) if t[0] == 'X' else dma_W(t[1], dft)

CODE_LINES_PER_WG = 10
def prologue(a, q):
    a('s_cmp_ge_u32 s2, 256')
    a('s_cbranch_scc1 L_end')
    a('s_load_dwordx2 s[4:5], s[0:1], 0')
    a('s_load_dwordx4 s[8:11], s[0:1], 24')
    a('s_load_dwordx4 s[12:15], s[0:1], 48')
    a('s_load_dwordx8 s[72:79], s[0:1], 64')
    St.n = 0
    if C.stamps: a('s_memrealtime s[84:85]'); a('s_memtime s[82:83]')
    a.raw(f'    s_getpc_b64 s[80:81]'); a.hist.append((Ins('s_getpc_b64 s[80:81]'),1))
    a(f's_lshr_b32 s{sT}, s2, 3')
    a(f's_mul_i32 s{sT}, s{sT}, {CODE_LINES_PER_WG*128}')
    a(f'v_min_u32 v4, {CODE_LINES_PER_WG-1}, v0')
    a(f'v_lshl_add_u32 v4, v4, 7, s{sT}')
    a(f'global_load_dword v{vDBG}, v4, s[80:81]')
    a(f'v_and_b32 v{vLANE}, 63, v0')
    a(f'v_lshrrev_b32 v4, 6, v0')
    a(f'v_and_b32 v{vN}, 15, v0')
    a(f'v_readfirstlane_b32 s{sW}, v4')
    a(f'v_bfe_u32 v{vG}, v0, 4, 2')
    a(f's_and_b32 s{sT}, s2, 1')
    a(f's_lshl_b32 s{sT}, s{sT}, 3')
    a(f's_bfe_u32 s{sI}, s2, {3|(3<<16)}')
    a(f's_add_u32 s{sI}, s{sI}, s{sT}')
    a(f's_bfe_u32 s{sT}, s2, {1|(2<<16)}')
    a(f's_lshr_b32 s{sT+1}, s2, 6')
    if C.dmap:
        a(f's_mul_i32 s{sJ}, s{sT}, 3')
        a(f's_add_u32 s{sJ}, s{sJ}, s{sT+1}')
        a(f's_add_u32 s{sT+2}, s{sT}, 14')
        a(f's_cmp_eq_u32 s{sT+1}, 3')
        a(f's_cselect_b32 s{sT+2}, s{sT+2}, s{sJ}')
        a(f's_cmp_eq_u32 s{sT}, 3')
        a(f's_addc_u32 s{sJ}, s{sJ}, 0')
        a(f's_cmp_lt_u32 s{sT}, 2')
        a(f's_cselect_b32 s{sJ}, s{sT+2}, s{sJ}')
    else:
        a(f's_mul_i32 s{sJ}, s{sT}, 3')
        a(f's_add_u32 s{sJ}, s{sJ}, s{sT+1}')
        a(f's_lshr_b32 s{sT+2}, s2, 4')
        a(f's_xor_b32 s{sT+2}, s{sT+2}, s2')
        a(f's_and_b32 s{sT+2}, s{sT+2}, 2')
        a(f's_lshr_b32 s{sT}, s{sT}, 1')
        a(f's_add_u32 s{sT}, s{sT}, s{sT+2}')
        a(f's_add_u32 s{sT}, s{sT}, 12')
        a(f's_cmp_eq_u32 s{sT+1}, 3')
        a(f's_cselect_b32 s{sJ}, s{sT}, s{sJ}')
    a(f's_xor_b32 s{sT}, s{sI}, s{sT+1}')
    a(f's_and_b32 s{sT}, s{sT}, 1')
    a(f's_lshl_b32 s{sKCX}, s{sT}, 1')
    a(f's_lshr_b32 s{sT}, s2, 1')
    a(f's_xor_b32 s{sT}, s{sT}, s2')
    a(f's_and_b32 s{sT}, s{sT}, 1')
    a(f's_add_u32 s{sKCX}, s{sKCX}, s{sT}')
    a(f's_lshl_b32 s{sL}, s{sKCX}, 8')
    if C.xord: a(f's_or_b32 s{sKCX}, s{sKCX}, 4')
    a(f's_mov_b32 s{sKCW}, s{sKCX}')
    a(f's_sub_u32 s{sT+1}, 32, s{sI}')
    a(f's_cmp_eq_u32 s{sI}, 0')
    a(f's_cselect_b32 s{sT+1}, 16, s{sT+1}')
    a(f's_bitcmp1_b32 s{sW}, 1')
    a(f's_cselect_b32 s{sT}, s{sT+1}, s{sI}')
    a(f's_sub_u32 s{sT+1}, 64, s{sT}')
    a(f's_cmp_eq_u32 s{sT}, 0')
    a(f's_cselect_b32 s{sT+1}, 32, s{sT+1}')
    a(f's_add_u32 s{sT+2}, s{sT}, 32')
    a(f's_movk_i32 s{sT+6}, 3584')
    a(f's_cmp_ge_u32 s{sJ}, 14')
    a(f's_cselect_b32 s{sT+1}, s{sT+2}, s{sT+1}')
    a(f's_cselect_b32 s{sT+6}, 1024, s{sT+6}')
    a(f's_cselect_b32 s{sT+4}, 12, 0')
    a(f's_sub_u32 s{sT+4}, s{sJ}, s{sT+4}')
    a(f's_lshl_b32 s{sT+4}, s{sT+4}, 8')
    a(f's_bitcmp1_b32 s{sW}, 0')
    a(f's_cselect_b32 s{sT}, s{sT+1}, s{sT}')
    a(f's_cselect_b32 s{sT+5}, 8, 0')
    a(f's_lshl_b32 s{sT}, s{sT}, 10')
    a(f'v_lshrrev_b32 v4, 3, v{vLANE}')
    a(f'v_lshl_add_u32 v4, v4, 16, s{sT}')
    a(f'v_and_b32 v6, 7, v{vLANE}')
    a(f'v_xor_b32 v6, v6, v{vG}')
    a(f'v_lshl_add_u32 v{vXD}, v6, 4, v4')
    a(f'v_xor_b32 v7, 64, v{vXD}')
    a(f'v_add_u32 v{vXD+1}, {524288-1024}, v7')
    a(f'v_add_u32 v{vXD+2}, {2*(524288-1024)}, v{vXD}')
    a(f'v_add_u32 v{vXD+3}, {3*(524288-1024)}, v7')
    a(f's_lshl_b32 s{sM0}, s{sW}, 12')
    a(f's_lshl_b32 s{sPITCH}, s{sT+6}, 5')
    a(f's_mov_b32 s{sX+2}, {2048*1024}')
    a(f's_mov_b32 s{sX+3}, 0x20000')
    def waddr():
        a(f's_lshl_b32 s{sT+1}, s{sW}, 3')
        a(f'v_add_u32 v4, s{sT+1}, v{vG}')
        a(f'v_mul_u32_u24 v4, s{sT+6}, v4')
        a(f'v_add_u32 v4, s{sT+4}, v4')
        a(f'v_lshl_add_u32 v7, v{vG}, 1, s{sT+5}')
        a(f'v_xor_b32 v6, v{vN}, v7')
        a(f'v_lshl_add_u32 v{vWD}, v6, 4, v4')
        a(f's_lshl_b32 s{sT+1}, s{sT+6}, 2')
        a(f's_sub_u32 s{sT+1}, s{sT+1}, 1024')
        a(f'v_add_u32 v{vWD+1}, s{sT+1}, v{vWD}')
        a(f's_lshl_b32 s{sG+2}, s{sT+6}, 9')
        a(f's_mov_b32 s{sG+3}, 0x20000')
        a(f's_add_u32 s{sU+2}, s{sG+2}, 2048')
        a(f's_mov_b32 s{sU+3}, 0x20000')
    if C.hoist: waddr()
    q.pend = items(('X',0)); q.pre()
    a.wait(lgkm=0)
    a(f's_mov_b64 s[{sX}:{sX+1}], s[4:5]')
    if C.stamps:
        a(f'v_writelane_b32 v{vSTAMP}, s84, 32'); a(f'v_writelane_b32 v{vSTAMP}, s82, 0'); St.n = 1
    q.issue(1)
    a(f's_cmp_ge_u32 s{sJ}, 14')
    a(f's_cselect_b64 s[{sG}:{sG+1}], s[8:9], s[12:13]')
    a(f's_cselect_b64 s[{sU}:{sU+1}], s[10:11], s[14:15]')
    q.issue(1)
    if not C.hoist: waddr()
    a(f's_sub_u32 s{sU}, s{sU}, 2048')
    a(f's_subb_u32 s{sU+1}, s{sU+1}, 0')
    q.issue(1)
    a(f's_lshl_b32 s{sP2}, s{sPITCH}, 1')
    a(f's_mul_i32 s{sP7}, s{sPITCH}, {-9 if C.xord else 7}')
    q.issue(1)

def setup2(a):
    srd(a, sWS, 78, WS_BYTES)
    a(f's_cmp_eq_u32 s2, 0')
    a(f's_cselect_b32 s{sT+1}, {NFL}, 0')
    a(f's_mov_b32 s{sONE}, 1')
    a(f'v_mov_b32 v4, 0')
    a(f'v_mov_b32 v5, 0')
    a(f'v_mov_b32 v10, {OOB}')
    a(f'v_lshlrev_b32 v8, 7, v0')
    a(f'v_cmp_gt_u32 vcc, s{sT+1}, v0')
    a(f'v_mov_b32 v11, 0')
    a(f's_mov_b32 s{sT+3}, {FL_OFF}')
    a(f'v_cndmask_b32 v8, v10, v8, vcc')
    z = a(f'buffer_store_dwordx2 v[4:5], v8, {S(sWS)}, s{sT+3} offen sc1')
    srd(a, sWD, 72, 1792*1024)
    srd(a, sOUT, 74, 2048*1024)
    a(f'v_lshrrev_b32 v4, 1, v{vN}')
    a(f'v_xor_b32 v4, v4, v{vG}')
    a(f'v_lshlrev_b32 v4, 4, v4')
    a(f'v_lshl_add_u32 v{vXA}, v{vN}, 7, v4')
    a(f'v_xor_b32 v{vXA+1}, 64, v{vXA}')
    a(f'v_add_u32 v{vOA}, s{sM0}, v{vXA}')
    a(f'v_add_u32 v{vOA+1}, s{sM0}, v{vXA+1}')
    a(f'v_bfe_u32 v4, v{vLANE}, 2, 2')
    a(f'v_and_b32 v7, 3, v{vLANE}')
    a(f'v_cmp_eq_u32 s[{sM1}:{sM1+1}], 1, v7')
    a(f'v_cmp_eq_u32 s[{sM2}:{sM2+1}], 2, v7')
    a(f'v_cmp_eq_u32 s[{sM3}:{sM3+1}], 3, v7')
    a(f'v_cmp_eq_u32 s[{sMV}:{sMV+1}], v4, v{vG}')
    a(f'v_lshlrev_b32 v7, 3, v7')
    a(f'v_and_b32 v5, 1, v{vG}')
    a(f'v_lshl_add_u32 v5, v5, 2, v4')
    a(f's_lshl_b32 s{sT}, s{sW}, 1')
    a(f'v_xor_b32 v5, s{sT}, v5')
    a(f'v_lshl_add_u32 v5, v5, 5, v7')
    a(f'v_lshl_add_u32 v5, v4, 8, v5')
    a(f'v_lshl_add_u32 v5, v{vG}, 12, v5')
    a(f'v_add_u32 v{vWA}, {4*UN}, v5')
    a(f'v_xor_b32 v{vWA+1}, 32, v{vWA}')
    a(f'v_add_u32 v{vWA+2}, {4*UN}, v{vWA}')
    a(f'v_add_u32 v{vWA+3}, {4*UN}, v{vWA+1}')
    a(f'v_mov_b32 v4, 0x3f803f80')
    for d in range(4): a(f'v_accvgpr_write_b32 a{aONE+d}, v4')
    if C.bmap == 0:
        a(f's_and_b32 s{sR}, s2, 7')
        a(f's_lshl_b32 s{sR}, s{sR}, 2')
        a(f's_bfe_u32 s{sT}, s2, {3|(2<<16)}')
        a(f's_add_u32 s{sR}, s{sR}, s{sT}')
        a(f's_lshr_b32 s{sCB}, s2, 5')
    elif C.dmap:
        a(f's_and_b32 s{sR}, s2, 3')
        a(f's_lshl_b32 s{sR}, s{sR}, 3')
        a(f's_bfe_u32 s{sT}, s2, {3|(3<<16)}')
        a(f's_add_u32 s{sR}, s{sR}, s{sT}')
        a(f's_lshr_b32 s{sCB}, s2, 6')
        a(f's_xor_b32 s{sCB}, s{sCB}, 2')
        a(f's_and_b32 s{sT}, s2, 4')
        a(f's_add_u32 s{sCB}, s{sCB}, s{sT}')
        a(f's_add_u32 s{sCB}, s{sCB}, 2')
        a(f's_and_b32 s{sCB}, s{sCB}, 7')
    else:
        a(f's_bfe_u32 s{sR}, s2, {1|(2<<16)}')
        a(f's_lshl_b32 s{sR}, s{sR}, 3')
        a(f's_bfe_u32 s{sT}, s2, {3|(3<<16)}')
        a(f's_add_u32 s{sR}, s{sR}, s{sT}')
        a(f's_lshr_b32 s{sCB}, s2, 6')
        a(f's_and_b32 s{sT}, s2, 1')
        a(f's_lshl_b32 s{sT}, s{sT}, 2')
        a(f's_add_u32 s{sCB}, s{sCB}, s{sT}')
        a(f's_add_u32 s{sCB}, s{sCB}, 6')
        a(f's_and_b32 s{sCB}, s{sCB}, 7')
    a(f'v_and_b32 v12, 1, v{vN}')
    a(f'v_mul_u32_u24 v12, 0x8000, v12')
    a(f'v_lshl_or_b32 v12, v12, 16, v12')
    return z

def late_setup_ops():
    r = []; a = r.append
    a(f'v_and_b32 v{vTR+1}, 3, v{vLANE}')
    a(f'v_bfe_u32 v{vTR}, v{vLANE}, 3, 2')
    a(f'v_lshl_add_u32 v{vTR}, v{vTR}, 2, v{vTR+1}')
    a(f'v_lshrrev_b32 v{vTR+1}, 2, v{vLANE}')
    a(f'v_lshl_add_u32 v{vTR}, v{vTR+1}, 4, v{vTR}')
    a(f'v_lshl_add_u32 v{vTR}, v{vTR}, 3, s{sM0}')
    a(f's_and_b32 s{sT}, s{sW}, 1')
    a(f's_lshl_b32 s{sT}, s{sT}, 6')
    a(f'v_xor_b32 v{vTR}, s{sT}, v{vTR}')
    for c in (1,2,3): a(f'v_xor_b32 v{vTR+c}, {32*c}, v{vTR}')
    for wnd in (1,2):
        for c in range(4): a(f'v_add_u32 v{vTR+4*wnd+c}, {wnd*4*UN}, v{vTR+c}')
    a(f's_mul_i32 s{sT}, s{sW}, {448*1024}')
    a(f's_lshl_b32 s{sT+1}, s{sCB}, 7')
    a(f's_add_u32 s{sT}, s{sT}, s{sT+1}')
    a(f'v_lshrrev_b32 v{vD+1}, 3, v{vLANE}')
    a(f'v_lshl_add_u32 v{vD+1}, v{vD+1}, 10, s{sT}')
    a(f'v_and_b32 v{vD}, 7, v{vLANE}')
    a(f'v_lshlrev_b32 v{vD+2}, 1, v{vG}')
    a(f'v_xor_b32 v{vD}, v{vD}, v{vD+2}')
    a(f'v_lshl_add_u32 v{vD}, v{vD}, 4, v{vD+1}')
    for q in (1,2,3): a(f'v_add_u32 v{vD+q}, {q*7168}, v{vD}')
    a(f's_mov_b32 s{sMSK}, 0xffff0000')
    return r

def coef_ops():
    r = []; a = r.append
    T = vACC+16
    a(f's_lshr_b32 s{sT}, s{sR}, 1')
    a(f's_sub_u32 s{sT+1}, 32, s{sT}')
    a(f's_cmp_eq_u32 s{sT}, 0')
    a(f's_cselect_b32 s{sT+1}, 16, s{sT+1}')
    a(f's_bitcmp1_b32 s{sR}, 0')
    a(f's_cselect_b32 s{sP}, s{sT+1}, s{sT}')
    a(f's_sub_u32 s{sT+1}, 64, s{sP}')
    a(f's_cmp_eq_u32 s{sP}, 0')
    a(f's_cselect_b32 s{sT+1}, 32, s{sT+1}')
    a(f's_bitcmp1_b32 s{sW}, 1')
    a(f's_cselect_b32 s{sT+2}, s{sT+1}, s{sP}')
    a(f's_cselect_b32 s{sT+10}, -1.0, 1.0')
    a(f's_cmp_eq_u32 s{sP}, 0')
    a(f's_cselect_b32 s{sT+10}, 0, s{sT+10}')
    a(f's_cmp_eq_u32 s{sT+2}, 32')
    a(f's_cselect_b32 s{sT+9}, 0, 1.0')
    a(f's_cselect_b32 s{sT+11}, 1.0, 0')
    a(f's_cmp_ge_u32 s{sCB}, 4')
    a(f's_cselect_b32 s{sT+8}, 0, 0x80008000')
    a(f'v_lshl_add_u32 v7, v{vN}, 6, s{sT+2}')
    a(f'v_cvt_f32_u32 v5, v7')
    a(f'v_cvt_f32_u32 v4, v{vG}')
    a(f'v_mul_f32 v5, {f2u(1/2048):#x}, v5')
    a(f'v_cmp_eq_u32 vcc, 0, v{vG}')
    a(f's_lshl_b32 s{sT+1}, s{sCB}, 1')
    a(f's_and_b32 s{sT}, s{sW}, 1')
    a(f's_add_u32 s{sT+1}, s{sT+1}, s{sT}')
    a(f's_lshl_b32 s{sT+1}, s{sT+1}, 6')
    a(f'v_lshl_add_u32 v7, v7, 10, s{sT+1}')
    a(f'v_and_b32 v6, 1, v{vG}')
    a(f'v_lshl_add_u32 v7, v6, 5, v7')
    a(f'v_mul_u32_u24 v9, 0x8000, v6')
    a(f'v_lshl_or_b32 v9, v9, 16, v9')
    a(f'v_lshrrev_b32 v6, 1, v{vG}')
    a(f'v_lshl_add_u32 v{vOUT}, v6, 4, v7')
    a(f'v_mov_b32 v7, {f2u(16.0):#x}')
    for kp in range(4):
        for z in range(2):
            if z == 0: a(f'v_add_f32 v6, {f2u(4.0*kp):#x}, v4')
            else:
                a(f'v_sub_f32 v6, {f2u(32.0-4*kp):#x}, v4')
                if kp == 0: a(f'v_cndmask_b32 v6, v6, v7, vcc')
            a(f'v_mul_f32 v6, v6, v5')
            a(f'v_cos_f32 v{T}, v6')
            a(f'v_sin_f32 v{T+1}, v6')
            a(f'v_mul_f32 v{T+2}, s{sT+9}, v{T}')
            a(f'v_mul_f32 v{T+3}, s{sT+11}, v{T}')
            a(f'v_fmac_f32 v{T+3}, s{sT+10}, v{T+1}')
            a(f'v_mul_f32 v{T+4}, s{sT+9}, v{T+1}')
            a(f'v_mul_f32 v{T+5}, s{sT+11}, v{T+1}')
            a(f'v_fma_f32 v{T+5}, -v{T}, s{sT+10}, v{T+5}')
            a(f'v_cvt_pk_bf16_f32 v{T+2}, v{T+2}, v{T+3}')
            a(f'v_cvt_pk_bf16_f32 v{T+4}, v{T+4}, v{T+5}')
            a(f'v_accvgpr_write_b32 a{aCF+4*kp+2*z}, v{T+2}')
            a(f'v_xor_b32 v{T+4}, s{sT+8}, v{T+4}')
            a(f'v_xor_b32 v{T+2}, v9, v{T+2}')
            a(f'v_accvgpr_write_b32 a{aCF+4*kp+2*z+1}, v{T+4}')
            a(f'v_xor_b32 v{T+4}, v9, v{T+4}')
            a(f'v_accvgpr_write_b32 a{aCL+4*kp+2*z}, v{T+2}')
            a(f'v_accvgpr_write_b32 a{aCL+4*kp+2*z+1}, v{T+4}')
    return r

def scalar_late(a, dft):
    a(f's_lshr_b32 s{sT}, s2, 3')
    a(f's_xor_b32 s{sT}, s{sT}, s2')
    a(f's_bfe_u32 s{sT+1}, s{sT}, {4|(1<<16)}')
    a(f's_bfe_u32 s{sT}, s{sT}, {2|(1<<16)}')
    a(f's_lshl_b32 s{sT+1}, s{sT+1}, 1')
    a(f's_add_u32 s{sSET}, s{sT}, s{sT+1}')
    a(f's_lshl_b32 s{sT+2}, s{sSET}, 10')
    a(f's_lshl_b32 s{sT+1}, s{sW}, 1')
    a(f's_and_b32 s{sT+1}, s{sT+1}, 2')
    a(f's_xor_b32 s{sT+1}, s{sT+1}, s{sW}')
    a(f's_cmp_eq_u32 s{sI}, 0')
    a(f's_cselect_b32 s{sT}, s{sW}, s{sT+1}')
    a(f's_cmp_ge_u32 s{sJ}, 14')
    a(f's_cselect_b32 s{sT}, s{sT}, s{sW}')
    a(f's_lshl_b32 s{sXS}, s{sI}, 2')
    a(f's_add_u32 s{sXS}, s{sXS}, s{sT}')
    a(f's_lshl_b32 s{sXS}, s{sXS}, 12')
    a(f's_add_u32 s{sXS}, s{sXS}, s{sT+2}')
    a(f's_add_u32 s{sXS}, s{sXS}, {XS_OFF}')
    a(f's_lshl_b32 s{sCS}, s{sJ}, 14')
    a(f's_add_u32 s{sCS}, s{sCS}, s{sM0}')
    a(f's_add_u32 s{sCS}, s{sCS}, s{sT+2}')
    a(f's_add_u32 s{sCS}, s{sCS}, {CS_OFF}')
    a(f's_add_u32 s{sT}, s{sJ}, 16')
    a(f's_bitcmp1_b32 s{sW}, 0')
    a(f's_cselect_b32 s{sT}, s{sT}, s{sI}')
    a(f's_lshl_b32 s{sT}, s{sT}, 2')
    a(f's_add_u32 s{sT}, s{sT}, s{sSET}')
    a(f's_lshl_b32 s{sT}, s{sT}, 7')
    a(f's_add_u32 s{sT+8}, s{sT}, {FLS_OFF}')
    drot = C.drotd if dft else C.drot
    if drot == 0: a(f's_mov_b32 s{sPO}, 0')
    elif drot == 1:
        a(f's_and_b32 s{sPO}, s{sR}, 1'); a(f's_lshl_b32 s{sPO}, s{sPO}, 13')
    else:
        a(f's_and_b32 s{sPO}, s{sR}, {3 if drot == 2 else 7}')
        a(f's_mul_i32 s{sPO}, s{sPO}, 7')
        a(f's_add_u32 s{sPO}, s{sPO}, 2')
        a(f's_lshr_b32 s{sPO}, s{sPO}, {drot}')
        if C.xoff:
            a(f's_bfe_u32 s{sT}, s2, {1|(1<<16)}')
            a(f's_add_u32 s{sPO}, s{sPO}, s{sT}')
        a(f's_lshl_b32 s{sPO}, s{sPO}, 11')
    for k in range(1, 7):
        a(f's_add_u32 s{sPO+k}, s{sPO+k-1}, 2048')
        a(f's_cmp_eq_u32 s{sPO+k}, {7*2048}')
        a(f's_cselect_b32 s{sPO+k}, 0, s{sPO+k}')

LR = LST+8192
LC = LST+6144
def dft_R_addr():
    r = []; a = r.append; T = vCS
    a(f's_lshl_b32 s{sT}, s{sW}, 16')
    a(f'v_lshrrev_b32 v{T+1}, 3, v{vLANE}')
    a(f'v_lshl_add_u32 v{T+1}, v{T+1}, 13, s{sT}')
    a(f'v_lshlrev_b32 v{T}, 1, v{vG}')
    a(f'v_xor_b32 v{T}, v{T}, v{vLANE}')
    a(f'v_and_b32 v{T}, 7, v{T}')
    a(f'v_lshl_add_u32 v{T}, v{T}, 4, v{T+1}')
    a(f'v_xor_b32 v{T+1}, 16, v{T}')
    a(f'v_add_u32 v{T+1}, 1024, v{T+1}')
    a(f's_lshr_b32 s{sT+9}, s{sM0}, 1')
    a(f'v_lshrrev_b32 v{T+3}, 1, v{vN}')
    a(f'v_and_b32 v{T+4}, 1, v{vN}')
    a(f'v_and_or_b32 v{T+2}, v{T+3}, 6, v{T+4}')
    a(f'v_xor_b32 v{T+2}, v{T+2}, v{vG}')
    a(f'v_lshl_add_u32 v{T+3}, v{T+4}, 3, v{T+3}')
    a(f'v_lshl_add_u32 v{T+2}, v{T+3}, 3, v{T+2}')
    a(f'v_cmp_eq_u32 vcc, 1, v{vN}')
    a(f'v_lshlrev_b32 v{T+2}, 4, v{T+2}')
    a(f'v_add_u32 v{T+2}, {LR}, v{T+2}')
    a(f'v_mov_b32 v{T+6}, {LC}')
    a(f'v_xor_b32 v{T+3}, 64, v{T+2}')
    a(f'v_cndmask_b32 v{T+4}, v{T+2}, v{T+6}, vcc')
    a(f'v_cndmask_b32 v{T+5}, v{T+3}, v{T+6}, vcc')
    for d in range(4): a(f'v_mov_b32 v{112+d}, 0xbf803f80')
    return r
def dft_R_loads():
    return [(('R',0), [f's_add_u32 m0, s{sT+9}, {LR}'], f'buffer_load_dwordx4 v{vCS}, {S(sG)}, 0 offen lds'),
            (('R',0), [], f'buffer_load_dwordx4 v{vCS+1}, {S(sU)}, 0 offen offset:1024 lds')]
def dft_R_reads():
    return [f'ds_read_b128 {ar(aR+8*jb+4*sub,4)}, v{vCS+(2 if jb else 4)+sub} offset:{2048*jb}' for jb in range(4) for sub in range(2)]

def stats_reads(n):
    return [f'ds_read_b128 {ar(aSX+4*o,4)}, v{vOA+(n&1)} offset:{(n>>1)*UN+o*2048}' for o in range(2)]
def stats_mfma(dft, n):
    r = []
    def mf(c, x, y): r.append(f'{MF} {vr(c,4)}, {x}, {y}, {vr(c,4) if n else 0}')
    for o in range(2):
        mf(vSXo+4*o, ar(aONE,4), ar(aSX+4*o,4))
        mf(vSQo+4*o, ar(aSX+4*o,4), ar(aSX+4*o,4))
    if not dft:
        for wf in range(4): mf(vCS+4*wf, ar(aONE,4), vr(fW(n&1,wf),4))
    return r
def stats_pack_ops(dft):
    r = []; a = r.append
    a(f'v_lshlrev_b32 v4, 4, v{vN}')
    a(f'v_mov_b32 v10, {OOB}')
    a(f'v_mov_b32 v{vSXo+2}, v{vSXo+4}')
    a(f'v_cndmask_b32 v4, v10, v4, s[{sMV}:{sMV+1}]')
    for o in range(2):
        sq = vSQo+4*o
        a(f'v_cndmask_b32 v{sq}, v{sq}, v{sq+1}, s[{sM1}:{sM1+1}]')
        a(f'v_cndmask_b32 v{sq}, v{sq}, v{sq+2}, s[{sM2}:{sM2+1}]')
        a(f'v_cndmask_b32 v{vSXo+1+2*o}, v{sq}, v{sq+3}, s[{sM3}:{sM3+1}]')
    if not dft:
        a(f'v_lshlrev_b32 v5, 2, v{vLANE}')
        for g, m in ((1,sM1),(2,sM2),(3,sM3)): a(f'v_cmp_eq_u32 s[{m}:{m+1}], {g}, v{vG}')
        for g, m in ((1,sM1),(2,sM2),(3,sM3)): a(f'v_cndmask_b32 v{vCS}, v{vCS}, v{vCS+4*g}, s[{m}:{m+1}]')
    a(f's_add_u32 s{sT+6}, s{sXS}, s{sL}')
    a(f's_add_u32 s{sT+7}, s{sCS}, s{sL}')
    a(f'v_lshlrev_b32 v15, 4, v{vLANE}')
    return r
def stats_reduce_ops(dft):
    r = []; a = r.append
    a(f's_lshl_b32 s{sT}, s{sW}, {7 if dft else 9}')
    a(f's_add_u32 s{sT}, s{sT}, {LST}')
    a(f'v_permlane32_swap_b32 v96, v98')
    a(f'v_permlane32_swap_b32 v97, v99')
    if not dft:
        a(f'v_permlane32_swap_b32 v112, v114')
        a(f'v_permlane32_swap_b32 v113, v115')
    a(f'v_add_f32 v100, v96, v98')
    a(f'v_add_f32 v101, v97, v99')
    a(f'v_add_f32 v96, v96, v98')
    a(f'v_add_f32 v97, v97, v99')
    if not dft:
        a(f'v_add_f32 v112, v112, v114')
        a(f'v_add_f32 v113, v113, v115')
    a(f'v_lshrrev_b32 v14, 1, v{vG}')
    a(f'v_lshl_add_u32 v14, v14, 4, v{vN}')
    a(f'v_permlane16_swap_b32 v96, v100')
    a(f'v_permlane16_swap_b32 v97, v101')
    if not dft: a(f'v_permlane16_swap_b32 v112, v113')
    a(f'v_lshl_add_u32 v14, v14, {2 if dft else 4}, s{sT}')
    a(f'v_add_f32 v96, v96, v100')
    a(f'v_add_f32 v97, v97, v101')
    if not dft:
        a(f'v_add_f32 v98, v112, v113')
        a(f's_lshl_b32 s{sT}, s{sW}, 8')
        a(f's_add_u32 s{sT}, s{sT}, {LST+4096}')
        a(f'v_lshl_add_u32 v8, v{vN}, 2, v{vG}')
        a(f'v_lshl_add_u32 v8, v8, 2, s{sT}')
        a(f'v_lshl_add_u32 v9, v{vG}, 4, s{sT}')
    a(f'v_mul_f32 v4, {f2u(-1/512):#x}, v96')
    a(f'v_mul_f32 v97, {f2u(1/512):#x}, v97')
    a(f'v_fma_f32 v97, -v4, v4, v97')
    a(f'v_max_f32 v97, 0, v97')
    a(f'v_add_f32 v97, {f2u(1e-5):#x}, v97')
    a(f'v_rsq_f32 v7, v97')
    if dft: a(f'v_lshlrev_b32 v15, 4, v{vG}')
    else:
        a(f'v_sqrt_f32 v5, v97')
        a(f'v_mul_f32 v6, {f2u(-LOG2E):#x}, v7')
        if C.ftz:
            a(f's_mov_b32 s{sM1}, {f2u(128.0-C.ftz):#x}')
            a(f'v_mul_f32 v7, {f2u(2.0**(C.ftz-128)):#x}, v5')
        a(f'v_lshlrev_b32 v15, 4, v{vN}')
    w = []
    if dft: w += [f'ds_write_b32 v14, v7', f'ds_write_b128 v{vCS+6}, v[112:115]']
    else:
        w.append(f'ds_write_b32 v8, v98')
        w.append(f'ds_write_b128 v14, v[4:7]')
        w += [f'ds_read_b128 {vr(vCS+4*wf,4)}, v9 offset:{64*wf}' for wf in range(4)]
    return r, w
TFO = [0, 2, 4, 6, 1, 3, 5, 7]
def rec(k): return vWF+4*k
def rec_read(k, dft): return f'ds_read_b128 {vr(rec(k),4)}, v15 offset:{LST+(64*k if dft else 256*TFO[k])}'
def epi_addr_ops(dft):
    r = []; a = r.append
    if dft:
        a(f's_lshl_b32 s{sT+2}, s{sI}, 12')
        a(f's_lshl_b32 s{sT+1}, s{sJ}, 11')
        a(f's_add_u32 s{sT+2}, s{sT+2}, s{sT+1}')
        a(f's_lshl_b32 s{sT+1}, s{sW}, 9')
        a(f's_add_u32 s{sT+2}, s{sT+2}, s{sT+1}')
        a(f'v_mul_u32_u24 v16, {2*GP}, v{vG}')
        a(f'v_lshl_add_u32 v17, v{vN}, 4, s{sT+2}')
        a(f'v_add_u32 v16, v16, v17')
        a(f's_lshr_b32 s{sT+12}, s{sI}, 2')
        a(f's_lshl_b32 s{sT+12}, s{sT+12}, 7')
        a(f's_add_u32 s{sT+12}, s{sT+12}, s{sM0}')
        a(f's_add_u32 s{sT+12}, s{sT+12}, {FLG_OFF}')
    else:
        a(f's_mul_i32 s{sT+2}, s{sI}, {8*HP}')
        a(f's_lshl_b32 s{sT+1}, s{sJ}, 2')
        a(f's_add_u32 s{sT+1}, s{sT+1}, s{sW}')
        a(f's_mul_i32 s{sT+12}, s{sT+1}, 4682')
        a(f's_lshl_b32 s{sT+1}, s{sT+1}, 10')
        a(f's_add_u32 s{sT+4}, s{sT+2}, s{sT+1}')
        a(f'v_lshlrev_b32 v16, 4, v{vLANE}')
        a(f's_lshr_b32 s{sT+12}, s{sT+12}, 16')
        a(f's_lshl_b32 s{sT+1}, s{sI}, 2')
        a(f's_add_u32 s{sT+12}, s{sT+12}, s{sT+1}')
        a(f's_lshl_b32 s{sT+12}, s{sT+12}, 8')
        a(f's_add_u32 s{sT+11}, s{sT+12}, {FL_OFF}')
        a(f's_add_u32 s{sT+12}, s{sT+12}, {FL_OFF+128}')
    return r

def spin(a, tag, load, test, cnt, sleep=2, first=True):
    if first:
        a.wait(lgkm=0)
        for t in test: a(t)
        a(f's_cbranch_scc1 L{tag}_ok')
    a(f's_mov_b32 s{cnt}, 0')
    a.label(f'L{tag}_spin')
    for t in load + [f's_add_u32 s{cnt}, s{cnt}, 1', 's_waitcnt lgkmcnt(0)'] + test + [f's_cbranch_scc1 L{tag}_ok'] + ([f's_sleep {sleep}'] if sleep else []) + [f's_cmp_lt_u32 s{cnt}, 0x100000', f's_cbranch_scc1 L{tag}_spin']:
        a.raw('    '+t)
    a.label(f'L{tag}_ok')
    if not first: a.lgkm = []; a.smem_out = []

def phaseA(a, dft, q, z):
    tag = 'd' if dft else 'g'
    full = master_list(dft)
    master = full[4:]
    cnt = {}; c = 0
    for t in full: c += 4; cnt[t] = c
    def lastneed(n):
        return [t for t in full if (t[0] == 'W' and t[1] <= n+1) or (t[0] == 'X' and 2*t[1] <= n+1)][-1]
    def enqueue(nb):
        while master:
            t = master[0]
            if t[0] == 'W' and t[1]-((8 if t[1] < 12 else 4) if dft else 6) > nb: break
            if t[0] == 'X' and t[1] >= 4 and t[1]-4 > (nb >> 1)-1: break
            q.pend += items(master.pop(0), dft)
    def front(its):
        k = 1 if q.predone else 0
        q.pend[k:k] = its; q.limit += len(its)
        for t in cnt: cnt[t] += len(its)
    def setlimit(n):
        q.limit = cnt[lastneed(n)] + (C.dcap if dft else C.cap) if n < C.capn else 10**9
    enqueue(-1)
    q.need(('W',0))
    a('s_barrier')
    stamp(a)
    setlimit(0)
    wr = w_reads(0, dft)
    a(wr[0]); a(wr[1]); a(x_read(0))
    for t in wr[2:]: a(t)
    a(x_read(1)); a(x_read(2))
    for t in stats_reads(0): a(t)
    fq = []
    red, redw = stats_reduce_ops(dft)
    spoll = f's_load_dword s{sFV}, s[78:79], s{sT+8} glc'
    dbgld = f's_load_dword s{sFV}, s[76:77], 0'
    rd0 = 12 if dft else C.rd0
    for n in range(16):
        s, p = n >> 1, n & 1
        wr = w_reads(n+1, dft) if n < 15 else []
        wfree = dft and (n+1) & 2
        bar_tf = C.bar if n < 15 else None
        if n == (0 if dft else 6): late = late_setup_ops() + (dft_R_addr() if dft else [])
        else: late = []
        if n == C.spoll: fq.insert(0, spoll)
        if n == 3: fq.insert(0, dbgld)
        if n == 11: fq += red
        if n == 14: fq += epi_addr_ops(dft)
        for tf in range(8):
            k = 8*n+tf; q.pos = k
            can_w = wfree or bar_tf is None or tf > bar_tf
            dpos = [[pp for t,pp in q.log if t == ('D',u)] for u in range(14)]
            dmax = min(rd0, len([1 for u,d in enumerate(dpos) if len(d) == 4 and d[3]+(C.ddlag if dft and u < 2 else C.dlag) <= k]))
            rate = 8 if n < 5 else C.rate
            if q.ready() and q.pend[0][0][0] == 'D' and q.pend[-1][0][0] == 'D':
                u = q.pend[0][0][1]
                rate = (C.ddrate if u < 4 else 8) if dft else (C.drate if u >= C.dslow else 4)
            slot = (tf*rate) % 8 < rate
            def other(cnt_):
                for _ in range(cnt_):
                    if can_w and wr: a(wr.pop(0))
                    elif dft and q.read1(dmax): pass
                    elif fq: a(fq.pop(0))
                    elif q.read1(dmax): pass
            def flush():
                while fq: a(fq.pop(0))
            if n == 4 and tf == 0:
                flush()
                its = [(('S',0), [], f'buffer_store_dwordx4 {vr(vSXo,4)}, v4, {S(sWS)}, s{sT+6} offen sc1')]
                if not dft: its.append((('S',0), [], f'buffer_store_dword v{vCS}, v5, {S(sWS)}, s{sT+7} offen sc1'))
                front(its)
            if tf == 0: fq += late
            for wf in range(4):
                w2 = 3-wf if (C.snake and tf & 1) else wf
                c = vr(acc(tf,w2),4); wfr = vr(fW(p,w2),4); xf = vr(fX(k),4)
                src = f'{xf}, {wfr}' if dft else f'{wfr}, {xf}'
                a(f'{MF} {c}, {src}, {c if n else 0}')
                if wf == 0:
                    if k+3 < 128: a(x_read(k+3)); other(1)
                    else: other(2)
                elif wf == 1:
                    if slot and q.haspre(): q.pre()
                    else: other(2)
                elif wf == 2:
                    if slot and q.ready() and not q.haspre(): q.issue(1)
                    else: other(2)
                elif tf != bar_tf: other(1)
                else:
                    q.limit = 10**9
                    while q.has(lastneed(n)): q.issue(1)
                    if n in (0, 1, 5, 9) or (n == 12 and dft): flush()
                    if n < 4:
                        for t in stats_mfma(dft, n): a(t)
                    if n == 0: scalar_late(a, dft)
                    if n == 1 and C.pads: a.raw(f';WARM {tag}')
                    q.need(lastneed(n))
                    if n == 5:
                        q.need(('S',0))
                        spin(a, tag+'i', [f'global_load_dword v{vDBG}, v11, s[76:77] sc1', 's_waitcnt vmcnt(0)', f'v_readfirstlane_b32 s{sFV}, v{vDBG}', 's_nop 3'], [f's_cmp_lg_u32 s{sFV}, 0'], sT+14)
                    if n == 9: spin(a, tag+'s', [spoll], [f's_cmp_eq_u32 s{sFV}, 8'], sT+14)
                    a('s_barrier')
                    if n == 0:
                        assert z not in a.vm
                        a(f's_or_b32 s{sT}, s2, s{sW}')
                        a(f's_cbranch_scc1 L{tag}_noinit')
                        a(f's_atomic_add s{sONE}, s[76:77], 0')
                        a.label(f'L{tag}_noinit')
                    if n == 2: a.smem_out = []
                    if n == 5: a(f's_atomic_add s{sONE}, s[78:79], s{sT+8}')
                    if n == 7: a.smem_out = []
                    if n in (1,3,7,11,13): stamp(a)
                    enqueue(n); setlimit(n+1)
                    if n < 3: wr += stats_reads(n+1)
                    if n == 3: fq += stats_pack_ops(dft)
                    if n == 9:
                        g = [(('A',0), [], f'buffer_load_dwordx4 {vr(96,4)}, v15, {S(sWS)}, s{sXS} offen sc1')]
                        if not dft: g += [(('A',0), [], f'buffer_load_dwordx4 {vr(112,4)}, v15, {S(sWS)}, s{sCS} offen sc1')]
                        front(g)
                    if n == 0 and dft and C.dearly:
                        its = q.plan.dma(0) + q.plan.dma(1); q.nD = 2
                        its += [(('T',0), [], f'buffer_load_dword v14, v{vCS}, {S(sG)}, 0 offen'), (('T',0), [], f'buffer_load_dword v14, v{vCS+1}, {S(sU)}, 0 offen offset:1024')]
                        tg = [('X',2), ('W',4), ('W',5)][C.dearly-1]
                        k0 = max(i for i,t in enumerate(q.pend) if t[0] == tg)+1
                        q.pend[k0:k0] = its
                        for t in cnt:
                            if cnt[t] > cnt[tg]: cnt[t] += len(its)
                    if n == 12 and dft: q.pend += dft_R_loads()
                    for nn, up in q.plan.avail.items():
                        if nn <= n: q.addD(up)
                    if n >= 10: assert not master
                    if n == 13: fq += redw
            if n == 10 and tf == 0: assert not q.has(('A',0))
            if n == 13 and tf == 7: assert not q.has(('X',7))
            if n == 15 and tf == 5:
                flush()
                if dft: q.need(('R',0))
                a.wait(lgkm=0)
                a('s_barrier')
                fq += [rec_read(t4, dft) for t4 in range(4)]
                if dft: fq += dft_R_reads()
                q.addD(14)
        assert not wr, (n, wr)
    for t4 in range(4, 8): fq.append(rec_read(t4, dft))
    while fq: a(fq.pop(0))
    q.pos = 128
    if C.log: print(tag, ' '.join(f'{t[0]}{t[1]}@{p//8}.{p%8}' for t,p in q.log), 'reads left', len(q.rq), 'dma left', q.left(), file=sys.stderr)
    if not dft:
        q.readD(C.rd0)
        while q.left() > C.dleft: q.issue(1)

def glu_epilogue(a, q):
    sts = []
    for k, tf in enumerate(TFO):
        R = rec(k); G = acc(tf,0); U = acc(tf,2); hb = vSXo+4*(k&1)
        ms = vr(R,2); ar_ = vr(R+2,2)
        for r in range(0,8,2): a(f'v_pk_fma_f32 {vr(G+r,2)}, {vr(vCS+r,2)}, {ms}, {vr(G+r,2)} op_sel_hi:[1,0,1]')
        for r in range(0,8,2):
            if C.ftz: a(f'v_pk_fma_f32 {vr(G+r,2)}, {vr(G+r,2)}, {ar_}, s[{sM1}:{sM1+1}] op_sel_hi:[1,0,0]')
            else: a(f'v_pk_mul_f32 {vr(G+r,2)}, {vr(G+r,2)}, {ar_} op_sel_hi:[1,0]')
        for r in range(8):
            a(f'v_exp_f32 v{G+r}, v{G+r}')
            if tf == 0 and r == 5: a.wait(lgkm=0)
        for r in range(0,8,2): a(f'v_pk_fma_f32 {vr(U+r,2)}, {vr(vCS+8+r,2)}, {ms}, {vr(U+r,2)} op_sel_hi:[1,0,1]')
        for r in range(0,8,2): a(f'v_pk_fma_f32 {vr(G+r,2)}, {vr(G+r,2)}, {ar_ if C.ftz else ms}, {ms} op_sel:[0,1,1] op_sel_hi:[1,1,1]')
        q.issue(C.epi_dma)
        for r in range(8): a(f'v_rcp_f32 v{G+r}, v{G+r}')
        if k: a(f's_add_u32 s{sT+4}, s{sT+4}, {2*HP}' if k != 4 else f's_sub_u32 s{sT+4}, s{sT+4}, {5*HP}')
        for r in range(0,8,2): a(f'v_pk_mul_f32 {vr(U+r,2)}, {vr(U+r,2)}, {vr(G+r,2)}')
        for d in range(4): a(f'v_cvt_pk_bf16_f32 v{hb+d}, v{U+2*d}, v{U+2*d+1}')
        sts.append(a(f'buffer_store_dwordx4 {vr(hb,4)}, v16, {S(sWS)}, s{sT+4} offen sc1'))
    a.wait_vm_for(sts[3])
    a(f's_atomic_add s{sONE}, s[78:79], s{sT+11}')
    return sts[7]

def dft_epilogue(a, q):
    Z = lambda z, sub, m: 96+16*z+8*sub+4*m
    D2 = lambda jb,z,wf: vACC+32*jb+16*z+4*wf
    nst = [0]
    def stores(jb, fb):
        out = []
        for rp in range(2):
            t = 48+4*(nst[0] & 3); nst[0] += 1
            for z in range(2):
                for m in range(2): out.append(f'v_cvt_pk_bf16_f32 v{t+2*z+m}, v{D2(jb,z,2*m+fb)+2*rp}, v{D2(jb,z,2*m+fb)+2*rp+1}')
            out.append(f's_mov_b32 s{sT+2}, {G_OFF-14*2048+(8*jb+rp)*GP}')
            out.append(f'buffer_store_dwordx4 {vr(t,4)}, v16, {S(sWS)}, s{sT+2} offen offset:{256*fb} sc1')
        return out
    pend = []
    for fb in range(2):
        for z in range(2):
            for sub in range(2):
                for m in range(2):
                    for qq in range(2):
                        tf = 4*z+2*qq+sub; A = acc(tf, 2*m+fb)
                        for r in (0,2): a(f'v_pk_mul_f32 {vr(A+r,2)}, {vr(A+r,2)}, {vr(rec(tf)+r,2)}')
                for m in range(2):
                    for r in range(4): a(f'v_cvt_pk_bf16_f32 v{Z(z,sub,m)+r}, v{acc(4*z+sub,2*m+fb)+r}, v{acc(4*z+2+sub,2*m+fb)+r}')
                if fb == 0 and z == 0 and sub == 0: a.wait(lgkm=0); a('s_nop 0')
                for t in pend[:6]: a(t)
                pend = pend[6:]
                q.issue(C.epi_dma)
        for jb in range(4):
            n = 0
            for sub in range(2):
                for z in range(2):
                    for m in range(2):
                        c = vr(D2(jb,z,2*m+fb),4)
                        a(f'{MF} {c}, {ar(aR+8*jb+4*sub,4)}, {vr(Z(z,sub,m),4)}, {c if sub else 0}')
                        n += 1
                        if n >= 3:
                            for t in pend[:2]: a(t)
                            pend = pend[2:]
            assert not pend
            pend = stores(jb, fb)
    for t in pend: last = a(t)
    return last

vHA, vGA, vHS, vPW, vXS, vH, NH, vAC = 14, 26, 30, 15, 64, 128, 16, 192
PR = {1: 18, 2: 20, 3: 21}
sMB = sOWN
LPX = 4*UN
SEQ = [(sl, ks) for sl in range(4) for ks in range(14)]
def hload(a, n):
    sl, ks = SEQ[n]
    return a(f'buffer_load_dwordx4 {vr(vH+4*(n%NH),4)}, v{vHS+sl}, {S(sWS)}, s{sPO+(ks>>1)} offen offset:{(ks&1)*1024} sc1')
def hpoll(r): return [f's_mov_b32 s{sFV}, 0', f's_atomic_add s{sFV}, s[78:79], s{r} glc']
def presync(a, dft, q, last):
    tag = 'd' if dft else 'g'
    lazy(a, 0)
    q.issue(C.pre)
    a(f's_mov_b32 s{sMB}, {1<<20}')
    a(f's_lshr_b32 s{sT}, s{sR}, 1')
    a(f's_lshl_b32 s{sT}, s{sT}, 2')
    a(f's_add_u32 s{sT}, s{sT}, s{sW}')
    a(f's_lshl_b32 s{sT}, s{sT}, 8')
    a(f's_add_u32 s{sT+15}, s{sT}, {FL_OFF}')
    a(f's_add_u32 s{sT+13}, s{sT}, {FL_OFF+128}')
    q.readD(C.rd1 if not dft else C.drd1)
    a(f'v_lshlrev_b32 v{vHA}, 4, v{vLANE}')
    a(f's_mul_i32 s{sT+2}, s{sR}, {4*HP}')
    a(f's_mul_i32 s{sT+1}, s{sW}, {14*1024}')
    a(f's_add_u32 s{sT+2}, s{sT+2}, s{sT+1}')
    a(f's_and_b32 s{sT}, s{sW}, 2')
    a(f's_mul_i32 s{sT+1}, s{sT}, {HP}')
    a(f's_add_u32 s{sT+1}, s{sT+1}, s{sT+2}')
    a(f'v_add_u32 v{vHS+1}, s{sT+1}, v{vHA}')
    a(f's_xor_b32 s{sT}, s{sT}, 2')
    a(f's_mul_i32 s{sT+1}, s{sT}, {HP}')
    a(f's_add_u32 s{sT+1}, s{sT+1}, s{sT+2}')
    a(f'v_add_u32 v{vHS}, s{sT+1}, v{vHA}')
    a(f'v_add_u32 v{vHS+2}, {HP}, v{vHS}')
    a(f'v_add_u32 v{vHS+3}, {HP}, v{vHS+1}')
    a.wait(lgkm=0 if dft else 1, smem=False)
    lazy(a, 1)
    if dft:
        for t in hpoll(sT+15): a(t)
    a(f's_lshl_b32 s{sKX}, s{sR}, 2')
    a(f's_add_u32 s{sKX}, s{sKX}, s{sW}')
    a(f's_lshl_b32 s{sKX}, s{sKX}, 7')
    a(f's_add_u32 s{sKX}, s{sKX}, {FLG_OFF}')
    if dft:
        a(f's_add_u32 s{sM1}, s78, s{sT+12}')
        a(f's_addc_u32 s{sM1+1}, s79, 0')
    a(f'v_add_u32 v{vHA}, {LPX}, v{vHA}')
    a(f'v_add_u32 v{vPW}, s{sM0}, v{vHA}')
    for k in (1,2,3): a(f'v_xor_b32 v{PR[k]}, {k*4096}, v{vPW}')
    if C.gnew:
        a(f's_lshl_b32 s{sT+1}, s{sCB}, 6')
        a(f's_sub_u32 s{sT+2}, s{sT+1}, 256')
        a(f's_sub_u32 s{sT+1}, 193, s{sT+1}')
        a(f's_cmp_ge_u32 s{sCB}, 4')
        a(f's_cselect_b32 s{sT+1}, s{sT+2}, s{sT+1}')
        a(f's_cselect_b32 s{sT+3}, 0, 63')
        a(f'v_add_u32 v5, s{sT+1}, v{vLANE}')
        a(f's_mul_i32 s{sT}, s{sP}, {GP}')
        a(f's_lshl_b32 s{sT+1}, s{sW}, 14')
        a(f's_add_u32 s{sT}, s{sT}, s{sT+1}')
        a(f's_add_u32 s{sT}, s{sT}, {G_OFF}')
        a(f'v_cmp_gt_u32 vcc, 0x100, v5')
        a(f'v_lshl_add_u32 v5, v5, 4, s{sT}')
        a(f's_and_b32 s{sT}, s{sW}, 1')
        a(f's_lshl_b32 s{sT}, s{sT}, 5')
        a(f'v_cndmask_b32 v{vGA}, v10, v5, vcc')
        a(f's_xor_b32 s{sT}, s{sT}, s{sT+3}')
        a(f'v_xor_b32 v4, s{sT}, v{vN}')
        for k in (1,2,3): a(f'v_add_u32 v{vGA+k}, {3072*k}, v{vGA}')
        a(f'v_lshl_add_u32 v4, v{vG}, 6, v4')
        a(f'v_lshlrev_b32 v4, 4, v4')
        a(f'v_add_u32 v{vHA}, {LPX}, v4')
        a(f'v_xor_b32 v19, 0x100, v{vHA}')
    else:
        a(f's_and_b32 s{sT}, s{sW}, 1')
        a(f's_lshl_b32 s{sT}, s{sT}, 11')
        a(f'v_add_u32 v{vHA}, s{sT}, v{vHA}')
        a(f's_mul_i32 s{sT}, s{sP}, {GP}')
        a(f's_lshl_b32 s{sT+1}, s{sW}, 14')
        a(f's_add_u32 s{sT}, s{sT}, s{sT+1}')
        a(f's_add_u32 s{sT}, s{sT}, {G_OFF}')
        a(f'v_lshl_add_u32 v4, v{vG}, 12, s{sT}')
        a(f's_lshl_b32 s{sT+1}, s{sCB}, 6')
        for cbk in range(4):
            a(f'v_add_u32 v5, s{sT+1}, v{vN}')
            a(f'v_add_u32 v5, {16*cbk-256}, v5')
            a(f'v_sub_u32 v6, 0, v5')
            a(f'v_max_i32 v5, v5, v6')
            a(f'v_cmp_gt_u32 vcc, 0x100, v5')
            a(f'v_lshl_add_u32 v5, v5, 4, v4')
            a(f'v_subrev_u32 v4, 0x400, v4')
            a(f'v_cndmask_b32 v{vGA+cbk}, v10, v5, vcc')
    if not dft:
        a.wait_vm_for(last)
        a(f's_atomic_add s{sONE}, s[78:79], s{sT+12}')
        for t in hpoll(sT+15): a(t)
    lazy(a, 2)
    q.issue(99)
    assert not q.left()
    a(f'buffer_load_dwordx4 {vr(48,4)}, v{vOUT}, {S(sX)}, 0 offen')
    a(f'buffer_load_dwordx4 {vr(52,4)}, v{vOUT}, {S(sX)}, s{sMB} offen')
    lazy(a, 3)
    a(f's_cmp_eq_u32 s{sFV}, 14')
    a(f's_cbranch_scc1 L{tag}h_ok')
    keep = list(a.smem_out)
    spin(a, tag+'h', hpoll(sT+15), [f's_cmp_eq_u32 s{sFV}, 14'], sT+14, sleep=0, first=False)
    a.smem_out = keep
    lazy(a, 4)
    for n in range(C.look0): hload(a, n)
    a(f's_add_u32 m0, s{sM0}, {LPX+3*UN}')
    q.readD(14)
    for pr in range(2):
        for d in range(2): a(f'v_permlane16_swap_b32 v{48+4*pr+d}, v{48+4*pr+2+d}')
    for k in range(8):
        a(f'v_lshlrev_b32 v{vXS+2*k}, 16, v{48+k}')
        a(f'v_and_b32 v{vXS+2*k+1}, s{sMSK}, v{48+k}')
    a.wait(vm=C.look0)
    if dft:
        assert last not in a.vm
        a.wait(lgkm=0)
        a('s_barrier')
        for k in range(8): a(f's_atomic_add s{sONE}, s[{sM1}:{sM1+1}], {512*k}')

def phaseB(a):
    gpoll = [f's_load_dword s{sFV}, s[78:79], s{sKX} glc']
    AC = lambda sl,c: vAC+16*sl+4*c
    GF = lambda kp,c: 80+8*kp+4*c
    EP = [112, 120, 48]; LP = [80, 88, 96]; OB = 56
    osc = ("","sc1","nt","sc0 sc1")[C.outsc]
    gl = [f'buffer_load_dwordx4 v{vGA+cbk}, {S(sWS)}, 0 offen offset:{1024*cbk} sc1 lds' for cbk in range(4)]
    def preads(P, half, srcs):
        off = {2: half*UN, 3: half*UN+2048, 1: 2*UN+2048*half}
        return [f'ds_read_b128 {vr(P[{2:0,3:1,1:2}[k]]+4*c,4)}, v{PR[k]} offset:{off[k]+1024*c}' for k in srcs for c in range(2)]
    def adds(d, s_): return [f'v_add_f32 v{d+k}, v{d+k}, v{s_+k}' for k in range(8)]
    def pack(src, ob, so):
        return ([f'v_cvt_pk_bf16_f32 v{ob+k}, v{src+2*k}, v{src+2*k+1}' for k in range(4)] + [f'v_permlane16_swap_b32 v{ob+d}, v{ob+2+d}' for d in range(2)]
                + [f'buffer_store_dwordx4 {vr(ob,4)}, v{vOUT}, {S(sOUT)}, {so} offen {osc}'])
    nl = C.look0
    fillers = []; gm = []; wq = []; after_g = []
    def fill(k):
        for _ in range(k):
            if fillers: a(fillers.pop(0))
    def mf(n, c):
        sl, ks = SEQ[n]
        d = vr(AC(sl,c),4); ci = d
        if ks == 0 and not (sl == 3 and c < 2): ci = vr(vXS+4*c,4) if (sl == 1 and c < 2) else 0
        a(f'{MF} {d}, {ar(16*ks+4*c,4)}, {vr(vH+4*(n%NH),4)}, {ci}')
    lc = 28-C.look-1
    assert C.gb+6 <= 42 and C.lp+6 <= lc < C.gp and C.gb >= 31
    nend = 56-C.defer
    for n in range(nend):
        sl, ks = SEQ[n]
        for j in range(4):
            mf(n, j)
            if j == 0:
                if nl < 56: hload(a, nl); nl += 1
                else: fill(2)
            elif j == 1 and n == C.lp:
                a.wait(lgkm=0)
                for t in hpoll(sT+13): a(t)
            elif j == 1 and n == lc:
                assert nl <= 28
                spin(a, 'l', hpoll(sT+13), [f's_cmp_eq_u32 s{sFV}, 14'], sT+14, sleep=0)
            elif j == 1 and n == C.gp:
                for t in gpoll: a(t)
            elif j == 1 and n == C.gc:
                spin(a, 'g', gpoll, [f's_cmp_eq_u32 s{sFV}, 8'], sT+14, sleep=C.gsl)
            elif j == 1 and n == C.gb:
                assert not wq
                a.wait_vm_for(gdone); a.wait(lgkm=0); a('s_barrier')
                fillers = [f'ds_read_b128 {vr(GF(kp,c),4)}, v{(19 if c else vHA) if C.gnew else vHA} offset:{3*UN+4096*kp+(0 if C.gnew else 1024*c)}' for kp in range(4) for c in range(2)]
                fillers += preads(EP, 0, (2,3,1)) + adds(EP[0], EP[1]) + adds(EP[0], EP[2])
                for kp in range(4):
                    for (sl2, c) in ((1,0),(3,0),(3,1),(1,1)):
                        d = vr(AC(sl2,c),4)
                        gm.append(f'{MF} {d}, {vr(GF(kp,c),4)}, {ar((aCF if sl2 == 1 else aCL)+4*kp,4)}, {vr(vXS+8+4*c,4) if (sl2 == 3 and kp == 0) else d}')
                after_g = adds(EP[0], AC(1,0)) + pack(EP[0], OB, 0)
            elif j == 1 and sl and 1 <= ks and wq: a(wq.pop(0))
            elif j == 1 and sl == 3 and ks == C.xb:
                assert not wq and not gm
                a.wait(lgkm=0); a('s_barrier')
                fillers = preads(LP, 1, (2,3)) + fillers + adds(LP[0], LP[1])
            elif j == 2 and C.gc <= n < C.gc+4: gdone = a(gl[n-C.gc])
            elif j == 2 and nl < 56 and nl-n-1 < C.look:
                hload(a, nl); nl += 1
            else: fill(1 if j == 3 else 2)
        if gm and n >= C.gb+2:
            for t in gm[:4]: a(t); fill(2)
            gm = gm[4:]
        elif after_g and not gm: fillers += after_g; after_g = []
        if ks == 13 and sl < 3:
            assert not wq
            if sl == 1: wq = [f'ds_write_b128 v{vPW}, {vr(AC(1,2+c),4)} offset:{2*UN+1024*c}' for c in range(2)]
            else: wq = [f'ds_write_b128 v{vPW}, {vr(AC(sl,c),4)} offset:{(sl>>1)*UN+1024*c}' for c in range(4)]
        if n == 0: lazy_flush(a, 5); stamp(a, 3)
        if n in (7,14,21,28,35,42,49): stamp(a, 2)
    assert nl == 56
    for n in range(nend, 56):
        for c in (2, 3): mf(n, c); fill(2)
    fill(99)
    own = [(n, c) for n in range(nend, 56) for c in (0, 1)]
    k0 = min(3, len(own))
    for n, c in own[:k0]: mf(n, c)
    own = own[k0:]
    for c in range(2):
        a(f'ds_write_b128 v{vPW}, {vr(AC(3,2+c),4)} offset:{2*UN+2048+1024*c}')
        if own: mf(*own.pop(0))
    if own: mf(*own.pop(0))
    a.wait(lgkm=0); a('s_barrier')
    for t in preads(LP, 1, (1,)): a(t)
    for n, c in own: mf(n, c)
    stamp(a, 3)
    for k in range(0, 8, 2): a(f'v_pk_add_f32 {vr(LP[0]+k,2)}, {vr(LP[0]+k,2)}, {vr(AC(3,0)+k,2)}')
    for k in range(0, 8, 2): a(f'v_pk_add_f32 {vr(LP[0]+k,2)}, {vr(LP[0]+k,2)}, {vr(LP[2]+k,2)}')
    for t in pack(LP[0], OB+4, f's{sMB}'): a(t)
    stamp(a)

def kernel(a):
    q = Q(a)
    prologue(a, q)
    for t in master_list(False)[1:4]: q.pend += items(t)
    assert C.cap0 <= 8
    q.issue(6)
    stamp(a)
    z = setup2(a)
    for t in coef_ops(): a(t)
    q.issue(C.cap0-2)
    stamp(a)
    a(f's_cmp_ge_u32 s{sJ}, 14')
    a('s_cbranch_scc1 L_dft')
    st = a.snapshot(); n0 = St.n; q2 = q.clone(True)
    phaseA(a, False, q, z); stamp(a)
    presync(a, False, q, glu_epilogue(a, q))
    def state(): return ([i.text for i in a.vm], St.n)
    join = state(); jl = [i.text for i in a.lgkm]
    a.label('L_phaseB')
    a.raw(';PAD0') if C.pads else a('s_nop 0')
    phaseB(a)
    stamp_flush(a)
    a.label('L_end')
    a('s_endpgm')
    a.restore(st); St.n = n0; q = q2
    a.raw('.p2align 3')
    a.label('L_dft')
    phaseA(a, True, q, z); stamp(a)
    presync(a, True, q, dft_epilogue(a, q))
    assert join == state(), (join, state())
    assert not a.lgkm
    a('s_branch L_phaseB')
    if a.blocked: print('waits that block on smem at lines', a.blocked, file=sys.stderr)

def layout(lines, base):
    out = []
    for l in lines:
        if l.startswith(';WARM'):
            t = l.split()[1]
            out += [f'    s_mov_b32 s1, {1 if t == "d" else 0}', '    s_mov_b64 exec, 0']
            for w in range(3): out += [f'    s_cmp_eq_u32 s{sW}, {w}', f'    s_cbranch_scc1 @{t}{w}']
            out += [f'    s_branch @{t}3']
            if t == 'g': out += ['Ltramp:', '    s_cmp_eq_u32 s1, 1', '    s_cbranch_scc1 Lret_d']
            out += [f'Lret_{t}:', '    s_mov_b64 exec, -1']
        elif l == ';PAD0': out += ['Lpad_s0:', '    s_cbranch_execz @next_s0']
        else: out.append(l)
    import re
    sz = sizes_of([re.sub(r'@\w+', 'L_end', l) for l in out])
    idx = [i for i,l in enumerate(out) if l.startswith('    ') and not l.strip().startswith((';','.'))]
    assert len(idx) == len(sz)
    size = dict(zip(idx, sz))
    res = []; addr = base; cand = None; fixed = left = 0; region = None; pads = {'g': [], 's': ['s0'], 'd': []}
    page = addr >> 12
    for i,l in enumerate(out):
        if l == 'Lret_g:': region = 'g'
        if l == 'L_phaseB:': region = 's'
        if l == 'L_end:': region = None
        if l == 'Lret_d:': region = 'd'
        if l.startswith('.p2align 3'): addr = (addr+7)//8*8; cand = None; res.append(l); continue
        if i not in size: res.append(l); continue
        if (addr >> 12) != page:
            page = addr >> 12
            if region and C.pads and 'exec' not in l:
                nm = f'{region}{len(pads[region])}'; pads[region].append(nm)
                res += [f'Lpad_{nm}:', f'    s_cbranch_execz @next_{nm}']; addr += 4
                if C.log: print('pad', nm, 'before line', i, l.strip()[:60], file=sys.stderr)
        s = size[i]
        if s == 8 and addr % 8 == 4:
            if cand is not None and C.align:
                op = res[cand].split()[0]; res[cand] = res[cand].replace(op, op+'_e64', 1); addr += 4; fixed += 1
            elif addr % 32 == 28: left += 1
        res.append(l)
        if s == 8: cand = None
        elif l.split()[0] in PROMO and addr % 8 == 0: cand = len(res)-1
        addr += s
    tgt = {}
    sp = pads['s']
    for k, nm in enumerate(sp): tgt[f'next_{nm}'] = f'Lpad_{sp[k+1]}' if k+1 < len(sp) else 'Ltramp'
    for t in 'gd':
        own = pads[t]
        for k, nm in enumerate(own): tgt[f'next_{nm}'] = f'Lpad_{own[k+3]}' if k+3 < len(own) else f'Lret_{t}'
        for w in range(3): tgt[f'{t}{w}'] = f'Lpad_{own[w]}' if w < len(own) else f'Lret_{t}'
        tgt[f'{t}3'] = f'Lpad_{sp[0 if t == "d" or len(sp) == 1 else 1]}'
    res = [re.sub(r'@(\w+)', lambda m: tgt[m.group(1)], l) for l in res]
    print('align fixed', fixed, 'left', left, 'pads', pads, 'bytes', addr-base, file=sys.stderr)
    assert addr-base <= 32*CODE_LINES_PER_WG*128
    return res

def build():
    out = ['; @launch grid=(256,1,1) block=(256,1,1) lds=163840', '; '+' '.join(sys.argv[2:]),
           '.amdgcn_target "amdgcn-amd-amdhsa--gfx950"', '.text', '.p2align 12']
    if C.shift: out.append(f'.fill {64*C.shift}, 4, 0xbf800000')
    nm = NAME+'_kernel'
    a = Asm(); kernel(a)
    lines = layout(a.lines, 0x300+256*C.shift)
    out += [f'.globl {nm}', '.p2align 8', f'.type {nm},@function', f'{nm}:', '\n'.join(lines)]
    out.append('L_code_end:')
    out.append(f'.fill ({32*CODE_LINES_PER_WG*128+256} - (L_code_end - {nm}))/4, 4, 0xbf800000')
    out.append('.section .rodata,"a"')
    out.append('.p2align 6')
    out.append(f'''.amdhsa_kernel {nm}
  .amdhsa_next_free_vgpr 512
  .amdhsa_next_free_sgpr 102
  .amdhsa_accum_offset 256
  .amdhsa_group_segment_fixed_size 0
  .amdhsa_kernarg_size 96
  .amdhsa_user_sgpr_count 2
  .amdhsa_user_sgpr_kernarg_segment_ptr 1
  .amdhsa_system_sgpr_workgroup_id_x 1
.end_amdhsa_kernel
''')
    return '\n'.join(out)
if __name__ == '__main__':
    for kv in sys.argv[2:]:
        k, v = kv.split('='); assert hasattr(C, k), k; setattr(C, k, int(v))
    HP = 56*1024+C.hpad; GP = 65536+C.gpad
    t = build()
    open(sys.argv[1], 'w').write(t)
```

```python
import sys
NAME='parallel_sum__spectral_fnet__glu_gated_glu__prompt_kernel'
def wrap(src, body, grid=256, block=256, pre=True):
    L0 = f'; @launch kernel={NAME} grid=(256,1,1) block=(256,1,1) lds=163840'
    L1 = f'; @launch kernel=e_kernel grid=({grid},1,1) block=({block},1,1) lds=163840'
    lines = src.split('\n')
    assert lines[0].startswith('; @launch')
    lines[0] = (L1+'\n'+L0) if pre else (L0+'\n'+L1)
    s = '\n'.join(lines)
    code = f'.globl e_kernel\n.p2align 8\n.type e_kernel,@function\ne_kernel:\ns_cmp_ge_u32 s2, {grid}\ns_cbranch_scc1 Le_end\n{body}\nLe_end:\ns_endpgm\n'
    s = s.replace('.section .rodata,"a"', code+'.section .rodata,"a"')
    s += '''.p2align 6
.amdhsa_kernel e_kernel
  .amdhsa_next_free_vgpr 64
  .amdhsa_next_free_sgpr 96
  .amdhsa_accum_offset 64
  .amdhsa_group_segment_fixed_size 0
  .amdhsa_kernarg_size 96
  .amdhsa_user_sgpr_count 2
  .amdhsa_user_sgpr_kernarg_segment_ptr 1
  .amdhsa_system_sgpr_workgroup_id_x 1
.end_amdhsa_kernel
'''
    return s
def stores(off, rounds, op='st'):
    b = ['s_load_dwordx2 s[4:5], s[0:1], 88', 'v_lshlrev_b32 v1, 4, v0', 's_lshl_b32 s3, s2, 15', 'v_add_u32 v1, s3, v1', 's_waitcnt lgkmcnt(0)',
         's_mov_b32 s8, s4', 's_mov_b32 s9, s5', 's_mov_b32 s10, 0x10000000', 's_mov_b32 s11, 0x20000']
    for r in range(rounds):
        for k in range(8):
            b.append(f's_mov_b32 s12, {off+r*0x800000+k*4096}')
            if op=='st': b.append('buffer_store_dwordx4 v[4:7], v1, s[8:11], s12 offen sc1')
            else: b.append(f'buffer_load_dwordx4 v[{4+4*k}:{7+4*k}], v1, s[8:11], s12 offen')
        b.append('s_waitcnt vmcnt(0)')
    return '\n'.join(b)
if __name__=='__main__':
    src = open('v3.s').read()
    w = lambda fn,s: open('probe/'+fn,'w').write(s)
    w('p_none.s', wrap(src, stores(0,0)))
    w('p_st16.s', wrap(src, stores(16<<20,4)))
    w('p_st112.s', wrap(src, stores(112<<20,4)))
    w('p_st224.s', wrap(src, stores(224<<20,4)))
    w('p_ld16.s', wrap(src, stores(16<<20,4,'ld')))
    w('p_ld224.s', wrap(src, stores(224<<20,4,'ld')))
```

```python
from probe3 import wrap
src = open('s4.s').read()
def body(kind, M):
    b = ['s_memrealtime s[8:9]', 's_load_dwordx2 s[4:5], s[0:1], 88', 'v_lshlrev_b32 v1, 10, v0', 'v_add_u32 v1, 0xC00080, v1', 's_waitcnt lgkmcnt(0)']
    for k in range(4):
        b += [f'global_load_dwordx2 v[{2+2*k}:{3+2*k}], v1, s[4:5]', 'v_add_u32 v1, 0x10000, v1']
    b += ['s_waitcnt vmcnt(0)']
    for k in range(8): b.append(f'v_sub_u32 v{2+k}, s8, v{2+k}')
    b += ['v_max_u32 v10, v2, v4', 'v_max_u32 v11, v6, v8', 'v_max_u32 v10, v10, v11',
          'v_min_u32 v12, v2, v4', 'v_min_u32 v11, v6, v8', 'v_min_u32 v12, v12, v11',
          'v_min_u32 v13, v3, v5', 'v_min_u32 v11, v7, v9', 'v_min_u32 v13, v13, v11',
          's_mov_b32 s20, 0', 's_mov_b32 s21, -1', 's_mov_b32 s22, -1', 's_nop 4']
    for l in range(64):
        b += [f'v_readlane_b32 s12, v10, {l}', f'v_readlane_b32 s13, v12, {l}', f'v_readlane_b32 s14, v13, {l}', 's_nop 2', 's_max_u32 s20, s20, s12', 's_min_u32 s21, s21, s13', 's_min_u32 s22, s22, s14']
    b.append({'skew':'s_sub_u32 s10, s20, s21','tot':'s_sub_u32 s10, s20, s22','last':'s_sub_u32 s10, s21, s22','gap':'s_mov_b32 s10, s22'}[kind])
    b += ['s_min_u32 s10, s10, 3000', f's_mul_i32 s10, s10, {M}', 's_add_u32 s10, s10, 400', 'Lc_loop:', 's_memrealtime s[12:13]', 's_waitcnt lgkmcnt(0)', 's_sub_u32 s12, s12, s8', 's_cmp_lt_u32 s12, s10', 's_cbranch_scc1 Lc_loop']
    return '\n'.join(b)
for fn,kind,M in (('q0','skew',0),('q1','skew',8),('q2','tot',1),('q3','last',1),('q4','gap',4)):
    open(f'probe/{fn}.s','w').write(wrap(src, body(kind,M), grid=1, block=64, pre=False))
open('q5.s','w').write(src)
```

```python
import sys, struct
from asmlib import *

NAME = 'parallel_sum__spectral_fnet__glu_gated_glu__prompt'
HP = 56*1024+128
GP = 65536+128
G_OFF = 0x790000
FL_OFF = 0xA00000
FLS_OFF = FL_OFF+128*128
FLG_OFF = FLS_OFF+4
NFL = 256
XS_OFF = 0xA10000
CS_OFF = 0xA50000
WS_BYTES = 0xA90000
STAMP_OFF = 0xC00000
OOB = 0x7f000000
def f2u(x): return struct.unpack('<I', struct.pack('<f', x))[0]
LOG2E = 1.4426950408889634
MF = 'v_mfma_f32_16x16x32_bf16'

class Cfg:
    stamps = 0; log = 0; align = 1
    touch = 0
    tlb = 0
    pads = 1
    shift = 0
    hrot = 0; bmap = 1; drot = 2
    cap0 = 6; cap = 6; capn = 3; bar = 2
    rate = 8; drate = 8; dslow = 0
    spoll = 8; dlag = 10; rd0 = 5; rd1 = 6
    dleft = 16; epi_dma = 0; post = 12
    look = 10; look0 = 8; gp = 18; gc = 24; gb = 36; xb = 6; skipb = 0; snake = 1; defer = 4; lp = 8; pre = 8; mid = 4; xoff = 0; dmap = 1; dstart = 5; ddrate = 4; ddlag = 16; dearly = 0; drotd = 2; dcap = 14; xord = 1; tw = 3; tswap = 0; hoist = 1; gnew = 1; drd1 = 12; plate = 2; ftz = 0; gsl = 0
    infl = 2; pgap = 5
    outsc = 1; tpos = 3; tfl = 0; rmask = 6
    hpad = 0; gpad = 0
C = Cfg()

sMSK, sR, sCB = 3, 6, 7
sPO = 8
sDBG, sX, sG, sU, sWS, sWD, sOUT = 16, 20, 24, 28, 32, 36, 40
sW, sI, sJ, sP = 44, 45, 46, 47
sT = 48
sM0, sKX, sKW, sPITCH, sKCX, sKCW, sL, sXS = 64, 65, 66, 67, 68, 69, 70, 71
sSET, sCS, sOWN, sONE, sFV, sKD, sP2, sP7 = 80, 81, 86, 87, 4, 5, 15, 0
sM1, sM2, sM3, sMV = 88, 90, 92, 94
vLANE, vN, vG, vOUT = 1, 2, 3, 13
vXD, vWD, vD, vXA, vOA, vWA, vTR, vDBG, vSTAMP = 16, 20, 22, 26, 28, 30, 34, 46, 47
vXR, vWF, vSXo, vCS, vSQo, vACC = 48, 64, 96, 104, 120, 128
aSX, aONE, aR, aCL, aCF = 160, 168, 192, 224, 240
UN = 16384
LST = 1*UN
def acc(tf, wf): return vACC+16*tf+4*wf
def fW(p, wf): return vWF+16*p+4*wf
def fX(k): return vXR+4*(k & 3)
def S(r): return f's[{r}:{r+3}]'

class St: n = 0
def stamp(a, grp=1):
    if not (C.stamps & grp): return
    a(f's_memtime s[82:83]')
    a(f's_memrealtime s[84:85]')
    a.wait(lgkm=0)
    a(f'v_writelane_b32 v{vSTAMP}, s82, {St.n}')
    a(f'v_writelane_b32 v{vSTAMP}, s84, {32+St.n}')
    St.n += 1
LZ = [16, 18, 90, 92, 94]
def lazy(a, k):
    if C.stamps & 1: a.raw(f'    s_memrealtime s[{LZ[k]}:{LZ[k]+1}] ; s_memtime')
def lazy_flush(a, n):
    if not (C.stamps & 1): return
    a.raw('    s_waitcnt lgkmcnt(0)')
    for k in range(n):
        a(f'v_writelane_b32 v{vSTAMP}, s{LZ[k]}, {32+St.n}'); St.n += 1
def stamp_flush(a):
    if not C.stamps: return
    a.wait(vm=0)
    stamp(a, 255)
    a(f's_mov_b32 s{sWS+2}, 0x1000000')
    a(f's_lshl_b32 s82, s2, 2')
    a(f's_add_u32 s82, s82, s{sW}')
    a(f's_lshl_b32 s82, s82, 8')
    a(f's_add_u32 s82, s82, {STAMP_OFF}')
    a(f'v_lshlrev_b32 v4, 2, v{vLANE}')
    a(f'buffer_store_dword v{vSTAMP}, v4, {S(sWS)}, s82 offen')

def srd(a, d, ptr, nbytes):
    a(f's_mov_b64 s[{d}:{d+1}], s[{ptr}:{ptr+1}]')
    a(f's_mov_b32 s{d+2}, {nbytes}')
    a(f's_mov_b32 s{d+3}, 0x20000')

def dma_X(s):
    pre = {0: [f's_add_u32 m0, s{sM0}, {(s % 4)*UN}', f's_xor_b32 s{sKX}, s{sKX}, 512' if s & 1 else f's_lshl_b32 s{sKX}, s{sKCX}, 7']}
    if s & 1: pre[1] = [f's_add_u32 s{sKCX}, s{sKCX}, 1', f's_and_b32 s{sKCX}, s{sKCX}, 3'] + ([f's_or_b32 s{sKCX}, s{sKCX}, 4'] if C.xord else [])
    return [(('X', s), pre.get(q, []), f'buffer_load_dwordx4 v{vXD+q}, {S(sX)}, s{sKX} offen offset:{q*1024} lds') for q in range(4)]
def wunit(n, dft): return 4 + (((2 if n >> 2 == 1 else 0)+(n & 1)) if dft else n % 6)
def dma_W(n, dft):
    k = [f's_mul_i32 s{sKW}, s{sKCW}, s{sP2}', f's_add_u32 s{sKW}, s{sKW}, s{sPITCH}', f's_add_u32 s{sKW}, s{sKW}, s{sP7}', f's_add_u32 s{sKW}, s{sKW}, s{sPITCH}'][n & 3]
    pre = {0: [f's_add_u32 m0, s{sM0}, {wunit(n, dft)*UN}', k]}
    if n & 3 == 1: pre[1] = [f's_add_u32 s{sKCW}, s{sKCW}, 1', f's_and_b32 s{sKCW}, s{sKCW}, 3'] + ([f's_or_b32 s{sKCW}, s{sKCW}, 4'] if C.xord else [])
    return [(('W', n), pre.get(q, []), f'buffer_load_dwordx4 v{vWD+(q&1)}, {S(sU if q >> 1 else sG)}, s{sKW} offen offset:{q*1024} lds') for q in range(4)]
class Plan:
    def __init__(self, dft):
        if dft:
            self.units = [8, 9, 6, 7, 8, 9, 6, 7, 0, 8, 9, 6, 7, 4]
            assert C.dstart >= 5
            self.avail = {C.dstart:8, 10:13, 12:14}
        else:
            self.units = [0, 8, 9, 4, 5, 0, 6, 2, 8, 7, 3, 9, 4, 5]
            self.avail = {10:2, 11:3, 12:4, 13:6, 14:9}
        self.prev = {u: max(v for v in range(u) if self.units[v] == self.units[u]) for u in range(14) if self.units[u] in self.units[:u]}
    def dma(self, u):
        pre = {0: [f's_add_u32 m0, s{sM0}, {self.units[u]*UN}',
                   f's_add_u32 s{sKD}, s{sKD}, 32768' if u & 1 else f's_lshl_b32 s{sKD}, s{sPO+(u>>1)}, 5']}
        return [(('D', u), pre.get(q, []), f'buffer_load_dwordx4 v{vD+q}, {S(sWD)}, s{sKD} offen offset:{q*1024} lds') for q in range(4)]
    def reads(self, u):
        un = self.units[u]
        return [f'ds_read_b64_tr_b16 {ar(16*u+4*cbk+2*u2,2)}, v{vTR+4*(un>>2)+cbk} offset:{(un&3)*UN+2048*u2}' for cbk in range(4) for u2 in range(2)]

class Q:
    def __init__(self, a, dft=False):
        self.a = a; self.pend = []; self.last = {}; self.predone = False; self.nD = 0; self.maxD = 0; self.rd = {}
        self.plan = Plan(dft)
        self.rq = [(u, t) for u in range(14) for t in self.plan.reads(u)]; self.issued = 0; self.limit = 10**9; self.log = []; self.pos = -1
    def clone(self, dft):
        q = Q(self.a, dft); q.pend = list(self.pend); q.last = dict(self.last); q.predone = self.predone; q.issued = self.issued; q.log = list(self.log)
        return q
    def left(self): return len(self.pend) + 4*(14-self.nD)
    def ready(self):
        if not self.pend and self.nD < self.maxD:
            pv = self.plan.prev.get(self.nD)
            if pv is None or not self.rq or self.rq[0][0] > pv:
                self.pend += self.plan.dma(self.nD); self.nD += 1
        return bool(self.pend) and self.issued < self.limit
    def haspre(self): return self.ready() and self.pend[0][1] and not self.predone
    def pre(self):
        if self.ready() and not self.predone:
            for t in self.pend[0][1]: self.a(t)
            self.predone = True
    def issue(self, n=1):
        for _ in range(n):
            if not self.ready(): return
            self.pre()
            tag, pf, t = self.pend.pop(0)
            if tag[0] == 'D' and tag[1] in self.plan.prev: self.a.wait_lgkm_for(self.rd[self.plan.prev[tag[1]]])
            self.last[tag] = self.a(t); self.predone = False; self.issued += 1; self.log.append((tag, self.pos))
    def addD(self, upto): self.maxD = max(self.maxD, upto)
    def has(self, tag): return [1 for t in self.pend if t[0] == tag]
    def need(self, tag):
        assert tag in self.last and not self.has(tag), ('not issued', tag)
        self.a.wait_vm_for(self.last[tag])
    def read1(self, upto):
        if not self.rq or self.rq[0][0] >= upto: return False
        u, t = self.rq.pop(0)
        self.need(('D', u))
        self.rd[u] = self.a(t)
        return True
    def readD(self, upto):
        while self.read1(upto): pass

def x_read(k):
    n, tf = k >> 3, k & 7
    return f'ds_read_b128 {vr(fX(k),4)}, v{vXA+(n&1)} offset:{((n>>1) % 4)*UN+tf*2048}'
def w_reads(n, dft):
    if dft and n & 2:
        return [f'v_xor_b32 v{fW(n&1,0)+k}, v12, v{fW(n&1,0)+k}' for k in range(16)]
    un = wunit(n, dft)-4
    return [f'ds_read_b64_tr_b16 {vr(fW(n&1,wf)+2*u,2)}, v{vWA+2*(un>>2)+(wf&1)} offset:{(un&3)*UN+(wf>>1)*2048+u*1024}' for wf in range(4) for u in range(2)]

def master_list(dft):
    m = []
    for n in range(16):
        if n % 2 == 0: m.append(('X', n >> 1))
        if not (dft and n & 2): m.append(('W', n))
    return m
def items(t, dft=False): return dma_X(t[1]) if t[0] == 'X' else dma_W(t[1], dft)

CODE_LINES_PER_WG = 10
def prologue(a, q):
    a('s_cmp_ge_u32 s2, 256')
    a('s_cbranch_scc1 L_end')
    a('s_load_dwordx2 s[4:5], s[0:1], 0')
    a('s_load_dwordx4 s[8:11], s[0:1], 24')
    a('s_load_dwordx4 s[12:15], s[0:1], 48')
    a('s_load_dwordx8 s[72:79], s[0:1], 64')
    St.n = 0
    if C.stamps: a('s_memrealtime s[84:85]'); a('s_memtime s[82:83]')
    a.raw(f'    s_getpc_b64 s[80:81]'); a.hist.append((Ins('s_getpc_b64 s[80:81]'),1))
    a(f's_lshr_b32 s{sT}, s2, 3')
    a(f's_mul_i32 s{sT}, s{sT}, {CODE_LINES_PER_WG*128}')
    a(f'v_min_u32 v4, {CODE_LINES_PER_WG-1}, v0')
    a(f'v_lshl_add_u32 v4, v4, 7, s{sT}')
    a(f'global_load_dword v{vDBG}, v4, s[80:81]')
    a(f'v_and_b32 v{vLANE}, 63, v0')
    a(f'v_lshrrev_b32 v4, 6, v0')
    a(f'v_and_b32 v{vN}, 15, v0')
    a(f'v_readfirstlane_b32 s{sW}, v4')
    a(f'v_bfe_u32 v{vG}, v0, 4, 2')
    a(f's_and_b32 s{sT}, s2, 1')
    a(f's_lshl_b32 s{sT}, s{sT}, 3')
    a(f's_bfe_u32 s{sI}, s2, {3|(3<<16)}')
    a(f's_add_u32 s{sI}, s{sI}, s{sT}')
    a(f's_bfe_u32 s{sT}, s2, {1|(2<<16)}')
    a(f's_lshr_b32 s{sT+1}, s2, 6')
    if C.dmap:
        a(f's_mul_i32 s{sJ}, s{sT}, 3')
        a(f's_add_u32 s{sJ}, s{sJ}, s{sT+1}')
        a(f's_add_u32 s{sT+2}, s{sT}, 14')
        a(f's_cmp_eq_u32 s{sT+1}, 3')
        a(f's_cselect_b32 s{sT+2}, s{sT+2}, s{sJ}')
        a(f's_cmp_eq_u32 s{sT}, 3')
        a(f's_addc_u32 s{sJ}, s{sJ}, 0')
        a(f's_cmp_lt_u32 s{sT}, 2')
        a(f's_cselect_b32 s{sJ}, s{sT+2}, s{sJ}')
    else:
        a(f's_mul_i32 s{sJ}, s{sT}, 3')
        a(f's_add_u32 s{sJ}, s{sJ}, s{sT+1}')
        a(f's_lshr_b32 s{sT+2}, s2, 4')
        a(f's_xor_b32 s{sT+2}, s{sT+2}, s2')
        a(f's_and_b32 s{sT+2}, s{sT+2}, 2')
        a(f's_lshr_b32 s{sT}, s{sT}, 1')
        a(f's_add_u32 s{sT}, s{sT}, s{sT+2}')
        a(f's_add_u32 s{sT}, s{sT}, 12')
        a(f's_cmp_eq_u32 s{sT+1}, 3')
        a(f's_cselect_b32 s{sJ}, s{sT}, s{sJ}')
    a(f's_xor_b32 s{sT}, s{sI}, s{sT+1}')
    a(f's_and_b32 s{sT}, s{sT}, 1')
    a(f's_lshl_b32 s{sKCX}, s{sT}, 1')
    a(f's_lshr_b32 s{sT}, s2, 1')
    a(f's_xor_b32 s{sT}, s{sT}, s2')
    a(f's_and_b32 s{sT}, s{sT}, 1')
    a(f's_add_u32 s{sKCX}, s{sKCX}, s{sT}')
    a(f's_lshl_b32 s{sL}, s{sKCX}, 8')
    if C.xord: a(f's_or_b32 s{sKCX}, s{sKCX}, 4')
    a(f's_mov_b32 s{sKCW}, s{sKCX}')
    a(f's_sub_u32 s{sT+1}, 32, s{sI}')
    a(f's_cmp_eq_u32 s{sI}, 0')
    a(f's_cselect_b32 s{sT+1}, 16, s{sT+1}')
    a(f's_bitcmp1_b32 s{sW}, 1')
    a(f's_cselect_b32 s{sT}, s{sT+1}, s{sI}')
    a(f's_sub_u32 s{sT+1}, 64, s{sT}')
    a(f's_cmp_eq_u32 s{sT}, 0')
    a(f's_cselect_b32 s{sT+1}, 32, s{sT+1}')
    a(f's_add_u32 s{sT+2}, s{sT}, 32')
    a(f's_movk_i32 s{sT+6}, 3584')
    a(f's_cmp_ge_u32 s{sJ}, 14')
    a(f's_cselect_b32 s{sT+1}, s{sT+2}, s{sT+1}')
    a(f's_cselect_b32 s{sT+6}, 1024, s{sT+6}')
    a(f's_cselect_b32 s{sT+4}, 12, 0')
    a(f's_sub_u32 s{sT+4}, s{sJ}, s{sT+4}')
    a(f's_lshl_b32 s{sT+4}, s{sT+4}, 8')
    a(f's_bitcmp1_b32 s{sW}, 0')
    a(f's_cselect_b32 s{sT}, s{sT+1}, s{sT}')
    a(f's_cselect_b32 s{sT+5}, 8, 0')
    a(f's_lshl_b32 s{sT}, s{sT}, 10')
    a(f'v_lshrrev_b32 v4, 3, v{vLANE}')
    a(f'v_lshl_add_u32 v4, v4, 16, s{sT}')
    a(f'v_and_b32 v6, 7, v{vLANE}')
    a(f'v_xor_b32 v6, v6, v{vG}')
    a(f'v_lshl_add_u32 v{vXD}, v6, 4, v4')
    a(f'v_xor_b32 v7, 64, v{vXD}')
    a(f'v_add_u32 v{vXD+1}, {524288-1024}, v7')
    a(f'v_add_u32 v{vXD+2}, {2*(524288-1024)}, v{vXD}')
    a(f'v_add_u32 v{vXD+3}, {3*(524288-1024)}, v7')
    a(f's_lshl_b32 s{sM0}, s{sW}, 12')
    a(f's_lshl_b32 s{sPITCH}, s{sT+6}, 5')
    a(f's_mov_b32 s{sX+2}, {2048*1024}')
    a(f's_mov_b32 s{sX+3}, 0x20000')
    def waddr():
        a(f's_lshl_b32 s{sT+1}, s{sW}, 3')
        a(f'v_add_u32 v4, s{sT+1}, v{vG}')
        a(f'v_mul_u32_u24 v4, s{sT+6}, v4')
        a(f'v_add_u32 v4, s{sT+4}, v4')
        a(f'v_lshl_add_u32 v7, v{vG}, 1, s{sT+5}')
        a(f'v_xor_b32 v6, v{vN}, v7')
        a(f'v_lshl_add_u32 v{vWD}, v6, 4, v4')
        a(f's_lshl_b32 s{sT+1}, s{sT+6}, 2')
        a(f's_sub_u32 s{sT+1}, s{sT+1}, 1024')
        a(f'v_add_u32 v{vWD+1}, s{sT+1}, v{vWD}')
        a(f's_lshl_b32 s{sG+2}, s{sT+6}, 9')
        a(f's_mov_b32 s{sG+3}, 0x20000')
        a(f's_add_u32 s{sU+2}, s{sG+2}, 2048')
        a(f's_mov_b32 s{sU+3}, 0x20000')
    if C.hoist: waddr()
    sTW = 96
    if C.tw & 2:
        a(f's_lshl_b32 s{sT+1}, s2, 2')
        a(f's_add_u32 s{sT+1}, s{sT+1}, s{sW}')
        a(f's_lshl_b32 s{sT+7}, s{sT+1}, 7')
        a(f's_lshr_b32 s{sT+1}, s2, 3')
        a(f's_add_u32 s{sT+1}, s{sT+1}, s{sW}')
        a(f's_and_b32 s{sT+1}, s{sT+1}, 7')
        a(f's_min_u32 s{sT+1}, s{sT+1}, 5')
        a(f's_lshl_b32 s{sT+1}, s{sT+1}, 21')
        a(f's_add_u32 s{sT+8}, s{sT+1}, s{sT+7}')
    q.pend = items(('X',0)); q.pre()
    a.wait(lgkm=0)
    a(f's_mov_b64 s[{sX}:{sX+1}], s[4:5]')
    if C.stamps:
        a(f'v_writelane_b32 v{vSTAMP}, s84, 32'); a(f'v_writelane_b32 v{vSTAMP}, s82, 0'); St.n = 1
    if not C.tw & 4: q.issue(1)
    a(f's_cmp_ge_u32 s{sJ}, 14')
    a(f's_cselect_b64 s[{sG}:{sG+1}], s[8:9], s[12:13]')
    a(f's_cselect_b64 s[{sU}:{sU+1}], s[10:11], s[14:15]')
    if C.tw & 1:
        if C.tswap:
            a(f's_bitcmp1_b32 s2, {C.tswap}')
            a(f's_cselect_b64 s[8:9], s[{sG}:{sG+1}], s[{sU}:{sU+1}]')
            a(f's_load_dword s{sTW}, s[8:9], 0')
        else:
            a(f's_load_dword s{sTW}, s[{sG}:{sG+1}], 0')
            a(f's_load_dword s{sTW+1}, s[{sU}:{sU+1}], 0')
    if C.tw & 4: q.issue(1)
    if C.tw & 2:
        a(f's_load_dword s{sTW+2}, s[78:79], s{sT+8} glc')
        a(f's_load_dword s{sTW+3}, s[76:77], 128')
        a(f's_load_dword s{sTW+4}, s[72:73], 0')
        a(f's_load_dword s{sTW+5}, s[74:75], s{sT+7} glc')
    q.issue(1)
    if not C.hoist: waddr()
    a(f's_sub_u32 s{sU}, s{sU}, 2048')
    a(f's_subb_u32 s{sU+1}, s{sU+1}, 0')
    q.issue(1)
    a(f's_lshl_b32 s{sP2}, s{sPITCH}, 1')
    a(f's_mul_i32 s{sP7}, s{sPITCH}, {-9 if C.xord else 7}')
    q.issue(1)

def setup2(a):
    srd(a, sWS, 78, WS_BYTES)
    a(f's_cmp_eq_u32 s2, 0')
    a(f's_cselect_b32 s{sT+1}, {NFL}, 0')
    a(f's_mov_b32 s{sONE}, 1')
    a(f'v_mov_b32 v4, 0')
    a(f'v_mov_b32 v5, 0')
    a(f'v_mov_b32 v10, {OOB}')
    a(f'v_lshlrev_b32 v8, 7, v0')
    a(f'v_cmp_gt_u32 vcc, s{sT+1}, v0')
    a(f'v_mov_b32 v11, 0')
    a(f's_mov_b32 s{sT+3}, {FL_OFF}')
    a(f'v_cndmask_b32 v8, v10, v8, vcc')
    z = a(f'buffer_store_dwordx2 v[4:5], v8, {S(sWS)}, s{sT+3} offen sc1')
    srd(a, sWD, 72, 1792*1024)
    srd(a, sOUT, 74, 2048*1024)
    a(f'v_lshrrev_b32 v4, 1, v{vN}')
    a(f'v_xor_b32 v4, v4, v{vG}')
    a(f'v_lshlrev_b32 v4, 4, v4')
    a(f'v_lshl_add_u32 v{vXA}, v{vN}, 7, v4')
    a(f'v_xor_b32 v{vXA+1}, 64, v{vXA}')
    a(f'v_add_u32 v{vOA}, s{sM0}, v{vXA}')
    a(f'v_add_u32 v{vOA+1}, s{sM0}, v{vXA+1}')
    a(f'v_bfe_u32 v4, v{vLANE}, 2, 2')
    a(f'v_and_b32 v7, 3, v{vLANE}')
    a(f'v_cmp_eq_u32 s[{sM1}:{sM1+1}], 1, v7')
    a(f'v_cmp_eq_u32 s[{sM2}:{sM2+1}], 2, v7')
    a(f'v_cmp_eq_u32 s[{sM3}:{sM3+1}], 3, v7')
    a(f'v_cmp_eq_u32 s[{sMV}:{sMV+1}], v4, v{vG}')
    a(f'v_lshlrev_b32 v7, 3, v7')
    a(f'v_and_b32 v5, 1, v{vG}')
    a(f'v_lshl_add_u32 v5, v5, 2, v4')
    a(f's_lshl_b32 s{sT}, s{sW}, 1')
    a(f'v_xor_b32 v5, s{sT}, v5')
    a(f'v_lshl_add_u32 v5, v5, 5, v7')
    a(f'v_lshl_add_u32 v5, v4, 8, v5')
    a(f'v_lshl_add_u32 v5, v{vG}, 12, v5')
    a(f'v_add_u32 v{vWA}, {4*UN}, v5')
    a(f'v_xor_b32 v{vWA+1}, 32, v{vWA}')
    a(f'v_add_u32 v{vWA+2}, {4*UN}, v{vWA}')
    a(f'v_add_u32 v{vWA+3}, {4*UN}, v{vWA+1}')
    a(f'v_mov_b32 v4, 0x3f803f80')
    for d in range(4): a(f'v_accvgpr_write_b32 a{aONE+d}, v4')
    if C.bmap == 0:
        a(f's_and_b32 s{sR}, s2, 7')
        a(f's_lshl_b32 s{sR}, s{sR}, 2')
        a(f's_bfe_u32 s{sT}, s2, {3|(2<<16)}')
        a(f's_add_u32 s{sR}, s{sR}, s{sT}')
        a(f's_lshr_b32 s{sCB}, s2, 5')
    elif C.dmap:
        a(f's_and_b32 s{sR}, s2, 3')
        a(f's_lshl_b32 s{sR}, s{sR}, 3')
        a(f's_bfe_u32 s{sT}, s2, {3|(3<<16)}')
        a(f's_add_u32 s{sR}, s{sR}, s{sT}')
        a(f's_lshr_b32 s{sCB}, s2, 6')
        a(f's_xor_b32 s{sCB}, s{sCB}, 2')
        a(f's_and_b32 s{sT}, s2, 4')
        a(f's_add_u32 s{sCB}, s{sCB}, s{sT}')
        a(f's_add_u32 s{sCB}, s{sCB}, 2')
        a(f's_and_b32 s{sCB}, s{sCB}, 7')
    else:
        a(f's_bfe_u32 s{sR}, s2, {1|(2<<16)}')
        a(f's_lshl_b32 s{sR}, s{sR}, 3')
        a(f's_bfe_u32 s{sT}, s2, {3|(3<<16)}')
        a(f's_add_u32 s{sR}, s{sR}, s{sT}')
        a(f's_lshr_b32 s{sCB}, s2, 6')
        a(f's_and_b32 s{sT}, s2, 1')
        a(f's_lshl_b32 s{sT}, s{sT}, 2')
        a(f's_add_u32 s{sCB}, s{sCB}, s{sT}')
        a(f's_add_u32 s{sCB}, s{sCB}, 6')
        a(f's_and_b32 s{sCB}, s{sCB}, 7')
    a(f'v_and_b32 v12, 1, v{vN}')
    a(f'v_mul_u32_u24 v12, 0x8000, v12')
    a(f'v_lshl_or_b32 v12, v12, 16, v12')
    return z

def late_setup_ops():
    r = []; a = r.append
    a(f'v_and_b32 v{vTR+1}, 3, v{vLANE}')
    a(f'v_bfe_u32 v{vTR}, v{vLANE}, 3, 2')
    a(f'v_lshl_add_u32 v{vTR}, v{vTR}, 2, v{vTR+1}')
    a(f'v_lshrrev_b32 v{vTR+1}, 2, v{vLANE}')
    a(f'v_lshl_add_u32 v{vTR}, v{vTR+1}, 4, v{vTR}')
    a(f'v_lshl_add_u32 v{vTR}, v{vTR}, 3, s{sM0}')
    a(f's_and_b32 s{sT}, s{sW}, 1')
    a(f's_lshl_b32 s{sT}, s{sT}, 6')
    a(f'v_xor_b32 v{vTR}, s{sT}, v{vTR}')
    for c in (1,2,3): a(f'v_xor_b32 v{vTR+c}, {32*c}, v{vTR}')
    for wnd in (1,2):
        for c in range(4): a(f'v_add_u32 v{vTR+4*wnd+c}, {wnd*4*UN}, v{vTR+c}')
    a(f's_mul_i32 s{sT}, s{sW}, {448*1024}')
    a(f's_lshl_b32 s{sT+1}, s{sCB}, 7')
    a(f's_add_u32 s{sT}, s{sT}, s{sT+1}')
    a(f'v_lshrrev_b32 v{vD+1}, 3, v{vLANE}')
    a(f'v_lshl_add_u32 v{vD+1}, v{vD+1}, 10, s{sT}')
    a(f'v_and_b32 v{vD}, 7, v{vLANE}')
    a(f'v_lshlrev_b32 v{vD+2}, 1, v{vG}')
    a(f'v_xor_b32 v{vD}, v{vD}, v{vD+2}')
    a(f'v_lshl_add_u32 v{vD}, v{vD}, 4, v{vD+1}')
    for q in (1,2,3): a(f'v_add_u32 v{vD+q}, {q*7168}, v{vD}')
    a(f's_mov_b32 s{sMSK}, 0xffff0000')
    return r

def coef_ops():
    r = []; a = r.append
    T = vACC+16
    a(f's_lshr_b32 s{sT}, s{sR}, 1')
    a(f's_sub_u32 s{sT+1}, 32, s{sT}')
    a(f's_cmp_eq_u32 s{sT}, 0')
    a(f's_cselect_b32 s{sT+1}, 16, s{sT+1}')
    a(f's_bitcmp1_b32 s{sR}, 0')
    a(f's_cselect_b32 s{sP}, s{sT+1}, s{sT}')
    a(f's_sub_u32 s{sT+1}, 64, s{sP}')
    a(f's_cmp_eq_u32 s{sP}, 0')
    a(f's_cselect_b32 s{sT+1}, 32, s{sT+1}')
    a(f's_bitcmp1_b32 s{sW}, 1')
    a(f's_cselect_b32 s{sT+2}, s{sT+1}, s{sP}')
    a(f's_cselect_b32 s{sT+10}, -1.0, 1.0')
    a(f's_cmp_eq_u32 s{sP}, 0')
    a(f's_cselect_b32 s{sT+10}, 0, s{sT+10}')
    a(f's_cmp_eq_u32 s{sT+2}, 32')
    a(f's_cselect_b32 s{sT+9}, 0, 1.0')
    a(f's_cselect_b32 s{sT+11}, 1.0, 0')
    a(f's_cmp_ge_u32 s{sCB}, 4')
    a(f's_cselect_b32 s{sT+8}, 0, 0x80008000')
    a(f'v_lshl_add_u32 v7, v{vN}, 6, s{sT+2}')
    a(f'v_cvt_f32_u32 v5, v7')
    a(f'v_cvt_f32_u32 v4, v{vG}')
    a(f'v_mul_f32 v5, {f2u(1/2048):#x}, v5')
    a(f'v_cmp_eq_u32 vcc, 0, v{vG}')
    a(f's_lshl_b32 s{sT+1}, s{sCB}, 1')
    a(f's_and_b32 s{sT}, s{sW}, 1')
    a(f's_add_u32 s{sT+1}, s{sT+1}, s{sT}')
    a(f's_lshl_b32 s{sT+1}, s{sT+1}, 6')
    a(f'v_lshl_add_u32 v7, v7, 10, s{sT+1}')
    a(f'v_and_b32 v6, 1, v{vG}')
    a(f'v_lshl_add_u32 v7, v6, 5, v7')
    a(f'v_mul_u32_u24 v9, 0x8000, v6')
    a(f'v_lshl_or_b32 v9, v9, 16, v9')
    a(f'v_lshrrev_b32 v6, 1, v{vG}')
    a(f'v_lshl_add_u32 v{vOUT}, v6, 4, v7')
    a(f'v_mov_b32 v7, {f2u(16.0):#x}')
    for kp in range(4):
        for z in range(2):
            if z == 0: a(f'v_add_f32 v6, {f2u(4.0*kp):#x}, v4')
            else:
                a(f'v_sub_f32 v6, {f2u(32.0-4*kp):#x}, v4')
                if kp == 0: a(f'v_cndmask_b32 v6, v6, v7, vcc')
            a(f'v_mul_f32 v6, v6, v5')
            a(f'v_cos_f32 v{T}, v6')
            a(f'v_sin_f32 v{T+1}, v6')
            a(f'v_mul_f32 v{T+2}, s{sT+9}, v{T}')
            a(f'v_mul_f32 v{T+3}, s{sT+11}, v{T}')
            a(f'v_fmac_f32 v{T+3}, s{sT+10}, v{T+1}')
            a(f'v_mul_f32 v{T+4}, s{sT+9}, v{T+1}')
            a(f'v_mul_f32 v{T+5}, s{sT+11}, v{T+1}')
            a(f'v_fma_f32 v{T+5}, -v{T}, s{sT+10}, v{T+5}')
            a(f'v_cvt_pk_bf16_f32 v{T+2}, v{T+2}, v{T+3}')
            a(f'v_cvt_pk_bf16_f32 v{T+4}, v{T+4}, v{T+5}')
            a(f'v_accvgpr_write_b32 a{aCF+4*kp+2*z}, v{T+2}')
            a(f'v_xor_b32 v{T+4}, s{sT+8}, v{T+4}')
            a(f'v_xor_b32 v{T+2}, v9, v{T+2}')
            a(f'v_accvgpr_write_b32 a{aCF+4*kp+2*z+1}, v{T+4}')
            a(f'v_xor_b32 v{T+4}, v9, v{T+4}')
            a(f'v_accvgpr_write_b32 a{aCL+4*kp+2*z}, v{T+2}')
            a(f'v_accvgpr_write_b32 a{aCL+4*kp+2*z+1}, v{T+4}')
    return r

def scalar_late(a, dft):
    a(f's_lshr_b32 s{sT}, s2, 3')
    a(f's_xor_b32 s{sT}, s{sT}, s2')
    a(f's_bfe_u32 s{sT+1}, s{sT}, {4|(1<<16)}')
    a(f's_bfe_u32 s{sT}, s{sT}, {2|(1<<16)}')
    a(f's_lshl_b32 s{sT+1}, s{sT+1}, 1')
    a(f's_add_u32 s{sSET}, s{sT}, s{sT+1}')
    a(f's_lshl_b32 s{sT+2}, s{sSET}, 10')
    a(f's_lshl_b32 s{sT+1}, s{sW}, 1')
    a(f's_and_b32 s{sT+1}, s{sT+1}, 2')
    a(f's_xor_b32 s{sT+1}, s{sT+1}, s{sW}')
    a(f's_cmp_eq_u32 s{sI}, 0')
    a(f's_cselect_b32 s{sT}, s{sW}, s{sT+1}')
    a(f's_cmp_ge_u32 s{sJ}, 14')
    a(f's_cselect_b32 s{sT}, s{sT}, s{sW}')
    a(f's_lshl_b32 s{sXS}, s{sI}, 2')
    a(f's_add_u32 s{sXS}, s{sXS}, s{sT}')
    a(f's_lshl_b32 s{sXS}, s{sXS}, 12')
    a(f's_add_u32 s{sXS}, s{sXS}, s{sT+2}')
    a(f's_add_u32 s{sXS}, s{sXS}, {XS_OFF}')
    a(f's_lshl_b32 s{sCS}, s{sJ}, 14')
    a(f's_add_u32 s{sCS}, s{sCS}, s{sM0}')
    a(f's_add_u32 s{sCS}, s{sCS}, s{sT+2}')
    a(f's_add_u32 s{sCS}, s{sCS}, {CS_OFF}')
    a(f's_add_u32 s{sT}, s{sJ}, 16')
    a(f's_bitcmp1_b32 s{sW}, 0')
    a(f's_cselect_b32 s{sT}, s{sT}, s{sI}')
    a(f's_lshl_b32 s{sT}, s{sT}, 2')
    a(f's_add_u32 s{sT}, s{sT}, s{sSET}')
    a(f's_lshl_b32 s{sT}, s{sT}, 7')
    a(f's_add_u32 s{sT+8}, s{sT}, {FLS_OFF}')
    drot = C.drotd if dft else C.drot
    if drot == 0: a(f's_mov_b32 s{sPO}, 0')
    elif drot == 1:
        a(f's_and_b32 s{sPO}, s{sR}, 1'); a(f's_lshl_b32 s{sPO}, s{sPO}, 13')
    else:
        a(f's_and_b32 s{sPO}, s{sR}, {3 if drot == 2 else 7}')
        a(f's_mul_i32 s{sPO}, s{sPO}, 7')
        a(f's_add_u32 s{sPO}, s{sPO}, 2')
        a(f's_lshr_b32 s{sPO}, s{sPO}, {drot}')
        if C.xoff:
            a(f's_bfe_u32 s{sT}, s2, {1|(1<<16)}')
            a(f's_add_u32 s{sPO}, s{sPO}, s{sT}')
        a(f's_lshl_b32 s{sPO}, s{sPO}, 11')
    for k in range(1, 7):
        a(f's_add_u32 s{sPO+k}, s{sPO+k-1}, 2048')
        a(f's_cmp_eq_u32 s{sPO+k}, {7*2048}')
        a(f's_cselect_b32 s{sPO+k}, 0, s{sPO+k}')

LR = LST+8192
LC = LST+6144
def dft_R_addr():
    r = []; a = r.append; T = vCS
    a(f's_lshl_b32 s{sT}, s{sW}, 16')
    a(f'v_lshrrev_b32 v{T+1}, 3, v{vLANE}')
    a(f'v_lshl_add_u32 v{T+1}, v{T+1}, 13, s{sT}')
    a(f'v_lshlrev_b32 v{T}, 1, v{vG}')
    a(f'v_xor_b32 v{T}, v{T}, v{vLANE}')
    a(f'v_and_b32 v{T}, 7, v{T}')
    a(f'v_lshl_add_u32 v{T}, v{T}, 4, v{T+1}')
    a(f'v_xor_b32 v{T+1}, 16, v{T}')
    a(f'v_add_u32 v{T+1}, 1024, v{T+1}')
    a(f's_lshr_b32 s{sT+9}, s{sM0}, 1')
    a(f'v_lshrrev_b32 v{T+3}, 1, v{vN}')
    a(f'v_and_b32 v{T+4}, 1, v{vN}')
    a(f'v_and_or_b32 v{T+2}, v{T+3}, 6, v{T+4}')
    a(f'v_xor_b32 v{T+2}, v{T+2}, v{vG}')
    a(f'v_lshl_add_u32 v{T+3}, v{T+4}, 3, v{T+3}')
    a(f'v_lshl_add_u32 v{T+2}, v{T+3}, 3, v{T+2}')
    a(f'v_cmp_eq_u32 vcc, 1, v{vN}')
    a(f'v_lshlrev_b32 v{T+2}, 4, v{T+2}')
    a(f'v_add_u32 v{T+2}, {LR}, v{T+2}')
    a(f'v_mov_b32 v{T+6}, {LC}')
    a(f'v_xor_b32 v{T+3}, 64, v{T+2}')
    a(f'v_cndmask_b32 v{T+4}, v{T+2}, v{T+6}, vcc')
    a(f'v_cndmask_b32 v{T+5}, v{T+3}, v{T+6}, vcc')
    for d in range(4): a(f'v_mov_b32 v{112+d}, 0xbf803f80')
    return r
def dft_R_loads():
    return [(('R',0), [f's_add_u32 m0, s{sT+9}, {LR}'], f'buffer_load_dwordx4 v{vCS}, {S(sG)}, 0 offen lds'),
            (('R',0), [], f'buffer_load_dwordx4 v{vCS+1}, {S(sU)}, 0 offen offset:1024 lds')]
def dft_R_reads():
    return [f'ds_read_b128 {ar(aR+8*jb+4*sub,4)}, v{vCS+(2 if jb else 4)+sub} offset:{2048*jb}' for jb in range(4) for sub in range(2)]

def stats_reads(n):
    return [f'ds_read_b128 {ar(aSX+4*o,4)}, v{vOA+(n&1)} offset:{(n>>1)*UN+o*2048}' for o in range(2)]
def stats_mfma(dft, n):
    r = []
    def mf(c, x, y): r.append(f'{MF} {vr(c,4)}, {x}, {y}, {vr(c,4) if n else 0}')
    for o in range(2):
        mf(vSXo+4*o, ar(aONE,4), ar(aSX+4*o,4))
        mf(vSQo+4*o, ar(aSX+4*o,4), ar(aSX+4*o,4))
    if not dft:
        for wf in range(4): mf(vCS+4*wf, ar(aONE,4), vr(fW(n&1,wf),4))
    return r
def stats_pack_ops(dft):
    r = []; a = r.append
    a(f'v_lshlrev_b32 v4, 4, v{vN}')
    a(f'v_mov_b32 v10, {OOB}')
    a(f'v_mov_b32 v{vSXo+2}, v{vSXo+4}')
    a(f'v_cndmask_b32 v4, v10, v4, s[{sMV}:{sMV+1}]')
    for o in range(2):
        sq = vSQo+4*o
        a(f'v_cndmask_b32 v{sq}, v{sq}, v{sq+1}, s[{sM1}:{sM1+1}]')
        a(f'v_cndmask_b32 v{sq}, v{sq}, v{sq+2}, s[{sM2}:{sM2+1}]')
        a(f'v_cndmask_b32 v{vSXo+1+2*o}, v{sq}, v{sq+3}, s[{sM3}:{sM3+1}]')
    if not dft:
        a(f'v_lshlrev_b32 v5, 2, v{vLANE}')
        for g, m in ((1,sM1),(2,sM2),(3,sM3)): a(f'v_cmp_eq_u32 s[{m}:{m+1}], {g}, v{vG}')
        for g, m in ((1,sM1),(2,sM2),(3,sM3)): a(f'v_cndmask_b32 v{vCS}, v{vCS}, v{vCS+4*g}, s[{m}:{m+1}]')
    a(f's_add_u32 s{sT+6}, s{sXS}, s{sL}')
    a(f's_add_u32 s{sT+7}, s{sCS}, s{sL}')
    a(f'v_lshlrev_b32 v15, 4, v{vLANE}')
    return r
def stats_reduce_ops(dft):
    r = []; a = r.append
    a(f's_lshl_b32 s{sT}, s{sW}, {7 if dft else 9}')
    a(f's_add_u32 s{sT}, s{sT}, {LST}')
    a(f'v_permlane32_swap_b32 v96, v98')
    a(f'v_permlane32_swap_b32 v97, v99')
    if not dft:
        a(f'v_permlane32_swap_b32 v112, v114')
        a(f'v_permlane32_swap_b32 v113, v115')
    a(f'v_add_f32 v100, v96, v98')
    a(f'v_add_f32 v101, v97, v99')
    a(f'v_add_f32 v96, v96, v98')
    a(f'v_add_f32 v97, v97, v99')
    if not dft:
        a(f'v_add_f32 v112, v112, v114')
        a(f'v_add_f32 v113, v113, v115')
    a(f'v_lshrrev_b32 v14, 1, v{vG}')
    a(f'v_lshl_add_u32 v14, v14, 4, v{vN}')
    a(f'v_permlane16_swap_b32 v96, v100')
    a(f'v_permlane16_swap_b32 v97, v101')
    if not dft: a(f'v_permlane16_swap_b32 v112, v113')
    a(f'v_lshl_add_u32 v14, v14, {2 if dft else 4}, s{sT}')
    a(f'v_add_f32 v96, v96, v100')
    a(f'v_add_f32 v97, v97, v101')
    if not dft:
        a(f'v_add_f32 v98, v112, v113')
        a(f's_lshl_b32 s{sT}, s{sW}, 8')
        a(f's_add_u32 s{sT}, s{sT}, {LST+4096}')
        a(f'v_lshl_add_u32 v8, v{vN}, 2, v{vG}')
        a(f'v_lshl_add_u32 v8, v8, 2, s{sT}')
        a(f'v_lshl_add_u32 v9, v{vG}, 4, s{sT}')
    a(f'v_mul_f32 v4, {f2u(-1/512):#x}, v96')
    a(f'v_mul_f32 v97, {f2u(1/512):#x}, v97')
    a(f'v_fma_f32 v97, -v4, v4, v97')
    a(f'v_max_f32 v97, 0, v97')
    a(f'v_add_f32 v97, {f2u(1e-5):#x}, v97')
    a(f'v_rsq_f32 v7, v97')
    if dft: a(f'v_lshlrev_b32 v15, 4, v{vG}')
    else:
        a(f'v_sqrt_f32 v5, v97')
        a(f'v_mul_f32 v6, {f2u(-LOG2E):#x}, v7')
        if C.ftz:
            a(f's_mov_b32 s{sM1}, {f2u(128.0-C.ftz):#x}')
            a(f'v_mul_f32 v7, {f2u(2.0**(C.ftz-128)):#x}, v5')
        a(f'v_lshlrev_b32 v15, 4, v{vN}')
    w = []
    if dft: w += [f'ds_write_b32 v14, v7', f'ds_write_b128 v{vCS+6}, v[112:115]']
    else:
        w.append(f'ds_write_b32 v8, v98')
        w.append(f'ds_write_b128 v14, v[4:7]')
        w += [f'ds_read_b128 {vr(vCS+4*wf,4)}, v9 offset:{64*wf}' for wf in range(4)]
    return r, w
TFO = [0, 2, 4, 6, 1, 3, 5, 7]
def rec(k): return vWF+4*k
def rec_read(k, dft): return f'ds_read_b128 {vr(rec(k),4)}, v15 offset:{LST+(64*k if dft else 256*TFO[k])}'
def epi_addr_ops(dft):
    r = []; a = r.append
    if dft:
        a(f's_lshl_b32 s{sT+2}, s{sI}, 12')
        a(f's_lshl_b32 s{sT+1}, s{sJ}, 11')
        a(f's_add_u32 s{sT+2}, s{sT+2}, s{sT+1}')
        a(f's_lshl_b32 s{sT+1}, s{sW}, 9')
        a(f's_add_u32 s{sT+2}, s{sT+2}, s{sT+1}')
        a(f'v_mul_u32_u24 v16, {2*GP}, v{vG}')
        a(f'v_lshl_add_u32 v17, v{vN}, 4, s{sT+2}')
        a(f'v_add_u32 v16, v16, v17')
        a(f's_lshr_b32 s{sT+12}, s{sI}, 2')
        a(f's_lshl_b32 s{sT+12}, s{sT+12}, 7')
        a(f's_add_u32 s{sT+12}, s{sT+12}, s{sM0}')
        a(f's_add_u32 s{sT+12}, s{sT+12}, {FLG_OFF}')
    else:
        a(f's_mul_i32 s{sT+2}, s{sI}, {8*HP}')
        a(f's_lshl_b32 s{sT+1}, s{sJ}, 2')
        a(f's_add_u32 s{sT+1}, s{sT+1}, s{sW}')
        a(f's_mul_i32 s{sT+12}, s{sT+1}, 4682')
        a(f's_lshl_b32 s{sT+1}, s{sT+1}, 10')
        a(f's_add_u32 s{sT+4}, s{sT+2}, s{sT+1}')
        a(f'v_lshlrev_b32 v16, 4, v{vLANE}')
        a(f's_lshr_b32 s{sT+12}, s{sT+12}, 16')
        a(f's_lshl_b32 s{sT+1}, s{sI}, 2')
        a(f's_add_u32 s{sT+12}, s{sT+12}, s{sT+1}')
        a(f's_lshl_b32 s{sT+12}, s{sT+12}, 8')
        a(f's_add_u32 s{sT+11}, s{sT+12}, {FL_OFF}')
        a(f's_add_u32 s{sT+12}, s{sT+12}, {FL_OFF+128}')
    return r

def spin(a, tag, load, test, cnt, sleep=2, first=True):
    if first:
        a.wait(lgkm=0)
        for t in test: a(t)
        a(f's_cbranch_scc1 L{tag}_ok')
    a(f's_mov_b32 s{cnt}, 0')
    a.label(f'L{tag}_spin')
    for t in load + [f's_add_u32 s{cnt}, s{cnt}, 1', 's_waitcnt lgkmcnt(0)'] + test + [f's_cbranch_scc1 L{tag}_ok'] + ([f's_sleep {sleep}'] if sleep else []) + [f's_cmp_lt_u32 s{cnt}, 0x100000', f's_cbranch_scc1 L{tag}_spin']:
        a.raw('    '+t)
    a.label(f'L{tag}_ok')
    if not first: a.lgkm = []; a.smem_out = []

def phaseA(a, dft, q, z):
    tag = 'd' if dft else 'g'
    full = master_list(dft)
    master = full[4:]
    cnt = {}; c = 0
    for t in full: c += 4; cnt[t] = c
    def lastneed(n):
        return [t for t in full if (t[0] == 'W' and t[1] <= n+1) or (t[0] == 'X' and 2*t[1] <= n+1)][-1]
    def enqueue(nb):
        while master:
            t = master[0]
            if t[0] == 'W' and t[1]-((8 if t[1] < 12 else 4) if dft else 6) > nb: break
            if t[0] == 'X' and t[1] >= 4 and t[1]-4 > (nb >> 1)-1: break
            q.pend += items(master.pop(0), dft)
    def front(its):
        k = 1 if q.predone else 0
        q.pend[k:k] = its; q.limit += len(its)
        for t in cnt: cnt[t] += len(its)
    def setlimit(n):
        q.limit = cnt[lastneed(n)] + (C.dcap if dft else C.cap) if n < C.capn else 10**9
    enqueue(-1)
    a.wait(lgkm=0)
    q.need(('W',0))
    a('s_barrier')
    stamp(a)
    setlimit(0)
    wr = w_reads(0, dft)
    a(wr[0]); a(wr[1]); a(x_read(0))
    for t in wr[2:]: a(t)
    a(x_read(1)); a(x_read(2))
    for t in stats_reads(0): a(t)
    fq = []
    red, redw = stats_reduce_ops(dft)
    spoll = f's_load_dword s{sFV}, s[78:79], s{sT+8} glc'
    dbgld = f's_load_dword s{sFV}, s[76:77], 0'
    rd0 = 12 if dft else C.rd0
    for n in range(16):
        s, p = n >> 1, n & 1
        wr = w_reads(n+1, dft) if n < 15 else []
        wfree = dft and (n+1) & 2
        bar_tf = C.bar if n < 15 else None
        if n == (0 if dft else 6): late = late_setup_ops() + (dft_R_addr() if dft else [])
        else: late = []
        if n == C.spoll: fq.insert(0, spoll)
        if n == 3: fq.insert(0, dbgld)
        if n == 11: fq += red
        if n == 14: fq += epi_addr_ops(dft)
        for tf in range(8):
            k = 8*n+tf; q.pos = k
            can_w = wfree or bar_tf is None or tf > bar_tf
            dpos = [[pp for t,pp in q.log if t == ('D',u)] for u in range(14)]
            dmax = min(rd0, len([1 for u,d in enumerate(dpos) if len(d) == 4 and d[3]+(C.ddlag if dft and u < 2 else C.dlag) <= k]))
            rate = 8 if n < 5 else C.rate
            if q.ready() and q.pend[0][0][0] == 'D' and q.pend[-1][0][0] == 'D':
                u = q.pend[0][0][1]
                rate = (C.ddrate if u < 4 else 8) if dft else (C.drate if u >= C.dslow else 4)
            slot = (tf*rate) % 8 < rate
            def other(cnt_):
                for _ in range(cnt_):
                    if can_w and wr: a(wr.pop(0))
                    elif dft and q.read1(dmax): pass
                    elif fq: a(fq.pop(0))
                    elif q.read1(dmax): pass
            def flush():
                while fq: a(fq.pop(0))
            if n == 4 and tf == 0:
                flush()
                its = [(('S',0), [], f'buffer_store_dwordx4 {vr(vSXo,4)}, v4, {S(sWS)}, s{sT+6} offen sc1')]
                if not dft: its.append((('S',0), [], f'buffer_store_dword v{vCS}, v5, {S(sWS)}, s{sT+7} offen sc1'))
                front(its)
            if tf == 0: fq += late
            for wf in range(4):
                w2 = 3-wf if (C.snake and tf & 1) else wf
                c = vr(acc(tf,w2),4); wfr = vr(fW(p,w2),4); xf = vr(fX(k),4)
                src = f'{xf}, {wfr}' if dft else f'{wfr}, {xf}'
                a(f'{MF} {c}, {src}, {c if n else 0}')
                if wf == 0:
                    if k+3 < 128: a(x_read(k+3)); other(1)
                    else: other(2)
                elif wf == 1:
                    if slot and q.haspre(): q.pre()
                    else: other(2)
                elif wf == 2:
                    if slot and q.ready() and not q.haspre(): q.issue(1)
                    else: other(2)
                elif tf != bar_tf: other(1)
                else:
                    q.limit = 10**9
                    while q.has(lastneed(n)): q.issue(1)
                    if n in (0, 1, 5, 9) or (n == 12 and dft): flush()
                    if n < 4:
                        for t in stats_mfma(dft, n): a(t)
                    if n == 0: scalar_late(a, dft)
                    if n == 1 and C.pads: a.raw(f';WARM {tag}')
                    q.need(lastneed(n))
                    if n == 5:
                        q.need(('S',0))
                        spin(a, tag+'i', [f'global_load_dword v{vDBG}, v11, s[76:77] sc1', 's_waitcnt vmcnt(0)', f'v_readfirstlane_b32 s{sFV}, v{vDBG}', 's_nop 3'], [f's_cmp_lg_u32 s{sFV}, 0'], sT+14)
                    if n == 9: spin(a, tag+'s', [spoll], [f's_cmp_eq_u32 s{sFV}, 8'], sT+14)
                    a('s_barrier')
                    if n == 0:
                        assert z not in a.vm
                        a(f's_or_b32 s{sT}, s2, s{sW}')
                        a(f's_cbranch_scc1 L{tag}_noinit')
                        a(f's_atomic_add s{sONE}, s[76:77], 0')
                        a.label(f'L{tag}_noinit')
                    if n == 2: a.smem_out = []
                    if n == 5: a(f's_atomic_add s{sONE}, s[78:79], s{sT+8}')
                    if n == 7: a.smem_out = []
                    if n in (1,3,7,11,13): stamp(a)
                    enqueue(n); setlimit(n+1)
                    if n < 3: wr += stats_reads(n+1)
                    if n == 3: fq += stats_pack_ops(dft)
                    if n == 9:
                        g = [(('A',0), [], f'buffer_load_dwordx4 {vr(96,4)}, v15, {S(sWS)}, s{sXS} offen sc1')]
                        if not dft: g += [(('A',0), [], f'buffer_load_dwordx4 {vr(112,4)}, v15, {S(sWS)}, s{sCS} offen sc1')]
                        front(g)
                    if n == 0 and dft and C.dearly:
                        its = q.plan.dma(0) + q.plan.dma(1); q.nD = 2
                        its += [(('T',0), [], f'buffer_load_dword v14, v{vCS}, {S(sG)}, 0 offen'), (('T',0), [], f'buffer_load_dword v14, v{vCS+1}, {S(sU)}, 0 offen offset:1024')]
                        tg = [('X',2), ('W',4), ('W',5)][C.dearly-1]
                        k0 = max(i for i,t in enumerate(q.pend) if t[0] == tg)+1
                        q.pend[k0:k0] = its
                        for t in cnt:
                            if cnt[t] > cnt[tg]: cnt[t] += len(its)
                    if n == 12 and dft: q.pend += dft_R_loads()
                    for nn, up in q.plan.avail.items():
                        if nn <= n: q.addD(up)
                    if n >= 10: assert not master
                    if n == 13: fq += redw
            if n == 10 and tf == 0: assert not q.has(('A',0))
            if n == 13 and tf == 7: assert not q.has(('X',7))
            if n == 15 and tf == 5:
                flush()
                if dft: q.need(('R',0))
                a.wait(lgkm=0)
                a('s_barrier')
                fq += [rec_read(t4, dft) for t4 in range(4)]
                if dft: fq += dft_R_reads()
                q.addD(14)
        assert not wr, (n, wr)
    for t4 in range(4, 8): fq.append(rec_read(t4, dft))
    while fq: a(fq.pop(0))
    q.pos = 128
    if C.log: print(tag, ' '.join(f'{t[0]}{t[1]}@{p//8}.{p%8}' for t,p in q.log), 'reads left', len(q.rq), 'dma left', q.left(), file=sys.stderr)
    if not dft:
        q.readD(C.rd0)
        while q.left() > C.dleft: q.issue(1)

def glu_epilogue(a, q):
    sts = []
    for k, tf in enumerate(TFO):
        R = rec(k); G = acc(tf,0); U = acc(tf,2); hb = vSXo+4*(k&1)
        ms = vr(R,2); ar_ = vr(R+2,2)
        for r in range(0,8,2): a(f'v_pk_fma_f32 {vr(G+r,2)}, {vr(vCS+r,2)}, {ms}, {vr(G+r,2)} op_sel_hi:[1,0,1]')
        for r in range(0,8,2):
            if C.ftz: a(f'v_pk_fma_f32 {vr(G+r,2)}, {vr(G+r,2)}, {ar_}, s[{sM1}:{sM1+1}] op_sel_hi:[1,0,0]')
            else: a(f'v_pk_mul_f32 {vr(G+r,2)}, {vr(G+r,2)}, {ar_} op_sel_hi:[1,0]')
        for r in range(8):
            a(f'v_exp_f32 v{G+r}, v{G+r}')
            if tf == 0 and r == 5: a.wait(lgkm=0)
        for r in range(0,8,2): a(f'v_pk_fma_f32 {vr(U+r,2)}, {vr(vCS+8+r,2)}, {ms}, {vr(U+r,2)} op_sel_hi:[1,0,1]')
        for r in range(0,8,2): a(f'v_pk_fma_f32 {vr(G+r,2)}, {vr(G+r,2)}, {ar_ if C.ftz else ms}, {ms} op_sel:[0,1,1] op_sel_hi:[1,1,1]')
        q.issue(C.epi_dma)
        for r in range(8): a(f'v_rcp_f32 v{G+r}, v{G+r}')
        if k: a(f's_add_u32 s{sT+4}, s{sT+4}, {2*HP}' if k != 4 else f's_sub_u32 s{sT+4}, s{sT+4}, {5*HP}')
        for r in range(0,8,2): a(f'v_pk_mul_f32 {vr(U+r,2)}, {vr(U+r,2)}, {vr(G+r,2)}')
        for d in range(4): a(f'v_cvt_pk_bf16_f32 v{hb+d}, v{U+2*d}, v{U+2*d+1}')
        sts.append(a(f'buffer_store_dwordx4 {vr(hb,4)}, v16, {S(sWS)}, s{sT+4} offen sc1'))
    a.wait_vm_for(sts[3])
    a(f's_atomic_add s{sONE}, s[78:79], s{sT+11}')
    return sts[7]

def dft_epilogue(a, q):
    Z = lambda z, sub, m: 96+16*z+8*sub+4*m
    D2 = lambda jb,z,wf: vACC+32*jb+16*z+4*wf
    nst = [0]
    def stores(jb, fb):
        out = []
        for rp in range(2):
            t = 48+4*(nst[0] & 3); nst[0] += 1
            for z in range(2):
                for m in range(2): out.append(f'v_cvt_pk_bf16_f32 v{t+2*z+m}, v{D2(jb,z,2*m+fb)+2*rp}, v{D2(jb,z,2*m+fb)+2*rp+1}')
            out.append(f's_mov_b32 s{sT+2}, {G_OFF-14*2048+(8*jb+rp)*GP}')
            out.append(f'buffer_store_dwordx4 {vr(t,4)}, v16, {S(sWS)}, s{sT+2} offen offset:{256*fb} sc1')
        return out
    pend = []
    for fb in range(2):
        for z in range(2):
            for sub in range(2):
                for m in range(2):
                    for qq in range(2):
                        tf = 4*z+2*qq+sub; A = acc(tf, 2*m+fb)
                        for r in (0,2): a(f'v_pk_mul_f32 {vr(A+r,2)}, {vr(A+r,2)}, {vr(rec(tf)+r,2)}')
                for m in range(2):
                    for r in range(4): a(f'v_cvt_pk_bf16_f32 v{Z(z,sub,m)+r}, v{acc(4*z+sub,2*m+fb)+r}, v{acc(4*z+2+sub,2*m+fb)+r}')
                if fb == 0 and z == 0 and sub == 0: a.wait(lgkm=0); a('s_nop 0')
                for t in pend[:6]: a(t)
                pend = pend[6:]
                q.issue(C.epi_dma)
        for jb in range(4):
            n = 0
            for sub in range(2):
                for z in range(2):
                    for m in range(2):
                        c = vr(D2(jb,z,2*m+fb),4)
                        a(f'{MF} {c}, {ar(aR+8*jb+4*sub,4)}, {vr(Z(z,sub,m),4)}, {c if sub else 0}')
                        n += 1
                        if n >= 3:
                            for t in pend[:2]: a(t)
                            pend = pend[2:]
            assert not pend
            pend = stores(jb, fb)
    for t in pend: last = a(t)
    return last

vHA, vGA, vHS, vPW, vXS, vH, NH, vAC = 14, 26, 30, 15, 64, 128, 16, 192
PR = {1: 18, 2: 20, 3: 21}
sMB = sOWN
LPX = 4*UN
SEQ = [(sl, ks) for sl in range(4) for ks in range(14)]
def hload(a, n):
    sl, ks = SEQ[n]
    return a(f'buffer_load_dwordx4 {vr(vH+4*(n%NH),4)}, v{vHS+sl}, {S(sWS)}, s{sPO+(ks>>1)} offen offset:{(ks&1)*1024} sc1')
def hpoll(r): return [f's_mov_b32 s{sFV}, 0', f's_atomic_add s{sFV}, s[78:79], s{r} glc']
def presync(a, dft, q, last):
    tag = 'd' if dft else 'g'
    lazy(a, 0)
    q.issue(C.pre)
    a(f's_mov_b32 s{sMB}, {1<<20}')
    a(f's_lshr_b32 s{sT}, s{sR}, 1')
    a(f's_lshl_b32 s{sT}, s{sT}, 2')
    a(f's_add_u32 s{sT}, s{sT}, s{sW}')
    a(f's_lshl_b32 s{sT}, s{sT}, 8')
    a(f's_add_u32 s{sT+15}, s{sT}, {FL_OFF}')
    a(f's_add_u32 s{sT+13}, s{sT}, {FL_OFF+128}')
    q.readD(C.rd1 if not dft else C.drd1)
    a(f'v_lshlrev_b32 v{vHA}, 4, v{vLANE}')
    a(f's_mul_i32 s{sT+2}, s{sR}, {4*HP}')
    a(f's_mul_i32 s{sT+1}, s{sW}, {14*1024}')
    a(f's_add_u32 s{sT+2}, s{sT+2}, s{sT+1}')
    a(f's_and_b32 s{sT}, s{sW}, 2')
    a(f's_mul_i32 s{sT+1}, s{sT}, {HP}')
    a(f's_add_u32 s{sT+1}, s{sT+1}, s{sT+2}')
    a(f'v_add_u32 v{vHS+1}, s{sT+1}, v{vHA}')
    a(f's_xor_b32 s{sT}, s{sT}, 2')
    a(f's_mul_i32 s{sT+1}, s{sT}, {HP}')
    a(f's_add_u32 s{sT+1}, s{sT+1}, s{sT+2}')
    a(f'v_add_u32 v{vHS}, s{sT+1}, v{vHA}')
    a(f'v_add_u32 v{vHS+2}, {HP}, v{vHS}')
    a(f'v_add_u32 v{vHS+3}, {HP}, v{vHS+1}')
    a.wait(lgkm=0 if dft else 1, smem=False)
    lazy(a, 1)
    if dft:
        for t in hpoll(sT+15): a(t)
    a(f's_lshl_b32 s{sKX}, s{sR}, 2')
    a(f's_add_u32 s{sKX}, s{sKX}, s{sW}')
    a(f's_lshl_b32 s{sKX}, s{sKX}, 7')
    a(f's_add_u32 s{sKX}, s{sKX}, {FLG_OFF}')
    if dft:
        a(f's_add_u32 s{sM1}, s78, s{sT+12}')
        a(f's_addc_u32 s{sM1+1}, s79, 0')
    a(f'v_add_u32 v{vHA}, {LPX}, v{vHA}')
    a(f'v_add_u32 v{vPW}, s{sM0}, v{vHA}')
    for k in (1,2,3): a(f'v_xor_b32 v{PR[k]}, {k*4096}, v{vPW}')
    if C.gnew:
        a(f's_lshl_b32 s{sT+1}, s{sCB}, 6')
        a(f's_sub_u32 s{sT+2}, s{sT+1}, 256')
        a(f's_sub_u32 s{sT+1}, 193, s{sT+1}')
        a(f's_cmp_ge_u32 s{sCB}, 4')
        a(f's_cselect_b32 s{sT+1}, s{sT+2}, s{sT+1}')
        a(f's_cselect_b32 s{sT+3}, 0, 63')
        a(f'v_add_u32 v5, s{sT+1}, v{vLANE}')
        a(f's_mul_i32 s{sT}, s{sP}, {GP}')
        a(f's_lshl_b32 s{sT+1}, s{sW}, 14')
        a(f's_add_u32 s{sT}, s{sT}, s{sT+1}')
        a(f's_add_u32 s{sT}, s{sT}, {G_OFF}')
        a(f'v_cmp_gt_u32 vcc, 0x100, v5')
        a(f'v_lshl_add_u32 v5, v5, 4, s{sT}')
        a(f's_and_b32 s{sT}, s{sW}, 1')
        a(f's_lshl_b32 s{sT}, s{sT}, 5')
        a(f'v_cndmask_b32 v{vGA}, v10, v5, vcc')
        a(f's_xor_b32 s{sT}, s{sT}, s{sT+3}')
        a(f'v_xor_b32 v4, s{sT}, v{vN}')
        for k in (1,2,3): a(f'v_add_u32 v{vGA+k}, {3072*k}, v{vGA}')
        a(f'v_lshl_add_u32 v4, v{vG}, 6, v4')
        a(f'v_lshlrev_b32 v4, 4, v4')
        a(f'v_add_u32 v{vHA}, {LPX}, v4')
        a(f'v_xor_b32 v19, 0x100, v{vHA}')
    else:
        a(f's_and_b32 s{sT}, s{sW}, 1')
        a(f's_lshl_b32 s{sT}, s{sT}, 11')
        a(f'v_add_u32 v{vHA}, s{sT}, v{vHA}')
        a(f's_mul_i32 s{sT}, s{sP}, {GP}')
        a(f's_lshl_b32 s{sT+1}, s{sW}, 14')
        a(f's_add_u32 s{sT}, s{sT}, s{sT+1}')
        a(f's_add_u32 s{sT}, s{sT}, {G_OFF}')
        a(f'v_lshl_add_u32 v4, v{vG}, 12, s{sT}')
        a(f's_lshl_b32 s{sT+1}, s{sCB}, 6')
        for cbk in range(4):
            a(f'v_add_u32 v5, s{sT+1}, v{vN}')
            a(f'v_add_u32 v5, {16*cbk-256}, v5')
            a(f'v_sub_u32 v6, 0, v5')
            a(f'v_max_i32 v5, v5, v6')
            a(f'v_cmp_gt_u32 vcc, 0x100, v5')
            a(f'v_lshl_add_u32 v5, v5, 4, v4')
            a(f'v_subrev_u32 v4, 0x400, v4')
            a(f'v_cndmask_b32 v{vGA+cbk}, v10, v5, vcc')
    if not dft:
        a.wait_vm_for(last)
        a(f's_atomic_add s{sONE}, s[78:79], s{sT+12}')
        for t in hpoll(sT+15): a(t)
    lazy(a, 2)
    q.issue(99)
    assert not q.left()
    a(f'buffer_load_dwordx4 {vr(48,4)}, v{vOUT}, {S(sX)}, 0 offen')
    a(f'buffer_load_dwordx4 {vr(52,4)}, v{vOUT}, {S(sX)}, s{sMB} offen')
    lazy(a, 3)
    a(f's_cmp_eq_u32 s{sFV}, 14')
    a(f's_cbranch_scc1 L{tag}h_ok')
    keep = list(a.smem_out)
    spin(a, tag+'h', hpoll(sT+15), [f's_cmp_eq_u32 s{sFV}, 14'], sT+14, sleep=0, first=False)
    a.smem_out = keep
    lazy(a, 4)
    for n in range(C.look0): hload(a, n)
    a(f's_add_u32 m0, s{sM0}, {LPX+3*UN}')
    q.readD(14)
    for pr in range(2):
        for d in range(2): a(f'v_permlane16_swap_b32 v{48+4*pr+d}, v{48+4*pr+2+d}')
    for k in range(8):
        a(f'v_lshlrev_b32 v{vXS+2*k}, 16, v{48+k}')
        a(f'v_and_b32 v{vXS+2*k+1}, s{sMSK}, v{48+k}')
    a.wait(vm=C.look0)
    if dft:
        assert last not in a.vm
        a.wait(lgkm=0)
        a('s_barrier')
        for k in range(8): a(f's_atomic_add s{sONE}, s[{sM1}:{sM1+1}], {512*k}')

def phaseB(a):
    gpoll = [f's_load_dword s{sFV}, s[78:79], s{sKX} glc']
    AC = lambda sl,c: vAC+16*sl+4*c
    GF = lambda kp,c: 80+8*kp+4*c
    EP = [112, 120, 48]; LP = [80, 88, 96]; OB = 56
    osc = ("","sc1","nt","sc0 sc1")[C.outsc]
    gl = [f'buffer_load_dwordx4 v{vGA+cbk}, {S(sWS)}, 0 offen offset:{1024*cbk} sc1 lds' for cbk in range(4)]
    def preads(P, half, srcs):
        off = {2: half*UN, 3: half*UN+2048, 1: 2*UN+2048*half}
        return [f'ds_read_b128 {vr(P[{2:0,3:1,1:2}[k]]+4*c,4)}, v{PR[k]} offset:{off[k]+1024*c}' for k in srcs for c in range(2)]
    def adds(d, s_): return [f'v_add_f32 v{d+k}, v{d+k}, v{s_+k}' for k in range(8)]
    def pack(src, ob, so):
        return ([f'v_cvt_pk_bf16_f32 v{ob+k}, v{src+2*k}, v{src+2*k+1}' for k in range(4)] + [f'v_permlane16_swap_b32 v{ob+d}, v{ob+2+d}' for d in range(2)]
                + [f'buffer_store_dwordx4 {vr(ob,4)}, v{vOUT}, {S(sOUT)}, {so} offen {osc}'])
    nl = C.look0
    fillers = []; gm = []; wq = []; after_g = []
    def fill(k):
        for _ in range(k):
            if fillers: a(fillers.pop(0))
    def mf(n, c):
        sl, ks = SEQ[n]
        d = vr(AC(sl,c),4); ci = d
        if ks == 0 and not (sl == 3 and c < 2): ci = vr(vXS+4*c,4) if (sl == 1 and c < 2) else 0
        a(f'{MF} {d}, {ar(16*ks+4*c,4)}, {vr(vH+4*(n%NH),4)}, {ci}')
    lc = 28-C.look-1
    assert C.gb+6 <= 42 and C.lp+6 <= lc < C.gp and C.gb >= 31
    nend = 56-C.defer
    for n in range(nend):
        sl, ks = SEQ[n]
        for j in range(4):
            mf(n, j)
            if j == 0:
                if nl < 56: hload(a, nl); nl += 1
                else: fill(2)
            elif j == 1 and n == C.lp:
                a.wait(lgkm=0)
                for t in hpoll(sT+13): a(t)
            elif j == 1 and n == lc:
                assert nl <= 28
                spin(a, 'l', hpoll(sT+13), [f's_cmp_eq_u32 s{sFV}, 14'], sT+14, sleep=0)
            elif j == 1 and n == C.gp:
                for t in gpoll: a(t)
            elif j == 1 and n == C.gc:
                spin(a, 'g', gpoll, [f's_cmp_eq_u32 s{sFV}, 8'], sT+14, sleep=C.gsl)
            elif j == 1 and n == C.gb:
                assert not wq
                a.wait_vm_for(gdone); a.wait(lgkm=0); a('s_barrier')
                fillers = [f'ds_read_b128 {vr(GF(kp,c),4)}, v{(19 if c else vHA) if C.gnew else vHA} offset:{3*UN+4096*kp+(0 if C.gnew else 1024*c)}' for kp in range(4) for c in range(2)]
                fillers += preads(EP, 0, (2,3,1)) + adds(EP[0], EP[1]) + adds(EP[0], EP[2])
                for kp in range(4):
                    for (sl2, c) in ((1,0),(3,0),(3,1),(1,1)):
                        d = vr(AC(sl2,c),4)
                        gm.append(f'{MF} {d}, {vr(GF(kp,c),4)}, {ar((aCF if sl2 == 1 else aCL)+4*kp,4)}, {vr(vXS+8+4*c,4) if (sl2 == 3 and kp == 0) else d}')
                after_g = adds(EP[0], AC(1,0)) + pack(EP[0], OB, 0)
            elif j == 1 and sl and 1 <= ks and wq: a(wq.pop(0))
            elif j == 1 and sl == 3 and ks == C.xb:
                assert not wq and not gm
                a.wait(lgkm=0); a('s_barrier')
                fillers = preads(LP, 1, (2,3)) + fillers + adds(LP[0], LP[1])
            elif j == 2 and C.gc <= n < C.gc+4: gdone = a(gl[n-C.gc])
            elif j == 2 and nl < 56 and nl-n-1 < C.look:
                hload(a, nl); nl += 1
            else: fill(1 if j == 3 else 2)
        if gm and n >= C.gb+2:
            for t in gm[:4]: a(t); fill(2)
            gm = gm[4:]
        elif after_g and not gm: fillers += after_g; after_g = []
        if ks == 13 and sl < 3:
            assert not wq
            if sl == 1: wq = [f'ds_write_b128 v{vPW}, {vr(AC(1,2+c),4)} offset:{2*UN+1024*c}' for c in range(2)]
            else: wq = [f'ds_write_b128 v{vPW}, {vr(AC(sl,c),4)} offset:{(sl>>1)*UN+1024*c}' for c in range(4)]
        if n == 0: lazy_flush(a, 5); stamp(a, 3)
        if n in (7,14,21,28,35,42,49): stamp(a, 2)
    assert nl == 56
    for n in range(nend, 56):
        for c in (2, 3): mf(n, c); fill(2)
    fill(99)
    own = [(n, c) for n in range(nend, 56) for c in (0, 1)]
    k0 = min(3, len(own))
    for n, c in own[:k0]: mf(n, c)
    own = own[k0:]
    for c in range(2):
        a(f'ds_write_b128 v{vPW}, {vr(AC(3,2+c),4)} offset:{2*UN+2048+1024*c}')
        if own: mf(*own.pop(0))
    if own: mf(*own.pop(0))
    a.wait(lgkm=0); a('s_barrier')
    for t in preads(LP, 1, (1,)): a(t)
    for n, c in own: mf(n, c)
    stamp(a, 3)
    for k in range(0, 8, 2): a(f'v_pk_add_f32 {vr(LP[0]+k,2)}, {vr(LP[0]+k,2)}, {vr(AC(3,0)+k,2)}')
    for k in range(0, 8, 2): a(f'v_pk_add_f32 {vr(LP[0]+k,2)}, {vr(LP[0]+k,2)}, {vr(LP[2]+k,2)}')
    for t in pack(LP[0], OB+4, f's{sMB}'): a(t)
    stamp(a)

def kernel(a):
    q = Q(a)
    prologue(a, q)
    for t in master_list(False)[1:4]: q.pend += items(t)
    assert C.cap0 <= 8
    q.issue(6)
    stamp(a)
    z = setup2(a)
    for t in coef_ops(): a(t)
    q.issue(C.cap0-2)
    stamp(a)
    a(f's_cmp_ge_u32 s{sJ}, 14')
    a('s_cbranch_scc1 L_dft')
    st = a.snapshot(); n0 = St.n; q2 = q.clone(True)
    phaseA(a, False, q, z); stamp(a)
    presync(a, False, q, glu_epilogue(a, q))
    def state(): return ([i.text for i in a.vm], St.n)
    join = state(); jl = [i.text for i in a.lgkm]
    a.label('L_phaseB')
    a.raw(';PAD0') if C.pads else a('s_nop 0')
    phaseB(a)
    stamp_flush(a)
    a.label('L_end')
    a('s_endpgm')
    a.restore(st); St.n = n0; q = q2
    a.raw('.p2align 3')
    a.label('L_dft')
    phaseA(a, True, q, z); stamp(a)
    presync(a, True, q, dft_epilogue(a, q))
    assert join == state(), (join, state())
    assert not a.lgkm
    a('s_branch L_phaseB')
    if a.blocked: print('waits that block on smem at lines', a.blocked, file=sys.stderr)

def layout(lines, base):
    out = []
    for l in lines:
        if l.startswith(';WARM'):
            t = l.split()[1]
            out += [f'    s_mov_b32 s1, {1 if t == "d" else 0}', '    s_mov_b64 exec, 0']
            for w in range(3): out += [f'    s_cmp_eq_u32 s{sW}, {w}', f'    s_cbranch_scc1 @{t}{w}']
            out += [f'    s_branch @{t}3']
            if t == 'g': out += ['Ltramp:', '    s_cmp_eq_u32 s1, 1', '    s_cbranch_scc1 Lret_d']
            out += [f'Lret_{t}:', '    s_mov_b64 exec, -1']
        elif l == ';PAD0': out += ['Lpad_s0:', '    s_cbranch_execz @next_s0']
        else: out.append(l)
    import re
    sz = sizes_of([re.sub(r'@\w+', 'L_end', l) for l in out])
    idx = [i for i,l in enumerate(out) if l.startswith('    ') and not l.strip().startswith((';','.'))]
    assert len(idx) == len(sz)
    size = dict(zip(idx, sz))
    res = []; addr = base; cand = None; fixed = left = 0; region = None; pads = {'g': [], 's': ['s0'], 'd': []}
    page = addr >> 12
    for i,l in enumerate(out):
        if l == 'Lret_g:': region = 'g'
        if l == 'L_phaseB:': region = 's'
        if l == 'L_end:': region = None
        if l == 'Lret_d:': region = 'd'
        if l.startswith('.p2align 3'): addr = (addr+7)//8*8; cand = None; res.append(l); continue
        if i not in size: res.append(l); continue
        if (addr >> 12) != page:
            page = addr >> 12
            if region and C.pads and 'exec' not in l:
                nm = f'{region}{len(pads[region])}'; pads[region].append(nm)
                res += [f'Lpad_{nm}:', f'    s_cbranch_execz @next_{nm}']; addr += 4
                if C.log: print('pad', nm, 'before line', i, l.strip()[:60], file=sys.stderr)
        s = size[i]
        if s == 8 and addr % 8 == 4:
            if cand is not None and C.align:
                op = res[cand].split()[0]; res[cand] = res[cand].replace(op, op+'_e64', 1); addr += 4; fixed += 1
            elif addr % 32 == 28: left += 1
        res.append(l)
        if s == 8: cand = None
        elif l.split()[0] in PROMO and addr % 8 == 0: cand = len(res)-1
        addr += s
    tgt = {}
    sp = pads['s']
    for k, nm in enumerate(sp): tgt[f'next_{nm}'] = f'Lpad_{sp[k+1]}' if k+1 < len(sp) else 'Ltramp'
    for t in 'gd':
        own = pads[t]
        for k, nm in enumerate(own): tgt[f'next_{nm}'] = f'Lpad_{own[k+3]}' if k+3 < len(own) else f'Lret_{t}'
        for w in range(3): tgt[f'{t}{w}'] = f'Lpad_{own[w]}' if w < len(own) else f'Lret_{t}'
        tgt[f'{t}3'] = f'Lpad_{sp[0 if t == "d" or len(sp) == 1 else 1]}'
    res = [re.sub(r'@(\w+)', lambda m: tgt[m.group(1)], l) for l in res]
    print('align fixed', fixed, 'left', left, 'pads', pads, 'bytes', addr-base, file=sys.stderr)
    assert addr-base <= 32*CODE_LINES_PER_WG*128
    return res

def build():
    out = ['; @launch grid=(256,1,1) block=(256,1,1) lds=163840', '; '+' '.join(sys.argv[2:]),
           '.amdgcn_target "amdgcn-amd-amdhsa--gfx950"', '.text', '.p2align 12']
    if C.shift: out.append(f'.fill {64*C.shift}, 4, 0xbf800000')
    nm = NAME+'_kernel'
    a = Asm(); kernel(a)
    lines = layout(a.lines, 0x300+256*C.shift)
    out += [f'.globl {nm}', '.p2align 8', f'.type {nm},@function', f'{nm}:', '\n'.join(lines)]
    out.append('L_code_end:')
    out.append(f'.fill ({32*CODE_LINES_PER_WG*128+256} - (L_code_end - {nm}))/4, 4, 0xbf800000')
    out.append('.section .rodata,"a"')
    out.append('.p2align 6')
    out.append(f'''.amdhsa_kernel {nm}
  .amdhsa_next_free_vgpr 512
  .amdhsa_next_free_sgpr 102
  .amdhsa_accum_offset 256
  .amdhsa_group_segment_fixed_size 0
  .amdhsa_kernarg_size 96
  .amdhsa_user_sgpr_count 2
  .amdhsa_user_sgpr_kernarg_segment_ptr 1
  .amdhsa_system_sgpr_workgroup_id_x 1
.end_amdhsa_kernel
''')
    return '\n'.join(out)
if __name__ == '__main__':
    for kv in sys.argv[2:]:
        k, v = kv.split('='); assert hasattr(C, k), k; setattr(C, k, int(v))
    HP = 56*1024+C.hpad; GP = 65536+C.gpad
    t = build()
    open(sys.argv[1], 'w').write(t)
```

```python
import sys, struct
from asmlib import *

NAME = 'parallel_sum__spectral_fnet__glu_gated_glu__prompt'
HP = 56*1024+128
GP = 65536+128
G_OFF = 0x790000
FL_OFF = 0xA00000
FLS_OFF = FL_OFF+128*128
FLG_OFF = FLS_OFF+4
NFL = 256
XS_OFF = 0xA10000
CS_OFF = 0xA50000
WS_BYTES = 0xA90000
STAMP_OFF = 0xC00000
OOB = 0x7f000000
def f2u(x): return struct.unpack('<I', struct.pack('<f', x))[0]
LOG2E = 1.4426950408889634
MF = 'v_mfma_f32_16x16x32_bf16'

class Cfg:
    stamps = 0; log = 0; align = 1
    touch = 0
    tlb = 0
    pads = 1
    shift = 0
    hrot = 0; bmap = 1; drot = 2
    cap0 = 6; cap = 6; capn = 3; bar = 2
    rate = 8; drate = 8; dslow = 0
    spoll = 8; dlag = 10; rd0 = 5; rd1 = 6
    dleft = 16; epi_dma = 0; post = 12
    look = 10; look0 = 8; gp = 18; gc = 24; gb = 36; xb = 6; skipb = 0; snake = 1; defer = 4; lp = 8; pre = 8; mid = 4; xoff = 0; dmap = 1; dstart = 5; ddrate = 4; ddlag = 16; dearly = 0; drotd = 2; dcap = 14; xord = 1; tw = 3; tswap = 5; wsoff = 0; hoist = 1; gnew = 1; drd1 = 12; plate = 2; ftz = 0; gsl = 0
    infl = 2; pgap = 5
    outsc = 1; tpos = 3; tfl = 0; rmask = 6
    hpad = 0; gpad = 0
C = Cfg()

sMSK, sR, sCB = 3, 6, 7
sPO = 8
sDBG, sX, sG, sU, sWS, sWD, sOUT = 16, 20, 24, 28, 32, 36, 40
sW, sI, sJ, sP = 44, 45, 46, 47
sT = 48
sM0, sKX, sKW, sPITCH, sKCX, sKCW, sL, sXS = 64, 65, 66, 67, 68, 69, 70, 71
sSET, sCS, sOWN, sONE, sFV, sKD, sP2, sP7 = 80, 81, 86, 87, 4, 5, 15, 0
sM1, sM2, sM3, sMV = 88, 90, 92, 94
vLANE, vN, vG, vOUT = 1, 2, 3, 13
vXD, vWD, vD, vXA, vOA, vWA, vTR, vDBG, vSTAMP = 16, 20, 22, 26, 28, 30, 34, 46, 47
vXR, vWF, vSXo, vCS, vSQo, vACC = 48, 64, 96, 104, 120, 128
aSX, aONE, aR, aCL, aCF = 160, 168, 192, 224, 240
UN = 16384
LST = 1*UN
def acc(tf, wf): return vACC+16*tf+4*wf
def fW(p, wf): return vWF+16*p+4*wf
def fX(k): return vXR+4*(k & 3)
def S(r): return f's[{r}:{r+3}]'

class St: n = 0
def stamp(a, grp=1):
    if not (C.stamps & grp): return
    a(f's_memtime s[82:83]')
    a(f's_memrealtime s[84:85]')
    a.wait(lgkm=0)
    a(f'v_writelane_b32 v{vSTAMP}, s82, {St.n}')
    a(f'v_writelane_b32 v{vSTAMP}, s84, {32+St.n}')
    St.n += 1
LZ = [16, 18, 90, 92, 94]
def lazy(a, k):
    if C.stamps & 1: a.raw(f'    s_memrealtime s[{LZ[k]}:{LZ[k]+1}] ; s_memtime')
def lazy_flush(a, n):
    if not (C.stamps & 1): return
    a.raw('    s_waitcnt lgkmcnt(0)')
    for k in range(n):
        a(f'v_writelane_b32 v{vSTAMP}, s{LZ[k]}, {32+St.n}'); St.n += 1
def stamp_flush(a):
    if not C.stamps: return
    a.wait(vm=0)
    stamp(a, 255)
    a(f's_mov_b32 s{sWS+2}, 0x1000000')
    a(f's_lshl_b32 s82, s2, 2')
    a(f's_add_u32 s82, s82, s{sW}')
    a(f's_lshl_b32 s82, s82, 8')
    a(f's_add_u32 s82, s82, {STAMP_OFF}')
    a(f'v_lshlrev_b32 v4, 2, v{vLANE}')
    a(f'buffer_store_dword v{vSTAMP}, v4, {S(sWS)}, s82 offen')

def srd(a, d, ptr, nbytes):
    a(f's_mov_b64 s[{d}:{d+1}], s[{ptr}:{ptr+1}]')
    a(f's_mov_b32 s{d+2}, {nbytes}')
    a(f's_mov_b32 s{d+3}, 0x20000')

def dma_X(s):
    pre = {0: [f's_add_u32 m0, s{sM0}, {(s % 4)*UN}', f's_xor_b32 s{sKX}, s{sKX}, 512' if s & 1 else f's_lshl_b32 s{sKX}, s{sKCX}, 7']}
    if s & 1: pre[1] = [f's_add_u32 s{sKCX}, s{sKCX}, 1', f's_and_b32 s{sKCX}, s{sKCX}, 3'] + ([f's_or_b32 s{sKCX}, s{sKCX}, 4'] if C.xord else [])
    return [(('X', s), pre.get(q, []), f'buffer_load_dwordx4 v{vXD+q}, {S(sX)}, s{sKX} offen offset:{q*1024} lds') for q in range(4)]
def wunit(n, dft): return 4 + (((2 if n >> 2 == 1 else 0)+(n & 1)) if dft else n % 6)
def dma_W(n, dft):
    k = [f's_mul_i32 s{sKW}, s{sKCW}, s{sP2}', f's_add_u32 s{sKW}, s{sKW}, s{sPITCH}', f's_add_u32 s{sKW}, s{sKW}, s{sP7}', f's_add_u32 s{sKW}, s{sKW}, s{sPITCH}'][n & 3]
    pre = {0: [f's_add_u32 m0, s{sM0}, {wunit(n, dft)*UN}', k]}
    if n & 3 == 1: pre[1] = [f's_add_u32 s{sKCW}, s{sKCW}, 1', f's_and_b32 s{sKCW}, s{sKCW}, 3'] + ([f's_or_b32 s{sKCW}, s{sKCW}, 4'] if C.xord else [])
    return [(('W', n), pre.get(q, []), f'buffer_load_dwordx4 v{vWD+(q&1)}, {S(sU if q >> 1 else sG)}, s{sKW} offen offset:{q*1024} lds') for q in range(4)]
class Plan:
    def __init__(self, dft):
        if dft:
            self.units = [8, 9, 6, 7, 8, 9, 6, 7, 0, 8, 9, 6, 7, 4]
            assert C.dstart >= 5
            self.avail = {C.dstart:8, 10:13, 12:14}
        else:
            self.units = [0, 8, 9, 4, 5, 0, 6, 2, 8, 7, 3, 9, 4, 5]
            self.avail = {10:2, 11:3, 12:4, 13:6, 14:9}
        self.prev = {u: max(v for v in range(u) if self.units[v] == self.units[u]) for u in range(14) if self.units[u] in self.units[:u]}
    def dma(self, u):
        pre = {0: [f's_add_u32 m0, s{sM0}, {self.units[u]*UN}',
                   f's_add_u32 s{sKD}, s{sKD}, 32768' if u & 1 else f's_lshl_b32 s{sKD}, s{sPO+(u>>1)}, 5']}
        return [(('D', u), pre.get(q, []), f'buffer_load_dwordx4 v{vD+q}, {S(sWD)}, s{sKD} offen offset:{q*1024} lds') for q in range(4)]
    def reads(self, u):
        un = self.units[u]
        return [f'ds_read_b64_tr_b16 {ar(16*u+4*cbk+2*u2,2)}, v{vTR+4*(un>>2)+cbk} offset:{(un&3)*UN+2048*u2}' for cbk in range(4) for u2 in range(2)]

class Q:
    def __init__(self, a, dft=False):
        self.a = a; self.pend = []; self.last = {}; self.predone = False; self.nD = 0; self.maxD = 0; self.rd = {}
        self.plan = Plan(dft)
        self.rq = [(u, t) for u in range(14) for t in self.plan.reads(u)]; self.issued = 0; self.limit = 10**9; self.log = []; self.pos = -1
    def clone(self, dft):
        q = Q(self.a, dft); q.pend = list(self.pend); q.last = dict(self.last); q.predone = self.predone; q.issued = self.issued; q.log = list(self.log)
        return q
    def left(self): return len(self.pend) + 4*(14-self.nD)
    def ready(self):
        if not self.pend and self.nD < self.maxD:
            pv = self.plan.prev.get(self.nD)
            if pv is None or not self.rq or self.rq[0][0] > pv:
                self.pend += self.plan.dma(self.nD); self.nD += 1
        return bool(self.pend) and self.issued < self.limit
    def haspre(self): return self.ready() and self.pend[0][1] and not self.predone
    def pre(self):
        if self.ready() and not self.predone:
            for t in self.pend[0][1]: self.a(t)
            self.predone = True
    def issue(self, n=1):
        for _ in range(n):
            if not self.ready(): return
            self.pre()
            tag, pf, t = self.pend.pop(0)
            if tag[0] == 'D' and tag[1] in self.plan.prev: self.a.wait_lgkm_for(self.rd[self.plan.prev[tag[1]]])
            self.last[tag] = self.a(t); self.predone = False; self.issued += 1; self.log.append((tag, self.pos))
    def addD(self, upto): self.maxD = max(self.maxD, upto)
    def has(self, tag): return [1 for t in self.pend if t[0] == tag]
    def need(self, tag):
        assert tag in self.last and not self.has(tag), ('not issued', tag)
        self.a.wait_vm_for(self.last[tag])
    def read1(self, upto):
        if not self.rq or self.rq[0][0] >= upto: return False
        u, t = self.rq.pop(0)
        self.need(('D', u))
        self.rd[u] = self.a(t)
        return True
    def readD(self, upto):
        while self.read1(upto): pass

def x_read(k):
    n, tf = k >> 3, k & 7
    return f'ds_read_b128 {vr(fX(k),4)}, v{vXA+(n&1)} offset:{((n>>1) % 4)*UN+tf*2048}'
def w_reads(n, dft):
    if dft and n & 2:
        return [f'v_xor_b32 v{fW(n&1,0)+k}, v12, v{fW(n&1,0)+k}' for k in range(16)]
    un = wunit(n, dft)-4
    return [f'ds_read_b64_tr_b16 {vr(fW(n&1,wf)+2*u,2)}, v{vWA+2*(un>>2)+(wf&1)} offset:{(un&3)*UN+(wf>>1)*2048+u*1024}' for wf in range(4) for u in range(2)]

def master_list(dft):
    m = []
    for n in range(16):
        if n % 2 == 0: m.append(('X', n >> 1))
        if not (dft and n & 2): m.append(('W', n))
    return m
def items(t, dft=False): return dma_X(t[1]) if t[0] == 'X' else dma_W(t[1], dft)

CODE_LINES_PER_WG = 10
def prologue(a, q):
    a('s_cmp_ge_u32 s2, 256')
    a('s_cbranch_scc1 L_end')
    a('s_load_dwordx2 s[4:5], s[0:1], 0')
    a('s_load_dwordx4 s[8:11], s[0:1], 24')
    a('s_load_dwordx4 s[12:15], s[0:1], 48')
    a('s_load_dwordx8 s[72:79], s[0:1], 64')
    St.n = 0
    if C.stamps: a('s_memrealtime s[84:85]'); a('s_memtime s[82:83]')
    a.raw(f'    s_getpc_b64 s[80:81]'); a.hist.append((Ins('s_getpc_b64 s[80:81]'),1))
    a(f's_lshr_b32 s{sT}, s2, 3')
    a(f's_mul_i32 s{sT}, s{sT}, {CODE_LINES_PER_WG*128}')
    a(f'v_min_u32 v4, {CODE_LINES_PER_WG-1}, v0')
    a(f'v_lshl_add_u32 v4, v4, 7, s{sT}')
    a(f'global_load_dword v{vDBG}, v4, s[80:81]')
    a(f'v_and_b32 v{vLANE}, 63, v0')
    a(f'v_lshrrev_b32 v4, 6, v0')
    a(f'v_and_b32 v{vN}, 15, v0')
    a(f'v_readfirstlane_b32 s{sW}, v4')
    a(f'v_bfe_u32 v{vG}, v0, 4, 2')
    a(f's_and_b32 s{sT}, s2, 1')
    a(f's_lshl_b32 s{sT}, s{sT}, 3')
    a(f's_bfe_u32 s{sI}, s2, {3|(3<<16)}')
    a(f's_add_u32 s{sI}, s{sI}, s{sT}')
    a(f's_bfe_u32 s{sT}, s2, {1|(2<<16)}')
    a(f's_lshr_b32 s{sT+1}, s2, 6')
    if C.dmap:
        a(f's_mul_i32 s{sJ}, s{sT}, 3')
        a(f's_add_u32 s{sJ}, s{sJ}, s{sT+1}')
        a(f's_add_u32 s{sT+2}, s{sT}, 14')
        a(f's_cmp_eq_u32 s{sT+1}, 3')
        a(f's_cselect_b32 s{sT+2}, s{sT+2}, s{sJ}')
        a(f's_cmp_eq_u32 s{sT}, 3')
        a(f's_addc_u32 s{sJ}, s{sJ}, 0')
        a(f's_cmp_lt_u32 s{sT}, 2')
        a(f's_cselect_b32 s{sJ}, s{sT+2}, s{sJ}')
    else:
        a(f's_mul_i32 s{sJ}, s{sT}, 3')
        a(f's_add_u32 s{sJ}, s{sJ}, s{sT+1}')
        a(f's_lshr_b32 s{sT+2}, s2, 4')
        a(f's_xor_b32 s{sT+2}, s{sT+2}, s2')
        a(f's_and_b32 s{sT+2}, s{sT+2}, 2')
        a(f's_lshr_b32 s{sT}, s{sT}, 1')
        a(f's_add_u32 s{sT}, s{sT}, s{sT+2}')
        a(f's_add_u32 s{sT}, s{sT}, 12')
        a(f's_cmp_eq_u32 s{sT+1}, 3')
        a(f's_cselect_b32 s{sJ}, s{sT}, s{sJ}')
    a(f's_xor_b32 s{sT}, s{sI}, s{sT+1}')
    a(f's_and_b32 s{sT}, s{sT}, 1')
    a(f's_lshl_b32 s{sKCX}, s{sT}, 1')
    a(f's_lshr_b32 s{sT}, s2, 1')
    a(f's_xor_b32 s{sT}, s{sT}, s2')
    a(f's_and_b32 s{sT}, s{sT}, 1')
    a(f's_add_u32 s{sKCX}, s{sKCX}, s{sT}')
    a(f's_lshl_b32 s{sL}, s{sKCX}, 8')
    if C.xord: a(f's_or_b32 s{sKCX}, s{sKCX}, 4')
    a(f's_mov_b32 s{sKCW}, s{sKCX}')
    a(f's_sub_u32 s{sT+1}, 32, s{sI}')
    a(f's_cmp_eq_u32 s{sI}, 0')
    a(f's_cselect_b32 s{sT+1}, 16, s{sT+1}')
    a(f's_bitcmp1_b32 s{sW}, 1')
    a(f's_cselect_b32 s{sT}, s{sT+1}, s{sI}')
    a(f's_sub_u32 s{sT+1}, 64, s{sT}')
    a(f's_cmp_eq_u32 s{sT}, 0')
    a(f's_cselect_b32 s{sT+1}, 32, s{sT+1}')
    a(f's_add_u32 s{sT+2}, s{sT}, 32')
    a(f's_movk_i32 s{sT+6}, 3584')
    a(f's_cmp_ge_u32 s{sJ}, 14')
    a(f's_cselect_b32 s{sT+1}, s{sT+2}, s{sT+1}')
    a(f's_cselect_b32 s{sT+6}, 1024, s{sT+6}')
    a(f's_cselect_b32 s{sT+4}, 12, 0')
    a(f's_sub_u32 s{sT+4}, s{sJ}, s{sT+4}')
    a(f's_lshl_b32 s{sT+4}, s{sT+4}, 8')
    a(f's_bitcmp1_b32 s{sW}, 0')
    a(f's_cselect_b32 s{sT}, s{sT+1}, s{sT}')
    a(f's_cselect_b32 s{sT+5}, 8, 0')
    a(f's_lshl_b32 s{sT}, s{sT}, 10')
    a(f'v_lshrrev_b32 v4, 3, v{vLANE}')
    a(f'v_lshl_add_u32 v4, v4, 16, s{sT}')
    a(f'v_and_b32 v6, 7, v{vLANE}')
    a(f'v_xor_b32 v6, v6, v{vG}')
    a(f'v_lshl_add_u32 v{vXD}, v6, 4, v4')
    a(f'v_xor_b32 v7, 64, v{vXD}')
    a(f'v_add_u32 v{vXD+1}, {524288-1024}, v7')
    a(f'v_add_u32 v{vXD+2}, {2*(524288-1024)}, v{vXD}')
    a(f'v_add_u32 v{vXD+3}, {3*(524288-1024)}, v7')
    a(f's_lshl_b32 s{sM0}, s{sW}, 12')
    a(f's_lshl_b32 s{sPITCH}, s{sT+6}, 5')
    a(f's_mov_b32 s{sX+2}, {2048*1024}')
    a(f's_mov_b32 s{sX+3}, 0x20000')
    def waddr():
        a(f's_lshl_b32 s{sT+1}, s{sW}, 3')
        a(f'v_add_u32 v4, s{sT+1}, v{vG}')
        a(f'v_mul_u32_u24 v4, s{sT+6}, v4')
        a(f'v_add_u32 v4, s{sT+4}, v4')
        a(f'v_lshl_add_u32 v7, v{vG}, 1, s{sT+5}')
        a(f'v_xor_b32 v6, v{vN}, v7')
        a(f'v_lshl_add_u32 v{vWD}, v6, 4, v4')
        a(f's_lshl_b32 s{sT+1}, s{sT+6}, 2')
        a(f's_sub_u32 s{sT+1}, s{sT+1}, 1024')
        a(f'v_add_u32 v{vWD+1}, s{sT+1}, v{vWD}')
        a(f's_lshl_b32 s{sG+2}, s{sT+6}, 9')
        a(f's_mov_b32 s{sG+3}, 0x20000')
        a(f's_add_u32 s{sU+2}, s{sG+2}, 2048')
        a(f's_mov_b32 s{sU+3}, 0x20000')
    if C.hoist: waddr()
    sTW = 96
    if C.tw & 2:
        a(f's_lshl_b32 s{sT+1}, s2, 2')
        a(f's_add_u32 s{sT+1}, s{sT+1}, s{sW}')
        a(f's_lshl_b32 s{sT+7}, s{sT+1}, 7')
        a(f's_lshr_b32 s{sT+1}, s2, 3')
        a(f's_add_u32 s{sT+1}, s{sT+1}, s{sW}')
        a(f's_and_b32 s{sT+1}, s{sT+1}, 7')
        a(f's_min_u32 s{sT+1}, s{sT+1}, 5')
        a(f's_lshl_b32 s{sT+1}, s{sT+1}, 21')
        a(f's_add_u32 s{sT+8}, s{sT+1}, s{sT+7}')
    q.pend = items(('X',0)); q.pre()
    a.wait(lgkm=0)
    a(f's_mov_b64 s[{sX}:{sX+1}], s[4:5]')
    if C.stamps:
        a(f'v_writelane_b32 v{vSTAMP}, s84, 32'); a(f'v_writelane_b32 v{vSTAMP}, s82, 0'); St.n = 1
    if not C.tw & 4: q.issue(1)
    a(f's_cmp_ge_u32 s{sJ}, 14')
    a(f's_cselect_b64 s[{sG}:{sG+1}], s[8:9], s[12:13]')
    a(f's_cselect_b64 s[{sU}:{sU+1}], s[10:11], s[14:15]')
    if C.tw & 1:
        if C.tswap:
            a(f's_bitcmp1_b32 s2, {C.tswap}')
            a(f's_cselect_b64 s[8:9], s[{sG}:{sG+1}], s[{sU}:{sU+1}]')
            a(f's_load_dword s{sTW}, s[8:9], 0')
        else:
            a(f's_load_dword s{sTW}, s[{sG}:{sG+1}], 0')
            a(f's_load_dword s{sTW+1}, s[{sU}:{sU+1}], 0')
    if C.tw & 4: q.issue(1)
    if C.wsoff:
        a(f's_add_u32 s78, s78, {C.wsoff << 20}')
        a(f's_addc_u32 s79, s79, 0')
    if C.tw & 2:
        a(f's_load_dword s{sTW+2}, s[78:79], s{sT+8} glc')
        a(f's_load_dword s{sTW+3}, s[76:77], 128')
        a(f's_load_dword s{sTW+4}, s[72:73], 0')
        a(f's_load_dword s{sTW+5}, s[74:75], s{sT+7} glc')
    q.issue(1)
    if not C.hoist: waddr()
    a(f's_sub_u32 s{sU}, s{sU}, 2048')
    a(f's_subb_u32 s{sU+1}, s{sU+1}, 0')
    q.issue(1)
    a(f's_lshl_b32 s{sP2}, s{sPITCH}, 1')
    a(f's_mul_i32 s{sP7}, s{sPITCH}, {-9 if C.xord else 7}')
    q.issue(1)

def setup2(a):
    srd(a, sWS, 78, WS_BYTES)
    a(f's_cmp_eq_u32 s2, 0')
    a(f's_cselect_b32 s{sT+1}, {NFL}, 0')
    a(f's_mov_b32 s{sONE}, 1')
    a(f'v_mov_b32 v4, 0')
    a(f'v_mov_b32 v5, 0')
    a(f'v_mov_b32 v10, {OOB}')
    a(f'v_lshlrev_b32 v8, 7, v0')
    a(f'v_cmp_gt_u32 vcc, s{sT+1}, v0')
    a(f'v_mov_b32 v11, 0')
    a(f's_mov_b32 s{sT+3}, {FL_OFF}')
    a(f'v_cndmask_b32 v8, v10, v8, vcc')
    z = a(f'buffer_store_dwordx2 v[4:5], v8, {S(sWS)}, s{sT+3} offen sc1')
    srd(a, sWD, 72, 1792*1024)
    srd(a, sOUT, 74, 2048*1024)
    a(f'v_lshrrev_b32 v4, 1, v{vN}')
    a(f'v_xor_b32 v4, v4, v{vG}')
    a(f'v_lshlrev_b32 v4, 4, v4')
    a(f'v_lshl_add_u32 v{vXA}, v{vN}, 7, v4')
    a(f'v_xor_b32 v{vXA+1}, 64, v{vXA}')
    a(f'v_add_u32 v{vOA}, s{sM0}, v{vXA}')
    a(f'v_add_u32 v{vOA+1}, s{sM0}, v{vXA+1}')
    a(f'v_bfe_u32 v4, v{vLANE}, 2, 2')
    a(f'v_and_b32 v7, 3, v{vLANE}')
    a(f'v_cmp_eq_u32 s[{sM1}:{sM1+1}], 1, v7')
    a(f'v_cmp_eq_u32 s[{sM2}:{sM2+1}], 2, v7')
    a(f'v_cmp_eq_u32 s[{sM3}:{sM3+1}], 3, v7')
    a(f'v_cmp_eq_u32 s[{sMV}:{sMV+1}], v4, v{vG}')
    a(f'v_lshlrev_b32 v7, 3, v7')
    a(f'v_and_b32 v5, 1, v{vG}')
    a(f'v_lshl_add_u32 v5, v5, 2, v4')
    a(f's_lshl_b32 s{sT}, s{sW}, 1')
    a(f'v_xor_b32 v5, s{sT}, v5')
    a(f'v_lshl_add_u32 v5, v5, 5, v7')
    a(f'v_lshl_add_u32 v5, v4, 8, v5')
    a(f'v_lshl_add_u32 v5, v{vG}, 12, v5')
    a(f'v_add_u32 v{vWA}, {4*UN}, v5')
    a(f'v_xor_b32 v{vWA+1}, 32, v{vWA}')
    a(f'v_add_u32 v{vWA+2}, {4*UN}, v{vWA}')
    a(f'v_add_u32 v{vWA+3}, {4*UN}, v{vWA+1}')
    a(f'v_mov_b32 v4, 0x3f803f80')
    for d in range(4): a(f'v_accvgpr_write_b32 a{aONE+d}, v4')
    if C.bmap == 0:
        a(f's_and_b32 s{sR}, s2, 7')
        a(f's_lshl_b32 s{sR}, s{sR}, 2')
        a(f's_bfe_u32 s{sT}, s2, {3|(2<<16)}')
        a(f's_add_u32 s{sR}, s{sR}, s{sT}')
        a(f's_lshr_b32 s{sCB}, s2, 5')
    elif C.dmap:
        a(f's_and_b32 s{sR}, s2, 3')
        a(f's_lshl_b32 s{sR}, s{sR}, 3')
        a(f's_bfe_u32 s{sT}, s2, {3|(3<<16)}')
        a(f's_add_u32 s{sR}, s{sR}, s{sT}')
        a(f's_lshr_b32 s{sCB}, s2, 6')
        a(f's_xor_b32 s{sCB}, s{sCB}, 2')
        a(f's_and_b32 s{sT}, s2, 4')
        a(f's_add_u32 s{sCB}, s{sCB}, s{sT}')
        a(f's_add_u32 s{sCB}, s{sCB}, 2')
        a(f's_and_b32 s{sCB}, s{sCB}, 7')
    else:
        a(f's_bfe_u32 s{sR}, s2, {1|(2<<16)}')
        a(f's_lshl_b32 s{sR}, s{sR}, 3')
        a(f's_bfe_u32 s{sT}, s2, {3|(3<<16)}')
        a(f's_add_u32 s{sR}, s{sR}, s{sT}')
        a(f's_lshr_b32 s{sCB}, s2, 6')
        a(f's_and_b32 s{sT}, s2, 1')
        a(f's_lshl_b32 s{sT}, s{sT}, 2')
        a(f's_add_u32 s{sCB}, s{sCB}, s{sT}')
        a(f's_add_u32 s{sCB}, s{sCB}, 6')
        a(f's_and_b32 s{sCB}, s{sCB}, 7')
    a(f'v_and_b32 v12, 1, v{vN}')
    a(f'v_mul_u32_u24 v12, 0x8000, v12')
    a(f'v_lshl_or_b32 v12, v12, 16, v12')
    return z

def late_setup_ops():
    r = []; a = r.append
    a(f'v_and_b32 v{vTR+1}, 3, v{vLANE}')
    a(f'v_bfe_u32 v{vTR}, v{vLANE}, 3, 2')
    a(f'v_lshl_add_u32 v{vTR}, v{vTR}, 2, v{vTR+1}')
    a(f'v_lshrrev_b32 v{vTR+1}, 2, v{vLANE}')
    a(f'v_lshl_add_u32 v{vTR}, v{vTR+1}, 4, v{vTR}')
    a(f'v_lshl_add_u32 v{vTR}, v{vTR}, 3, s{sM0}')
    a(f's_and_b32 s{sT}, s{sW}, 1')
    a(f's_lshl_b32 s{sT}, s{sT}, 6')
    a(f'v_xor_b32 v{vTR}, s{sT}, v{vTR}')
    for c in (1,2,3): a(f'v_xor_b32 v{vTR+c}, {32*c}, v{vTR}')
    for wnd in (1,2):
        for c in range(4): a(f'v_add_u32 v{vTR+4*wnd+c}, {wnd*4*UN}, v{vTR+c}')
    a(f's_mul_i32 s{sT}, s{sW}, {448*1024}')
    a(f's_lshl_b32 s{sT+1}, s{sCB}, 7')
    a(f's_add_u32 s{sT}, s{sT}, s{sT+1}')
    a(f'v_lshrrev_b32 v{vD+1}, 3, v{vLANE}')
    a(f'v_lshl_add_u32 v{vD+1}, v{vD+1}, 10, s{sT}')
    a(f'v_and_b32 v{vD}, 7, v{vLANE}')
    a(f'v_lshlrev_b32 v{vD+2}, 1, v{vG}')
    a(f'v_xor_b32 v{vD}, v{vD}, v{vD+2}')
    a(f'v_lshl_add_u32 v{vD}, v{vD}, 4, v{vD+1}')
    for q in (1,2,3): a(f'v_add_u32 v{vD+q}, {q*7168}, v{vD}')
    a(f's_mov_b32 s{sMSK}, 0xffff0000')
    return r

def coef_ops():
    r = []; a = r.append
    T = vACC+16
    a(f's_lshr_b32 s{sT}, s{sR}, 1')
    a(f's_sub_u32 s{sT+1}, 32, s{sT}')
    a(f's_cmp_eq_u32 s{sT}, 0')
    a(f's_cselect_b32 s{sT+1}, 16, s{sT+1}')
    a(f's_bitcmp1_b32 s{sR}, 0')
    a(f's_cselect_b32 s{sP}, s{sT+1}, s{sT}')
    a(f's_sub_u32 s{sT+1}, 64, s{sP}')
    a(f's_cmp_eq_u32 s{sP}, 0')
    a(f's_cselect_b32 s{sT+1}, 32, s{sT+1}')
    a(f's_bitcmp1_b32 s{sW}, 1')
    a(f's_cselect_b32 s{sT+2}, s{sT+1}, s{sP}')
    a(f's_cselect_b32 s{sT+10}, -1.0, 1.0')
    a(f's_cmp_eq_u32 s{sP}, 0')
    a(f's_cselect_b32 s{sT+10}, 0, s{sT+10}')
    a(f's_cmp_eq_u32 s{sT+2}, 32')
    a(f's_cselect_b32 s{sT+9}, 0, 1.0')
    a(f's_cselect_b32 s{sT+11}, 1.0, 0')
    a(f's_cmp_ge_u32 s{sCB}, 4')
    a(f's_cselect_b32 s{sT+8}, 0, 0x80008000')
    a(f'v_lshl_add_u32 v7, v{vN}, 6, s{sT+2}')
    a(f'v_cvt_f32_u32 v5, v7')
    a(f'v_cvt_f32_u32 v4, v{vG}')
    a(f'v_mul_f32 v5, {f2u(1/2048):#x}, v5')
    a(f'v_cmp_eq_u32 vcc, 0, v{vG}')
    a(f's_lshl_b32 s{sT+1}, s{sCB}, 1')
    a(f's_and_b32 s{sT}, s{sW}, 1')
    a(f's_add_u32 s{sT+1}, s{sT+1}, s{sT}')
    a(f's_lshl_b32 s{sT+1}, s{sT+1}, 6')
    a(f'v_lshl_add_u32 v7, v7, 10, s{sT+1}')
    a(f'v_and_b32 v6, 1, v{vG}')
    a(f'v_lshl_add_u32 v7, v6, 5, v7')
    a(f'v_mul_u32_u24 v9, 0x8000, v6')
    a(f'v_lshl_or_b32 v9, v9, 16, v9')
    a(f'v_lshrrev_b32 v6, 1, v{vG}')
    a(f'v_lshl_add_u32 v{vOUT}, v6, 4, v7')
    a(f'v_mov_b32 v7, {f2u(16.0):#x}')
    for kp in range(4):
        for z in range(2):
            if z == 0: a(f'v_add_f32 v6, {f2u(4.0*kp):#x}, v4')
            else:
                a(f'v_sub_f32 v6, {f2u(32.0-4*kp):#x}, v4')
                if kp == 0: a(f'v_cndmask_b32 v6, v6, v7, vcc')
            a(f'v_mul_f32 v6, v6, v5')
            a(f'v_cos_f32 v{T}, v6')
            a(f'v_sin_f32 v{T+1}, v6')
            a(f'v_mul_f32 v{T+2}, s{sT+9}, v{T}')
            a(f'v_mul_f32 v{T+3}, s{sT+11}, v{T}')
            a(f'v_fmac_f32 v{T+3}, s{sT+10}, v{T+1}')
            a(f'v_mul_f32 v{T+4}, s{sT+9}, v{T+1}')
            a(f'v_mul_f32 v{T+5}, s{sT+11}, v{T+1}')
            a(f'v_fma_f32 v{T+5}, -v{T}, s{sT+10}, v{T+5}')
            a(f'v_cvt_pk_bf16_f32 v{T+2}, v{T+2}, v{T+3}')
            a(f'v_cvt_pk_bf16_f32 v{T+4}, v{T+4}, v{T+5}')
            a(f'v_accvgpr_write_b32 a{aCF+4*kp+2*z}, v{T+2}')
            a(f'v_xor_b32 v{T+4}, s{sT+8}, v{T+4}')
            a(f'v_xor_b32 v{T+2}, v9, v{T+2}')
            a(f'v_accvgpr_write_b32 a{aCF+4*kp+2*z+1}, v{T+4}')
            a(f'v_xor_b32 v{T+4}, v9, v{T+4}')
            a(f'v_accvgpr_write_b32 a{aCL+4*kp+2*z}, v{T+2}')
            a(f'v_accvgpr_write_b32 a{aCL+4*kp+2*z+1}, v{T+4}')
    return r

def scalar_late(a, dft):
    a(f's_lshr_b32 s{sT}, s2, 3')
    a(f's_xor_b32 s{sT}, s{sT}, s2')
    a(f's_bfe_u32 s{sT+1}, s{sT}, {4|(1<<16)}')
    a(f's_bfe_u32 s{sT}, s{sT}, {2|(1<<16)}')
    a(f's_lshl_b32 s{sT+1}, s{sT+1}, 1')
    a(f's_add_u32 s{sSET}, s{sT}, s{sT+1}')
    a(f's_lshl_b32 s{sT+2}, s{sSET}, 10')
    a(f's_lshl_b32 s{sT+1}, s{sW}, 1')
    a(f's_and_b32 s{sT+1}, s{sT+1}, 2')
    a(f's_xor_b32 s{sT+1}, s{sT+1}, s{sW}')
    a(f's_cmp_eq_u32 s{sI}, 0')
    a(f's_cselect_b32 s{sT}, s{sW}, s{sT+1}')
    a(f's_cmp_ge_u32 s{sJ}, 14')
    a(f's_cselect_b32 s{sT}, s{sT}, s{sW}')
    a(f's_lshl_b32 s{sXS}, s{sI}, 2')
    a(f's_add_u32 s{sXS}, s{sXS}, s{sT}')
    a(f's_lshl_b32 s{sXS}, s{sXS}, 12')
    a(f's_add_u32 s{sXS}, s{sXS}, s{sT+2}')
    a(f's_add_u32 s{sXS}, s{sXS}, {XS_OFF}')
    a(f's_lshl_b32 s{sCS}, s{sJ}, 14')
    a(f's_add_u32 s{sCS}, s{sCS}, s{sM0}')
    a(f's_add_u32 s{sCS}, s{sCS}, s{sT+2}')
    a(f's_add_u32 s{sCS}, s{sCS}, {CS_OFF}')
    a(f's_add_u32 s{sT}, s{sJ}, 16')
    a(f's_bitcmp1_b32 s{sW}, 0')
    a(f's_cselect_b32 s{sT}, s{sT}, s{sI}')
    a(f's_lshl_b32 s{sT}, s{sT}, 2')
    a(f's_add_u32 s{sT}, s{sT}, s{sSET}')
    a(f's_lshl_b32 s{sT}, s{sT}, 7')
    a(f's_add_u32 s{sT+8}, s{sT}, {FLS_OFF}')
    drot = C.drotd if dft else C.drot
    if drot == 0: a(f's_mov_b32 s{sPO}, 0')
    elif drot == 1:
        a(f's_and_b32 s{sPO}, s{sR}, 1'); a(f's_lshl_b32 s{sPO}, s{sPO}, 13')
    else:
        a(f's_and_b32 s{sPO}, s{sR}, {3 if drot == 2 else 7}')
        a(f's_mul_i32 s{sPO}, s{sPO}, 7')
        a(f's_add_u32 s{sPO}, s{sPO}, 2')
        a(f's_lshr_b32 s{sPO}, s{sPO}, {drot}')
        if C.xoff:
            a(f's_bfe_u32 s{sT}, s2, {1|(1<<16)}')
            a(f's_add_u32 s{sPO}, s{sPO}, s{sT}')
        a(f's_lshl_b32 s{sPO}, s{sPO}, 11')
    for k in range(1, 7):
        a(f's_add_u32 s{sPO+k}, s{sPO+k-1}, 2048')
        a(f's_cmp_eq_u32 s{sPO+k}, {7*2048}')
        a(f's_cselect_b32 s{sPO+k}, 0, s{sPO+k}')

LR = LST+8192
LC = LST+6144
def dft_R_addr():
    r = []; a = r.append; T = vCS
    a(f's_lshl_b32 s{sT}, s{sW}, 16')
    a(f'v_lshrrev_b32 v{T+1}, 3, v{vLANE}')
    a(f'v_lshl_add_u32 v{T+1}, v{T+1}, 13, s{sT}')
    a(f'v_lshlrev_b32 v{T}, 1, v{vG}')
    a(f'v_xor_b32 v{T}, v{T}, v{vLANE}')
    a(f'v_and_b32 v{T}, 7, v{T}')
    a(f'v_lshl_add_u32 v{T}, v{T}, 4, v{T+1}')
    a(f'v_xor_b32 v{T+1}, 16, v{T}')
    a(f'v_add_u32 v{T+1}, 1024, v{T+1}')
    a(f's_lshr_b32 s{sT+9}, s{sM0}, 1')
    a(f'v_lshrrev_b32 v{T+3}, 1, v{vN}')
    a(f'v_and_b32 v{T+4}, 1, v{vN}')
    a(f'v_and_or_b32 v{T+2}, v{T+3}, 6, v{T+4}')
    a(f'v_xor_b32 v{T+2}, v{T+2}, v{vG}')
    a(f'v_lshl_add_u32 v{T+3}, v{T+4}, 3, v{T+3}')
    a(f'v_lshl_add_u32 v{T+2}, v{T+3}, 3, v{T+2}')
    a(f'v_cmp_eq_u32 vcc, 1, v{vN}')
    a(f'v_lshlrev_b32 v{T+2}, 4, v{T+2}')
    a(f'v_add_u32 v{T+2}, {LR}, v{T+2}')
    a(f'v_mov_b32 v{T+6}, {LC}')
    a(f'v_xor_b32 v{T+3}, 64, v{T+2}')
    a(f'v_cndmask_b32 v{T+4}, v{T+2}, v{T+6}, vcc')
    a(f'v_cndmask_b32 v{T+5}, v{T+3}, v{T+6}, vcc')
    for d in range(4): a(f'v_mov_b32 v{112+d}, 0xbf803f80')
    return r
def dft_R_loads():
    return [(('R',0), [f's_add_u32 m0, s{sT+9}, {LR}'], f'buffer_load_dwordx4 v{vCS}, {S(sG)}, 0 offen lds'),
            (('R',0), [], f'buffer_load_dwordx4 v{vCS+1}, {S(sU)}, 0 offen offset:1024 lds')]
def dft_R_reads():
    return [f'ds_read_b128 {ar(aR+8*jb+4*sub,4)}, v{vCS+(2 if jb else 4)+sub} offset:{2048*jb}' for jb in range(4) for sub in range(2)]

def stats_reads(n):
    return [f'ds_read_b128 {ar(aSX+4*o,4)}, v{vOA+(n&1)} offset:{(n>>1)*UN+o*2048}' for o in range(2)]
def stats_mfma(dft, n):
    r = []
    def mf(c, x, y): r.append(f'{MF} {vr(c,4)}, {x}, {y}, {vr(c,4) if n else 0}')
    for o in range(2):
        mf(vSXo+4*o, ar(aONE,4), ar(aSX+4*o,4))
        mf(vSQo+4*o, ar(aSX+4*o,4), ar(aSX+4*o,4))
    if not dft:
        for wf in range(4): mf(vCS+4*wf, ar(aONE,4), vr(fW(n&1,wf),4))
    return r
def stats_pack_ops(dft):
    r = []; a = r.append
    a(f'v_lshlrev_b32 v4, 4, v{vN}')
    a(f'v_mov_b32 v10, {OOB}')
    a(f'v_mov_b32 v{vSXo+2}, v{vSXo+4}')
    a(f'v_cndmask_b32 v4, v10, v4, s[{sMV}:{sMV+1}]')
    for o in range(2):
        sq = vSQo+4*o
        a(f'v_cndmask_b32 v{sq}, v{sq}, v{sq+1}, s[{sM1}:{sM1+1}]')
        a(f'v_cndmask_b32 v{sq}, v{sq}, v{sq+2}, s[{sM2}:{sM2+1}]')
        a(f'v_cndmask_b32 v{vSXo+1+2*o}, v{sq}, v{sq+3}, s[{sM3}:{sM3+1}]')
    if not dft:
        a(f'v_lshlrev_b32 v5, 2, v{vLANE}')
        for g, m in ((1,sM1),(2,sM2),(3,sM3)): a(f'v_cmp_eq_u32 s[{m}:{m+1}], {g}, v{vG}')
        for g, m in ((1,sM1),(2,sM2),(3,sM3)): a(f'v_cndmask_b32 v{vCS}, v{vCS}, v{vCS+4*g}, s[{m}:{m+1}]')
    a(f's_add_u32 s{sT+6}, s{sXS}, s{sL}')
    a(f's_add_u32 s{sT+7}, s{sCS}, s{sL}')
    a(f'v_lshlrev_b32 v15, 4, v{vLANE}')
    return r
def stats_reduce_ops(dft):
    r = []; a = r.append
    a(f's_lshl_b32 s{sT}, s{sW}, {7 if dft else 9}')
    a(f's_add_u32 s{sT}, s{sT}, {LST}')
    a(f'v_permlane32_swap_b32 v96, v98')
    a(f'v_permlane32_swap_b32 v97, v99')
    if not dft:
        a(f'v_permlane32_swap_b32 v112, v114')
        a(f'v_permlane32_swap_b32 v113, v115')
    a(f'v_add_f32 v100, v96, v98')
    a(f'v_add_f32 v101, v97, v99')
    a(f'v_add_f32 v96, v96, v98')
    a(f'v_add_f32 v97, v97, v99')
    if not dft:
        a(f'v_add_f32 v112, v112, v114')
        a(f'v_add_f32 v113, v113, v115')
    a(f'v_lshrrev_b32 v14, 1, v{vG}')
    a(f'v_lshl_add_u32 v14, v14, 4, v{vN}')
    a(f'v_permlane16_swap_b32 v96, v100')
    a(f'v_permlane16_swap_b32 v97, v101')
    if not dft: a(f'v_permlane16_swap_b32 v112, v113')
    a(f'v_lshl_add_u32 v14, v14, {2 if dft else 4}, s{sT}')
    a(f'v_add_f32 v96, v96, v100')
    a(f'v_add_f32 v97, v97, v101')
    if not dft:
        a(f'v_add_f32 v98, v112, v113')
        a(f's_lshl_b32 s{sT}, s{sW}, 8')
        a(f's_add_u32 s{sT}, s{sT}, {LST+4096}')
        a(f'v_lshl_add_u32 v8, v{vN}, 2, v{vG}')
        a(f'v_lshl_add_u32 v8, v8, 2, s{sT}')
        a(f'v_lshl_add_u32 v9, v{vG}, 4, s{sT}')
    a(f'v_mul_f32 v4, {f2u(-1/512):#x}, v96')
    a(f'v_mul_f32 v97, {f2u(1/512):#x}, v97')
    a(f'v_fma_f32 v97, -v4, v4, v97')
    a(f'v_max_f32 v97, 0, v97')
    a(f'v_add_f32 v97, {f2u(1e-5):#x}, v97')
    a(f'v_rsq_f32 v7, v97')
    if dft: a(f'v_lshlrev_b32 v15, 4, v{vG}')
    else:
        a(f'v_sqrt_f32 v5, v97')
        a(f'v_mul_f32 v6, {f2u(-LOG2E):#x}, v7')
        if C.ftz:
            a(f's_mov_b32 s{sM1}, {f2u(128.0-C.ftz):#x}')
            a(f'v_mul_f32 v7, {f2u(2.0**(C.ftz-128)):#x}, v5')
        a(f'v_lshlrev_b32 v15, 4, v{vN}')
    w = []
    if dft: w += [f'ds_write_b32 v14, v7', f'ds_write_b128 v{vCS+6}, v[112:115]']
    else:
        w.append(f'ds_write_b32 v8, v98')
        w.append(f'ds_write_b128 v14, v[4:7]')
        w += [f'ds_read_b128 {vr(vCS+4*wf,4)}, v9 offset:{64*wf}' for wf in range(4)]
    return r, w
TFO = [0, 2, 4, 6, 1, 3, 5, 7]
def rec(k): return vWF+4*k
def rec_read(k, dft): return f'ds_read_b128 {vr(rec(k),4)}, v15 offset:{LST+(64*k if dft else 256*TFO[k])}'
def epi_addr_ops(dft):
    r = []; a = r.append
    if dft:
        a(f's_lshl_b32 s{sT+2}, s{sI}, 12')
        a(f's_lshl_b32 s{sT+1}, s{sJ}, 11')
        a(f's_add_u32 s{sT+2}, s{sT+2}, s{sT+1}')
        a(f's_lshl_b32 s{sT+1}, s{sW}, 9')
        a(f's_add_u32 s{sT+2}, s{sT+2}, s{sT+1}')
        a(f'v_mul_u32_u24 v16, {2*GP}, v{vG}')
        a(f'v_lshl_add_u32 v17, v{vN}, 4, s{sT+2}')
        a(f'v_add_u32 v16, v16, v17')
        a(f's_lshr_b32 s{sT+12}, s{sI}, 2')
        a(f's_lshl_b32 s{sT+12}, s{sT+12}, 7')
        a(f's_add_u32 s{sT+12}, s{sT+12}, s{sM0}')
        a(f's_add_u32 s{sT+12}, s{sT+12}, {FLG_OFF}')
    else:
        a(f's_mul_i32 s{sT+2}, s{sI}, {8*HP}')
        a(f's_lshl_b32 s{sT+1}, s{sJ}, 2')
        a(f's_add_u32 s{sT+1}, s{sT+1}, s{sW}')
        a(f's_mul_i32 s{sT+12}, s{sT+1}, 4682')
        a(f's_lshl_b32 s{sT+1}, s{sT+1}, 10')
        a(f's_add_u32 s{sT+4}, s{sT+2}, s{sT+1}')
        a(f'v_lshlrev_b32 v16, 4, v{vLANE}')
        a(f's_lshr_b32 s{sT+12}, s{sT+12}, 16')
        a(f's_lshl_b32 s{sT+1}, s{sI}, 2')
        a(f's_add_u32 s{sT+12}, s{sT+12}, s{sT+1}')
        a(f's_lshl_b32 s{sT+12}, s{sT+12}, 8')
        a(f's_add_u32 s{sT+11}, s{sT+12}, {FL_OFF}')
        a(f's_add_u32 s{sT+12}, s{sT+12}, {FL_OFF+128}')
    return r

def spin(a, tag, load, test, cnt, sleep=2, first=True):
    if first:
        a.wait(lgkm=0)
        for t in test: a(t)
        a(f's_cbranch_scc1 L{tag}_ok')
    a(f's_mov_b32 s{cnt}, 0')
    a.label(f'L{tag}_spin')
    for t in load + [f's_add_u32 s{cnt}, s{cnt}, 1', 's_waitcnt lgkmcnt(0)'] + test + [f's_cbranch_scc1 L{tag}_ok'] + ([f's_sleep {sleep}'] if sleep else []) + [f's_cmp_lt_u32 s{cnt}, 0x100000', f's_cbranch_scc1 L{tag}_spin']:
        a.raw('    '+t)
    a.label(f'L{tag}_ok')
    if not first: a.lgkm = []; a.smem_out = []

def phaseA(a, dft, q, z):
    tag = 'd' if dft else 'g'
    full = master_list(dft)
    master = full[4:]
    cnt = {}; c = 0
    for t in full: c += 4; cnt[t] = c
    def lastneed(n):
        return [t for t in full if (t[0] == 'W' and t[1] <= n+1) or (t[0] == 'X' and 2*t[1] <= n+1)][-1]
    def enqueue(nb):
        while master:
            t = master[0]
            if t[0] == 'W' and t[1]-((8 if t[1] < 12 else 4) if dft else 6) > nb: break
            if t[0] == 'X' and t[1] >= 4 and t[1]-4 > (nb >> 1)-1: break
            q.pend += items(master.pop(0), dft)
    def front(its):
        k = 1 if q.predone else 0
        q.pend[k:k] = its; q.limit += len(its)
        for t in cnt: cnt[t] += len(its)
    def setlimit(n):
        q.limit = cnt[lastneed(n)] + (C.dcap if dft else C.cap) if n < C.capn else 10**9
    enqueue(-1)
    a.wait(lgkm=0)
    q.need(('W',0))
    a('s_barrier')
    stamp(a, 17)
    setlimit(0)
    wr = w_reads(0, dft)
    a(wr[0]); a(wr[1]); a(x_read(0))
    for t in wr[2:]: a(t)
    a(x_read(1)); a(x_read(2))
    for t in stats_reads(0): a(t)
    fq = []
    red, redw = stats_reduce_ops(dft)
    spoll = f's_load_dword s{sFV}, s[78:79], s{sT+8} glc'
    dbgld = f's_load_dword s{sFV}, s[76:77], 0'
    rd0 = 12 if dft else C.rd0
    for n in range(16):
        s, p = n >> 1, n & 1
        wr = w_reads(n+1, dft) if n < 15 else []
        wfree = dft and (n+1) & 2
        bar_tf = C.bar if n < 15 else None
        if n == (0 if dft else 6): late = late_setup_ops() + (dft_R_addr() if dft else [])
        else: late = []
        if n == C.spoll: fq.insert(0, spoll)
        if n == 3: fq.insert(0, dbgld)
        if n == 11: fq += red
        if n == 14: fq += epi_addr_ops(dft)
        for tf in range(8):
            k = 8*n+tf; q.pos = k
            can_w = wfree or bar_tf is None or tf > bar_tf
            dpos = [[pp for t,pp in q.log if t == ('D',u)] for u in range(14)]
            dmax = min(rd0, len([1 for u,d in enumerate(dpos) if len(d) == 4 and d[3]+(C.ddlag if dft and u < 2 else C.dlag) <= k]))
            rate = 8 if n < 5 else C.rate
            if q.ready() and q.pend[0][0][0] == 'D' and q.pend[-1][0][0] == 'D':
                u = q.pend[0][0][1]
                rate = (C.ddrate if u < 4 else 8) if dft else (C.drate if u >= C.dslow else 4)
            slot = (tf*rate) % 8 < rate
            def other(cnt_):
                for _ in range(cnt_):
                    if can_w and wr: a(wr.pop(0))
                    elif dft and q.read1(dmax): pass
                    elif fq: a(fq.pop(0))
                    elif q.read1(dmax): pass
            def flush():
                while fq: a(fq.pop(0))
            if n == 4 and tf == 0:
                flush()
                its = [(('S',0), [], f'buffer_store_dwordx4 {vr(vSXo,4)}, v4, {S(sWS)}, s{sT+6} offen sc1')]
                if not dft: its.append((('S',0), [], f'buffer_store_dword v{vCS}, v5, {S(sWS)}, s{sT+7} offen sc1'))
                front(its)
            if tf == 0: fq += late
            for wf in range(4):
                w2 = 3-wf if (C.snake and tf & 1) else wf
                c = vr(acc(tf,w2),4); wfr = vr(fW(p,w2),4); xf = vr(fX(k),4)
                src = f'{xf}, {wfr}' if dft else f'{wfr}, {xf}'
                a(f'{MF} {c}, {src}, {c if n else 0}')
                if wf == 0:
                    if k+3 < 128: a(x_read(k+3)); other(1)
                    else: other(2)
                elif wf == 1:
                    if slot and q.haspre(): q.pre()
                    else: other(2)
                elif wf == 2:
                    if slot and q.ready() and not q.haspre(): q.issue(1)
                    else: other(2)
                elif tf != bar_tf: other(1)
                else:
                    q.limit = 10**9
                    while q.has(lastneed(n)): q.issue(1)
                    if n in (0, 1, 5, 9) or (n == 12 and dft): flush()
                    if n < 4:
                        for t in stats_mfma(dft, n): a(t)
                    if n == 0: scalar_late(a, dft)
                    if n == 1 and C.pads: a.raw(f';WARM {tag}')
                    q.need(lastneed(n))
                    if n == 5:
                        q.need(('S',0))
                        spin(a, tag+'i', [f'global_load_dword v{vDBG}, v11, s[76:77] sc1', 's_waitcnt vmcnt(0)', f'v_readfirstlane_b32 s{sFV}, v{vDBG}', 's_nop 3'], [f's_cmp_lg_u32 s{sFV}, 0'], sT+14)
                    if n == 9: spin(a, tag+'s', [spoll], [f's_cmp_eq_u32 s{sFV}, 8'], sT+14)
                    a('s_barrier')
                    if n == 0:
                        assert z not in a.vm
                        a(f's_or_b32 s{sT}, s2, s{sW}')
                        a(f's_cbranch_scc1 L{tag}_noinit')
                        a(f's_atomic_add s{sONE}, s[76:77], 0')
                        a.label(f'L{tag}_noinit')
                    if n == 2: a.smem_out = []
                    if n == 5: a(f's_atomic_add s{sONE}, s[78:79], s{sT+8}')
                    if n == 7: a.smem_out = []
                    if n in (1,3,7,11,13): stamp(a)
                    enqueue(n); setlimit(n+1)
                    if n < 3: wr += stats_reads(n+1)
                    if n == 3: fq += stats_pack_ops(dft)
                    if n == 9:
                        g = [(('A',0), [], f'buffer_load_dwordx4 {vr(96,4)}, v15, {S(sWS)}, s{sXS} offen sc1')]
                        if not dft: g += [(('A',0), [], f'buffer_load_dwordx4 {vr(112,4)}, v15, {S(sWS)}, s{sCS} offen sc1')]
                        front(g)
                    if n == 0 and dft and C.dearly:
                        its = q.plan.dma(0) + q.plan.dma(1); q.nD = 2
                        its += [(('T',0), [], f'buffer_load_dword v14, v{vCS}, {S(sG)}, 0 offen'), (('T',0), [], f'buffer_load_dword v14, v{vCS+1}, {S(sU)}, 0 offen offset:1024')]
                        tg = [('X',2), ('W',4), ('W',5)][C.dearly-1]
                        k0 = max(i for i,t in enumerate(q.pend) if t[0] == tg)+1
                        q.pend[k0:k0] = its
                        for t in cnt:
                            if cnt[t] > cnt[tg]: cnt[t] += len(its)
                    if n == 12 and dft: q.pend += dft_R_loads()
                    for nn, up in q.plan.avail.items():
                        if nn <= n: q.addD(up)
                    if n >= 10: assert not master
                    if n == 13: fq += redw
            if n == 10 and tf == 0: assert not q.has(('A',0))
            if n == 13 and tf == 7: assert not q.has(('X',7))
            if n == 15 and tf == 5:
                flush()
                if dft: q.need(('R',0))
                a.wait(lgkm=0)
                a('s_barrier')
                fq += [rec_read(t4, dft) for t4 in range(4)]
                if dft: fq += dft_R_reads()
                q.addD(14)
        assert not wr, (n, wr)
    for t4 in range(4, 8): fq.append(rec_read(t4, dft))
    while fq: a(fq.pop(0))
    q.pos = 128
    if C.log: print(tag, ' '.join(f'{t[0]}{t[1]}@{p//8}.{p%8}' for t,p in q.log), 'reads left', len(q.rq), 'dma left', q.left(), file=sys.stderr)
    if not dft:
        q.readD(C.rd0)
        while q.left() > C.dleft: q.issue(1)

def glu_epilogue(a, q):
    sts = []
    for k, tf in enumerate(TFO):
        R = rec(k); G = acc(tf,0); U = acc(tf,2); hb = vSXo+4*(k&1)
        ms = vr(R,2); ar_ = vr(R+2,2)
        for r in range(0,8,2): a(f'v_pk_fma_f32 {vr(G+r,2)}, {vr(vCS+r,2)}, {ms}, {vr(G+r,2)} op_sel_hi:[1,0,1]')
        for r in range(0,8,2):
            if C.ftz: a(f'v_pk_fma_f32 {vr(G+r,2)}, {vr(G+r,2)}, {ar_}, s[{sM1}:{sM1+1}] op_sel_hi:[1,0,0]')
            else: a(f'v_pk_mul_f32 {vr(G+r,2)}, {vr(G+r,2)}, {ar_} op_sel_hi:[1,0]')
        for r in range(8):
            a(f'v_exp_f32 v{G+r}, v{G+r}')
            if tf == 0 and r == 5: a.wait(lgkm=0)
        for r in range(0,8,2): a(f'v_pk_fma_f32 {vr(U+r,2)}, {vr(vCS+8+r,2)}, {ms}, {vr(U+r,2)} op_sel_hi:[1,0,1]')
        for r in range(0,8,2): a(f'v_pk_fma_f32 {vr(G+r,2)}, {vr(G+r,2)}, {ar_ if C.ftz else ms}, {ms} op_sel:[0,1,1] op_sel_hi:[1,1,1]')
        q.issue(C.epi_dma)
        for r in range(8): a(f'v_rcp_f32 v{G+r}, v{G+r}')
        if k: a(f's_add_u32 s{sT+4}, s{sT+4}, {2*HP}' if k != 4 else f's_sub_u32 s{sT+4}, s{sT+4}, {5*HP}')
        for r in range(0,8,2): a(f'v_pk_mul_f32 {vr(U+r,2)}, {vr(U+r,2)}, {vr(G+r,2)}')
        for d in range(4): a(f'v_cvt_pk_bf16_f32 v{hb+d}, v{U+2*d}, v{U+2*d+1}')
        sts.append(a(f'buffer_store_dwordx4 {vr(hb,4)}, v16, {S(sWS)}, s{sT+4} offen sc1'))
    a.wait_vm_for(sts[3])
    a(f's_atomic_add s{sONE}, s[78:79], s{sT+11}')
    return sts[7]

def dft_epilogue(a, q):
    Z = lambda z, sub, m: 96+16*z+8*sub+4*m
    D2 = lambda jb,z,wf: vACC+32*jb+16*z+4*wf
    nst = [0]
    def stores(jb, fb):
        out = []
        for rp in range(2):
            t = 48+4*(nst[0] & 3); nst[0] += 1
            for z in range(2):
                for m in range(2): out.append(f'v_cvt_pk_bf16_f32 v{t+2*z+m}, v{D2(jb,z,2*m+fb)+2*rp}, v{D2(jb,z,2*m+fb)+2*rp+1}')
            out.append(f's_mov_b32 s{sT+2}, {G_OFF-14*2048+(8*jb+rp)*GP}')
            out.append(f'buffer_store_dwordx4 {vr(t,4)}, v16, {S(sWS)}, s{sT+2} offen offset:{256*fb} sc1')
        return out
    pend = []
    for fb in range(2):
        for z in range(2):
            for sub in range(2):
                for m in range(2):
                    for qq in range(2):
                        tf = 4*z+2*qq+sub; A = acc(tf, 2*m+fb)
                        for r in (0,2): a(f'v_pk_mul_f32 {vr(A+r,2)}, {vr(A+r,2)}, {vr(rec(tf)+r,2)}')
                for m in range(2):
                    for r in range(4): a(f'v_cvt_pk_bf16_f32 v{Z(z,sub,m)+r}, v{acc(4*z+sub,2*m+fb)+r}, v{acc(4*z+2+sub,2*m+fb)+r}')
                if fb == 0 and z == 0 and sub == 0: a.wait(lgkm=0); a('s_nop 0')
                for t in pend[:6]: a(t)
                pend = pend[6:]
                q.issue(C.epi_dma)
        for jb in range(4):
            n = 0
            for sub in range(2):
                for z in range(2):
                    for m in range(2):
                        c = vr(D2(jb,z,2*m+fb),4)
                        a(f'{MF} {c}, {ar(aR+8*jb+4*sub,4)}, {vr(Z(z,sub,m),4)}, {c if sub else 0}')
                        n += 1
                        if n >= 3:
                            for t in pend[:2]: a(t)
                            pend = pend[2:]
            assert not pend
            pend = stores(jb, fb)
    for t in pend: last = a(t)
    return last

vHA, vGA, vHS, vPW, vXS, vH, NH, vAC = 14, 26, 30, 15, 64, 128, 16, 192
PR = {1: 18, 2: 20, 3: 21}
sMB = sOWN
LPX = 4*UN
SEQ = [(sl, ks) for sl in range(4) for ks in range(14)]
def hload(a, n):
    sl, ks = SEQ[n]
    return a(f'buffer_load_dwordx4 {vr(vH+4*(n%NH),4)}, v{vHS+sl}, {S(sWS)}, s{sPO+(ks>>1)} offen offset:{(ks&1)*1024} sc1')
def hpoll(r): return [f's_mov_b32 s{sFV}, 0', f's_atomic_add s{sFV}, s[78:79], s{r} glc']
def presync(a, dft, q, last):
    tag = 'd' if dft else 'g'
    lazy(a, 0)
    q.issue(C.pre)
    a(f's_mov_b32 s{sMB}, {1<<20}')
    a(f's_lshr_b32 s{sT}, s{sR}, 1')
    a(f's_lshl_b32 s{sT}, s{sT}, 2')
    a(f's_add_u32 s{sT}, s{sT}, s{sW}')
    a(f's_lshl_b32 s{sT}, s{sT}, 8')
    a(f's_add_u32 s{sT+15}, s{sT}, {FL_OFF}')
    a(f's_add_u32 s{sT+13}, s{sT}, {FL_OFF+128}')
    q.readD(C.rd1 if not dft else C.drd1)
    a(f'v_lshlrev_b32 v{vHA}, 4, v{vLANE}')
    a(f's_mul_i32 s{sT+2}, s{sR}, {4*HP}')
    a(f's_mul_i32 s{sT+1}, s{sW}, {14*1024}')
    a(f's_add_u32 s{sT+2}, s{sT+2}, s{sT+1}')
    a(f's_and_b32 s{sT}, s{sW}, 2')
    a(f's_mul_i32 s{sT+1}, s{sT}, {HP}')
    a(f's_add_u32 s{sT+1}, s{sT+1}, s{sT+2}')
    a(f'v_add_u32 v{vHS+1}, s{sT+1}, v{vHA}')
    a(f's_xor_b32 s{sT}, s{sT}, 2')
    a(f's_mul_i32 s{sT+1}, s{sT}, {HP}')
    a(f's_add_u32 s{sT+1}, s{sT+1}, s{sT+2}')
    a(f'v_add_u32 v{vHS}, s{sT+1}, v{vHA}')
    a(f'v_add_u32 v{vHS+2}, {HP}, v{vHS}')
    a(f'v_add_u32 v{vHS+3}, {HP}, v{vHS+1}')
    a.wait(lgkm=0 if dft else 1, smem=False)
    lazy(a, 1)
    if dft:
        for t in hpoll(sT+15): a(t)
    a(f's_lshl_b32 s{sKX}, s{sR}, 2')
    a(f's_add_u32 s{sKX}, s{sKX}, s{sW}')
    a(f's_lshl_b32 s{sKX}, s{sKX}, 7')
    a(f's_add_u32 s{sKX}, s{sKX}, {FLG_OFF}')
    if dft:
        a(f's_add_u32 s{sM1}, s78, s{sT+12}')
        a(f's_addc_u32 s{sM1+1}, s79, 0')
    a(f'v_add_u32 v{vHA}, {LPX}, v{vHA}')
    a(f'v_add_u32 v{vPW}, s{sM0}, v{vHA}')
    for k in (1,2,3): a(f'v_xor_b32 v{PR[k]}, {k*4096}, v{vPW}')
    if C.gnew:
        a(f's_lshl_b32 s{sT+1}, s{sCB}, 6')
        a(f's_sub_u32 s{sT+2}, s{sT+1}, 256')
        a(f's_sub_u32 s{sT+1}, 193, s{sT+1}')
        a(f's_cmp_ge_u32 s{sCB}, 4')
        a(f's_cselect_b32 s{sT+1}, s{sT+2}, s{sT+1}')
        a(f's_cselect_b32 s{sT+3}, 0, 63')
        a(f'v_add_u32 v5, s{sT+1}, v{vLANE}')
        a(f's_mul_i32 s{sT}, s{sP}, {GP}')
        a(f's_lshl_b32 s{sT+1}, s{sW}, 14')
        a(f's_add_u32 s{sT}, s{sT}, s{sT+1}')
        a(f's_add_u32 s{sT}, s{sT}, {G_OFF}')
        a(f'v_cmp_gt_u32 vcc, 0x100, v5')
        a(f'v_lshl_add_u32 v5, v5, 4, s{sT}')
        a(f's_and_b32 s{sT}, s{sW}, 1')
        a(f's_lshl_b32 s{sT}, s{sT}, 5')
        a(f'v_cndmask_b32 v{vGA}, v10, v5, vcc')
        a(f's_xor_b32 s{sT}, s{sT}, s{sT+3}')
        a(f'v_xor_b32 v4, s{sT}, v{vN}')
        for k in (1,2,3): a(f'v_add_u32 v{vGA+k}, {3072*k}, v{vGA}')
        a(f'v_lshl_add_u32 v4, v{vG}, 6, v4')
        a(f'v_lshlrev_b32 v4, 4, v4')
        a(f'v_add_u32 v{vHA}, {LPX}, v4')
        a(f'v_xor_b32 v19, 0x100, v{vHA}')
    else:
        a(f's_and_b32 s{sT}, s{sW}, 1')
        a(f's_lshl_b32 s{sT}, s{sT}, 11')
        a(f'v_add_u32 v{vHA}, s{sT}, v{vHA}')
        a(f's_mul_i32 s{sT}, s{sP}, {GP}')
        a(f's_lshl_b32 s{sT+1}, s{sW}, 14')
        a(f's_add_u32 s{sT}, s{sT}, s{sT+1}')
        a(f's_add_u32 s{sT}, s{sT}, {G_OFF}')
        a(f'v_lshl_add_u32 v4, v{vG}, 12, s{sT}')
        a(f's_lshl_b32 s{sT+1}, s{sCB}, 6')
        for cbk in range(4):
            a(f'v_add_u32 v5, s{sT+1}, v{vN}')
            a(f'v_add_u32 v5, {16*cbk-256}, v5')
            a(f'v_sub_u32 v6, 0, v5')
            a(f'v_max_i32 v5, v5, v6')
            a(f'v_cmp_gt_u32 vcc, 0x100, v5')
            a(f'v_lshl_add_u32 v5, v5, 4, v4')
            a(f'v_subrev_u32 v4, 0x400, v4')
            a(f'v_cndmask_b32 v{vGA+cbk}, v10, v5, vcc')
    if not dft:
        a.wait_vm_for(last)
        a(f's_atomic_add s{sONE}, s[78:79], s{sT+12}')
        for t in hpoll(sT+15): a(t)
    lazy(a, 2)
    q.issue(99)
    assert not q.left()
    a(f'buffer_load_dwordx4 {vr(48,4)}, v{vOUT}, {S(sX)}, 0 offen')
    a(f'buffer_load_dwordx4 {vr(52,4)}, v{vOUT}, {S(sX)}, s{sMB} offen')
    lazy(a, 3)
    a(f's_cmp_eq_u32 s{sFV}, 14')
    a(f's_cbranch_scc1 L{tag}h_ok')
    keep = list(a.smem_out)
    spin(a, tag+'h', hpoll(sT+15), [f's_cmp_eq_u32 s{sFV}, 14'], sT+14, sleep=0, first=False)
    a.smem_out = keep
    lazy(a, 4)
    for n in range(C.look0): hload(a, n)
    a(f's_add_u32 m0, s{sM0}, {LPX+3*UN}')
    q.readD(14)
    for pr in range(2):
        for d in range(2): a(f'v_permlane16_swap_b32 v{48+4*pr+d}, v{48+4*pr+2+d}')
    for k in range(8):
        a(f'v_lshlrev_b32 v{vXS+2*k}, 16, v{48+k}')
        a(f'v_and_b32 v{vXS+2*k+1}, s{sMSK}, v{48+k}')
    a.wait(vm=C.look0)
    if dft:
        assert last not in a.vm
        a.wait(lgkm=0)
        a('s_barrier')
        for k in range(8): a(f's_atomic_add s{sONE}, s[{sM1}:{sM1+1}], {512*k}')

def phaseB(a):
    gpoll = [f's_load_dword s{sFV}, s[78:79], s{sKX} glc']
    AC = lambda sl,c: vAC+16*sl+4*c
    GF = lambda kp,c: 80+8*kp+4*c
    EP = [112, 120, 48]; LP = [80, 88, 96]; OB = 56
    osc = ("","sc1","nt","sc0 sc1")[C.outsc]
    gl = [f'buffer_load_dwordx4 v{vGA+cbk}, {S(sWS)}, 0 offen offset:{1024*cbk} sc1 lds' for cbk in range(4)]
    def preads(P, half, srcs):
        off = {2: half*UN, 3: half*UN+2048, 1: 2*UN+2048*half}
        return [f'ds_read_b128 {vr(P[{2:0,3:1,1:2}[k]]+4*c,4)}, v{PR[k]} offset:{off[k]+1024*c}' for k in srcs for c in range(2)]
    def adds(d, s_): return [f'v_add_f32 v{d+k}, v{d+k}, v{s_+k}' for k in range(8)]
    def pack(src, ob, so):
        return ([f'v_cvt_pk_bf16_f32 v{ob+k}, v{src+2*k}, v{src+2*k+1}' for k in range(4)] + [f'v_permlane16_swap_b32 v{ob+d}, v{ob+2+d}' for d in range(2)]
                + [f'buffer_store_dwordx4 {vr(ob,4)}, v{vOUT}, {S(sOUT)}, {so} offen {osc}'])
    nl = C.look0
    fillers = []; gm = []; wq = []; after_g = []
    def fill(k):
        for _ in range(k):
            if fillers: a(fillers.pop(0))
    def mf(n, c):
        sl, ks = SEQ[n]
        d = vr(AC(sl,c),4); ci = d
        if ks == 0 and not (sl == 3 and c < 2): ci = vr(vXS+4*c,4) if (sl == 1 and c < 2) else 0
        a(f'{MF} {d}, {ar(16*ks+4*c,4)}, {vr(vH+4*(n%NH),4)}, {ci}')
    lc = 28-C.look-1
    assert C.gb+6 <= 42 and C.lp+6 <= lc < C.gp and C.gb >= 31
    nend = 56-C.defer
    for n in range(nend):
        sl, ks = SEQ[n]
        for j in range(4):
            mf(n, j)
            if j == 0:
                if nl < 56: hload(a, nl); nl += 1
                else: fill(2)
            elif j == 1 and n == C.lp:
                a.wait(lgkm=0)
                for t in hpoll(sT+13): a(t)
            elif j == 1 and n == lc:
                assert nl <= 28
                spin(a, 'l', hpoll(sT+13), [f's_cmp_eq_u32 s{sFV}, 14'], sT+14, sleep=0)
            elif j == 1 and n == C.gp:
                for t in gpoll: a(t)
            elif j == 1 and n == C.gc:
                spin(a, 'g', gpoll, [f's_cmp_eq_u32 s{sFV}, 8'], sT+14, sleep=C.gsl)
            elif j == 1 and n == C.gb:
                assert not wq
                a.wait_vm_for(gdone); a.wait(lgkm=0); a('s_barrier')
                fillers = [f'ds_read_b128 {vr(GF(kp,c),4)}, v{(19 if c else vHA) if C.gnew else vHA} offset:{3*UN+4096*kp+(0 if C.gnew else 1024*c)}' for kp in range(4) for c in range(2)]
                fillers += preads(EP, 0, (2,3,1)) + adds(EP[0], EP[1]) + adds(EP[0], EP[2])
                for kp in range(4):
                    for (sl2, c) in ((1,0),(3,0),(3,1),(1,1)):
                        d = vr(AC(sl2,c),4)
                        gm.append(f'{MF} {d}, {vr(GF(kp,c),4)}, {ar((aCF if sl2 == 1 else aCL)+4*kp,4)}, {vr(vXS+8+4*c,4) if (sl2 == 3 and kp == 0) else d}')
                after_g = adds(EP[0], AC(1,0)) + pack(EP[0], OB, 0)
            elif j == 1 and sl and 1 <= ks and wq: a(wq.pop(0))
            elif j == 1 and sl == 3 and ks == C.xb:
                assert not wq and not gm
                a.wait(lgkm=0); a('s_barrier')
                fillers = preads(LP, 1, (2,3)) + fillers + adds(LP[0], LP[1])
            elif j == 2 and C.gc <= n < C.gc+4: gdone = a(gl[n-C.gc])
            elif j == 2 and nl < 56 and nl-n-1 < C.look:
                hload(a, nl); nl += 1
            else: fill(1 if j == 3 else 2)
        if gm and n >= C.gb+2:
            for t in gm[:4]: a(t); fill(2)
            gm = gm[4:]
        elif after_g and not gm: fillers += after_g; after_g = []
        if ks == 13 and sl < 3:
            assert not wq
            if sl == 1: wq = [f'ds_write_b128 v{vPW}, {vr(AC(1,2+c),4)} offset:{2*UN+1024*c}' for c in range(2)]
            else: wq = [f'ds_write_b128 v{vPW}, {vr(AC(sl,c),4)} offset:{(sl>>1)*UN+1024*c}' for c in range(4)]
        if n == 0: lazy_flush(a, 5); stamp(a, 3)
        if n in (7,14,21,28,35,42,49): stamp(a, 18 if n == 7 else 2)
    assert nl == 56
    for n in range(nend, 56):
        for c in (2, 3): mf(n, c); fill(2)
    fill(99)
    own = [(n, c) for n in range(nend, 56) for c in (0, 1)]
    k0 = min(3, len(own))
    for n, c in own[:k0]: mf(n, c)
    own = own[k0:]
    for c in range(2):
        a(f'ds_write_b128 v{vPW}, {vr(AC(3,2+c),4)} offset:{2*UN+2048+1024*c}')
        if own: mf(*own.pop(0))
    if own: mf(*own.pop(0))
    a.wait(lgkm=0); a('s_barrier')
    for t in preads(LP, 1, (1,)): a(t)
    for n, c in own: mf(n, c)
    stamp(a, 3)
    for k in range(0, 8, 2): a(f'v_pk_add_f32 {vr(LP[0]+k,2)}, {vr(LP[0]+k,2)}, {vr(AC(3,0)+k,2)}')
    for k in range(0, 8, 2): a(f'v_pk_add_f32 {vr(LP[0]+k,2)}, {vr(LP[0]+k,2)}, {vr(LP[2]+k,2)}')
    for t in pack(LP[0], OB+4, f's{sMB}'): a(t)
    stamp(a)

def kernel(a):
    q = Q(a)
    prologue(a, q)
    for t in master_list(False)[1:4]: q.pend += items(t)
    assert C.cap0 <= 8
    q.issue(6)
    stamp(a)
    z = setup2(a)
    for t in coef_ops(): a(t)
    q.issue(C.cap0-2)
    stamp(a)
    a(f's_cmp_ge_u32 s{sJ}, 14')
    a('s_cbranch_scc1 L_dft')
    st = a.snapshot(); n0 = St.n; q2 = q.clone(True)
    phaseA(a, False, q, z); stamp(a, 17)
    presync(a, False, q, glu_epilogue(a, q))
    def state(): return ([i.text for i in a.vm], St.n)
    join = state(); jl = [i.text for i in a.lgkm]
    a.label('L_phaseB')
    a.raw(';PAD0') if C.pads else a('s_nop 0')
    phaseB(a)
    stamp_flush(a)
    a.label('L_end')
    a('s_endpgm')
    a.restore(st); St.n = n0; q = q2
    a.raw('.p2align 3')
    a.label('L_dft')
    phaseA(a, True, q, z); stamp(a, 17)
    presync(a, True, q, dft_epilogue(a, q))
    assert join == state(), (join, state())
    assert not a.lgkm
    a('s_branch L_phaseB')
    if a.blocked: print('waits that block on smem at lines', a.blocked, file=sys.stderr)

def layout(lines, base):
    out = []
    for l in lines:
        if l.startswith(';WARM'):
            t = l.split()[1]
            out += [f'    s_mov_b32 s1, {1 if t == "d" else 0}', '    s_mov_b64 exec, 0']
            for w in range(3): out += [f'    s_cmp_eq_u32 s{sW}, {w}', f'    s_cbranch_scc1 @{t}{w}']
            out += [f'    s_branch @{t}3']
            if t == 'g': out += ['Ltramp:', '    s_cmp_eq_u32 s1, 1', '    s_cbranch_scc1 Lret_d']
            out += [f'Lret_{t}:', '    s_mov_b64 exec, -1']
        elif l == ';PAD0': out += ['Lpad_s0:', '    s_cbranch_execz @next_s0']
        else: out.append(l)
    import re
    sz = sizes_of([re.sub(r'@\w+', 'L_end', l) for l in out])
    idx = [i for i,l in enumerate(out) if l.startswith('    ') and not l.strip().startswith((';','.'))]
    assert len(idx) == len(sz)
    size = dict(zip(idx, sz))
    res = []; addr = base; cand = None; fixed = left = 0; region = None; pads = {'g': [], 's': ['s0'], 'd': []}
    page = addr >> 12
    for i,l in enumerate(out):
        if l == 'Lret_g:': region = 'g'
        if l == 'L_phaseB:': region = 's'
        if l == 'L_end:': region = None
        if l == 'Lret_d:': region = 'd'
        if l.startswith('.p2align 3'): addr = (addr+7)//8*8; cand = None; res.append(l); continue
        if i not in size: res.append(l); continue
        if (addr >> 12) != page:
            page = addr >> 12
            if region and C.pads and 'exec' not in l:
                nm = f'{region}{len(pads[region])}'; pads[region].append(nm)
                res += [f'Lpad_{nm}:', f'    s_cbranch_execz @next_{nm}']; addr += 4
                if C.log: print('pad', nm, 'before line', i, l.strip()[:60], file=sys.stderr)
        s = size[i]
        if s == 8 and addr % 8 == 4:
            if cand is not None and C.align:
                op = res[cand].split()[0]; res[cand] = res[cand].replace(op, op+'_e64', 1); addr += 4; fixed += 1
            elif addr % 32 == 28: left += 1
        res.append(l)
        if s == 8: cand = None
        elif l.split()[0] in PROMO and addr % 8 == 0: cand = len(res)-1
        addr += s
    tgt = {}
    sp = pads['s']
    for k, nm in enumerate(sp): tgt[f'next_{nm}'] = f'Lpad_{sp[k+1]}' if k+1 < len(sp) else 'Ltramp'
    for t in 'gd':
        own = pads[t]
        for k, nm in enumerate(own): tgt[f'next_{nm}'] = f'Lpad_{own[k+3]}' if k+3 < len(own) else f'Lret_{t}'
        for w in range(3): tgt[f'{t}{w}'] = f'Lpad_{own[w]}' if w < len(own) else f'Lret_{t}'
        tgt[f'{t}3'] = f'Lpad_{sp[0 if t == "d" or len(sp) == 1 else 1]}'
    res = [re.sub(r'@(\w+)', lambda m: tgt[m.group(1)], l) for l in res]
    print('align fixed', fixed, 'left', left, 'pads', pads, 'bytes', addr-base, file=sys.stderr)
    assert addr-base <= 32*CODE_LINES_PER_WG*128
    return res

def build():
    out = ['; @launch grid=(256,1,1) block=(256,1,1) lds=163840', '; '+' '.join(sys.argv[2:]),
           '.amdgcn_target "amdgcn-amd-amdhsa--gfx950"', '.text', '.p2align 12']
    if C.shift: out.append(f'.fill {64*C.shift}, 4, 0xbf800000')
    nm = NAME+'_kernel'
    a = Asm(); kernel(a)
    lines = layout(a.lines, 0x300+256*C.shift)
    out += [f'.globl {nm}', '.p2align 8', f'.type {nm},@function', f'{nm}:', '\n'.join(lines)]
    out.append('L_code_end:')
    out.append(f'.fill ({32*CODE_LINES_PER_WG*128+256} - (L_code_end - {nm}))/4, 4, 0xbf800000')
    out.append('.section .rodata,"a"')
    out.append('.p2align 6')
    out.append(f'''.amdhsa_kernel {nm}
  .amdhsa_next_free_vgpr 512
  .amdhsa_next_free_sgpr 102
  .amdhsa_accum_offset 256
  .amdhsa_group_segment_fixed_size 0
  .amdhsa_kernarg_size 96
  .amdhsa_user_sgpr_count 2
  .amdhsa_user_sgpr_kernarg_segment_ptr 1
  .amdhsa_system_sgpr_workgroup_id_x 1
.end_amdhsa_kernel
''')
    return '\n'.join(out)
if __name__ == '__main__':
    for kv in sys.argv[2:]:
        k, v = kv.split('='); assert hasattr(C, k), k; setattr(C, k, int(v))
    HP = 56*1024+C.hpad; GP = 65536+C.gpad
    t = build()
    open(sys.argv[1], 'w').write(t)
```

```python
import sys, struct
from asmlib import *

NAME = 'parallel_sum__spectral_fnet__glu_gated_glu__prompt'
HP = 56*1024+128
GP = 65536+128
G_OFF = 0x790000
FL_OFF = 0xA00000
FLS_OFF = FL_OFF+128*128
FLG_OFF = FLS_OFF+4
NFL = 256
XS_OFF = 0xA10000
CS_OFF = 0xA50000
WS_BYTES = 0xA90000
STAMP_OFF = 0xC00000
OOB = 0x7f000000
def f2u(x): return struct.unpack('<I', struct.pack('<f', x))[0]
LOG2E = 1.4426950408889634
MF = 'v_mfma_f32_16x16x32_bf16'

class Cfg:
    stamps = 0; log = 0; align = 1
    touch = 0
    tlb = 0
    pads = 1
    shift = 0
    hrot = 0; bmap = 1; drot = 2
    cap0 = 6; cap = 6; capn = 3; bar = 2
    rate = 8; drate = 8; dslow = 0
    spoll = 8; dlag = 10; rd0 = 5; rd1 = 6
    dleft = 16; epi_dma = 0; post = 12
    look = 10; look0 = 8; gp = 18; gc = 24; gb = 36; xb = 6; skipb = 0; snake = 1; defer = 4; lp = 8; pre = 8; mid = 4; xoff = 0; dmap = 1; dstart = 5; ddrate = 4; ddlag = 16; dearly = 0; drotd = 2; dcap = 14; xord = 1; tw = 3; tswap = 5; wsoff = 0; perm = 1; hfl = 0; hoist = 1; gnew = 1; drd1 = 12; plate = 2; ftz = 0; gsl = 0
    infl = 2; pgap = 5
    outsc = 1; tpos = 3; tfl = 0; rmask = 6
    hpad = 0; gpad = 0
C = Cfg()

sMSK, sR, sCB = 3, 6, 7
sPO = 8
sDBG, sX, sG, sU, sWS, sWD, sOUT = 16, 20, 24, 28, 32, 36, 40
sW, sI, sJ, sP = 44, 45, 46, 47
sT = 48
sM0, sKX, sKW, sPITCH, sKCX, sKCW, sL, sXS = 64, 65, 66, 67, 68, 69, 70, 71
sSET, sCS, sOWN, sONE, sFV, sKD, sP2, sP7 = 80, 81, 86, 87, 4, 5, 15, 0
sM1, sM2, sM3, sMV = 88, 90, 92, 94
vLANE, vN, vG, vOUT = 1, 2, 3, 13
vXD, vWD, vD, vXA, vOA, vWA, vTR, vDBG, vSTAMP = 16, 20, 22, 26, 28, 30, 34, 46, 47
vXR, vWF, vSXo, vCS, vSQo, vACC = 48, 64, 96, 104, 120, 128
aSX, aONE, aR, aCL, aCF = 160, 168, 192, 224, 240
UN = 16384
LST = 1*UN
def acc(tf, wf): return vACC+16*tf+4*wf
def fW(p, wf): return vWF+16*p+4*wf
def fX(k): return vXR+4*(k & 3)
def S(r): return f's[{r}:{r+3}]'

class St: n = 0
def stamp(a, grp=1):
    if not (C.stamps & grp): return
    a(f's_memtime s[82:83]')
    a(f's_memrealtime s[84:85]')
    a.wait(lgkm=0)
    a(f'v_writelane_b32 v{vSTAMP}, s82, {St.n}')
    a(f'v_writelane_b32 v{vSTAMP}, s84, {32+St.n}')
    St.n += 1
LZ = [16, 18, 90, 92, 94]
def lazy(a, k):
    if C.stamps & 1: a.raw(f'    s_memrealtime s[{LZ[k]}:{LZ[k]+1}] ; s_memtime')
def lazy_flush(a, n):
    if not (C.stamps & 1): return
    a.raw('    s_waitcnt lgkmcnt(0)')
    for k in range(n):
        a(f'v_writelane_b32 v{vSTAMP}, s{LZ[k]}, {32+St.n}'); St.n += 1
def stamp_flush(a):
    if not C.stamps: return
    a.wait(vm=0)
    stamp(a, 255)
    a(f's_mov_b32 s{sWS+2}, 0x1000000')
    a(f's_lshl_b32 s82, s2, 2')
    a(f's_add_u32 s82, s82, s{sW}')
    a(f's_lshl_b32 s82, s82, 8')
    a(f's_add_u32 s82, s82, {STAMP_OFF}')
    a(f'v_lshlrev_b32 v4, 2, v{vLANE}')
    a(f'buffer_store_dword v{vSTAMP}, v4, {S(sWS)}, s82 offen')

def srd(a, d, ptr, nbytes):
    a(f's_mov_b64 s[{d}:{d+1}], s[{ptr}:{ptr+1}]')
    a(f's_mov_b32 s{d+2}, {nbytes}')
    a(f's_mov_b32 s{d+3}, 0x20000')

def dma_X(s):
    pre = {0: [f's_add_u32 m0, s{sM0}, {(s % 4)*UN}', f's_xor_b32 s{sKX}, s{sKX}, 512' if s & 1 else f's_lshl_b32 s{sKX}, s{sKCX}, 7']}
    if s & 1: pre[1] = [f's_add_u32 s{sKCX}, s{sKCX}, 1', f's_and_b32 s{sKCX}, s{sKCX}, 3'] + ([f's_or_b32 s{sKCX}, s{sKCX}, 4'] if C.xord else [])
    return [(('X', s), pre.get(q, []), f'buffer_load_dwordx4 v{vXD+q}, {S(sX)}, s{sKX} offen offset:{q*1024} lds') for q in range(4)]
def wunit(n, dft): return 4 + (((2 if n >> 2 == 1 else 0)+(n & 1)) if dft else n % 6)
def dma_W(n, dft):
    k = [f's_mul_i32 s{sKW}, s{sKCW}, s{sP2}', f's_add_u32 s{sKW}, s{sKW}, s{sPITCH}', f's_add_u32 s{sKW}, s{sKW}, s{sP7}', f's_add_u32 s{sKW}, s{sKW}, s{sPITCH}'][n & 3]
    pre = {0: [f's_add_u32 m0, s{sM0}, {wunit(n, dft)*UN}', k]}
    if n & 3 == 1: pre[1] = [f's_add_u32 s{sKCW}, s{sKCW}, 1', f's_and_b32 s{sKCW}, s{sKCW}, 3'] + ([f's_or_b32 s{sKCW}, s{sKCW}, 4'] if C.xord else [])
    return [(('W', n), pre.get(q, []), f'buffer_load_dwordx4 v{vWD+(q&1)}, {S(sU if q >> 1 else sG)}, s{sKW} offen offset:{q*1024} lds') for q in range(4)]
class Plan:
    def __init__(self, dft):
        if dft:
            self.units = [8, 9, 6, 7, 8, 9, 6, 7, 0, 8, 9, 6, 7, 4]
            assert C.dstart >= 5
            self.avail = {C.dstart:8, 10:13, 12:14}
        else:
            self.units = [0, 8, 9, 4, 5, 0, 6, 2, 8, 7, 3, 9, 4, 5]
            self.avail = {10:2, 11:3, 12:4, 13:6, 14:9}
        self.prev = {u: max(v for v in range(u) if self.units[v] == self.units[u]) for u in range(14) if self.units[u] in self.units[:u]}
    def dma(self, u):
        pre = {0: [f's_add_u32 m0, s{sM0}, {self.units[u]*UN}',
                   f's_add_u32 s{sKD}, s{sKD}, 32768' if u & 1 else f's_lshl_b32 s{sKD}, s{sPO+(u>>1)}, 5']}
        return [(('D', u), pre.get(q, []), f'buffer_load_dwordx4 v{vD+q}, {S(sWD)}, s{sKD} offen offset:{q*1024} lds') for q in range(4)]
    def reads(self, u):
        un = self.units[u]
        return [f'ds_read_b64_tr_b16 {ar(16*u+4*cbk+2*u2,2)}, v{vTR+4*(un>>2)+cbk} offset:{(un&3)*UN+2048*u2}' for cbk in range(4) for u2 in range(2)]

class Q:
    def __init__(self, a, dft=False):
        self.a = a; self.pend = []; self.last = {}; self.predone = False; self.nD = 0; self.maxD = 0; self.rd = {}
        self.plan = Plan(dft)
        self.rq = [(u, t) for u in range(14) for t in self.plan.reads(u)]; self.issued = 0; self.limit = 10**9; self.log = []; self.pos = -1
    def clone(self, dft):
        q = Q(self.a, dft); q.pend = list(self.pend); q.last = dict(self.last); q.predone = self.predone; q.issued = self.issued; q.log = list(self.log)
        return q
    def left(self): return len(self.pend) + 4*(14-self.nD)
    def ready(self):
        if not self.pend and self.nD < self.maxD:
            pv = self.plan.prev.get(self.nD)
            if pv is None or not self.rq or self.rq[0][0] > pv:
                self.pend += self.plan.dma(self.nD); self.nD += 1
        return bool(self.pend) and self.issued < self.limit
    def haspre(self): return self.ready() and self.pend[0][1] and not self.predone
    def pre(self):
        if self.ready() and not self.predone:
            for t in self.pend[0][1]: self.a(t)
            self.predone = True
    def issue(self, n=1):
        for _ in range(n):
            if not self.ready(): return
            self.pre()
            tag, pf, t = self.pend.pop(0)
            if tag[0] == 'D' and tag[1] in self.plan.prev: self.a.wait_lgkm_for(self.rd[self.plan.prev[tag[1]]])
            self.last[tag] = self.a(t); self.predone = False; self.issued += 1; self.log.append((tag, self.pos))
    def addD(self, upto): self.maxD = max(self.maxD, upto)
    def has(self, tag): return [1 for t in self.pend if t[0] == tag]
    def need(self, tag):
        assert tag in self.last and not self.has(tag), ('not issued', tag)
        self.a.wait_vm_for(self.last[tag])
    def read1(self, upto):
        if not self.rq or self.rq[0][0] >= upto: return False
        u, t = self.rq.pop(0)
        self.need(('D', u))
        self.rd[u] = self.a(t)
        return True
    def readD(self, upto):
        while self.read1(upto): pass

def x_read(k):
    n, tf = k >> 3, k & 7
    return f'ds_read_b128 {vr(fX(k),4)}, v{vXA+(n&1)} offset:{((n>>1) % 4)*UN+tf*2048}'
def w_reads(n, dft):
    if dft and n & 2:
        return [f'v_xor_b32 v{fW(n&1,0)+k}, v12, v{fW(n&1,0)+k}' for k in range(16)]
    un = wunit(n, dft)-4
    return [f'ds_read_b64_tr_b16 {vr(fW(n&1,wf)+2*u,2)}, v{vWA+2*(un>>2)+(wf&1)} offset:{(un&3)*UN+(wf>>1)*2048+u*1024}' for wf in range(4) for u in range(2)]

def master_list(dft):
    m = []
    for n in range(16):
        if n % 2 == 0: m.append(('X', n >> 1))
        if not (dft and n & 2): m.append(('W', n))
    return m
def items(t, dft=False): return dma_X(t[1]) if t[0] == 'X' else dma_W(t[1], dft)

CODE_LINES_PER_WG = 10
def prologue(a, q):
    a('s_cmp_ge_u32 s2, 256')
    a('s_cbranch_scc1 L_end')
    a('s_load_dwordx2 s[4:5], s[0:1], 0')
    a('s_load_dwordx4 s[8:11], s[0:1], 24')
    a('s_load_dwordx4 s[12:15], s[0:1], 48')
    a('s_load_dwordx8 s[72:79], s[0:1], 64')
    St.n = 0
    if C.stamps: a('s_memrealtime s[84:85]'); a('s_memtime s[82:83]')
    a.raw(f'    s_getpc_b64 s[80:81]'); a.hist.append((Ins('s_getpc_b64 s[80:81]'),1))
    a(f's_lshr_b32 s{sT}, s2, 3')
    a(f's_mul_i32 s{sT}, s{sT}, {CODE_LINES_PER_WG*128}')
    a(f'v_min_u32 v4, {CODE_LINES_PER_WG-1}, v0')
    a(f'v_lshl_add_u32 v4, v4, 7, s{sT}')
    a(f'global_load_dword v{vDBG}, v4, s[80:81]')
    a(f'v_and_b32 v{vLANE}, 63, v0')
    a(f'v_lshrrev_b32 v4, 6, v0')
    a(f'v_and_b32 v{vN}, 15, v0')
    a(f'v_readfirstlane_b32 s{sW}, v4')
    a(f'v_bfe_u32 v{vG}, v0, 4, 2')
    if C.perm:
        a(f's_lshr_b32 s{sT}, s2, 2')
        a(f's_xor_b32 s{sT}, s{sT}, s2')
        a(f's_and_b32 s{sT}, s{sT}, 1')
        a(f's_mul_i32 s{sT}, s{sT}, 5')
        a(f's_xor_b32 s2, s2, s{sT}')
    a(f's_and_b32 s{sT}, s2, 1')
    a(f's_lshl_b32 s{sT}, s{sT}, 3')
    a(f's_bfe_u32 s{sI}, s2, {3|(3<<16)}')
    a(f's_add_u32 s{sI}, s{sI}, s{sT}')
    a(f's_bfe_u32 s{sT}, s2, {1|(2<<16)}')
    a(f's_lshr_b32 s{sT+1}, s2, 6')
    if C.dmap:
        a(f's_mul_i32 s{sJ}, s{sT}, 3')
        a(f's_add_u32 s{sJ}, s{sJ}, s{sT+1}')
        a(f's_add_u32 s{sT+2}, s{sT}, 14')
        a(f's_cmp_eq_u32 s{sT+1}, 3')
        a(f's_cselect_b32 s{sT+2}, s{sT+2}, s{sJ}')
        a(f's_cmp_eq_u32 s{sT}, 3')
        a(f's_addc_u32 s{sJ}, s{sJ}, 0')
        a(f's_cmp_lt_u32 s{sT}, 2')
        a(f's_cselect_b32 s{sJ}, s{sT+2}, s{sJ}')
    else:
        a(f's_mul_i32 s{sJ}, s{sT}, 3')
        a(f's_add_u32 s{sJ}, s{sJ}, s{sT+1}')
        a(f's_lshr_b32 s{sT+2}, s2, 4')
        a(f's_xor_b32 s{sT+2}, s{sT+2}, s2')
        a(f's_and_b32 s{sT+2}, s{sT+2}, 2')
        a(f's_lshr_b32 s{sT}, s{sT}, 1')
        a(f's_add_u32 s{sT}, s{sT}, s{sT+2}')
        a(f's_add_u32 s{sT}, s{sT}, 12')
        a(f's_cmp_eq_u32 s{sT+1}, 3')
        a(f's_cselect_b32 s{sJ}, s{sT}, s{sJ}')
    a(f's_xor_b32 s{sT}, s{sI}, s{sT+1}')
    a(f's_and_b32 s{sT}, s{sT}, 1')
    a(f's_lshl_b32 s{sKCX}, s{sT}, 1')
    a(f's_lshr_b32 s{sT}, s2, 1')
    a(f's_xor_b32 s{sT}, s{sT}, s2')
    a(f's_and_b32 s{sT}, s{sT}, 1')
    a(f's_add_u32 s{sKCX}, s{sKCX}, s{sT}')
    a(f's_lshl_b32 s{sL}, s{sKCX}, 8')
    if C.xord: a(f's_or_b32 s{sKCX}, s{sKCX}, 4')
    a(f's_mov_b32 s{sKCW}, s{sKCX}')
    a(f's_sub_u32 s{sT+1}, 32, s{sI}')
    a(f's_cmp_eq_u32 s{sI}, 0')
    a(f's_cselect_b32 s{sT+1}, 16, s{sT+1}')
    a(f's_bitcmp1_b32 s{sW}, 1')
    a(f's_cselect_b32 s{sT}, s{sT+1}, s{sI}')
    a(f's_sub_u32 s{sT+1}, 64, s{sT}')
    a(f's_cmp_eq_u32 s{sT}, 0')
    a(f's_cselect_b32 s{sT+1}, 32, s{sT+1}')
    a(f's_add_u32 s{sT+2}, s{sT}, 32')
    a(f's_movk_i32 s{sT+6}, 3584')
    a(f's_cmp_ge_u32 s{sJ}, 14')
    a(f's_cselect_b32 s{sT+1}, s{sT+2}, s{sT+1}')
    a(f's_cselect_b32 s{sT+6}, 1024, s{sT+6}')
    a(f's_cselect_b32 s{sT+4}, 12, 0')
    a(f's_sub_u32 s{sT+4}, s{sJ}, s{sT+4}')
    a(f's_lshl_b32 s{sT+4}, s{sT+4}, 8')
    a(f's_bitcmp1_b32 s{sW}, 0')
    a(f's_cselect_b32 s{sT}, s{sT+1}, s{sT}')
    a(f's_cselect_b32 s{sT+5}, 8, 0')
    a(f's_lshl_b32 s{sT}, s{sT}, 10')
    a(f'v_lshrrev_b32 v4, 3, v{vLANE}')
    a(f'v_lshl_add_u32 v4, v4, 16, s{sT}')
    a(f'v_and_b32 v6, 7, v{vLANE}')
    a(f'v_xor_b32 v6, v6, v{vG}')
    a(f'v_lshl_add_u32 v{vXD}, v6, 4, v4')
    a(f'v_xor_b32 v7, 64, v{vXD}')
    a(f'v_add_u32 v{vXD+1}, {524288-1024}, v7')
    a(f'v_add_u32 v{vXD+2}, {2*(524288-1024)}, v{vXD}')
    a(f'v_add_u32 v{vXD+3}, {3*(524288-1024)}, v7')
    a(f's_lshl_b32 s{sM0}, s{sW}, 12')
    a(f's_lshl_b32 s{sPITCH}, s{sT+6}, 5')
    a(f's_mov_b32 s{sX+2}, {2048*1024}')
    a(f's_mov_b32 s{sX+3}, 0x20000')
    def waddr():
        a(f's_lshl_b32 s{sT+1}, s{sW}, 3')
        a(f'v_add_u32 v4, s{sT+1}, v{vG}')
        a(f'v_mul_u32_u24 v4, s{sT+6}, v4')
        a(f'v_add_u32 v4, s{sT+4}, v4')
        a(f'v_lshl_add_u32 v7, v{vG}, 1, s{sT+5}')
        a(f'v_xor_b32 v6, v{vN}, v7')
        a(f'v_lshl_add_u32 v{vWD}, v6, 4, v4')
        a(f's_lshl_b32 s{sT+1}, s{sT+6}, 2')
        a(f's_sub_u32 s{sT+1}, s{sT+1}, 1024')
        a(f'v_add_u32 v{vWD+1}, s{sT+1}, v{vWD}')
        a(f's_lshl_b32 s{sG+2}, s{sT+6}, 9')
        a(f's_mov_b32 s{sG+3}, 0x20000')
        a(f's_add_u32 s{sU+2}, s{sG+2}, 2048')
        a(f's_mov_b32 s{sU+3}, 0x20000')
    if C.hoist: waddr()
    sTW = 96
    if C.tw & 2:
        a(f's_lshl_b32 s{sT+1}, s2, 2')
        a(f's_add_u32 s{sT+1}, s{sT+1}, s{sW}')
        a(f's_lshl_b32 s{sT+7}, s{sT+1}, 7')
        a(f's_lshr_b32 s{sT+1}, s2, 3')
        a(f's_add_u32 s{sT+1}, s{sT+1}, s{sW}')
        a(f's_and_b32 s{sT+1}, s{sT+1}, 7')
        a(f's_min_u32 s{sT+1}, s{sT+1}, 5')
        a(f's_lshl_b32 s{sT+1}, s{sT+1}, 21')
        a(f's_add_u32 s{sT+8}, s{sT+1}, s{sT+7}')
    q.pend = items(('X',0)); q.pre()
    a.wait(lgkm=0)
    a(f's_mov_b64 s[{sX}:{sX+1}], s[4:5]')
    if C.stamps:
        a(f'v_writelane_b32 v{vSTAMP}, s84, 32'); a(f'v_writelane_b32 v{vSTAMP}, s82, 0'); St.n = 1
    if not C.tw & 4: q.issue(1)
    a(f's_cmp_ge_u32 s{sJ}, 14')
    a(f's_cselect_b64 s[{sG}:{sG+1}], s[8:9], s[12:13]')
    a(f's_cselect_b64 s[{sU}:{sU+1}], s[10:11], s[14:15]')
    if C.tw & 1:
        if C.tswap:
            a(f's_bitcmp1_b32 s2, {C.tswap}')
            a(f's_cselect_b64 s[8:9], s[{sG}:{sG+1}], s[{sU}:{sU+1}]')
            a(f's_load_dword s{sTW}, s[8:9], 0')
        else:
            a(f's_load_dword s{sTW}, s[{sG}:{sG+1}], 0')
            a(f's_load_dword s{sTW+1}, s[{sU}:{sU+1}], 0')
    if C.tw & 4: q.issue(1)
    if C.wsoff:
        a(f's_add_u32 s78, s78, {C.wsoff << 20}')
        a(f's_addc_u32 s79, s79, 0')
    if C.tw & 2:
        a(f's_load_dword s{sTW+2}, s[78:79], s{sT+8} glc')
        a(f's_load_dword s{sTW+3}, s[76:77], 128')
        a(f's_load_dword s{sTW+4}, s[72:73], 0')
        a(f's_load_dword s{sTW+5}, s[74:75], s{sT+7} glc')
    q.issue(1)
    if not C.hoist: waddr()
    a(f's_sub_u32 s{sU}, s{sU}, 2048')
    a(f's_subb_u32 s{sU+1}, s{sU+1}, 0')
    q.issue(1)
    a(f's_lshl_b32 s{sP2}, s{sPITCH}, 1')
    a(f's_mul_i32 s{sP7}, s{sPITCH}, {-9 if C.xord else 7}')
    q.issue(1)

def setup2(a):
    srd(a, sWS, 78, WS_BYTES)
    a(f's_cmp_eq_u32 s2, 0')
    a(f's_cselect_b32 s{sT+1}, {NFL}, 0')
    a(f's_mov_b32 s{sONE}, 1')
    a(f'v_mov_b32 v4, 0')
    a(f'v_mov_b32 v5, 0')
    a(f'v_mov_b32 v10, {OOB}')
    a(f'v_lshlrev_b32 v8, 7, v0')
    a(f'v_cmp_gt_u32 vcc, s{sT+1}, v0')
    a(f'v_mov_b32 v11, 0')
    a(f's_mov_b32 s{sT+3}, {FL_OFF}')
    a(f'v_cndmask_b32 v8, v10, v8, vcc')
    z = a(f'buffer_store_dwordx2 v[4:5], v8, {S(sWS)}, s{sT+3} offen sc1')
    srd(a, sWD, 72, 1792*1024)
    srd(a, sOUT, 74, 2048*1024)
    a(f'v_lshrrev_b32 v4, 1, v{vN}')
    a(f'v_xor_b32 v4, v4, v{vG}')
    a(f'v_lshlrev_b32 v4, 4, v4')
    a(f'v_lshl_add_u32 v{vXA}, v{vN}, 7, v4')
    a(f'v_xor_b32 v{vXA+1}, 64, v{vXA}')
    a(f'v_add_u32 v{vOA}, s{sM0}, v{vXA}')
    a(f'v_add_u32 v{vOA+1}, s{sM0}, v{vXA+1}')
    a(f'v_bfe_u32 v4, v{vLANE}, 2, 2')
    a(f'v_and_b32 v7, 3, v{vLANE}')
    a(f'v_cmp_eq_u32 s[{sM1}:{sM1+1}], 1, v7')
    a(f'v_cmp_eq_u32 s[{sM2}:{sM2+1}], 2, v7')
    a(f'v_cmp_eq_u32 s[{sM3}:{sM3+1}], 3, v7')
    a(f'v_cmp_eq_u32 s[{sMV}:{sMV+1}], v4, v{vG}')
    a(f'v_lshlrev_b32 v7, 3, v7')
    a(f'v_and_b32 v5, 1, v{vG}')
    a(f'v_lshl_add_u32 v5, v5, 2, v4')
    a(f's_lshl_b32 s{sT}, s{sW}, 1')
    a(f'v_xor_b32 v5, s{sT}, v5')
    a(f'v_lshl_add_u32 v5, v5, 5, v7')
    a(f'v_lshl_add_u32 v5, v4, 8, v5')
    a(f'v_lshl_add_u32 v5, v{vG}, 12, v5')
    a(f'v_add_u32 v{vWA}, {4*UN}, v5')
    a(f'v_xor_b32 v{vWA+1}, 32, v{vWA}')
    a(f'v_add_u32 v{vWA+2}, {4*UN}, v{vWA}')
    a(f'v_add_u32 v{vWA+3}, {4*UN}, v{vWA+1}')
    a(f'v_mov_b32 v4, 0x3f803f80')
    for d in range(4): a(f'v_accvgpr_write_b32 a{aONE+d}, v4')
    if C.bmap == 0:
        a(f's_and_b32 s{sR}, s2, 7')
        a(f's_lshl_b32 s{sR}, s{sR}, 2')
        a(f's_bfe_u32 s{sT}, s2, {3|(2<<16)}')
        a(f's_add_u32 s{sR}, s{sR}, s{sT}')
        a(f's_lshr_b32 s{sCB}, s2, 5')
    elif C.dmap:
        a(f's_and_b32 s{sR}, s2, 3')
        a(f's_lshl_b32 s{sR}, s{sR}, 3')
        a(f's_bfe_u32 s{sT}, s2, {3|(3<<16)}')
        a(f's_add_u32 s{sR}, s{sR}, s{sT}')
        a(f's_lshr_b32 s{sCB}, s2, 6')
        a(f's_xor_b32 s{sCB}, s{sCB}, 2')
        a(f's_and_b32 s{sT}, s2, 4')
        a(f's_add_u32 s{sCB}, s{sCB}, s{sT}')
        a(f's_add_u32 s{sCB}, s{sCB}, 2')
        a(f's_and_b32 s{sCB}, s{sCB}, 7')
    else:
        a(f's_bfe_u32 s{sR}, s2, {1|(2<<16)}')
        a(f's_lshl_b32 s{sR}, s{sR}, 3')
        a(f's_bfe_u32 s{sT}, s2, {3|(3<<16)}')
        a(f's_add_u32 s{sR}, s{sR}, s{sT}')
        a(f's_lshr_b32 s{sCB}, s2, 6')
        a(f's_and_b32 s{sT}, s2, 1')
        a(f's_lshl_b32 s{sT}, s{sT}, 2')
        a(f's_add_u32 s{sCB}, s{sCB}, s{sT}')
        a(f's_add_u32 s{sCB}, s{sCB}, 6')
        a(f's_and_b32 s{sCB}, s{sCB}, 7')
    a(f'v_and_b32 v12, 1, v{vN}')
    a(f'v_mul_u32_u24 v12, 0x8000, v12')
    a(f'v_lshl_or_b32 v12, v12, 16, v12')
    return z

def late_setup_ops():
    r = []; a = r.append
    a(f'v_and_b32 v{vTR+1}, 3, v{vLANE}')
    a(f'v_bfe_u32 v{vTR}, v{vLANE}, 3, 2')
    a(f'v_lshl_add_u32 v{vTR}, v{vTR}, 2, v{vTR+1}')
    a(f'v_lshrrev_b32 v{vTR+1}, 2, v{vLANE}')
    a(f'v_lshl_add_u32 v{vTR}, v{vTR+1}, 4, v{vTR}')
    a(f'v_lshl_add_u32 v{vTR}, v{vTR}, 3, s{sM0}')
    a(f's_and_b32 s{sT}, s{sW}, 1')
    a(f's_lshl_b32 s{sT}, s{sT}, 6')
    a(f'v_xor_b32 v{vTR}, s{sT}, v{vTR}')
    for c in (1,2,3): a(f'v_xor_b32 v{vTR+c}, {32*c}, v{vTR}')
    for wnd in (1,2):
        for c in range(4): a(f'v_add_u32 v{vTR+4*wnd+c}, {wnd*4*UN}, v{vTR+c}')
    a(f's_mul_i32 s{sT}, s{sW}, {448*1024}')
    a(f's_lshl_b32 s{sT+1}, s{sCB}, 7')
    a(f's_add_u32 s{sT}, s{sT}, s{sT+1}')
    a(f'v_lshrrev_b32 v{vD+1}, 3, v{vLANE}')
    a(f'v_lshl_add_u32 v{vD+1}, v{vD+1}, 10, s{sT}')
    a(f'v_and_b32 v{vD}, 7, v{vLANE}')
    a(f'v_lshlrev_b32 v{vD+2}, 1, v{vG}')
    a(f'v_xor_b32 v{vD}, v{vD}, v{vD+2}')
    a(f'v_lshl_add_u32 v{vD}, v{vD}, 4, v{vD+1}')
    for q in (1,2,3): a(f'v_add_u32 v{vD+q}, {q*7168}, v{vD}')
    a(f's_mov_b32 s{sMSK}, 0xffff0000')
    return r

def coef_ops():
    r = []; a = r.append
    T = vACC+16
    a(f's_lshr_b32 s{sT}, s{sR}, 1')
    a(f's_sub_u32 s{sT+1}, 32, s{sT}')
    a(f's_cmp_eq_u32 s{sT}, 0')
    a(f's_cselect_b32 s{sT+1}, 16, s{sT+1}')
    a(f's_bitcmp1_b32 s{sR}, 0')
    a(f's_cselect_b32 s{sP}, s{sT+1}, s{sT}')
    a(f's_sub_u32 s{sT+1}, 64, s{sP}')
    a(f's_cmp_eq_u32 s{sP}, 0')
    a(f's_cselect_b32 s{sT+1}, 32, s{sT+1}')
    a(f's_bitcmp1_b32 s{sW}, 1')
    a(f's_cselect_b32 s{sT+2}, s{sT+1}, s{sP}')
    a(f's_cselect_b32 s{sT+10}, -1.0, 1.0')
    a(f's_cmp_eq_u32 s{sP}, 0')
    a(f's_cselect_b32 s{sT+10}, 0, s{sT+10}')
    a(f's_cmp_eq_u32 s{sT+2}, 32')
    a(f's_cselect_b32 s{sT+9}, 0, 1.0')
    a(f's_cselect_b32 s{sT+11}, 1.0, 0')
    a(f's_cmp_ge_u32 s{sCB}, 4')
    a(f's_cselect_b32 s{sT+8}, 0, 0x80008000')
    a(f'v_lshl_add_u32 v7, v{vN}, 6, s{sT+2}')
    a(f'v_cvt_f32_u32 v5, v7')
    a(f'v_cvt_f32_u32 v4, v{vG}')
    a(f'v_mul_f32 v5, {f2u(1/2048):#x}, v5')
    a(f'v_cmp_eq_u32 vcc, 0, v{vG}')
    a(f's_lshl_b32 s{sT+1}, s{sCB}, 1')
    a(f's_and_b32 s{sT}, s{sW}, 1')
    a(f's_add_u32 s{sT+1}, s{sT+1}, s{sT}')
    a(f's_lshl_b32 s{sT+1}, s{sT+1}, 6')
    a(f'v_lshl_add_u32 v7, v7, 10, s{sT+1}')
    a(f'v_and_b32 v6, 1, v{vG}')
    a(f'v_lshl_add_u32 v7, v6, 5, v7')
    a(f'v_mul_u32_u24 v9, 0x8000, v6')
    a(f'v_lshl_or_b32 v9, v9, 16, v9')
    a(f'v_lshrrev_b32 v6, 1, v{vG}')
    a(f'v_lshl_add_u32 v{vOUT}, v6, 4, v7')
    a(f'v_mov_b32 v7, {f2u(16.0):#x}')
    for kp in range(4):
        for z in range(2):
            if z == 0: a(f'v_add_f32 v6, {f2u(4.0*kp):#x}, v4')
            else:
                a(f'v_sub_f32 v6, {f2u(32.0-4*kp):#x}, v4')
                if kp == 0: a(f'v_cndmask_b32 v6, v6, v7, vcc')
            a(f'v_mul_f32 v6, v6, v5')
            a(f'v_cos_f32 v{T}, v6')
            a(f'v_sin_f32 v{T+1}, v6')
            a(f'v_mul_f32 v{T+2}, s{sT+9}, v{T}')
            a(f'v_mul_f32 v{T+3}, s{sT+11}, v{T}')
            a(f'v_fmac_f32 v{T+3}, s{sT+10}, v{T+1}')
            a(f'v_mul_f32 v{T+4}, s{sT+9}, v{T+1}')
            a(f'v_mul_f32 v{T+5}, s{sT+11}, v{T+1}')
            a(f'v_fma_f32 v{T+5}, -v{T}, s{sT+10}, v{T+5}')
            a(f'v_cvt_pk_bf16_f32 v{T+2}, v{T+2}, v{T+3}')
            a(f'v_cvt_pk_bf16_f32 v{T+4}, v{T+4}, v{T+5}')
            a(f'v_accvgpr_write_b32 a{aCF+4*kp+2*z}, v{T+2}')
            a(f'v_xor_b32 v{T+4}, s{sT+8}, v{T+4}')
            a(f'v_xor_b32 v{T+2}, v9, v{T+2}')
            a(f'v_accvgpr_write_b32 a{aCF+4*kp+2*z+1}, v{T+4}')
            a(f'v_xor_b32 v{T+4}, v9, v{T+4}')
            a(f'v_accvgpr_write_b32 a{aCL+4*kp+2*z}, v{T+2}')
            a(f'v_accvgpr_write_b32 a{aCL+4*kp+2*z+1}, v{T+4}')
    return r

def scalar_late(a, dft):
    a(f's_lshr_b32 s{sT}, s2, 3')
    a(f's_xor_b32 s{sT}, s{sT}, s2')
    a(f's_bfe_u32 s{sT+1}, s{sT}, {4|(1<<16)}')
    a(f's_bfe_u32 s{sT}, s{sT}, {2|(1<<16)}')
    a(f's_lshl_b32 s{sT+1}, s{sT+1}, 1')
    a(f's_add_u32 s{sSET}, s{sT}, s{sT+1}')
    a(f's_lshl_b32 s{sT+2}, s{sSET}, 10')
    a(f's_lshl_b32 s{sT+1}, s{sW}, 1')
    a(f's_and_b32 s{sT+1}, s{sT+1}, 2')
    a(f's_xor_b32 s{sT+1}, s{sT+1}, s{sW}')
    a(f's_cmp_eq_u32 s{sI}, 0')
    a(f's_cselect_b32 s{sT}, s{sW}, s{sT+1}')
    a(f's_cmp_ge_u32 s{sJ}, 14')
    a(f's_cselect_b32 s{sT}, s{sT}, s{sW}')
    a(f's_lshl_b32 s{sXS}, s{sI}, 2')
    a(f's_add_u32 s{sXS}, s{sXS}, s{sT}')
    a(f's_lshl_b32 s{sXS}, s{sXS}, 12')
    a(f's_add_u32 s{sXS}, s{sXS}, s{sT+2}')
    a(f's_add_u32 s{sXS}, s{sXS}, {XS_OFF}')
    a(f's_lshl_b32 s{sCS}, s{sJ}, 14')
    a(f's_add_u32 s{sCS}, s{sCS}, s{sM0}')
    a(f's_add_u32 s{sCS}, s{sCS}, s{sT+2}')
    a(f's_add_u32 s{sCS}, s{sCS}, {CS_OFF}')
    a(f's_add_u32 s{sT}, s{sJ}, 16')
    a(f's_bitcmp1_b32 s{sW}, 0')
    a(f's_cselect_b32 s{sT}, s{sT}, s{sI}')
    a(f's_lshl_b32 s{sT}, s{sT}, 2')
    a(f's_add_u32 s{sT}, s{sT}, s{sSET}')
    a(f's_lshl_b32 s{sT}, s{sT}, 7')
    a(f's_add_u32 s{sT+8}, s{sT}, {FLS_OFF}')
    drot = C.drotd if dft else C.drot
    if drot == 0: a(f's_mov_b32 s{sPO}, 0')
    elif drot == 1:
        a(f's_and_b32 s{sPO}, s{sR}, 1'); a(f's_lshl_b32 s{sPO}, s{sPO}, 13')
    else:
        a(f's_and_b32 s{sPO}, s{sR}, {3 if drot == 2 else 7}')
        a(f's_mul_i32 s{sPO}, s{sPO}, 7')
        a(f's_add_u32 s{sPO}, s{sPO}, 2')
        a(f's_lshr_b32 s{sPO}, s{sPO}, {drot}')
        if C.xoff:
            a(f's_bfe_u32 s{sT}, s2, {1|(1<<16)}')
            a(f's_add_u32 s{sPO}, s{sPO}, s{sT}')
        a(f's_lshl_b32 s{sPO}, s{sPO}, 11')
    for k in range(1, 7):
        a(f's_add_u32 s{sPO+k}, s{sPO+k-1}, 2048')
        a(f's_cmp_eq_u32 s{sPO+k}, {7*2048}')
        a(f's_cselect_b32 s{sPO+k}, 0, s{sPO+k}')

LR = LST+8192
LC = LST+6144
def dft_R_addr():
    r = []; a = r.append; T = vCS
    a(f's_lshl_b32 s{sT}, s{sW}, 16')
    a(f'v_lshrrev_b32 v{T+1}, 3, v{vLANE}')
    a(f'v_lshl_add_u32 v{T+1}, v{T+1}, 13, s{sT}')
    a(f'v_lshlrev_b32 v{T}, 1, v{vG}')
    a(f'v_xor_b32 v{T}, v{T}, v{vLANE}')
    a(f'v_and_b32 v{T}, 7, v{T}')
    a(f'v_lshl_add_u32 v{T}, v{T}, 4, v{T+1}')
    a(f'v_xor_b32 v{T+1}, 16, v{T}')
    a(f'v_add_u32 v{T+1}, 1024, v{T+1}')
    a(f's_lshr_b32 s{sT+9}, s{sM0}, 1')
    a(f'v_lshrrev_b32 v{T+3}, 1, v{vN}')
    a(f'v_and_b32 v{T+4}, 1, v{vN}')
    a(f'v_and_or_b32 v{T+2}, v{T+3}, 6, v{T+4}')
    a(f'v_xor_b32 v{T+2}, v{T+2}, v{vG}')
    a(f'v_lshl_add_u32 v{T+3}, v{T+4}, 3, v{T+3}')
    a(f'v_lshl_add_u32 v{T+2}, v{T+3}, 3, v{T+2}')
    a(f'v_cmp_eq_u32 vcc, 1, v{vN}')
    a(f'v_lshlrev_b32 v{T+2}, 4, v{T+2}')
    a(f'v_add_u32 v{T+2}, {LR}, v{T+2}')
    a(f'v_mov_b32 v{T+6}, {LC}')
    a(f'v_xor_b32 v{T+3}, 64, v{T+2}')
    a(f'v_cndmask_b32 v{T+4}, v{T+2}, v{T+6}, vcc')
    a(f'v_cndmask_b32 v{T+5}, v{T+3}, v{T+6}, vcc')
    for d in range(4): a(f'v_mov_b32 v{112+d}, 0xbf803f80')
    return r
def dft_R_loads():
    return [(('R',0), [f's_add_u32 m0, s{sT+9}, {LR}'], f'buffer_load_dwordx4 v{vCS}, {S(sG)}, 0 offen lds'),
            (('R',0), [], f'buffer_load_dwordx4 v{vCS+1}, {S(sU)}, 0 offen offset:1024 lds')]
def dft_R_reads():
    return [f'ds_read_b128 {ar(aR+8*jb+4*sub,4)}, v{vCS+(2 if jb else 4)+sub} offset:{2048*jb}' for jb in range(4) for sub in range(2)]

def stats_reads(n):
    return [f'ds_read_b128 {ar(aSX+4*o,4)}, v{vOA+(n&1)} offset:{(n>>1)*UN+o*2048}' for o in range(2)]
def stats_mfma(dft, n):
    r = []
    def mf(c, x, y): r.append(f'{MF} {vr(c,4)}, {x}, {y}, {vr(c,4) if n else 0}')
    for o in range(2):
        mf(vSXo+4*o, ar(aONE,4), ar(aSX+4*o,4))
        mf(vSQo+4*o, ar(aSX+4*o,4), ar(aSX+4*o,4))
    if not dft:
        for wf in range(4): mf(vCS+4*wf, ar(aONE,4), vr(fW(n&1,wf),4))
    return r
def stats_pack_ops(dft):
    r = []; a = r.append
    a(f'v_lshlrev_b32 v4, 4, v{vN}')
    a(f'v_mov_b32 v10, {OOB}')
    a(f'v_mov_b32 v{vSXo+2}, v{vSXo+4}')
    a(f'v_cndmask_b32 v4, v10, v4, s[{sMV}:{sMV+1}]')
    for o in range(2):
        sq = vSQo+4*o
        a(f'v_cndmask_b32 v{sq}, v{sq}, v{sq+1}, s[{sM1}:{sM1+1}]')
        a(f'v_cndmask_b32 v{sq}, v{sq}, v{sq+2}, s[{sM2}:{sM2+1}]')
        a(f'v_cndmask_b32 v{vSXo+1+2*o}, v{sq}, v{sq+3}, s[{sM3}:{sM3+1}]')
    if not dft:
        a(f'v_lshlrev_b32 v5, 2, v{vLANE}')
        for g, m in ((1,sM1),(2,sM2),(3,sM3)): a(f'v_cmp_eq_u32 s[{m}:{m+1}], {g}, v{vG}')
        for g, m in ((1,sM1),(2,sM2),(3,sM3)): a(f'v_cndmask_b32 v{vCS}, v{vCS}, v{vCS+4*g}, s[{m}:{m+1}]')
    a(f's_add_u32 s{sT+6}, s{sXS}, s{sL}')
    a(f's_add_u32 s{sT+7}, s{sCS}, s{sL}')
    a(f'v_lshlrev_b32 v15, 4, v{vLANE}')
    return r
def stats_reduce_ops(dft):
    r = []; a = r.append
    a(f's_lshl_b32 s{sT}, s{sW}, {7 if dft else 9}')
    a(f's_add_u32 s{sT}, s{sT}, {LST}')
    a(f'v_permlane32_swap_b32 v96, v98')
    a(f'v_permlane32_swap_b32 v97, v99')
    if not dft:
        a(f'v_permlane32_swap_b32 v112, v114')
        a(f'v_permlane32_swap_b32 v113, v115')
    a(f'v_add_f32 v100, v96, v98')
    a(f'v_add_f32 v101, v97, v99')
    a(f'v_add_f32 v96, v96, v98')
    a(f'v_add_f32 v97, v97, v99')
    if not dft:
        a(f'v_add_f32 v112, v112, v114')
        a(f'v_add_f32 v113, v113, v115')
    a(f'v_lshrrev_b32 v14, 1, v{vG}')
    a(f'v_lshl_add_u32 v14, v14, 4, v{vN}')
    a(f'v_permlane16_swap_b32 v96, v100')
    a(f'v_permlane16_swap_b32 v97, v101')
    if not dft: a(f'v_permlane16_swap_b32 v112, v113')
    a(f'v_lshl_add_u32 v14, v14, {2 if dft else 4}, s{sT}')
    a(f'v_add_f32 v96, v96, v100')
    a(f'v_add_f32 v97, v97, v101')
    if not dft:
        a(f'v_add_f32 v98, v112, v113')
        a(f's_lshl_b32 s{sT}, s{sW}, 8')
        a(f's_add_u32 s{sT}, s{sT}, {LST+4096}')
        a(f'v_lshl_add_u32 v8, v{vN}, 2, v{vG}')
        a(f'v_lshl_add_u32 v8, v8, 2, s{sT}')
        a(f'v_lshl_add_u32 v9, v{vG}, 4, s{sT}')
    a(f'v_mul_f32 v4, {f2u(-1/512):#x}, v96')
    a(f'v_mul_f32 v97, {f2u(1/512):#x}, v97')
    a(f'v_fma_f32 v97, -v4, v4, v97')
    a(f'v_max_f32 v97, 0, v97')
    a(f'v_add_f32 v97, {f2u(1e-5):#x}, v97')
    a(f'v_rsq_f32 v7, v97')
    if dft: a(f'v_lshlrev_b32 v15, 4, v{vG}')
    else:
        a(f'v_sqrt_f32 v5, v97')
        a(f'v_mul_f32 v6, {f2u(-LOG2E):#x}, v7')
        if C.ftz:
            a(f's_mov_b32 s{sM1}, {f2u(128.0-C.ftz):#x}')
            a(f'v_mul_f32 v7, {f2u(2.0**(C.ftz-128)):#x}, v5')
        a(f'v_lshlrev_b32 v15, 4, v{vN}')
    w = []
    if dft: w += [f'ds_write_b32 v14, v7', f'ds_write_b128 v{vCS+6}, v[112:115]']
    else:
        w.append(f'ds_write_b32 v8, v98')
        w.append(f'ds_write_b128 v14, v[4:7]')
        w += [f'ds_read_b128 {vr(vCS+4*wf,4)}, v9 offset:{64*wf}' for wf in range(4)]
    return r, w
TFO = [0, 2, 4, 6, 1, 3, 5, 7]
def rec(k): return vWF+4*k
def rec_read(k, dft): return f'ds_read_b128 {vr(rec(k),4)}, v15 offset:{LST+(64*k if dft else 256*TFO[k])}'
def epi_addr_ops(dft):
    r = []; a = r.append
    if dft:
        a(f's_lshl_b32 s{sT+2}, s{sI}, 12')
        a(f's_lshl_b32 s{sT+1}, s{sJ}, 11')
        a(f's_add_u32 s{sT+2}, s{sT+2}, s{sT+1}')
        a(f's_lshl_b32 s{sT+1}, s{sW}, 9')
        a(f's_add_u32 s{sT+2}, s{sT+2}, s{sT+1}')
        a(f'v_mul_u32_u24 v16, {2*GP}, v{vG}')
        a(f'v_lshl_add_u32 v17, v{vN}, 4, s{sT+2}')
        a(f'v_add_u32 v16, v16, v17')
        a(f's_lshr_b32 s{sT+12}, s{sI}, 2')
        a(f's_lshl_b32 s{sT+12}, s{sT+12}, 7')
        a(f's_add_u32 s{sT+12}, s{sT+12}, s{sM0}')
        a(f's_add_u32 s{sT+12}, s{sT+12}, {FLG_OFF}')
    else:
        a(f's_mul_i32 s{sT+2}, s{sI}, {8*HP}')
        a(f's_lshl_b32 s{sT+1}, s{sJ}, 2')
        a(f's_add_u32 s{sT+1}, s{sT+1}, s{sW}')
        a(f's_mul_i32 s{sT+12}, s{sT+1}, 4682')
        a(f's_lshl_b32 s{sT+1}, s{sT+1}, 10')
        a(f's_add_u32 s{sT+4}, s{sT+2}, s{sT+1}')
        a(f'v_lshlrev_b32 v16, 4, v{vLANE}')
        a(f's_lshr_b32 s{sT+12}, s{sT+12}, 16')
        a(f's_lshl_b32 s{sT+1}, s{sI}, 2')
        a(f's_add_u32 s{sT+12}, s{sT+12}, s{sT+1}')
        a(f's_lshl_b32 s{sT+12}, s{sT+12}, 8')
        a(f's_add_u32 s{sT+11}, s{sT+12}, {FL_OFF}')
        a(f's_add_u32 s{sT+12}, s{sT+12}, {FL_OFF+128}')
    return r

def spin(a, tag, load, test, cnt, sleep=2, first=True):
    if first:
        a.wait(lgkm=0)
        for t in test: a(t)
        a(f's_cbranch_scc1 L{tag}_ok')
    a(f's_mov_b32 s{cnt}, 0')
    a.label(f'L{tag}_spin')
    for t in load + [f's_add_u32 s{cnt}, s{cnt}, 1', 's_waitcnt lgkmcnt(0)'] + test + [f's_cbranch_scc1 L{tag}_ok'] + ([f's_sleep {sleep}'] if sleep else []) + [f's_cmp_lt_u32 s{cnt}, 0x100000', f's_cbranch_scc1 L{tag}_spin']:
        a.raw('    '+t)
    a.label(f'L{tag}_ok')
    if not first: a.lgkm = []; a.smem_out = []

def phaseA(a, dft, q, z):
    tag = 'd' if dft else 'g'
    full = master_list(dft)
    master = full[4:]
    cnt = {}; c = 0
    for t in full: c += 4; cnt[t] = c
    def lastneed(n):
        return [t for t in full if (t[0] == 'W' and t[1] <= n+1) or (t[0] == 'X' and 2*t[1] <= n+1)][-1]
    def enqueue(nb):
        while master:
            t = master[0]
            if t[0] == 'W' and t[1]-((8 if t[1] < 12 else 4) if dft else 6) > nb: break
            if t[0] == 'X' and t[1] >= 4 and t[1]-4 > (nb >> 1)-1: break
            q.pend += items(master.pop(0), dft)
    def front(its):
        k = 1 if q.predone else 0
        q.pend[k:k] = its; q.limit += len(its)
        for t in cnt: cnt[t] += len(its)
    def setlimit(n):
        q.limit = cnt[lastneed(n)] + (C.dcap if dft else C.cap) if n < C.capn else 10**9
    enqueue(-1)
    a.wait(lgkm=0)
    q.need(('W',0))
    a('s_barrier')
    stamp(a, 17)
    setlimit(0)
    wr = w_reads(0, dft)
    a(wr[0]); a(wr[1]); a(x_read(0))
    for t in wr[2:]: a(t)
    a(x_read(1)); a(x_read(2))
    for t in stats_reads(0): a(t)
    fq = []
    red, redw = stats_reduce_ops(dft)
    spoll = f's_load_dword s{sFV}, s[78:79], s{sT+8} glc'
    dbgld = f's_load_dword s{sFV}, s[76:77], 0'
    rd0 = 12 if dft else C.rd0
    for n in range(16):
        s, p = n >> 1, n & 1
        wr = w_reads(n+1, dft) if n < 15 else []
        wfree = dft and (n+1) & 2
        bar_tf = C.bar if n < 15 else None
        if n == (0 if dft else 6): late = late_setup_ops() + (dft_R_addr() if dft else [])
        else: late = []
        if n == C.spoll: fq.insert(0, spoll)
        if n == 3: fq.insert(0, dbgld)
        if n == 11: fq += red
        if n == 14: fq += epi_addr_ops(dft)
        for tf in range(8):
            k = 8*n+tf; q.pos = k
            can_w = wfree or bar_tf is None or tf > bar_tf
            dpos = [[pp for t,pp in q.log if t == ('D',u)] for u in range(14)]
            dmax = min(rd0, len([1 for u,d in enumerate(dpos) if len(d) == 4 and d[3]+(C.ddlag if dft and u < 2 else C.dlag) <= k]))
            rate = 8 if n < 5 else C.rate
            if q.ready() and q.pend[0][0][0] == 'D' and q.pend[-1][0][0] == 'D':
                u = q.pend[0][0][1]
                rate = (C.ddrate if u < 4 else 8) if dft else (C.drate if u >= C.dslow else 4)
            slot = (tf*rate) % 8 < rate
            def other(cnt_):
                for _ in range(cnt_):
                    if can_w and wr: a(wr.pop(0))
                    elif dft and q.read1(dmax): pass
                    elif fq: a(fq.pop(0))
                    elif q.read1(dmax): pass
            def flush():
                while fq: a(fq.pop(0))
            if n == 4 and tf == 0:
                flush()
                its = [(('S',0), [], f'buffer_store_dwordx4 {vr(vSXo,4)}, v4, {S(sWS)}, s{sT+6} offen sc1')]
                if not dft: its.append((('S',0), [], f'buffer_store_dword v{vCS}, v5, {S(sWS)}, s{sT+7} offen sc1'))
                front(its)
            if tf == 0: fq += late
            for wf in range(4):
                w2 = 3-wf if (C.snake and tf & 1) else wf
                c = vr(acc(tf,w2),4); wfr = vr(fW(p,w2),4); xf = vr(fX(k),4)
                src = f'{xf}, {wfr}' if dft else f'{wfr}, {xf}'
                a(f'{MF} {c}, {src}, {c if n else 0}')
                if wf == 0:
                    if k+3 < 128: a(x_read(k+3)); other(1)
                    else: other(2)
                elif wf == 1:
                    if slot and q.haspre(): q.pre()
                    else: other(2)
                elif wf == 2:
                    if slot and q.ready() and not q.haspre(): q.issue(1)
                    else: other(2)
                elif tf != bar_tf: other(1)
                else:
                    q.limit = 10**9
                    while q.has(lastneed(n)): q.issue(1)
                    if n in (0, 1, 5, 9) or (n == 12 and dft): flush()
                    if n < 4:
                        for t in stats_mfma(dft, n): a(t)
                    if n == 0: scalar_late(a, dft)
                    if n == 1 and C.pads: a.raw(f';WARM {tag}')
                    q.need(lastneed(n))
                    if n == 5:
                        q.need(('S',0))
                        spin(a, tag+'i', [f'global_load_dword v{vDBG}, v11, s[76:77] sc1', 's_waitcnt vmcnt(0)', f'v_readfirstlane_b32 s{sFV}, v{vDBG}', 's_nop 3'], [f's_cmp_lg_u32 s{sFV}, 0'], sT+14)
                    if n == 9: spin(a, tag+'s', [spoll], [f's_cmp_eq_u32 s{sFV}, 8'], sT+14)
                    a('s_barrier')
                    if n == 0:
                        assert z not in a.vm
                        a(f's_or_b32 s{sT}, s2, s{sW}')
                        a(f's_cbranch_scc1 L{tag}_noinit')
                        a(f's_atomic_add s{sONE}, s[76:77], 0')
                        a.label(f'L{tag}_noinit')
                    if n == 2: a.smem_out = []
                    if n == 5: a(f's_atomic_add s{sONE}, s[78:79], s{sT+8}')
                    if n == 7: a.smem_out = []
                    if n in (1,3,7,11,13): stamp(a)
                    enqueue(n); setlimit(n+1)
                    if n < 3: wr += stats_reads(n+1)
                    if n == 3: fq += stats_pack_ops(dft)
                    if n == 9:
                        g = [(('A',0), [], f'buffer_load_dwordx4 {vr(96,4)}, v15, {S(sWS)}, s{sXS} offen sc1')]
                        if not dft: g += [(('A',0), [], f'buffer_load_dwordx4 {vr(112,4)}, v15, {S(sWS)}, s{sCS} offen sc1')]
                        front(g)
                    if n == 0 and dft and C.dearly:
                        its = q.plan.dma(0) + q.plan.dma(1); q.nD = 2
                        its += [(('T',0), [], f'buffer_load_dword v14, v{vCS}, {S(sG)}, 0 offen'), (('T',0), [], f'buffer_load_dword v14, v{vCS+1}, {S(sU)}, 0 offen offset:1024')]
                        tg = [('X',2), ('W',4), ('W',5)][C.dearly-1]
                        k0 = max(i for i,t in enumerate(q.pend) if t[0] == tg)+1
                        q.pend[k0:k0] = its
                        for t in cnt:
                            if cnt[t] > cnt[tg]: cnt[t] += len(its)
                    if n == 12 and dft: q.pend += dft_R_loads()
                    for nn, up in q.plan.avail.items():
                        if nn <= n: q.addD(up)
                    if n >= 10: assert not master
                    if n == 13: fq += redw
            if n == 10 and tf == 0: assert not q.has(('A',0))
            if n == 13 and tf == 7: assert not q.has(('X',7))
            if n == 15 and tf == 5:
                flush()
                if dft: q.need(('R',0))
                a.wait(lgkm=0)
                a('s_barrier')
                fq += [rec_read(t4, dft) for t4 in range(4)]
                if dft: fq += dft_R_reads()
                q.addD(14)
        assert not wr, (n, wr)
    for t4 in range(4, 8): fq.append(rec_read(t4, dft))
    while fq: a(fq.pop(0))
    q.pos = 128
    if C.log: print(tag, ' '.join(f'{t[0]}{t[1]}@{p//8}.{p%8}' for t,p in q.log), 'reads left', len(q.rq), 'dma left', q.left(), file=sys.stderr)
    if not dft:
        q.readD(C.rd0)
        while q.left() > C.dleft: q.issue(1)

def glu_epilogue(a, q):
    sts = []
    for k, tf in enumerate(TFO):
        R = rec(k); G = acc(tf,0); U = acc(tf,2); hb = vSXo+4*(k&1)
        ms = vr(R,2); ar_ = vr(R+2,2)
        for r in range(0,8,2): a(f'v_pk_fma_f32 {vr(G+r,2)}, {vr(vCS+r,2)}, {ms}, {vr(G+r,2)} op_sel_hi:[1,0,1]')
        for r in range(0,8,2):
            if C.ftz: a(f'v_pk_fma_f32 {vr(G+r,2)}, {vr(G+r,2)}, {ar_}, s[{sM1}:{sM1+1}] op_sel_hi:[1,0,0]')
            else: a(f'v_pk_mul_f32 {vr(G+r,2)}, {vr(G+r,2)}, {ar_} op_sel_hi:[1,0]')
        for r in range(8):
            a(f'v_exp_f32 v{G+r}, v{G+r}')
            if tf == 0 and r == 5: a.wait(lgkm=0)
        for r in range(0,8,2): a(f'v_pk_fma_f32 {vr(U+r,2)}, {vr(vCS+8+r,2)}, {ms}, {vr(U+r,2)} op_sel_hi:[1,0,1]')
        for r in range(0,8,2): a(f'v_pk_fma_f32 {vr(G+r,2)}, {vr(G+r,2)}, {ar_ if C.ftz else ms}, {ms} op_sel:[0,1,1] op_sel_hi:[1,1,1]')
        q.issue(C.epi_dma)
        for r in range(8): a(f'v_rcp_f32 v{G+r}, v{G+r}')
        if k: a(f's_add_u32 s{sT+4}, s{sT+4}, {2*HP}' if k != 4 else f's_sub_u32 s{sT+4}, s{sT+4}, {5*HP}')
        for r in range(0,8,2): a(f'v_pk_mul_f32 {vr(U+r,2)}, {vr(U+r,2)}, {vr(G+r,2)}')
        for d in range(4): a(f'v_cvt_pk_bf16_f32 v{hb+d}, v{U+2*d}, v{U+2*d+1}')
        sts.append(a(f'buffer_store_dwordx4 {vr(hb,4)}, v16, {S(sWS)}, s{sT+4} offen sc1'))
    a.wait_vm_for(sts[3])
    a(f's_atomic_add s{sONE}, s[78:79], s{sT+11}')
    return sts[7]

def dft_epilogue(a, q):
    Z = lambda z, sub, m: 96+16*z+8*sub+4*m
    D2 = lambda jb,z,wf: vACC+32*jb+16*z+4*wf
    nst = [0]
    def stores(jb, fb):
        out = []
        for rp in range(2):
            t = 48+4*(nst[0] & 3); nst[0] += 1
            for z in range(2):
                for m in range(2): out.append(f'v_cvt_pk_bf16_f32 v{t+2*z+m}, v{D2(jb,z,2*m+fb)+2*rp}, v{D2(jb,z,2*m+fb)+2*rp+1}')
            out.append(f's_mov_b32 s{sT+2}, {G_OFF-14*2048+(8*jb+rp)*GP}')
            out.append(f'buffer_store_dwordx4 {vr(t,4)}, v16, {S(sWS)}, s{sT+2} offen offset:{256*fb} sc1')
        return out
    pend = []
    for fb in range(2):
        for z in range(2):
            for sub in range(2):
                for m in range(2):
                    for qq in range(2):
                        tf = 4*z+2*qq+sub; A = acc(tf, 2*m+fb)
                        for r in (0,2): a(f'v_pk_mul_f32 {vr(A+r,2)}, {vr(A+r,2)}, {vr(rec(tf)+r,2)}')
                for m in range(2):
                    for r in range(4): a(f'v_cvt_pk_bf16_f32 v{Z(z,sub,m)+r}, v{acc(4*z+sub,2*m+fb)+r}, v{acc(4*z+2+sub,2*m+fb)+r}')
                if fb == 0 and z == 0 and sub == 0: a.wait(lgkm=0); a('s_nop 0')
                for t in pend[:6]: a(t)
                pend = pend[6:]
                q.issue(C.epi_dma)
        for jb in range(4):
            n = 0
            for sub in range(2):
                for z in range(2):
                    for m in range(2):
                        c = vr(D2(jb,z,2*m+fb),4)
                        a(f'{MF} {c}, {ar(aR+8*jb+4*sub,4)}, {vr(Z(z,sub,m),4)}, {c if sub else 0}')
                        n += 1
                        if n >= 3:
                            for t in pend[:2]: a(t)
                            pend = pend[2:]
            assert not pend
            pend = stores(jb, fb)
    for t in pend: last = a(t)
    return last

vHA, vGA, vHS, vPW, vXS, vH, NH, vAC = 14, 26, 30, 15, 64, 128, 16, 192
PR = {1: 18, 2: 20, 3: 21}
sMB = sOWN
LPX = 4*UN
SEQ = [(sl, ks) for sl in range(4) for ks in range(14)]
def hload(a, n):
    sl, ks = SEQ[n]
    return a(f'buffer_load_dwordx4 {vr(vH+4*(n%NH),4)}, v{vHS+sl}, {S(sWS)}, s{sPO+(ks>>1)} offen offset:{(ks&1)*1024} {("sc1","sc1 nt","sc0 sc1","sc0 sc1 nt")[C.hfl]}')
def hpoll(r): return [f's_mov_b32 s{sFV}, 0', f's_atomic_add s{sFV}, s[78:79], s{r} glc']
def presync(a, dft, q, last):
    tag = 'd' if dft else 'g'
    lazy(a, 0)
    q.issue(C.pre)
    a(f's_mov_b32 s{sMB}, {1<<20}')
    a(f's_lshr_b32 s{sT}, s{sR}, 1')
    a(f's_lshl_b32 s{sT}, s{sT}, 2')
    a(f's_add_u32 s{sT}, s{sT}, s{sW}')
    a(f's_lshl_b32 s{sT}, s{sT}, 8')
    a(f's_add_u32 s{sT+15}, s{sT}, {FL_OFF}')
    a(f's_add_u32 s{sT+13}, s{sT}, {FL_OFF+128}')
    q.readD(C.rd1 if not dft else C.drd1)
    a(f'v_lshlrev_b32 v{vHA}, 4, v{vLANE}')
    a(f's_mul_i32 s{sT+2}, s{sR}, {4*HP}')
    a(f's_mul_i32 s{sT+1}, s{sW}, {14*1024}')
    a(f's_add_u32 s{sT+2}, s{sT+2}, s{sT+1}')
    a(f's_and_b32 s{sT}, s{sW}, 2')
    a(f's_mul_i32 s{sT+1}, s{sT}, {HP}')
    a(f's_add_u32 s{sT+1}, s{sT+1}, s{sT+2}')
    a(f'v_add_u32 v{vHS+1}, s{sT+1}, v{vHA}')
    a(f's_xor_b32 s{sT}, s{sT}, 2')
    a(f's_mul_i32 s{sT+1}, s{sT}, {HP}')
    a(f's_add_u32 s{sT+1}, s{sT+1}, s{sT+2}')
    a(f'v_add_u32 v{vHS}, s{sT+1}, v{vHA}')
    a(f'v_add_u32 v{vHS+2}, {HP}, v{vHS}')
    a(f'v_add_u32 v{vHS+3}, {HP}, v{vHS+1}')
    a.wait(lgkm=0 if dft else 1, smem=False)
    lazy(a, 1)
    if dft:
        for t in hpoll(sT+15): a(t)
    a(f's_lshl_b32 s{sKX}, s{sR}, 2')
    a(f's_add_u32 s{sKX}, s{sKX}, s{sW}')
    a(f's_lshl_b32 s{sKX}, s{sKX}, 7')
    a(f's_add_u32 s{sKX}, s{sKX}, {FLG_OFF}')
    if dft:
        a(f's_add_u32 s{sM1}, s78, s{sT+12}')
        a(f's_addc_u32 s{sM1+1}, s79, 0')
    a(f'v_add_u32 v{vHA}, {LPX}, v{vHA}')
    a(f'v_add_u32 v{vPW}, s{sM0}, v{vHA}')
    for k in (1,2,3): a(f'v_xor_b32 v{PR[k]}, {k*4096}, v{vPW}')
    if C.gnew:
        a(f's_lshl_b32 s{sT+1}, s{sCB}, 6')
        a(f's_sub_u32 s{sT+2}, s{sT+1}, 256')
        a(f's_sub_u32 s{sT+1}, 193, s{sT+1}')
        a(f's_cmp_ge_u32 s{sCB}, 4')
        a(f's_cselect_b32 s{sT+1}, s{sT+2}, s{sT+1}')
        a(f's_cselect_b32 s{sT+3}, 0, 63')
        a(f'v_add_u32 v5, s{sT+1}, v{vLANE}')
        a(f's_mul_i32 s{sT}, s{sP}, {GP}')
        a(f's_lshl_b32 s{sT+1}, s{sW}, 14')
        a(f's_add_u32 s{sT}, s{sT}, s{sT+1}')
        a(f's_add_u32 s{sT}, s{sT}, {G_OFF}')
        a(f'v_cmp_gt_u32 vcc, 0x100, v5')
        a(f'v_lshl_add_u32 v5, v5, 4, s{sT}')
        a(f's_and_b32 s{sT}, s{sW}, 1')
        a(f's_lshl_b32 s{sT}, s{sT}, 5')
        a(f'v_cndmask_b32 v{vGA}, v10, v5, vcc')
        a(f's_xor_b32 s{sT}, s{sT}, s{sT+3}')
        a(f'v_xor_b32 v4, s{sT}, v{vN}')
        for k in (1,2,3): a(f'v_add_u32 v{vGA+k}, {3072*k}, v{vGA}')
        a(f'v_lshl_add_u32 v4, v{vG}, 6, v4')
        a(f'v_lshlrev_b32 v4, 4, v4')
        a(f'v_add_u32 v{vHA}, {LPX}, v4')
        a(f'v_xor_b32 v19, 0x100, v{vHA}')
    else:
        a(f's_and_b32 s{sT}, s{sW}, 1')
        a(f's_lshl_b32 s{sT}, s{sT}, 11')
        a(f'v_add_u32 v{vHA}, s{sT}, v{vHA}')
        a(f's_mul_i32 s{sT}, s{sP}, {GP}')
        a(f's_lshl_b32 s{sT+1}, s{sW}, 14')
        a(f's_add_u32 s{sT}, s{sT}, s{sT+1}')
        a(f's_add_u32 s{sT}, s{sT}, {G_OFF}')
        a(f'v_lshl_add_u32 v4, v{vG}, 12, s{sT}')
        a(f's_lshl_b32 s{sT+1}, s{sCB}, 6')
        for cbk in range(4):
            a(f'v_add_u32 v5, s{sT+1}, v{vN}')
            a(f'v_add_u32 v5, {16*cbk-256}, v5')
            a(f'v_sub_u32 v6, 0, v5')
            a(f'v_max_i32 v5, v5, v6')
            a(f'v_cmp_gt_u32 vcc, 0x100, v5')
            a(f'v_lshl_add_u32 v5, v5, 4, v4')
            a(f'v_subrev_u32 v4, 0x400, v4')
            a(f'v_cndmask_b32 v{vGA+cbk}, v10, v5, vcc')
    if not dft:
        a.wait_vm_for(last)
        a(f's_atomic_add s{sONE}, s[78:79], s{sT+12}')
        for t in hpoll(sT+15): a(t)
    lazy(a, 2)
    q.issue(99)
    assert not q.left()
    a(f'buffer_load_dwordx4 {vr(48,4)}, v{vOUT}, {S(sX)}, 0 offen')
    a(f'buffer_load_dwordx4 {vr(52,4)}, v{vOUT}, {S(sX)}, s{sMB} offen')
    lazy(a, 3)
    a(f's_cmp_eq_u32 s{sFV}, 14')
    a(f's_cbranch_scc1 L{tag}h_ok')
    keep = list(a.smem_out)
    spin(a, tag+'h', hpoll(sT+15), [f's_cmp_eq_u32 s{sFV}, 14'], sT+14, sleep=0, first=False)
    a.smem_out = keep
    lazy(a, 4)
    for n in range(C.look0): hload(a, n)
    a(f's_add_u32 m0, s{sM0}, {LPX+3*UN}')
    q.readD(14)
    for pr in range(2):
        for d in range(2): a(f'v_permlane16_swap_b32 v{48+4*pr+d}, v{48+4*pr+2+d}')
    for k in range(8):
        a(f'v_lshlrev_b32 v{vXS+2*k}, 16, v{48+k}')
        a(f'v_and_b32 v{vXS+2*k+1}, s{sMSK}, v{48+k}')
    a.wait(vm=C.look0)
    if dft:
        assert last not in a.vm
        a.wait(lgkm=0)
        a('s_barrier')
        for k in range(8): a(f's_atomic_add s{sONE}, s[{sM1}:{sM1+1}], {512*k}')

def phaseB(a):
    gpoll = [f's_load_dword s{sFV}, s[78:79], s{sKX} glc']
    AC = lambda sl,c: vAC+16*sl+4*c
    GF = lambda kp,c: 80+8*kp+4*c
    EP = [112, 120, 48]; LP = [80, 88, 96]; OB = 56
    osc = ("","sc1","nt","sc0 sc1")[C.outsc]
    gl = [f'buffer_load_dwordx4 v{vGA+cbk}, {S(sWS)}, 0 offen offset:{1024*cbk} sc1 lds' for cbk in range(4)]
    def preads(P, half, srcs):
        off = {2: half*UN, 3: half*UN+2048, 1: 2*UN+2048*half}
        return [f'ds_read_b128 {vr(P[{2:0,3:1,1:2}[k]]+4*c,4)}, v{PR[k]} offset:{off[k]+1024*c}' for k in srcs for c in range(2)]
    def adds(d, s_): return [f'v_add_f32 v{d+k}, v{d+k}, v{s_+k}' for k in range(8)]
    def pack(src, ob, so):
        return ([f'v_cvt_pk_bf16_f32 v{ob+k}, v{src+2*k}, v{src+2*k+1}' for k in range(4)] + [f'v_permlane16_swap_b32 v{ob+d}, v{ob+2+d}' for d in range(2)]
                + [f'buffer_store_dwordx4 {vr(ob,4)}, v{vOUT}, {S(sOUT)}, {so} offen {osc}'])
    nl = C.look0
    fillers = []; gm = []; wq = []; after_g = []
    def fill(k):
        for _ in range(k):
            if fillers: a(fillers.pop(0))
    def mf(n, c):
        sl, ks = SEQ[n]
        d = vr(AC(sl,c),4); ci = d
        if ks == 0 and not (sl == 3 and c < 2): ci = vr(vXS+4*c,4) if (sl == 1 and c < 2) else 0
        a(f'{MF} {d}, {ar(16*ks+4*c,4)}, {vr(vH+4*(n%NH),4)}, {ci}')
    lc = 28-C.look-1
    assert C.gb+6 <= 42 and C.lp+6 <= lc < C.gp and C.gb >= 31
    nend = 56-C.defer
    for n in range(nend):
        sl, ks = SEQ[n]
        for j in range(4):
            mf(n, j)
            if j == 0:
                if nl < 56: hload(a, nl); nl += 1
                else: fill(2)
            elif j == 1 and n == C.lp:
                a.wait(lgkm=0)
                for t in hpoll(sT+13): a(t)
            elif j == 1 and n == lc:
                assert nl <= 28
                spin(a, 'l', hpoll(sT+13), [f's_cmp_eq_u32 s{sFV}, 14'], sT+14, sleep=0)
            elif j == 1 and n == C.gp:
                for t in gpoll: a(t)
            elif j == 1 and n == C.gc:
                spin(a, 'g', gpoll, [f's_cmp_eq_u32 s{sFV}, 8'], sT+14, sleep=C.gsl)
            elif j == 1 and n == C.gb:
                assert not wq
                a.wait_vm_for(gdone); a.wait(lgkm=0); a('s_barrier')
                fillers = [f'ds_read_b128 {vr(GF(kp,c),4)}, v{(19 if c else vHA) if C.gnew else vHA} offset:{3*UN+4096*kp+(0 if C.gnew else 1024*c)}' for kp in range(4) for c in range(2)]
                fillers += preads(EP, 0, (2,3,1)) + adds(EP[0], EP[1]) + adds(EP[0], EP[2])
                for kp in range(4):
                    for (sl2, c) in ((1,0),(3,0),(3,1),(1,1)):
                        d = vr(AC(sl2,c),4)
                        gm.append(f'{MF} {d}, {vr(GF(kp,c),4)}, {ar((aCF if sl2 == 1 else aCL)+4*kp,4)}, {vr(vXS+8+4*c,4) if (sl2 == 3 and kp == 0) else d}')
                after_g = adds(EP[0], AC(1,0)) + pack(EP[0], OB, 0)
            elif j == 1 and sl and 1 <= ks and wq: a(wq.pop(0))
            elif j == 1 and sl == 3 and ks == C.xb:
                assert not wq and not gm
                a.wait(lgkm=0); a('s_barrier')
                fillers = preads(LP, 1, (2,3)) + fillers + adds(LP[0], LP[1])
            elif j == 2 and C.gc <= n < C.gc+4: gdone = a(gl[n-C.gc])
            elif j == 2 and nl < 56 and nl-n-1 < C.look:
                hload(a, nl); nl += 1
            else: fill(1 if j == 3 else 2)
        if gm and n >= C.gb+2:
            for t in gm[:4]: a(t); fill(2)
            gm = gm[4:]
        elif after_g and not gm: fillers += after_g; after_g = []
        if ks == 13 and sl < 3:
            assert not wq
            if sl == 1: wq = [f'ds_write_b128 v{vPW}, {vr(AC(1,2+c),4)} offset:{2*UN+1024*c}' for c in range(2)]
            else: wq = [f'ds_write_b128 v{vPW}, {vr(AC(sl,c),4)} offset:{(sl>>1)*UN+1024*c}' for c in range(4)]
        if n == 0: lazy_flush(a, 5); stamp(a, 3)
        if n in (7,14,21,28,35,42,49): stamp(a, 18 if n == 7 else 2)
    assert nl == 56
    for n in range(nend, 56):
        for c in (2, 3): mf(n, c); fill(2)
    fill(99)
    own = [(n, c) for n in range(nend, 56) for c in (0, 1)]
    k0 = min(3, len(own))
    for n, c in own[:k0]: mf(n, c)
    own = own[k0:]
    for c in range(2):
        a(f'ds_write_b128 v{vPW}, {vr(AC(3,2+c),4)} offset:{2*UN+2048+1024*c}')
        if own: mf(*own.pop(0))
    if own: mf(*own.pop(0))
    a.wait(lgkm=0); a('s_barrier')
    for t in preads(LP, 1, (1,)): a(t)
    for n, c in own: mf(n, c)
    stamp(a, 3)
    for k in range(0, 8, 2): a(f'v_pk_add_f32 {vr(LP[0]+k,2)}, {vr(LP[0]+k,2)}, {vr(AC(3,0)+k,2)}')
    for k in range(0, 8, 2): a(f'v_pk_add_f32 {vr(LP[0]+k,2)}, {vr(LP[0]+k,2)}, {vr(LP[2]+k,2)}')
    for t in pack(LP[0], OB+4, f's{sMB}'): a(t)
    stamp(a)

def kernel(a):
    q = Q(a)
    prologue(a, q)
    for t in master_list(False)[1:4]: q.pend += items(t)
    assert C.cap0 <= 8
    q.issue(6)
    stamp(a)
    z = setup2(a)
    for t in coef_ops(): a(t)
    q.issue(C.cap0-2)
    stamp(a)
    a(f's_cmp_ge_u32 s{sJ}, 14')
    a('s_cbranch_scc1 L_dft')
    st = a.snapshot(); n0 = St.n; q2 = q.clone(True)
    phaseA(a, False, q, z); stamp(a, 17)
    presync(a, False, q, glu_epilogue(a, q))
    def state(): return ([i.text for i in a.vm], St.n)
    join = state(); jl = [i.text for i in a.lgkm]
    a.label('L_phaseB')
    a.raw(';PAD0') if C.pads else a('s_nop 0')
    phaseB(a)
    stamp_flush(a)
    a.label('L_end')
    a('s_endpgm')
    a.restore(st); St.n = n0; q = q2
    a.raw('.p2align 3')
    a.label('L_dft')
    phaseA(a, True, q, z); stamp(a, 17)
    presync(a, True, q, dft_epilogue(a, q))
    assert join == state(), (join, state())
    assert not a.lgkm
    a('s_branch L_phaseB')
    if a.blocked: print('waits that block on smem at lines', a.blocked, file=sys.stderr)

def layout(lines, base):
    out = []
    for l in lines:
        if l.startswith(';WARM'):
            t = l.split()[1]
            out += [f'    s_mov_b32 s1, {1 if t == "d" else 0}', '    s_mov_b64 exec, 0']
            for w in range(3): out += [f'    s_cmp_eq_u32 s{sW}, {w}', f'    s_cbranch_scc1 @{t}{w}']
            out += [f'    s_branch @{t}3']
            if t == 'g': out += ['Ltramp:', '    s_cmp_eq_u32 s1, 1', '    s_cbranch_scc1 Lret_d']
            out += [f'Lret_{t}:', '    s_mov_b64 exec, -1']
        elif l == ';PAD0': out += ['Lpad_s0:', '    s_cbranch_execz @next_s0']
        else: out.append(l)
    import re
    sz = sizes_of([re.sub(r'@\w+', 'L_end', l) for l in out])
    idx = [i for i,l in enumerate(out) if l.startswith('    ') and not l.strip().startswith((';','.'))]
    assert len(idx) == len(sz)
    size = dict(zip(idx, sz))
    res = []; addr = base; cand = None; fixed = left = 0; region = None; pads = {'g': [], 's': ['s0'], 'd': []}
    page = addr >> 12
    for i,l in enumerate(out):
        if l == 'Lret_g:': region = 'g'
        if l == 'L_phaseB:': region = 's'
        if l == 'L_end:': region = None
        if l == 'Lret_d:': region = 'd'
        if l.startswith('.p2align 3'): addr = (addr+7)//8*8; cand = None; res.append(l); continue
        if i not in size: res.append(l); continue
        if (addr >> 12) != page:
            page = addr >> 12
            if region and C.pads and 'exec' not in l:
                nm = f'{region}{len(pads[region])}'; pads[region].append(nm)
                res += [f'Lpad_{nm}:', f'    s_cbranch_execz @next_{nm}']; addr += 4
                if C.log: print('pad', nm, 'before line', i, l.strip()[:60], file=sys.stderr)
        s = size[i]
        if s == 8 and addr % 8 == 4:
            if cand is not None and C.align:
                op = res[cand].split()[0]; res[cand] = res[cand].replace(op, op+'_e64', 1); addr += 4; fixed += 1
            elif addr % 32 == 28: left += 1
        res.append(l)
        if s == 8: cand = None
        elif l.split()[0] in PROMO and addr % 8 == 0: cand = len(res)-1
        addr += s
    tgt = {}
    sp = pads['s']
    for k, nm in enumerate(sp): tgt[f'next_{nm}'] = f'Lpad_{sp[k+1]}' if k+1 < len(sp) else 'Ltramp'
    for t in 'gd':
        own = pads[t]
        for k, nm in enumerate(own): tgt[f'next_{nm}'] = f'Lpad_{own[k+3]}' if k+3 < len(own) else f'Lret_{t}'
        for w in range(3): tgt[f'{t}{w}'] = f'Lpad_{own[w]}' if w < len(own) else f'Lret_{t}'
        tgt[f'{t}3'] = f'Lpad_{sp[0 if t == "d" or len(sp) == 1 else 1]}'
    res = [re.sub(r'@(\w+)', lambda m: tgt[m.group(1)], l) for l in res]
    print('align fixed', fixed, 'left', left, 'pads', pads, 'bytes', addr-base, file=sys.stderr)
    assert addr-base <= 32*CODE_LINES_PER_WG*128
    return res

def build():
    out = ['; @launch grid=(256,1,1) block=(256,1,1) lds=163840', '; '+' '.join(sys.argv[2:]),
           '.amdgcn_target "amdgcn-amd-amdhsa--gfx950"', '.text', '.p2align 12']
    if C.shift: out.append(f'.fill {64*C.shift}, 4, 0xbf800000')
    nm = NAME+'_kernel'
    a = Asm(); kernel(a)
    lines = layout(a.lines, 0x300+256*C.shift)
    out += [f'.globl {nm}', '.p2align 8', f'.type {nm},@function', f'{nm}:', '\n'.join(lines)]
    out.append('L_code_end:')
    out.append(f'.fill ({32*CODE_LINES_PER_WG*128+256} - (L_code_end - {nm}))/4, 4, 0xbf800000')
    out.append('.section .rodata,"a"')
    out.append('.p2align 6')
    out.append(f'''.amdhsa_kernel {nm}
  .amdhsa_next_free_vgpr 512
  .amdhsa_next_free_sgpr 102
  .amdhsa_accum_offset 256
  .amdhsa_group_segment_fixed_size 0
  .amdhsa_kernarg_size 96
  .amdhsa_user_sgpr_count 2
  .amdhsa_user_sgpr_kernarg_segment_ptr 1
  .amdhsa_system_sgpr_workgroup_id_x 1
.end_amdhsa_kernel
''')
    return '\n'.join(out)
if __name__ == '__main__':
    for kv in sys.argv[2:]:
        k, v = kv.split('='); assert hasattr(C, k), k; setattr(C, k, int(v))
    HP = 56*1024+C.hpad; GP = 65536+C.gpad
    t = build()
    open(sys.argv[1], 'w').write(t)
```

```python
import sys, struct
from asmlib import *

NAME = 'parallel_sum__spectral_fnet__glu_gated_glu__prompt'
HP = 56*1024+128
GP = 65536+128
G_OFF = 0x790000
FL_OFF = 0xA00000
FLS_OFF = FL_OFF+128*128
FLG_OFF = FLS_OFF+4
NFL = 256
XS_OFF = 0xA10000
CS_OFF = 0xA50000
WS_BYTES = 0xA90000
STAMP_OFF = 0xC00000
OOB = 0x7f000000
def f2u(x): return struct.unpack('<I', struct.pack('<f', x))[0]
LOG2E = 1.4426950408889634
MF = 'v_mfma_f32_16x16x32_bf16'

class Cfg:
    stamps = 0; log = 0; align = 1
    touch = 0
    tlb = 0
    pads = 1
    shift = 0
    hrot = 0; bmap = 1; drot = 2
    cap0 = 6; cap = 5; capn = 4; bar = 2
    rate = 8; drate = 8; dslow = 0
    spoll = 8; dlag = 10; rd0 = 5; rd1 = 9
    dleft = 20; epi_dma = 1; post = 12
    look = 9; look0 = 8; gp = 0; gc = 24; gb = 40; est = 51; xb = 6; skipb = 0; snake = 1; defer = 5; lp = 8; pre = 8; mid = 4; xoff = 0; dmap = 1; dstart = 5; ddrate = 4; ddlag = 16; dearly = 0; drotd = 3; dcap = 6; xord = 1; tw = 1; tswap = 5; wsoff = 0; perm = 1; diag = 0; gearly = 1; gb2 = 2; dpre = 0; depi = 0; fpre = 6; fdot = 1; hfl = 0; hoist = 1; gnew = 1; drd1 = 12; plate = 2; ftz = 0; gsl = 0
    infl = 2; pgap = 5
    outsc = 1; tpos = 3; tfl = 0; rmask = 6
    hpad = 0; gpad = 0
C = Cfg()

sMSK, sR, sCB = 3, 6, 7
sPO = 8
sDBG, sX, sG, sU, sWS, sWD, sOUT = 16, 20, 24, 28, 32, 36, 40
sW, sI, sJ, sP = 44, 45, 46, 47
sT = 48
sM0, sKX, sKW, sPITCH, sKCX, sKCW, sL, sXS = 64, 65, 66, 67, 68, 69, 70, 71
sSET, sCS, sOWN, sONE, sFV, sKD, sP2, sP7 = 80, 81, 86, 87, 4, 5, 15, 0
sM1, sM2, sM3, sMV = 88, 90, 92, 94
vLANE, vN, vG, vOUT = 1, 2, 3, 13
vXD, vWD, vD, vXA, vOA, vWA, vTR, vDBG, vSTAMP = 16, 20, 22, 26, 28, 30, 34, 46, 47
vXR, vWF, vSXo, vCS, vSQo, vACC = 48, 64, 96, 104, 120, 128
aSX, aONE, aR, aCL, aCF = 160, 168, 192, 224, 240
UN = 16384
LST = 1*UN
def acc(tf, wf): return vACC+16*tf+4*wf
def fW(p, wf): return vWF+16*p+4*wf
def fX(k): return vXR+4*(k & 3)
def S(r): return f's[{r}:{r+3}]'

class St: n = 0
def stamp(a, grp=1):
    if not (C.stamps & grp): return
    a(f's_memtime s[82:83]')
    a(f's_memrealtime s[84:85]')
    a.wait(lgkm=0)
    a(f'v_writelane_b32 v{vSTAMP}, s82, {St.n}')
    a(f'v_writelane_b32 v{vSTAMP}, s84, {32+St.n}')
    St.n += 1
LZ = [96, 18, 90, 92, 94]
def lazy(a, k):
    if C.stamps & 1: a.raw(f'    s_memrealtime s[{LZ[k]}:{LZ[k]+1}] ; s_memtime')
def lazy_flush(a, n):
    if not (C.stamps & 1): return
    a.raw('    s_waitcnt lgkmcnt(0)')
    for k in range(n):
        a(f'v_writelane_b32 v{vSTAMP}, s{LZ[k]}, {32+St.n}'); St.n += 1
def stamp_flush(a):
    if not C.stamps: return
    a.wait(vm=0)
    stamp(a, 255)
    a(f's_mov_b32 s{sWS+2}, 0x1000000')
    a(f's_lshl_b32 s82, s2, 2')
    a(f's_add_u32 s82, s82, s{sW}')
    a(f's_lshl_b32 s82, s82, 8')
    a(f's_add_u32 s82, s82, {STAMP_OFF}')
    a(f'v_lshlrev_b32 v4, 2, v{vLANE}')
    a(f'buffer_store_dword v{vSTAMP}, v4, {S(sWS)}, s82 offen')

def srd(a, d, ptr, nbytes):
    a(f's_mov_b64 s[{d}:{d+1}], s[{ptr}:{ptr+1}]')
    a(f's_mov_b32 s{d+2}, {nbytes}')
    a(f's_mov_b32 s{d+3}, 0x20000')

def dma_X(s):
    pre = {0: [f's_add_u32 m0, s{sM0}, {(s % 4)*UN}', f's_xor_b32 s{sKX}, s{sKX}, 512' if s & 1 else f's_lshl_b32 s{sKX}, s{sKCX}, 7']}
    if s & 1: pre[1] = [f's_add_u32 s{sKCX}, s{sKCX}, 1', f's_and_b32 s{sKCX}, s{sKCX}, 3'] + ([f's_or_b32 s{sKCX}, s{sKCX}, 4'] if C.xord else [])
    return [(('X', s), pre.get(q, []), f'buffer_load_dwordx4 v{vXD+q}, {S(sX)}, s{sKX} offen offset:{q*1024} lds') for q in range(4)]
def wunit(n, dft): return 4 + ((2*((n >> 2) & 1)+(n & 1)) if dft else n % 6)
def dma_W(n, dft):
    k = [f's_mul_i32 s{sKW}, s{sKCW}, s{sP2}', f's_add_u32 s{sKW}, s{sKW}, s{sPITCH}', f's_add_u32 s{sKW}, s{sKW}, s{sP7}', f's_add_u32 s{sKW}, s{sKW}, s{sPITCH}'][n & 3]
    pre = {0: [f's_add_u32 m0, s{sM0}, {wunit(n, dft)*UN}', k]}
    if n & 3 == 1: pre[1] = [f's_add_u32 s{sKCW}, s{sKCW}, 1', f's_and_b32 s{sKCW}, s{sKCW}, 3'] + ([f's_or_b32 s{sKCW}, s{sKCW}, 4'] if C.xord else [])
    return [(('W', n), pre.get(q, []), f'buffer_load_dwordx4 v{vWD+(q&1)}, {S(sU if q >> 1 else sG)}, s{sKW} offen offset:{q*1024} lds') for q in range(4)]
class Plan:
    def __init__(self, dft):
        if dft:
            self.units = [8, 9, 8, 9, 0, 4, 5, 6, 7, 2, 3, 8, 9, 0]
            self.avail = {}
        else:
            self.units = [0, 8, 9, 4, 5, 0, 6, 2, 8, 7, 3, 9, 4, 5]
            self.avail = {10:2, 11:3, 12:4, 13:6, 14:9}
        self.prev = {u: max(v for v in range(u) if self.units[v] == self.units[u]) for u in range(14) if self.units[u] in self.units[:u]}
    def dma(self, u):
        pre = {0: [f's_add_u32 m0, s{sM0}, {self.units[u]*UN}',
                   f's_add_u32 s{sKD}, s{sKD}, 32768' if u & 1 else f's_lshl_b32 s{sKD}, s{sPO+(u>>1)}, 5']}
        return [(('D', u), pre.get(q, []), f'buffer_load_dwordx4 v{vD+q}, {S(sWD)}, s{sKD} offen offset:{q*1024} lds') for q in range(4)]
    def reads(self, u):
        un = self.units[u]
        return [f'ds_read_b64_tr_b16 {ar(16*u+4*cbk+2*u2,2)}, v{vTR+4*(un>>2)+cbk} offset:{(un&3)*UN+2048*u2}' for cbk in range(4) for u2 in range(2)]

class Q:
    def __init__(self, a, dft=False):
        self.a = a; self.pend = []; self.last = {}; self.predone = False; self.nD = 0; self.maxD = 0; self.rd = {}
        self.plan = Plan(dft)
        self.rq = [(u, t) for u in range(14) for t in self.plan.reads(u)]; self.issued = 0; self.limit = 10**9; self.log = []; self.pos = -1
    def clone(self, dft):
        q = Q(self.a, dft); q.pend = list(self.pend); q.last = dict(self.last); q.predone = self.predone; q.issued = self.issued; q.log = list(self.log)
        return q
    def left(self): return len(self.pend) + 4*(14-self.nD)
    def ready(self):
        if not self.pend and self.nD < self.maxD:
            pv = self.plan.prev.get(self.nD)
            if pv is None or not self.rq or self.rq[0][0] > pv:
                self.pend += self.plan.dma(self.nD); self.nD += 1
        return bool(self.pend) and self.issued < self.limit
    def haspre(self): return self.ready() and self.pend[0][1] and not self.predone
    def pre(self):
        if self.ready() and not self.predone:
            for t in self.pend[0][1]: self.a(t)
            self.predone = True
    def issue(self, n=1):
        for _ in range(n):
            if not self.ready(): return
            self.pre()
            tag, pf, t = self.pend.pop(0)
            if tag[0] == 'D' and tag[1] in self.plan.prev: self.a.wait_lgkm_for(self.rd[self.plan.prev[tag[1]]])
            self.last[tag] = self.a(t); self.predone = False; self.issued += 1; self.log.append((tag, self.pos))
    def addD(self, upto): self.maxD = max(self.maxD, upto)
    def has(self, tag): return [1 for t in self.pend if t[0] == tag]
    def need(self, tag):
        assert tag in self.last and not self.has(tag), ('not issued', tag)
        self.a.wait_vm_for(self.last[tag])
    def read1(self, upto):
        if not self.rq or self.rq[0][0] >= upto: return False
        u, t = self.rq.pop(0)
        self.need(('D', u))
        self.rd[u] = self.a(t)
        return True
    def readD(self, upto):
        while self.read1(upto): pass

def x_read(k):
    n, tf = k >> 3, k & 7
    return f'ds_read_b128 {vr(fX(k),4)}, v{vXA+(n&1)} offset:{((n>>1) % 4)*UN+tf*2048}'
def w_reads(n, dft):
    if dft and n & 2:
        return [f'v_xor_b32 v{fW(n&1,0)+k}, v12, v{fW(n&1,0)+k}' for k in range(16)]
    un = wunit(n, dft)-4
    return [f'ds_read_b64_tr_b16 {vr(fW(n&1,wf)+2*u,2)}, v{vWA+2*(un>>2)+(wf&1)} offset:{(un&3)*UN+(wf>>1)*2048+u*1024}' for wf in range(4) for u in range(2)]

def master_list(dft):
    m = []
    for n in range(16):
        if n % 2 == 0: m.append(('X', n >> 1))
        if not (dft and n & 2): m.append(('W', n))
    return m
def items(t, dft=False): return dma_X(t[1]) if t[0] == 'X' else dma_W(t[1], dft)

CODE_LINES_PER_WG = 10
def prologue(a, q):
    a('s_cmp_ge_u32 s2, 256')
    a('s_cbranch_scc1 L_end')
    a('s_load_dwordx2 s[4:5], s[0:1], 0')
    a('s_load_dwordx4 s[8:11], s[0:1], 24')
    a('s_load_dwordx4 s[12:15], s[0:1], 48')
    a('s_load_dwordx8 s[72:79], s[0:1], 64')
    St.n = 0
    if C.stamps: a('s_memrealtime s[84:85]'); a('s_memtime s[82:83]')
    a.raw(f'    s_getpc_b64 s[80:81]'); a.hist.append((Ins('s_getpc_b64 s[80:81]'),1))
    a(f's_lshr_b32 s{sT}, s2, 3')
    a(f's_mul_i32 s{sT}, s{sT}, {CODE_LINES_PER_WG*128}')
    a(f'v_min_u32 v4, {CODE_LINES_PER_WG-1}, v0')
    a(f'v_lshl_add_u32 v4, v4, 7, s{sT}')
    a(f'global_load_dword v{vDBG}, v4, s[80:81]')
    a(f'v_and_b32 v{vLANE}, 63, v0')
    a(f'v_lshrrev_b32 v4, 6, v0')
    a(f'v_and_b32 v{vN}, 15, v0')
    a(f'v_readfirstlane_b32 s{sW}, v4')
    a(f'v_bfe_u32 v{vG}, v0, 4, 2')
    if C.perm:
        a(f's_lshr_b32 s{sT}, s2, 2')
        a(f's_xor_b32 s{sT}, s{sT}, s2')
        a(f's_and_b32 s{sT}, s{sT}, 1')
        a(f's_mul_i32 s{sT}, s{sT}, 5')
        a(f's_xor_b32 s2, s2, s{sT}')
    a(f's_and_b32 s{sT}, s2, 1')
    a(f's_lshl_b32 s{sT}, s{sT}, 3')
    a(f's_bfe_u32 s{sI}, s2, {3|(3<<16)}')
    a(f's_add_u32 s{sI}, s{sI}, s{sT}')
    a(f's_bfe_u32 s{sT}, s2, {1|(2<<16)}')
    a(f's_lshr_b32 s{sT+1}, s2, 6')
    if C.dmap:
        a(f's_mul_i32 s{sJ}, s{sT}, 3')
        a(f's_add_u32 s{sJ}, s{sJ}, s{sT+1}')
        a(f's_add_u32 s{sT+2}, s{sT}, 14')
        a(f's_cmp_eq_u32 s{sT+1}, 3')
        a(f's_cselect_b32 s{sT+2}, s{sT+2}, s{sJ}')
        a(f's_cmp_eq_u32 s{sT}, 3')
        a(f's_addc_u32 s{sJ}, s{sJ}, 0')
        a(f's_cmp_lt_u32 s{sT}, 2')
        a(f's_cselect_b32 s{sJ}, s{sT+2}, s{sJ}')
    else:
        a(f's_mul_i32 s{sJ}, s{sT}, 3')
        a(f's_add_u32 s{sJ}, s{sJ}, s{sT+1}')
        a(f's_lshr_b32 s{sT+2}, s2, 4')
        a(f's_xor_b32 s{sT+2}, s{sT+2}, s2')
        a(f's_and_b32 s{sT+2}, s{sT+2}, 2')
        a(f's_lshr_b32 s{sT}, s{sT}, 1')
        a(f's_add_u32 s{sT}, s{sT}, s{sT+2}')
        a(f's_add_u32 s{sT}, s{sT}, 12')
        a(f's_cmp_eq_u32 s{sT+1}, 3')
        a(f's_cselect_b32 s{sJ}, s{sT}, s{sJ}')
    a(f's_xor_b32 s{sT}, s{sI}, s{sT+1}')
    a(f's_and_b32 s{sT}, s{sT}, 1')
    a(f's_lshl_b32 s{sKCX}, s{sT}, 1')
    a(f's_lshr_b32 s{sT}, s2, 1')
    a(f's_xor_b32 s{sT}, s{sT}, s2')
    a(f's_and_b32 s{sT}, s{sT}, 1')
    a(f's_add_u32 s{sKCX}, s{sKCX}, s{sT}')
    a(f's_lshl_b32 s{sL}, s{sKCX}, 8')
    if C.rmask != 6: a(f's_and_b32 s{sKCX}, s{sKCX}, {C.rmask >> 1}')
    if C.xord: a(f's_or_b32 s{sKCX}, s{sKCX}, 4')
    a(f's_mov_b32 s{sKCW}, s{sKCX}')
    a(f's_sub_u32 s{sT+1}, 32, s{sI}')
    a(f's_cmp_eq_u32 s{sI}, 0')
    a(f's_cselect_b32 s{sT+1}, 16, s{sT+1}')
    a(f's_bitcmp1_b32 s{sW}, 1')
    a(f's_cselect_b32 s{sT}, s{sT+1}, s{sI}')
    a(f's_sub_u32 s{sT+1}, 64, s{sT}')
    a(f's_cmp_eq_u32 s{sT}, 0')
    a(f's_cselect_b32 s{sT+1}, 32, s{sT+1}')
    a(f's_add_u32 s{sT+2}, s{sT}, 32')
    a(f's_movk_i32 s{sT+6}, 3584')
    a(f's_cmp_ge_u32 s{sJ}, 14')
    a(f's_cselect_b32 s{sT+1}, s{sT+2}, s{sT+1}')
    a(f's_cselect_b32 s{sT+6}, 1024, s{sT+6}')
    a(f's_cselect_b32 s{sT+4}, 12, 0')
    a(f's_sub_u32 s{sT+4}, s{sJ}, s{sT+4}')
    a(f's_lshl_b32 s{sT+4}, s{sT+4}, 8')
    a(f's_bitcmp1_b32 s{sW}, 0')
    a(f's_cselect_b32 s{sT}, s{sT+1}, s{sT}')
    a(f's_cselect_b32 s{sT+5}, 8, 0')
    a(f's_lshl_b32 s{sT}, s{sT}, 10')
    a(f'v_lshrrev_b32 v4, 3, v{vLANE}')
    a(f'v_lshl_add_u32 v4, v4, 16, s{sT}')
    a(f'v_and_b32 v6, 7, v{vLANE}')
    a(f'v_xor_b32 v6, v6, v{vG}')
    a(f'v_lshl_add_u32 v{vXD}, v6, 4, v4')
    a(f'v_xor_b32 v7, 64, v{vXD}')
    a(f'v_add_u32 v{vXD+1}, {524288-1024}, v7')
    a(f'v_add_u32 v{vXD+2}, {2*(524288-1024)}, v{vXD}')
    a(f'v_add_u32 v{vXD+3}, {3*(524288-1024)}, v7')
    a(f's_lshl_b32 s{sM0}, s{sW}, 12')
    a(f's_lshl_b32 s{sPITCH}, s{sT+6}, 5')
    a(f's_mov_b32 s{sX+2}, {2048*1024}')
    a(f's_mov_b32 s{sX+3}, 0x20000')
    def waddr():
        a(f's_lshl_b32 s{sT+1}, s{sW}, 3')
        a(f'v_add_u32 v4, s{sT+1}, v{vG}')
        a(f'v_mul_u32_u24 v4, s{sT+6}, v4')
        a(f'v_add_u32 v4, s{sT+4}, v4')
        a(f'v_lshl_add_u32 v7, v{vG}, 1, s{sT+5}')
        a(f'v_xor_b32 v6, v{vN}, v7')
        a(f'v_lshl_add_u32 v{vWD}, v6, 4, v4')
        a(f's_lshl_b32 s{sT+1}, s{sT+6}, 2')
        a(f's_sub_u32 s{sT+1}, s{sT+1}, 1024')
        a(f'v_add_u32 v{vWD+1}, s{sT+1}, v{vWD}')
        a(f's_cmp_lt_u32 s{sJ}, 14')
        a(f's_cbranch_scc1 L_wglu')
        a(f's_lshl_b32 s{sT+1}, s{sW}, 6')
        a(f's_add_u32 s{sT+1}, s{sT+1}, s{sJ}')
        a(f's_add_u32 s{sT+1}, s{sT+1}, 242')
        a(f's_lshl_b32 s{sT+1}, s{sT+1}, 10')
        a(f'v_lshrrev_b32 v4, 3, v{vLANE}')
        a(f'v_lshl_add_u32 v4, v4, 11, s{sT+1}')
        a(f'v_and_b32 v6, 0x70, v{vXD}')
        a(f'v_add_u32 v{vWD}, v6, v4')
        a(f'v_xor_b32 v7, 64, v{vWD}')
        a(f'v_add_u32 v{vWD+1}, {16384-1024}, v7')
        a.label('L_wglu')
        a(f's_lshl_b32 s{sG+2}, s{sT+6}, 9')
        a(f's_mov_b32 s{sG+3}, 0x20000')
        a(f's_add_u32 s{sU+2}, s{sG+2}, 2048')
        a(f's_mov_b32 s{sU+3}, 0x20000')
    if C.hoist: waddr()
    sTW = 96
    if C.tw & 2:
        a(f's_lshl_b32 s{sT+1}, s2, 2')
        a(f's_add_u32 s{sT+1}, s{sT+1}, s{sW}')
        a(f's_lshl_b32 s{sT+7}, s{sT+1}, 7')
        a(f's_lshr_b32 s{sT+1}, s2, 3')
        a(f's_add_u32 s{sT+1}, s{sT+1}, s{sW}')
        a(f's_and_b32 s{sT+1}, s{sT+1}, 7')
        a(f's_min_u32 s{sT+1}, s{sT+1}, 5')
        a(f's_lshl_b32 s{sT+1}, s{sT+1}, 21')
        a(f's_add_u32 s{sT+8}, s{sT+1}, s{sT+7}')
    q.pend = items(('X',0)); q.pre()
    a.wait(lgkm=0)
    a(f's_mov_b64 s[{sX}:{sX+1}], s[4:5]')
    if C.stamps:
        a(f'v_writelane_b32 v{vSTAMP}, s84, 32'); a(f'v_writelane_b32 v{vSTAMP}, s82, 0'); St.n = 1
    if not C.tw & 4: q.issue(1)
    a(f's_cmp_ge_u32 s{sJ}, 14')
    a(f's_cselect_b64 s[{sG}:{sG+1}], s[8:9], s[12:13]')
    a(f's_cselect_b64 s[{sU}:{sU+1}], s[10:11], s[14:15]')
    if C.tw & 1:
        if C.tswap:
            a(f's_bitcmp1_b32 s2, {C.tswap}')
            a(f's_cselect_b64 s[8:9], s[{sG}:{sG+1}], s[{sU}:{sU+1}]')
            a(f's_load_dword s{sTW}, s[8:9], 0')
        else:
            a(f's_load_dword s{sTW}, s[{sG}:{sG+1}], 0')
            a(f's_load_dword s{sTW+1}, s[{sU}:{sU+1}], 0')
    if C.tw & 4: q.issue(1)
    if C.wsoff:
        a(f's_add_u32 s78, s78, {C.wsoff << 20}')
        a(f's_addc_u32 s79, s79, 0')
    if C.tw & 2:
        a(f's_load_dword s{sTW+2}, s[78:79], s{sT+8} glc')
        a(f's_load_dword s{sTW+3}, s[76:77], 128')
        a(f's_load_dword s{sTW+4}, s[72:73], 0')
        a(f's_load_dword s{sTW+5}, s[74:75], s{sT+7} glc')
    q.issue(1)
    if not C.hoist: waddr()
    a(f's_sub_u32 s{sU}, s{sU}, 2048')
    a(f's_subb_u32 s{sU+1}, s{sU+1}, 0')
    q.issue(1)
    a(f's_lshl_b32 s{sP2}, s{sPITCH}, 1')
    a(f's_cmp_ge_u32 s{sJ}, 14')
    a(f's_cselect_b32 s{sP2}, 128, s{sP2}')
    a(f's_mul_i32 s{sP7}, s{sPITCH}, {-9 if C.xord else 7}')
    q.issue(1)

def setup2(a):
    srd(a, sWS, 78, WS_BYTES)
    a(f's_cmp_eq_u32 s2, 0')
    a(f's_cselect_b32 s{sT+1}, {NFL}, 0')
    a(f's_mov_b32 s{sONE}, 1')
    a(f'v_mov_b32 v4, 0')
    a(f'v_mov_b32 v5, 0')
    a(f'v_mov_b32 v10, {OOB}')
    a(f'v_lshlrev_b32 v8, 7, v0')
    a(f'v_cmp_gt_u32 vcc, s{sT+1}, v0')
    a(f'v_mov_b32 v11, 0')
    a(f's_mov_b32 s{sT+3}, {FL_OFF}')
    a(f'v_cndmask_b32 v8, v10, v8, vcc')
    z = a(f'buffer_store_dwordx2 v[4:5], v8, {S(sWS)}, s{sT+3} offen sc1')
    srd(a, sWD, 72, 1792*1024)
    srd(a, sOUT, 74, 2048*1024)
    a(f'v_lshrrev_b32 v4, 1, v{vN}')
    a(f'v_xor_b32 v4, v4, v{vG}')
    a(f'v_lshlrev_b32 v4, 4, v4')
    a(f'v_lshl_add_u32 v{vXA}, v{vN}, 7, v4')
    a(f'v_xor_b32 v{vXA+1}, 64, v{vXA}')
    a(f'v_add_u32 v{vOA}, s{sM0}, v{vXA}')
    a(f'v_add_u32 v{vOA+1}, s{sM0}, v{vXA+1}')
    a(f'v_bfe_u32 v4, v{vLANE}, 2, 2')
    a(f'v_and_b32 v7, 3, v{vLANE}')
    a(f'v_cmp_eq_u32 s[{sM1}:{sM1+1}], 1, v7')
    a(f'v_cmp_eq_u32 s[{sM2}:{sM2+1}], 2, v7')
    a(f'v_cmp_eq_u32 s[{sM3}:{sM3+1}], 3, v7')
    a(f'v_cmp_eq_u32 s[{sMV}:{sMV+1}], v4, v{vG}')
    a(f'v_lshlrev_b32 v7, 3, v7')
    a(f'v_and_b32 v5, 1, v{vG}')
    a(f'v_lshl_add_u32 v5, v5, 2, v4')
    a(f's_lshl_b32 s{sT}, s{sW}, 1')
    a(f'v_xor_b32 v5, s{sT}, v5')
    a(f'v_lshl_add_u32 v5, v5, 5, v7')
    a(f'v_lshl_add_u32 v5, v4, 8, v5')
    a(f'v_lshl_add_u32 v5, v{vG}, 12, v5')
    a(f'v_add_u32 v{vWA}, {4*UN}, v5')
    a(f'v_xor_b32 v{vWA+1}, 32, v{vWA}')
    a(f'v_add_u32 v{vWA+2}, {4*UN}, v{vWA}')
    a(f'v_add_u32 v{vWA+3}, {4*UN}, v{vWA+1}')
    a(f'v_mov_b32 v4, 0x3f803f80')
    for d in range(4): a(f'v_accvgpr_write_b32 a{aONE+d}, v4')
    if C.bmap == 0:
        a(f's_and_b32 s{sR}, s2, 7')
        a(f's_lshl_b32 s{sR}, s{sR}, 2')
        a(f's_bfe_u32 s{sT}, s2, {3|(2<<16)}')
        a(f's_add_u32 s{sR}, s{sR}, s{sT}')
        a(f's_lshr_b32 s{sCB}, s2, 5')
    elif C.dmap:
        a(f's_and_b32 s{sR}, s2, 3')
        a(f's_lshl_b32 s{sR}, s{sR}, 3')
        a(f's_bfe_u32 s{sT}, s2, {3|(3<<16)}')
        a(f's_add_u32 s{sR}, s{sR}, s{sT}')
        a(f's_lshr_b32 s{sCB}, s2, 6')
        a(f's_xor_b32 s{sCB}, s{sCB}, 2')
        a(f's_and_b32 s{sT}, s2, 4')
        a(f's_add_u32 s{sCB}, s{sCB}, s{sT}')
        a(f's_add_u32 s{sCB}, s{sCB}, 2')
        a(f's_and_b32 s{sCB}, s{sCB}, 7')
    else:
        a(f's_bfe_u32 s{sR}, s2, {1|(2<<16)}')
        a(f's_lshl_b32 s{sR}, s{sR}, 3')
        a(f's_bfe_u32 s{sT}, s2, {3|(3<<16)}')
        a(f's_add_u32 s{sR}, s{sR}, s{sT}')
        a(f's_lshr_b32 s{sCB}, s2, 6')
        a(f's_and_b32 s{sT}, s2, 1')
        a(f's_lshl_b32 s{sT}, s{sT}, 2')
        a(f's_add_u32 s{sCB}, s{sCB}, s{sT}')
        a(f's_add_u32 s{sCB}, s{sCB}, 6')
        a(f's_and_b32 s{sCB}, s{sCB}, 7')
    return z

def late_setup_ops():
    r = []; a = r.append
    a(f'v_and_b32 v{vTR+1}, 3, v{vLANE}')
    a(f'v_bfe_u32 v{vTR}, v{vLANE}, 3, 2')
    a(f'v_lshl_add_u32 v{vTR}, v{vTR}, 2, v{vTR+1}')
    a(f'v_lshrrev_b32 v{vTR+1}, 2, v{vLANE}')
    a(f'v_lshl_add_u32 v{vTR}, v{vTR+1}, 4, v{vTR}')
    a(f'v_lshl_add_u32 v{vTR}, v{vTR}, 3, s{sM0}')
    a(f's_and_b32 s{sT}, s{sW}, 1')
    a(f's_lshl_b32 s{sT}, s{sT}, 6')
    a(f'v_xor_b32 v{vTR}, s{sT}, v{vTR}')
    for c in (1,2,3): a(f'v_xor_b32 v{vTR+c}, {32*c}, v{vTR}')
    for wnd in (1,2):
        for c in range(4): a(f'v_add_u32 v{vTR+4*wnd+c}, {wnd*4*UN}, v{vTR+c}')
    a(f's_mul_i32 s{sT}, s{sW}, {448*1024}')
    a(f's_lshl_b32 s{sT+1}, s{sCB}, 7')
    a(f's_add_u32 s{sT}, s{sT}, s{sT+1}')
    a(f'v_lshrrev_b32 v{vD+1}, 3, v{vLANE}')
    a(f'v_lshl_add_u32 v{vD+1}, v{vD+1}, 10, s{sT}')
    a(f'v_and_b32 v{vD}, 7, v{vLANE}')
    a(f'v_lshlrev_b32 v{vD+2}, 1, v{vG}')
    a(f'v_xor_b32 v{vD}, v{vD}, v{vD+2}')
    a(f'v_lshl_add_u32 v{vD}, v{vD}, 4, v{vD+1}')
    for q in (1,2,3): a(f'v_add_u32 v{vD+q}, {q*7168}, v{vD}')
    a(f's_mov_b32 s{sMSK}, 0xffff0000')
    return r

def coef_ops():
    r = []; a = r.append
    T = vACC+16
    a(f's_lshr_b32 s{sT}, s{sR}, 1')
    a(f's_sub_u32 s{sT+1}, 32, s{sT}')
    a(f's_cmp_eq_u32 s{sT}, 0')
    a(f's_cselect_b32 s{sT+1}, 16, s{sT+1}')
    a(f's_bitcmp1_b32 s{sR}, 0')
    a(f's_cselect_b32 s{sP}, s{sT+1}, s{sT}')
    a(f's_sub_u32 s{sT+1}, 64, s{sP}')
    a(f's_cmp_eq_u32 s{sP}, 0')
    a(f's_cselect_b32 s{sT+1}, 32, s{sT+1}')
    a(f's_bitcmp1_b32 s{sW}, 1')
    a(f's_cselect_b32 s{sT+2}, s{sT+1}, s{sP}')
    a(f's_cselect_b32 s{sT+10}, -1.0, 1.0')
    a(f's_cmp_eq_u32 s{sP}, 0')
    a(f's_cselect_b32 s{sT+10}, 0, s{sT+10}')
    a(f's_cmp_eq_u32 s{sT+2}, 32')
    a(f's_cselect_b32 s{sT+9}, 0, 1.0')
    a(f's_cselect_b32 s{sT+11}, 1.0, 0')
    a(f's_cmp_ge_u32 s{sCB}, 4')
    a(f's_cselect_b32 s{sT+8}, 0, 0x80008000')
    a(f'v_lshl_add_u32 v7, v{vN}, 6, s{sT+2}')
    a(f'v_cvt_f32_u32 v5, v7')
    a(f'v_cvt_f32_u32 v4, v{vG}')
    a(f'v_mul_f32 v5, {f2u(1/2048):#x}, v5')
    a(f'v_cmp_eq_u32 vcc, 0, v{vG}')
    a(f's_lshl_b32 s{sT+1}, s{sCB}, 1')
    a(f's_and_b32 s{sT}, s{sW}, 1')
    a(f's_add_u32 s{sT+1}, s{sT+1}, s{sT}')
    a(f's_lshl_b32 s{sT+1}, s{sT+1}, 6')
    a(f'v_lshl_add_u32 v7, v7, 10, s{sT+1}')
    a(f'v_and_b32 v6, 1, v{vG}')
    a(f'v_lshl_add_u32 v7, v6, 5, v7')
    a(f'v_mul_u32_u24 v9, 0x8000, v6')
    a(f'v_lshl_or_b32 v9, v9, 16, v9')
    a(f'v_lshrrev_b32 v6, 1, v{vG}')
    a(f'v_lshl_add_u32 v{vOUT}, v6, 4, v7')
    a(f'v_mov_b32 v7, {f2u(16.0):#x}')
    for kp in range(4):
        for z in range(2):
            if z == 0: a(f'v_add_f32 v6, {f2u(4.0*kp):#x}, v4')
            else:
                a(f'v_sub_f32 v6, {f2u(32.0-4*kp):#x}, v4')
                if kp == 0: a(f'v_cndmask_b32 v6, v6, v7, vcc')
            a(f'v_mul_f32 v6, v6, v5')
            a(f'v_cos_f32 v{T}, v6')
            a(f'v_sin_f32 v{T+1}, v6')
            a(f'v_mul_f32 v{T+2}, s{sT+9}, v{T}')
            a(f'v_mul_f32 v{T+3}, s{sT+11}, v{T}')
            a(f'v_fmac_f32 v{T+3}, s{sT+10}, v{T+1}')
            a(f'v_mul_f32 v{T+4}, s{sT+9}, v{T+1}')
            a(f'v_mul_f32 v{T+5}, s{sT+11}, v{T+1}')
            a(f'v_fma_f32 v{T+5}, -v{T}, s{sT+10}, v{T+5}')
            a(f'v_cvt_pk_bf16_f32 v{T+2}, v{T+2}, v{T+3}')
            a(f'v_cvt_pk_bf16_f32 v{T+4}, v{T+4}, v{T+5}')
            a(f'v_accvgpr_write_b32 a{aCF+4*kp+2*z}, v{T+2}')
            a(f'v_xor_b32 v{T+4}, s{sT+8}, v{T+4}')
            a(f'v_xor_b32 v{T+2}, v9, v{T+2}')
            a(f'v_accvgpr_write_b32 a{aCF+4*kp+2*z+1}, v{T+4}')
            a(f'v_xor_b32 v{T+4}, v9, v{T+4}')
            a(f'v_accvgpr_write_b32 a{aCL+4*kp+2*z}, v{T+2}')
            a(f'v_accvgpr_write_b32 a{aCL+4*kp+2*z+1}, v{T+4}')
    return r

def scalar_late(a, dft):
    a(f's_lshr_b32 s{sT}, s2, 3')
    a(f's_xor_b32 s{sT}, s{sT}, s2')
    a(f's_bfe_u32 s{sT+1}, s{sT}, {4|(1<<16)}')
    a(f's_bfe_u32 s{sT}, s{sT}, {2|(1<<16)}')
    a(f's_lshl_b32 s{sT+1}, s{sT+1}, 1')
    a(f's_add_u32 s{sSET}, s{sT}, s{sT+1}')
    a(f's_lshl_b32 s{sT+2}, s{sSET}, 10')
    a(f's_lshl_b32 s{sT+1}, s{sW}, 1')
    a(f's_and_b32 s{sT+1}, s{sT+1}, 2')
    a(f's_xor_b32 s{sT+1}, s{sT+1}, s{sW}')
    a(f's_cmp_eq_u32 s{sI}, 0')
    a(f's_cselect_b32 s{sT}, s{sW}, s{sT+1}')
    a(f's_cmp_ge_u32 s{sJ}, 14')
    a(f's_cselect_b32 s{sT}, s{sT}, s{sW}')
    a(f's_lshl_b32 s{sXS}, s{sI}, 2')
    a(f's_add_u32 s{sXS}, s{sXS}, s{sT}')
    a(f's_lshl_b32 s{sXS}, s{sXS}, 12')
    a(f's_add_u32 s{sXS}, s{sXS}, s{sT+2}')
    a(f's_add_u32 s{sXS}, s{sXS}, {XS_OFF}')
    a(f's_lshl_b32 s{sCS}, s{sJ}, 14')
    a(f's_add_u32 s{sCS}, s{sCS}, s{sM0}')
    a(f's_add_u32 s{sCS}, s{sCS}, s{sT+2}')
    a(f's_add_u32 s{sCS}, s{sCS}, {CS_OFF}')
    a(f's_add_u32 s{sT}, s{sJ}, 16')
    a(f's_bitcmp1_b32 s{sW}, 0')
    a(f's_cselect_b32 s{sT}, s{sT}, s{sI}')
    a(f's_lshl_b32 s{sT}, s{sT}, 2')
    a(f's_add_u32 s{sT}, s{sT}, s{sSET}')
    a(f's_lshl_b32 s{sT}, s{sT}, 7')
    a(f's_add_u32 s{sT+8}, s{sT}, {FLS_OFF}')
    drot = C.drotd if dft else C.drot
    if drot == 0: a(f's_mov_b32 s{sPO}, 0')
    elif drot == 1:
        a(f's_and_b32 s{sPO}, s{sR}, 1'); a(f's_lshl_b32 s{sPO}, s{sPO}, 13')
    else:
        a(f's_and_b32 s{sPO}, s{sR}, {3 if drot == 2 else 7}')
        a(f's_mul_i32 s{sPO}, s{sPO}, 7')
        a(f's_add_u32 s{sPO}, s{sPO}, 2')
        a(f's_lshr_b32 s{sPO}, s{sPO}, {drot}')
        if C.xoff:
            a(f's_bfe_u32 s{sT}, s2, {1|(1<<16)}')
            a(f's_add_u32 s{sPO}, s{sPO}, s{sT}')
        a(f's_lshl_b32 s{sPO}, s{sPO}, 11')
    for k in range(1, 7):
        a(f's_add_u32 s{sPO+k}, s{sPO+k-1}, 2048')
        a(f's_cmp_eq_u32 s{sPO+k}, {7*2048}')
        a(f's_cselect_b32 s{sPO+k}, 0, s{sPO+k}')

LR = 9*UN
LC = 9*UN+8192
vRT = 240
def dft_R_addr():
    r = []; a = r.append; T = vRT
    a(f's_lshl_b32 s{sT}, s{sW}, 16')
    a(f'v_lshrrev_b32 v{T+1}, 3, v{vLANE}')
    a(f'v_lshl_add_u32 v{T+1}, v{T+1}, 13, s{sT}')
    a(f'v_lshlrev_b32 v{T}, 1, v{vG}')
    a(f'v_xor_b32 v{T}, v{T}, v{vLANE}')
    a(f'v_and_b32 v{T}, 7, v{T}')
    a(f'v_lshl_add_u32 v{T}, v{T}, 4, v{T+1}')
    a(f'v_xor_b32 v{T+1}, 16, v{T}')
    a(f'v_add_u32 v{T+1}, 1024, v{T+1}')
    a(f's_lshr_b32 s{sT+9}, s{sM0}, 1')
    a(f'v_lshrrev_b32 v{T+3}, 1, v{vN}')
    a(f'v_and_b32 v{T+4}, 1, v{vN}')
    a(f'v_and_or_b32 v{T+2}, v{T+3}, 6, v{T+4}')
    a(f'v_xor_b32 v{T+2}, v{T+2}, v{vG}')
    a(f'v_lshl_add_u32 v{T+3}, v{T+4}, 3, v{T+3}')
    a(f'v_lshl_add_u32 v{T+2}, v{T+3}, 3, v{T+2}')
    a(f'v_cmp_eq_u32 vcc, 1, v{vN}')
    a(f'v_lshlrev_b32 v{T+2}, 4, v{T+2}')
    a(f'v_add_u32 v{T+2}, {LR}, v{T+2}')
    a(f'v_mov_b32 v{T+6}, {LC}')
    a(f'v_xor_b32 v{T+3}, 64, v{T+2}')
    a(f'v_cndmask_b32 v{T+4}, v{T+2}, v{T+6}, vcc')
    a(f'v_cndmask_b32 v{T+5}, v{T+3}, v{T+6}, vcc')
    for d in range(4): a(f'v_mov_b32 v{vRT+8+d}, 0xbf803f80')
    return r
def dft_R_loads():
    return [(('R',0), [f's_add_u32 m0, s{sT+9}, {LR}'], f'buffer_load_dwordx4 v{vRT}, {S(sG)}, 0 offen lds'),
            (('R',0), [], f'buffer_load_dwordx4 v{vRT+1}, {S(sU)}, 0 offen offset:1024 lds')]
def dft_R_reads():
    return [f'ds_read_b128 {ar(aR+8*jb+4*sub,4)}, v{vRT+(2 if jb else 4)+sub} offset:{2048*jb}' for jb in range(4) for sub in range(2)]

def stats_reads(n, aSX=aSX):
    return [f'ds_read_b128 {ar(aSX+4*o,4)}, v{vOA+(n&1)} offset:{(n>>1)*UN+o*2048}' for o in range(2)]
def stats_mfma(dft, n, aSX=aSX):
    r = []
    def mf(c, x, y): r.append(f'{MF} {vr(c,4)}, {x}, {y}, {vr(c,4) if n else 0}')
    for o in range(2):
        mf(vSXo+4*o, ar(aONE,4), ar(aSX+4*o,4))
        mf(vSQo+4*o, ar(aSX+4*o,4), ar(aSX+4*o,4))
    if not dft:
        for wf in range(4): mf(vCS+4*wf, ar(aONE,4), vr(fW(n&1,wf),4))
    return r
def stats_pack_ops(dft):
    r = []; a = r.append
    a(f'v_lshlrev_b32 v4, 4, v{vN}')
    a(f'v_mov_b32 v10, {OOB}')
    a(f'v_mov_b32 v{vSXo+2}, v{vSXo+4}')
    a(f'v_cndmask_b32 v4, v10, v4, s[{sMV}:{sMV+1}]')
    for o in range(2):
        sq = vSQo+4*o
        a(f'v_cndmask_b32 v{sq}, v{sq}, v{sq+1}, s[{sM1}:{sM1+1}]')
        a(f'v_cndmask_b32 v{sq}, v{sq}, v{sq+2}, s[{sM2}:{sM2+1}]')
        a(f'v_cndmask_b32 v{vSXo+1+2*o}, v{sq}, v{sq+3}, s[{sM3}:{sM3+1}]')
    if not dft:
        a(f'v_lshlrev_b32 v5, 2, v{vLANE}')
        for g, m in ((1,sM1),(2,sM2),(3,sM3)): a(f'v_cmp_eq_u32 s[{m}:{m+1}], {g}, v{vG}')
        for g, m in ((1,sM1),(2,sM2),(3,sM3)): a(f'v_cndmask_b32 v{vCS}, v{vCS}, v{vCS+4*g}, s[{m}:{m+1}]')
    a(f's_add_u32 s{sT+6}, s{sXS}, s{sL}')
    a(f's_add_u32 s{sT+7}, s{sCS}, s{sL}')
    a(f'v_lshlrev_b32 v15, 4, v{vLANE}')
    return r
def stats_reduce_ops(dft):
    r = []; a = r.append
    a(f's_lshl_b32 s{sT}, s{sW}, {7 if dft else 9}')
    a(f's_add_u32 s{sT}, s{sT}, {LST}')
    a(f'v_permlane32_swap_b32 v96, v98')
    a(f'v_permlane32_swap_b32 v97, v99')
    if not dft:
        a(f'v_permlane32_swap_b32 v112, v114')
        a(f'v_permlane32_swap_b32 v113, v115')
    a(f'v_add_f32 v100, v96, v98')
    a(f'v_add_f32 v101, v97, v99')
    a(f'v_add_f32 v96, v96, v98')
    a(f'v_add_f32 v97, v97, v99')
    if not dft:
        a(f'v_add_f32 v112, v112, v114')
        a(f'v_add_f32 v113, v113, v115')
    a(f'v_lshrrev_b32 v14, 1, v{vG}')
    a(f'v_lshl_add_u32 v14, v14, 4, v{vN}')
    a(f'v_permlane16_swap_b32 v96, v100')
    a(f'v_permlane16_swap_b32 v97, v101')
    if not dft: a(f'v_permlane16_swap_b32 v112, v113')
    a(f'v_lshl_add_u32 v14, v14, {2 if dft else 4}, s{sT}')
    a(f'v_add_f32 v96, v96, v100')
    a(f'v_add_f32 v97, v97, v101')
    if not dft:
        a(f'v_add_f32 v98, v112, v113')
        a(f's_lshl_b32 s{sT}, s{sW}, 8')
        a(f's_add_u32 s{sT}, s{sT}, {LST+4096}')
        a(f'v_lshl_add_u32 v8, v{vN}, 2, v{vG}')
        a(f'v_lshl_add_u32 v8, v8, 2, s{sT}')
        a(f'v_lshl_add_u32 v9, v{vG}, 4, s{sT}')
    a(f'v_mul_f32 v4, {f2u(-1/512):#x}, v96')
    a(f'v_mul_f32 v97, {f2u(1/512):#x}, v97')
    a(f'v_fma_f32 v97, -v4, v4, v97')
    a(f'v_max_f32 v97, 0, v97')
    a(f'v_add_f32 v97, {f2u(1e-5):#x}, v97')
    a(f'v_rsq_f32 v7, v97')
    if dft: a(f'v_lshlrev_b32 v15, 4, v{vG}')
    else:
        a(f'v_sqrt_f32 v5, v97')
        a(f'v_mul_f32 v6, {f2u(-LOG2E):#x}, v7')
        if C.ftz:
            a(f's_mov_b32 s{sM1}, {f2u(128.0-C.ftz):#x}')
            a(f'v_mul_f32 v7, {f2u(2.0**(C.ftz-128)):#x}, v5')
        a(f'v_lshlrev_b32 v15, 4, v{vN}')
    w = []
    if dft: w += [f'ds_write_b32 v14, v7']
    else:
        w.append(f'ds_write_b32 v8, v98')
        w.append(f'ds_write_b128 v14, v[4:7]')
        w += [f'ds_read_b128 {vr(vCS+4*wf,4)}, v9 offset:{64*wf}' for wf in range(4)]
    return r, w
TFO = [0, 2, 4, 6, 1, 3, 5, 7]
def rec(k): return vWF+4*k
def rec_read(k, dft): return f'ds_read_b128 {vr(rec(k),4)}, v15 offset:{LST+(64*k if dft else 256*TFO[k])}'
def epi_addr_ops(dft):
    r = []; a = r.append
    if dft:
        a(f's_lshl_b32 s{sT+2}, s{sI}, 12')
        a(f's_lshl_b32 s{sT+1}, s{sJ}, 11')
        a(f's_add_u32 s{sT+2}, s{sT+2}, s{sT+1}')
        a(f's_lshl_b32 s{sT+1}, s{sW}, 9')
        a(f's_add_u32 s{sT+2}, s{sT+2}, s{sT+1}')
        a(f'v_mul_u32_u24 v16, {2*GP}, v{vG}')
        a(f'v_lshl_add_u32 v17, v{vN}, 4, s{sT+2}')
        a(f'v_add_u32 v16, v16, v17')
        a(f's_lshr_b32 s{sT+12}, s{sI}, 2')
        a(f's_lshl_b32 s{sT+12}, s{sT+12}, 7')
        a(f's_add_u32 s{sT+12}, s{sT+12}, s{sM0}')
        a(f's_add_u32 s{sT+12}, s{sT+12}, {FLG_OFF}')
    else:
        a(f's_mul_i32 s{sT+2}, s{sI}, {8*HP}')
        a(f's_lshl_b32 s{sT+1}, s{sJ}, 2')
        a(f's_add_u32 s{sT+1}, s{sT+1}, s{sW}')
        a(f's_mul_i32 s{sT+12}, s{sT+1}, 4682')
        a(f's_lshl_b32 s{sT+1}, s{sT+1}, 10')
        a(f's_add_u32 s{sT+4}, s{sT+2}, s{sT+1}')
        a(f'v_lshlrev_b32 v16, 4, v{vLANE}')
        a(f's_lshr_b32 s{sT+12}, s{sT+12}, 16')
        a(f's_lshl_b32 s{sT+1}, s{sI}, 2')
        a(f's_add_u32 s{sT+12}, s{sT+12}, s{sT+1}')
        a(f's_lshl_b32 s{sT+12}, s{sT+12}, 8')
        a(f's_add_u32 s{sT+11}, s{sT+12}, {FL_OFF}')
        a(f's_add_u32 s{sT+12}, s{sT+12}, {FL_OFF+128}')
    return r

def spin(a, tag, load, test, cnt, sleep=2, first=True):
    if first:
        a.wait(lgkm=0)
        for t in test: a(t)
        a(f's_cbranch_scc1 L{tag}_ok')
    a(f's_mov_b32 s{cnt}, 0')
    a.label(f'L{tag}_spin')
    for t in load + [f's_add_u32 s{cnt}, s{cnt}, 1', 's_waitcnt lgkmcnt(0)'] + test + [f's_cbranch_scc1 L{tag}_ok'] + ([f's_sleep {sleep}'] if sleep else []) + [f's_cmp_lt_u32 s{cnt}, 0x100000', f's_cbranch_scc1 L{tag}_spin']:
        a.raw('    '+t)
    a.label(f'L{tag}_ok')
    if not first: a.lgkm = []; a.smem_out = []

def phaseA(a, dft, q, z):
    tag = 'd' if dft else 'g'
    full = master_list(dft)
    master = full[4:]
    cnt = {}; c = 0
    for t in full: c += 4; cnt[t] = c
    def lastneed(n):
        return [t for t in full if (t[0] == 'W' and t[1] <= n+1) or (t[0] == 'X' and 2*t[1] <= n+1)][-1]
    def enqueue(nb):
        while master:
            t = master[0]
            if t[0] == 'W' and t[1]-((8 if t[1] < 12 else 4) if dft else 6) > nb: break
            if t[0] == 'X' and t[1] >= 4 and t[1]-4 > (nb >> 1)-1: break
            q.pend += items(master.pop(0), dft)
    def front(its):
        k = 1 if q.predone else 0
        q.pend[k:k] = its; q.limit += len(its)
        for t in cnt: cnt[t] += len(its)
    def setlimit(n):
        q.limit = cnt[lastneed(n)] + (C.dcap if dft else C.cap) if n < C.capn else 10**9
    enqueue(-1)
    if C.diag == 3:
        for t in range(24): a(f'{MF} {ar(4*(t&15),4)}, {ar(aCF+4*(t&3),4)}, {ar(aCL+4*((t>>2)&3),4)}, 0')
    a.wait(lgkm=0)
    q.need(('W',0))
    a('s_barrier')
    stamp(a, 17)
    setlimit(0)
    wr = w_reads(0, dft)
    a(wr[0]); a(wr[1]); a(x_read(0))
    for t in wr[2:]: a(t)
    a(x_read(1)); a(x_read(2))
    for t in stats_reads(0): a(t)
    fq = []
    red, redw = stats_reduce_ops(dft)
    spoll = f's_load_dword s{sFV}, s[78:79], s{sT+8} glc'
    dbgld = f's_load_dword s{sFV}, s[76:77], 0'
    rd0 = 12 if dft else C.rd0
    for n in range(16):
        s, p = n >> 1, n & 1
        wr = w_reads(n+1, dft) if n < 15 else []
        wfree = dft and (n+1) & 2
        bar_tf = C.bar if n < 15 else None
        if n == (0 if dft else 6): late = late_setup_ops() + (dft_R_addr() if dft else [])
        else: late = []
        if n == C.spoll: fq.insert(0, spoll)
        if n == 3: fq.insert(0, dbgld)
        if n == 11: fq += red
        if n == 14: fq += epi_addr_ops(dft)
        for tf in range(8):
            k = 8*n+tf; q.pos = k
            can_w = wfree or bar_tf is None or tf > bar_tf
            dpos = [[pp for t,pp in q.log if t == ('D',u)] for u in range(14)]
            dmax = min(rd0, len([1 for u,d in enumerate(dpos) if len(d) == 4 and d[3]+(C.ddlag if dft and u < 2 else C.dlag) <= k]))
            rate = 8 if n < 5 else C.rate
            if q.ready() and q.pend[0][0][0] == 'D' and q.pend[-1][0][0] == 'D':
                u = q.pend[0][0][1]
                rate = (C.ddrate if u < 4 else 8) if dft else (C.drate if u >= C.dslow else 4)
            slot = (tf*rate) % 8 < rate
            def other(cnt_):
                for _ in range(cnt_):
                    if can_w and wr: a(wr.pop(0))
                    elif dft and q.read1(dmax): pass
                    elif fq: a(fq.pop(0))
                    elif q.read1(dmax): pass
            def flush():
                while fq: a(fq.pop(0))
            if n == 4 and tf == 0:
                flush()
                its = [(('S',0), [], f'buffer_store_dwordx4 {vr(vSXo,4)}, v4, {S(sWS)}, s{sT+6} offen sc1')]
                if not dft: its.append((('S',0), [], f'buffer_store_dword v{vCS}, v5, {S(sWS)}, s{sT+7} offen sc1'))
                front(its)
            if tf == 0: fq += late
            for wf in range(4):
                w2 = 3-wf if (C.snake and tf & 1) else wf
                c = vr(acc(tf,w2),4); wfr = vr(fW(p,w2),4); xf = vr(fX(k),4)
                src = f'{xf}, {wfr}' if dft else f'{wfr}, {xf}'
                a(f'{MF} {c}, {src}, {c if n else 0}')
                if wf == 0:
                    if k+3 < 128: a(x_read(k+3)); other(1)
                    else: other(2)
                elif wf == 1:
                    if slot and q.haspre(): q.pre()
                    else: other(2)
                elif wf == 2:
                    if slot and q.ready() and not q.haspre(): q.issue(1)
                    else: other(2)
                elif tf != bar_tf: other(1)
                else:
                    q.limit = 10**9
                    while q.has(lastneed(n)): q.issue(1)
                    if n in (0, 1, 5, 9) or (n == 12 and dft): flush()
                    if n < 4 and not (C.diag == 1 and n):
                        for t in stats_mfma(dft, n): a(t)
                        if C.diag == 2 and n < 2:
                            for t in range(16): a(f'{MF} {ar(4*t,4)}, {vr(fW(p,t&3),4)}, {ar(aSX+4*(t>>3),4)}, 0')
                    if n == 0: scalar_late(a, dft)
                    if n == 1 and C.pads: a.raw(f';WARM {tag}')
                    q.need(lastneed(n))
                    if n == 5:
                        q.need(('S',0))
                        spin(a, tag+'i', [f'global_load_dword v{vDBG}, v11, s[76:77] sc1', 's_waitcnt vmcnt(0)', f'v_readfirstlane_b32 s{sFV}, v{vDBG}', 's_nop 3'], [f's_cmp_lg_u32 s{sFV}, 0'], sT+14)
                    if n == 9: spin(a, tag+'s', [spoll], [f's_cmp_eq_u32 s{sFV}, 8'], sT+14)
                    a('s_barrier')
                    if n == 0:
                        assert z not in a.vm
                        a(f's_or_b32 s{sT}, s2, s{sW}')
                        a(f's_cbranch_scc1 L{tag}_noinit')
                        a(f's_atomic_add s{sONE}, s[76:77], 0')
                        a.label(f'L{tag}_noinit')
                    if n == 2: a.smem_out = []
                    if n == 5: a(f's_atomic_add s{sONE}, s[78:79], s{sT+8}')
                    if n == 7: a.smem_out = []
                    if n in (1,3,7,11,13): stamp(a)
                    enqueue(n); setlimit(n+1)
                    if n < 3: wr += stats_reads(n+1)
                    if n == 3: fq += stats_pack_ops(dft)
                    if n == 9:
                        g = [(('A',0), [], f'buffer_load_dwordx4 {vr(96,4)}, v15, {S(sWS)}, s{sXS} offen sc1')]
                        if not dft: g += [(('A',0), [], f'buffer_load_dwordx4 {vr(112,4)}, v15, {S(sWS)}, s{sCS} offen sc1')]
                        front(g)
                    if n == 0 and dft and C.dearly:
                        its = q.plan.dma(0) + q.plan.dma(1); q.nD = 2
                        its += [(('T',0), [], f'buffer_load_dword v14, v{vCS}, {S(sG)}, 0 offen'), (('T',0), [], f'buffer_load_dword v14, v{vCS+1}, {S(sU)}, 0 offen offset:1024')]
                        tg = [('X',2), ('W',4), ('W',5)][C.dearly-1]
                        k0 = max(i for i,t in enumerate(q.pend) if t[0] == tg)+1
                        q.pend[k0:k0] = its
                        for t in cnt:
                            if cnt[t] > cnt[tg]: cnt[t] += len(its)
                    if n == 12 and dft: q.pend += dft_R_loads()
                    for nn, up in q.plan.avail.items():
                        if nn <= n: q.addD(up)
                    if n >= 10: assert not master
                    if n == 13: fq += redw
            if n == 10 and tf == 0: assert not q.has(('A',0))
            if n == 13 and tf == 7: assert not q.has(('X',7))
            if n == 15 and tf == 5:
                flush()
                if dft: q.need(('R',0))
                a.wait(lgkm=0)
                a('s_barrier')
                fq += [rec_read(t4, dft) for t4 in range(4)]
                if dft: fq += dft_R_reads()
                q.addD(14)
        assert not wr, (n, wr)
    for t4 in range(4, 8): fq.append(rec_read(t4, dft))
    while fq: a(fq.pop(0))
    q.pos = 128
    if C.log: print(tag, ' '.join(f'{t[0]}{t[1]}@{p//8}.{p%8}' for t,p in q.log), 'reads left', len(q.rq), 'dma left', q.left(), file=sys.stderr)
    if not dft:
        q.readD(C.rd0)
        while q.left() > C.dleft: q.issue(1)

def phaseD(a, q, z):
    sSG = 16; vF = vWA+2
    q.issue(99)
    for t in dft_R_addr(): a(t)
    q.pend += dft_R_loads()
    def stage(m): return items(('X',2*m)) + items(('X',2*m+1)) + items(('W',4*m), True) + items(('W',4*m+1), True)
    q.pend += stage(1)
    q.issue(2)
    a(f'ds_write_b128 v{vRT+6}, {vr(vRT+8,4)}')
    scalar_late(a, True)
    for t in late_setup_ops(): a(t)
    for ks in range(2): a(f'v_add_u32 v{vWA+ks}, {4*UN}, v{vOA+ks}')
    a(f'v_lshl_add_u32 v{vF}, v{vLANE}, 4, s{sM0}')
    a(f's_bitcmp1_b32 s{sJ}, 0')
    a(f's_cselect_b32 s{sSG}, -1.0, 1.0')
    if C.fdot:
        a(f's_or_b32 s{sSG}, s{sSG}, 0x3f80')
        a(f's_mov_b32 s{sSG+2}, 0x05040100')
        a(f's_mov_b32 s{sSG+3}, 0x07060302')
    a.wait(lgkm=0)
    stamp(a, 17)
    q.need(('X',0))
    for n in (0, 1):
        for t in stats_reads(n, 128+8*n): a(t)
    q.issue(C.dcap)
    for n in (0, 1):
        for t in stats_mfma(True, n, 128+8*n): a(t)
    if C.pads: a.raw(';WARM d')
    q.need(('X',1))
    for n in (2, 3):
        for t in stats_reads(n, 128+8*n): a(t)
    for n in (2, 3):
        for t in stats_mfma(True, n, 128+8*n): a(t)
    for t in stats_pack_ops(True): a(t)
    S0 = a(f'buffer_store_dwordx4 {vr(vSXo,4)}, v4, {S(sWS)}, s{sT+6} offen sc1')
    red, redw = stats_reduce_ops(True)
    spoll = f's_load_dword s{sFV}, s[78:79], s{sT+8} glc'
    dbgld = f's_load_dword s{sFV}, s[76:77], 0'
    def wrd(n):
        m, ks = n >> 1, n & 1
        return [f'ds_read_b128 {vr(fW(ks,wf),4)}, v{vWA+ks} offset:{(2*(m&1)+(wf&1))*UN+2048*(wf>>1)}' for wf in range(4)]
    def xrd(m, k): return f'ds_read_b128 {vr(fX(k),4)}, v{vXA+(k>>3)} offset:{2*(m&1)*UN+(k&7)*2048}'
    def raw(m): return [f'ds_read_b128 {vr(96+16*h+4*k,4)}, v{vF} offset:{(2*(m&1)+h)*UN+1024*k}' for k in range(4) for h in range(2)]
    fq = []
    for m in range(4):
        ua = 2*(m & 1)*UN
        if m == 0: fq += raw(0)
        while fq: a(fq.pop(0))
        if m: q.readD(m-1); q.addD(m)
        for d4 in range(0, 16, 4):
            q.issue(1)
            if C.fdot:
                for d in range(d4, d4+4):
                    a(f'v_perm_b32 v{4+(d&3)}, v{112+d}, v{96+d}, s{sSG+2}')
                    a(f'v_perm_b32 v{112+d}, v{112+d}, v{96+d}, s{sSG+3}')
                for d in range(d4, d4+4):
                    a(f'v_dot2_f32_bf16 v{4+(d&3)}, v{4+(d&3)}, s{sSG}, 0')
                    a(f'v_dot2_f32_bf16 v{112+d}, v{112+d}, s{sSG}, 0')
                for d in range(d4, d4+4): a(f'v_cvt_pk_bf16_f32 v{96+d}, v{4+(d&3)}, v{112+d}')
            else:
                for d in range(d4, d4+4):
                    a(f'v_lshlrev_b32 v4, 16, v{96+d}')
                    a(f'v_and_b32 v5, s{sMSK}, v{96+d}')
                    a(f'v_lshlrev_b32 v6, 16, v{112+d}')
                    a(f'v_and_b32 v7, s{sMSK}, v{112+d}')
                    a(f'v_pk_fma_f32 v[4:5], v[6:7], s[{sSG}:{sSG+1}], v[4:5] op_sel_hi:[1,0,1]')
                    a(f'v_cvt_pk_bf16_f32 v{96+d}, v4, v5')
            lw = a(f'ds_write_b128 v{vF}, {vr(96+d4,4)} offset:{ua+256*d4}')
        while q.has(('W',4*m+1)): q.issue(1)
        q.need(('W',4*m+1))
        for t in wrd(2*m): a(t)
        a.wait_lgkm_for(lw)
        if m == 0: q.need(('R',0))
        if m == 1:
            a.wait_vm_for(S0)
            spin(a, 'di', [f'global_load_dword v{vDBG}, v11, s[76:77] sc1', 's_waitcnt vmcnt(0)', f'v_readfirstlane_b32 s{sFV}, v{vDBG}', 's_nop 3'], [f's_cmp_lg_u32 s{sFV}, 0'], sT+14)
        if m == 3: spin(a, 'ds', [spoll], [f's_cmp_eq_u32 s{sFV}, 8'], sT+14)
        a('s_barrier')
        for k in range(3): a(xrd(m, k))
        if m == 0: fq += dft_R_reads()
        if m == 1: a(f's_atomic_add s{sONE}, s[78:79], s{sT+8}')
        if m in (1, 2): q.pend += stage(m+1)
        if m == 3:
            a(f'buffer_load_dwordx4 {vr(96,4)}, v15, {S(sWS)}, s{sXS} offen sc1')
            q.addD(7)
            fq += epi_addr_ops(True)
        stamp(a)
        for ks in range(2):
            n = 2*m+ks
            wr = wrd(n+1) if ks == 0 else []
            if n == 1: fq.insert(0, dbgld)
            if n == 3: a.smem_out = []
            if n == 5: fq.insert(0, spoll)
            if n == 7: fq += red + redw
            for tf in range(8):
                k = 8*ks+tf; q.pos = 8*n+tf
                def other(c_):
                    for _ in range(c_):
                        if wr: a(wr.pop(0))
                        elif fq: a(fq.pop(0))
                if n == 0 and tf == 6: assert not fq
                if ks == 1 and m < 3 and tf == C.fpre:
                    q.need(('X',2*m+3)); fq += raw(m+1)
                for wf in range(4):
                    w2 = 3-wf if (C.snake and tf & 1) else wf
                    c = vr(acc(tf,w2),4)
                    a(f'{MF} {c}, {vr(fX(k),4)}, {vr(fW(ks,w2),4)}, {c if n else 0}')
                    if wf == 0:
                        if k+3 < 16: a(xrd(m, k+3)); other(1)
                        else: other(2)
                    elif wf == 1:
                        if q.haspre(): q.pre()
                        else: other(2)
                    elif wf == 2:
                        if q.ready() and not q.haspre(): q.issue(1)
                        else: other(2)
                    else: other(1)
                if n == 7 and tf == 6:
                    while fq: a(fq.pop(0))
                    a.wait(lgkm=0)
                    a('s_barrier')
                    fq += [rec_read(t4, True) for t4 in range(4)]
                    q.addD(14)
            assert not wr
    stamp(a)
    for t4 in range(4, 8): fq.append(rec_read(t4, True))
    while fq: a(fq.pop(0))
    if C.log: print('d', ' '.join(f'{t[0]}{t[1]}@{p//8}.{p%8}' for t,p in q.log), 'dma left', q.left(), file=sys.stderr)

def glu_epilogue(a, q):
    sts = []
    for k, tf in enumerate(TFO):
        R = rec(k); G = acc(tf,0); U = acc(tf,2); hb = vSXo+4*(k&1)
        ms = vr(R,2); ar_ = vr(R+2,2)
        for r in range(0,8,2): a(f'v_pk_fma_f32 {vr(G+r,2)}, {vr(vCS+r,2)}, {ms}, {vr(G+r,2)} op_sel_hi:[1,0,1]')
        for r in range(0,8,2):
            if C.ftz: a(f'v_pk_fma_f32 {vr(G+r,2)}, {vr(G+r,2)}, {ar_}, s[{sM1}:{sM1+1}] op_sel_hi:[1,0,0]')
            else: a(f'v_pk_mul_f32 {vr(G+r,2)}, {vr(G+r,2)}, {ar_} op_sel_hi:[1,0]')
        for r in range(8):
            a(f'v_exp_f32 v{G+r}, v{G+r}')
            if tf == 0 and r == 5: a.wait(lgkm=0)
        for r in range(0,8,2): a(f'v_pk_fma_f32 {vr(U+r,2)}, {vr(vCS+8+r,2)}, {ms}, {vr(U+r,2)} op_sel_hi:[1,0,1]')
        for r in range(0,8,2): a(f'v_pk_fma_f32 {vr(G+r,2)}, {vr(G+r,2)}, {ar_ if C.ftz else ms}, {ms} op_sel:[0,1,1] op_sel_hi:[1,1,1]')
        q.issue(C.epi_dma)
        for r in range(8): a(f'v_rcp_f32 v{G+r}, v{G+r}')
        if k: a(f's_add_u32 s{sT+4}, s{sT+4}, {2*HP}' if k != 4 else f's_sub_u32 s{sT+4}, s{sT+4}, {5*HP}')
        for r in range(0,8,2): a(f'v_pk_mul_f32 {vr(U+r,2)}, {vr(U+r,2)}, {vr(G+r,2)}')
        for d in range(4): a(f'v_cvt_pk_bf16_f32 v{hb+d}, v{U+2*d}, v{U+2*d+1}')
        sts.append(a(f'buffer_store_dwordx4 {vr(hb,4)}, v16, {S(sWS)}, s{sT+4} offen sc1'))
    a.wait_vm_for(sts[3])
    a(f's_atomic_add s{sONE}, s[78:79], s{sT+11}')
    return sts[7]

def dft_epilogue(a, q):
    Z = lambda z, sub, m: 96+16*z+8*sub+4*m
    D2 = lambda jb,z,wf: vACC+32*jb+16*z+4*wf
    nst = [0]
    def stores(jb, fb):
        out = []
        for rp in range(2):
            t = 48+4*(nst[0] & 3); nst[0] += 1
            for z in range(2):
                for m in range(2): out.append(f'v_cvt_pk_bf16_f32 v{t+2*z+m}, v{D2(jb,z,2*m+fb)+2*rp}, v{D2(jb,z,2*m+fb)+2*rp+1}')
            out.append(f's_mov_b32 s{sT+2}, {G_OFF-14*2048+(8*jb+rp)*GP}')
            out.append(f'buffer_store_dwordx4 {vr(t,4)}, v16, {S(sWS)}, s{sT+2} offen offset:{256*fb} sc1')
        return out
    pend = []
    for fb in range(2):
        for z in range(2):
            for sub in range(2):
                for m in range(2):
                    for qq in range(2):
                        tf = 4*z+2*qq+sub; A = acc(tf, 2*m+fb)
                        for r in (0,2): a(f'v_pk_mul_f32 {vr(A+r,2)}, {vr(A+r,2)}, {vr(rec(tf)+r,2)}')
                for m in range(2):
                    for r in range(4): a(f'v_cvt_pk_bf16_f32 v{Z(z,sub,m)+r}, v{acc(4*z+sub,2*m+fb)+r}, v{acc(4*z+2+sub,2*m+fb)+r}')
                if fb == 0 and z == 0 and sub == 0: a.wait(lgkm=0); a('s_nop 0')
                for t in pend[:6]: a(t)
                pend = pend[6:]
                q.issue(C.depi)
        for jb in range(4):
            n = 0
            for sub in range(2):
                for z in range(2):
                    for m in range(2):
                        c = vr(D2(jb,z,2*m+fb),4)
                        a(f'{MF} {c}, {ar(aR+8*jb+4*sub,4)}, {vr(Z(z,sub,m),4)}, {c if sub else 0}')
                        n += 1
                        if n >= 3:
                            for t in pend[:2]: a(t)
                            pend = pend[2:]
            assert not pend
            pend = stores(jb, fb)
    for t in pend: last = a(t)
    return last

vHA, vGA, vHS, vPW, vXS, vH, NH, vAC = 14, 26, 30, 15, 64, 128, 16, 192
PR = {1: 18, 2: 20, 3: 21}
sMB = sOWN
LPX = 4*UN
SEQ = [(sl, ks) for sl in range(4) for ks in range(14)]
def hload(a, n):
    sl, ks = SEQ[n]
    return a(f'buffer_load_dwordx4 {vr(vH+4*(n%NH),4)}, v{vHS+sl}, {S(sWS)}, s{sPO+(ks>>1)} offen offset:{(ks&1)*1024} {("sc1","sc1 nt","sc0 sc1","sc0 sc1 nt")[C.hfl]}')
def hpoll(r): return [f's_mov_b32 s{sFV}, 0', f's_atomic_add s{sFV}, s[78:79], s{r} glc']
GU, PU = 2, 3
GL = [f'buffer_load_dwordx4 v{vGA+k}, {S(sWS)}, 0 offen offset:{1024*k} sc1 lds' for k in range(4)]
sFG = 17
GPOLL = [f's_load_dword s{sFG}, s[78:79], s{sKX} glc']
GTEST = [f's_cmp_eq_u32 s{sFG}, 8']
def presync(a, dft, q, last):
    tag = 'd' if dft else 'g'
    lazy(a, 0)
    a(f's_lshl_b32 s{sKX}, s{sR}, 2')
    a(f's_add_u32 s{sKX}, s{sKX}, s{sW}')
    a(f's_lshl_b32 s{sKX}, s{sKX}, 7')
    a(f's_add_u32 s{sKX}, s{sKX}, {FLG_OFF}')
    q.issue(C.dpre if dft else C.pre)
    a(f's_mov_b32 s{sMB}, {1<<20}')
    a(f's_lshr_b32 s{sT}, s{sR}, 1')
    a(f's_lshl_b32 s{sT}, s{sT}, 2')
    a(f's_add_u32 s{sT}, s{sT}, s{sW}')
    a(f's_lshl_b32 s{sT}, s{sT}, 8')
    a(f's_add_u32 s{sT+15}, s{sT}, {FL_OFF}')
    a(f's_add_u32 s{sT+13}, s{sT}, {FL_OFF+128}')
    q.readD(7 if dft else C.rd1)
    a(f'v_lshlrev_b32 v{vHA}, 4, v{vLANE}')
    a(f's_mul_i32 s{sT+2}, s{sR}, {4*HP}')
    a(f's_mul_i32 s{sT+1}, s{sW}, {14*1024}')
    a(f's_add_u32 s{sT+2}, s{sT+2}, s{sT+1}')
    a(f's_and_b32 s{sT}, s{sW}, 2')
    a(f's_mul_i32 s{sT+1}, s{sT}, {HP}')
    a(f's_add_u32 s{sT+1}, s{sT+1}, s{sT+2}')
    a(f'v_add_u32 v{vHS+1}, s{sT+1}, v{vHA}')
    a(f's_xor_b32 s{sT}, s{sT}, 2')
    a(f's_mul_i32 s{sT+1}, s{sT}, {HP}')
    a(f's_add_u32 s{sT+1}, s{sT+1}, s{sT+2}')
    a(f'v_add_u32 v{vHS}, s{sT+1}, v{vHA}')
    a(f'v_add_u32 v{vHS+2}, {HP}, v{vHS}')
    a(f'v_add_u32 v{vHS+3}, {HP}, v{vHS+1}')
    a.wait(lgkm=0 if dft else 1, smem=False)
    lazy(a, 1)
    if C.gearly and not dft:
        for t in GPOLL: a(t)
    if dft:
        a(f's_add_u32 s{sM1}, s78, s{sT+12}')
        a(f's_addc_u32 s{sM1+1}, s79, 0')
    a(f'v_add_u32 v{vHA}, {LPX}, v{vHA}')
    a(f'v_add_u32 v{vPW}, s{sM0}, v{vHA}')
    for k in (1,2,3): a(f'v_xor_b32 v{PR[k]}, {k*4096}, v{vPW}')
    a(f's_lshl_b32 s{sT+1}, s{sCB}, 6')
    a(f's_sub_u32 s{sT+2}, s{sT+1}, 256')
    a(f's_sub_u32 s{sT+1}, 193, s{sT+1}')
    a(f's_cmp_ge_u32 s{sCB}, 4')
    a(f's_cselect_b32 s{sT+1}, s{sT+2}, s{sT+1}')
    a(f's_cselect_b32 s{sT+3}, 0, 63')
    a(f'v_and_b32 v5, 31, v{vLANE}')
    a(f'v_lshrrev_b32 v6, 5, v{vLANE}')
    a(f'v_lshl_add_u32 v5, v5, 1, s{sT+1}')
    a(f'v_add_u32 v5, v5, v6')
    a(f's_mul_i32 s{sT}, s{sP}, {GP}')
    a(f's_lshl_b32 s{sT+1}, s{sW}, 14')
    a(f's_add_u32 s{sT}, s{sT}, s{sT+1}')
    a(f's_add_u32 s{sT}, s{sT}, {G_OFF}')
    a(f'v_cmp_gt_u32 vcc, 0x100, v5')
    a(f'v_and_b32 v6, 1, v5')
    a(f'v_lshrrev_b32 v5, 1, v5')
    a(f'v_lshl_add_u32 v5, v6, 7, v5')
    a(f'v_lshl_add_u32 v5, v5, 4, s{sT}')
    a(f's_and_b32 s{sT}, s{sW}, 1')
    a(f's_lshl_b32 s{sT}, s{sT}, 5')
    a(f'v_cndmask_b32 v{vGA}, v10, v5, vcc')
    a(f's_xor_b32 s{sT}, s{sT}, s{sT+3}')
    a(f'v_xor_b32 v4, s{sT}, v{vN}')
    for k in (1,2,3): a(f'v_add_u32 v{vGA+k}, {3072*k}, v{vGA}')
    a(f'v_and_b32 v6, 1, v4')
    a(f'v_lshrrev_b32 v4, 1, v4')
    a(f'v_lshl_add_u32 v4, v6, 5, v4')
    a(f'v_lshl_add_u32 v4, v{vG}, 6, v4')
    a(f'v_lshlrev_b32 v4, 4, v4')
    a(f'v_add_u32 v{vHA}, {LPX}, v4')
    a(f'v_xor_b32 v19, 0x80, v{vHA}')
    a.wait_vm_for(last)
    if dft:
        a('s_barrier')
        for k in range(8): a(f's_atomic_add s{sONE}, s[{sM1}:{sM1+1}], {512*k}')
        lazy(a, 2)
        q.issue(99)
        a.wait(lgkm=0)
        while q.left():
            q.readD(q.rq[0][0]+1); q.issue(99)
        if C.gearly:
            q.readD(8)
            a.wait(lgkm=0)
            for t in GPOLL: a(t)
        for t in hpoll(sT+15): a(t)
    else:
        a(f's_atomic_add s{sONE}, s[78:79], s{sT+12}')
        for t in hpoll(sT+15): a(t)
        lazy(a, 2)
        q.issue(99)
    assert not q.left()
    a(f'buffer_load_dwordx4 {vr(48,4)}, v{vOUT}, {S(sX)}, 0 offen')
    a(f'buffer_load_dwordx4 {vr(52,4)}, v{vOUT}, {S(sX)}, s{sMB} offen')
    a(f's_add_u32 m0, s{sM0}, {LPX+GU*UN}')
    if dft: q.readD(14)
    lazy(a, 3)
    if C.gearly:
        assert all(u < (q.rq[0][0] if q.rq else 14) for u in range(14) if q.plan.units[u] == 4+GU)
        spin(a, tag+'g', GPOLL, GTEST, sT+14, sleep=0)
        for t in GL: a(t)
    spin(a, tag+'h', hpoll(sT+15), [f's_cmp_eq_u32 s{sFV}, 14'], sT+14, sleep=0)
    lazy(a, 4)
    for n in range(C.look0): hload(a, n)
    q.readD(14)
    for pr in range(2):
        for d in range(2): a(f'v_permlane16_swap_b32 v{48+4*pr+d}, v{48+4*pr+2+d}')
    for k in range(8):
        a(f'v_lshlrev_b32 v{vXS+2*k}, 16, v{48+k}')
        a(f'v_and_b32 v{vXS+2*k+1}, s{sMSK}, v{48+k}')
    a.wait(vm=C.look0)

def phaseB(a):
    AC = lambda sl,c: vAC+16*sl+4*c
    GF = lambda kp,c: 80+8*kp+4*c
    EP = [112, 120, 48]; LP = [160, 168, 176]; OB = 56
    osc = ("","sc1","nt","sc0 sc1")[C.outsc]
    def preads(P, half, srcs):
        off = {2: half*UN, 3: half*UN+2048, 1: PU*UN+2048*half}
        return [f'ds_read_b128 {vr(P[{2:0,3:1,1:2}[k]]+4*c,4)}, v{PR[k]} offset:{off[k]+1024*c}' for k in srcs for c in range(2)]
    def adds(d, s_): return [f'v_add_f32 v{d+k}, v{d+k}, v{s_+k}' for k in range(8)]
    def pack(src, ob, so):
        return ([f'v_cvt_pk_bf16_f32 v{ob+k}, v{src+2*k}, v{src+2*k+1}' for k in range(4)] + [f'v_permlane16_swap_b32 v{ob+d}, v{ob+2+d}' for d in range(2)]
                + [f'buffer_store_dwordx4 {vr(ob,4)}, v{vOUT}, {S(sOUT)}, {so} offen {osc}'])
    nl = C.look0
    fillers = []; gm = []; wq = []; after_g = []
    cur = [0]
    def fill(k):
        for _ in range(k):
            if fillers and not (fillers[0].startswith('buffer_store') and cur[0] < C.est): a(fillers.pop(0))
    def mf(n, c):
        cur[0] = n
        sl, ks = SEQ[n]
        d = vr(AC(sl,c),4); ci = d
        if ks == 0 and not (c < 2 and ((sl == 3 and not glate) or (sl == 1 and C.gearly))): ci = vr(vXS+4*(sl-1)+4*c,4) if (sl & 1 and c < 2) else 0
        a(f'{MF} {d}, {ar(16*ks+4*c,4)}, {vr(vH+4*(n%NH),4)}, {ci}')
    lc = 28-C.look-1
    glate = C.gb+6 > 42 and not C.gearly
    assert (not glate or C.gb+2 > 42) and C.xb >= 4 and C.lp+6 <= lc < (C.gp or C.gc) and C.gb >= 31
    nend = 56-C.defer
    for n in range(nend):
        sl, ks = SEQ[n]
        for j in range(4):
            mf(n, j)
            if j == 0:
                if nl < 56: hload(a, nl); nl += 1
                else: fill(2)
            elif j == 1 and n == C.lp:
                a.wait(lgkm=0)
                for t in hpoll(sT+13): a(t)
                if not C.gp and not C.gearly:
                    for t in GPOLL: a(t)
            elif j == 1 and n == lc:
                assert nl <= 28
                spin(a, 'l', hpoll(sT+13), [f's_cmp_eq_u32 s{sFV}, 14'], sT+14, sleep=0)
            elif j == 1 and C.gp and n == C.gp and not C.gearly:
                for t in GPOLL: a(t)
            elif j == 1 and n == C.gc and not C.gearly:
                spin(a, 'g', GPOLL, GTEST, sT+14, sleep=C.gsl)
            elif j == 1 and (n == C.gb or (n == C.gb2 and C.gearly)):
                assert not wq or sl == 3
                dog = (n == C.gb2) == bool(C.gearly)
                if not C.gearly: a.wait_vm_for(gdone)
                if n == C.gb: a.wait(lgkm=0)
                a('s_barrier')
                if dog:
                    fillers = [f'ds_read_b128 {vr(GF(kp,c),4)}, v{19 if c else vHA} offset:{GU*UN+4096*kp}' for kp in range(4) for c in range(2)]
                    gstart = n+2
                    for kp in range(4):
                        for (sl2, c) in ((1,0),(3,0),(3,1),(1,1)):
                            d = vr(AC(sl2,c),4); ini = kp == 0 and ((sl2 == 3 and not glate) or C.gearly)
                            gm.append(f'{MF} {d}, {vr(GF(kp,c),4)}, {ar((aCF if sl2 == 1 else aCL)+4*kp,4)}, {vr(vXS+4*(sl2-1)+4*c,4) if ini else d}')
                if n == C.gb:
                    fillers += preads(EP, 0, (2,3,1)) + adds(EP[0], EP[1]) + adds(EP[0], EP[2])
                    after_g = adds(EP[0], AC(1,0)) + pack(EP[0], OB, 0)
                    if n == 42+C.xb:
                        assert not wq
                        fillers += preads(LP, 1, (2,3)) + adds(LP[0], LP[1])
            elif j == 1 and sl and 1 <= ks and wq: a(wq.pop(0))
            elif j == 1 and sl == 3 and ks == C.xb:
                assert not wq
                a.wait(lgkm=0); a('s_barrier')
                fillers = preads(LP, 1, (2,3)) + fillers + adds(LP[0], LP[1])
            elif j == 2 and C.gc <= n < C.gc+4 and not C.gearly: gdone = a(GL[n-C.gc])
            elif j == 2 and nl < 56 and nl-n-1 < C.look:
                hload(a, nl); nl += 1
            else: fill(1 if j == 3 else 2)
        if gm and n >= gstart:
            for t in gm[:4]: a(t); fill(2)
            gm = gm[4:]
        elif after_g and not gm: fillers += after_g; after_g = []
        if ks == 13 and sl < 3:
            assert not wq
            if sl == 1: wq = [f'ds_write_b128 v{vPW}, {vr(AC(1,2+c),4)} offset:{PU*UN+1024*c}' for c in range(2)]
            else: wq = [f'ds_write_b128 v{vPW}, {vr(AC(sl,c),4)} offset:{(sl>>1)*UN+1024*c}' for c in range(4)]
        if n == 0: lazy_flush(a, 5); stamp(a, 3)
        if n in (7,14,21,28,35,42,49): stamp(a, 18 if n == 7 else 2)
    assert nl == 56
    for n in range(nend, 56):
        for c in (2, 3): mf(n, c); fill(2)
        if gm:
            for t in gm[:4]: a(t); fill(2)
            gm = gm[4:]
        elif after_g: fillers += after_g; after_g = []
    assert not gm and not after_g
    fill(99)
    own = [(n, c) for n in range(nend, 56) for c in (0, 1)]
    k0 = min(3, len(own))
    for n, c in own[:k0]: mf(n, c)
    own = own[k0:]
    for c in range(2):
        a(f'ds_write_b128 v{vPW}, {vr(AC(3,2+c),4)} offset:{PU*UN+2048+1024*c}')
        if own: mf(*own.pop(0))
    if own: mf(*own.pop(0))
    a.wait(lgkm=0); a('s_barrier')
    for t in preads(LP, 1, (1,)): a(t)
    for n, c in own: mf(n, c)
    stamp(a, 3)
    for k in range(0, 8, 2): a(f'v_pk_add_f32 {vr(LP[0]+k,2)}, {vr(LP[0]+k,2)}, {vr(AC(3,0)+k,2)}')
    for k in range(0, 8, 2): a(f'v_pk_add_f32 {vr(LP[0]+k,2)}, {vr(LP[0]+k,2)}, {vr(LP[2]+k,2)}')
    for t in pack(LP[0], OB+4, f's{sMB}'): a(t)
    stamp(a)

def kernel(a):
    q = Q(a)
    prologue(a, q)
    for t in master_list(False)[1:4]: q.pend += items(t)
    assert C.cap0 <= 8
    q.issue(6)
    stamp(a)
    z = setup2(a)
    for t in coef_ops(): a(t)
    q.issue(C.cap0-2)
    stamp(a)
    a(f's_cmp_ge_u32 s{sJ}, 14')
    a('s_cbranch_scc1 L_dft')
    st = a.snapshot(); n0 = St.n; q2 = q.clone(True)
    phaseA(a, False, q, z); stamp(a, 17)
    presync(a, False, q, glu_epilogue(a, q))
    def state(): return ([i.text for i in a.vm], St.n)
    join = state(); jl = [i.text for i in a.lgkm]
    a.label('L_phaseB')
    a.raw(';PAD0') if C.pads else a('s_nop 0')
    phaseB(a)
    stamp_flush(a)
    a.label('L_end')
    a('s_endpgm')
    a.restore(st); St.n = n0; q = q2
    a.raw('.p2align 3')
    a.label('L_dft')
    phaseD(a, q, z); stamp(a, 17)
    presync(a, True, q, dft_epilogue(a, q))
    assert join == state(), (join, state())
    assert not a.lgkm
    a('s_branch L_phaseB')
    if a.blocked: print('waits that block on smem at lines', a.blocked, file=sys.stderr)

def layout(lines, base):
    out = []
    for l in lines:
        if l.startswith(';WARM'):
            t = l.split()[1]
            out += [f'    s_mov_b32 s1, {1 if t == "d" else 0}', '    s_mov_b64 exec, 0']
            for w in range(3): out += [f'    s_cmp_eq_u32 s{sW}, {w}', f'    s_cbranch_scc1 @{t}{w}']
            out += [f'    s_branch @{t}3']
            if t == 'g': out += ['Ltramp:', '    s_cmp_eq_u32 s1, 1', '    s_cbranch_scc1 Lret_d']
            out += [f'Lret_{t}:', '    s_mov_b64 exec, -1']
        elif l == ';PAD0': out += ['Lpad_s0:', '    s_cbranch_execz @next_s0']
        else: out.append(l)
    import re
    sz = sizes_of([re.sub(r'@\w+', 'L_end', l) for l in out])
    idx = [i for i,l in enumerate(out) if l.startswith('    ') and not l.strip().startswith((';','.'))]
    assert len(idx) == len(sz)
    size = dict(zip(idx, sz))
    res = []; addr = base; cand = None; fixed = left = 0; region = None; pads = {'g': [], 's': ['s0'], 'd': []}
    page = addr >> 12
    for i,l in enumerate(out):
        if l == 'Lret_g:': region = 'g'
        if l == 'L_phaseB:': region = 's'
        if l == 'L_end:': region = None
        if l == 'Lret_d:': region = 'd'
        if l.startswith('.p2align 3'): addr = (addr+7)//8*8; cand = None; res.append(l); continue
        if i not in size: res.append(l); continue
        if (addr >> 12) != page:
            page = addr >> 12
            if region and C.pads and 'exec' not in l:
                nm = f'{region}{len(pads[region])}'; pads[region].append(nm)
                res += [f'Lpad_{nm}:', f'    s_cbranch_execz @next_{nm}']; addr += 4
                if C.log: print('pad', nm, 'before line', i, l.strip()[:60], file=sys.stderr)
        s = size[i]
        if s == 8 and addr % 8 == 4:
            if cand is not None and C.align:
                op = res[cand].split()[0]; res[cand] = res[cand].replace(op, op+'_e64', 1); addr += 4; fixed += 1
            elif addr % 32 == 28: left += 1
        res.append(l)
        if s == 8: cand = None
        elif l.split()[0] in PROMO and addr % 8 == 0: cand = len(res)-1
        addr += s
    tgt = {}
    sp = pads['s']
    for k, nm in enumerate(sp): tgt[f'next_{nm}'] = f'Lpad_{sp[k+1]}' if k+1 < len(sp) else 'Ltramp'
    for t in 'gd':
        own = pads[t]
        for k, nm in enumerate(own): tgt[f'next_{nm}'] = f'Lpad_{own[k+3]}' if k+3 < len(own) else f'Lret_{t}'
        for w in range(3): tgt[f'{t}{w}'] = f'Lpad_{own[w]}' if w < len(own) else f'Lret_{t}'
        tgt[f'{t}3'] = f'Lpad_{sp[0 if t == "d" or len(sp) == 1 else 1]}'
    res = [re.sub(r'@(\w+)', lambda m: tgt[m.group(1)], l) for l in res]
    print('align fixed', fixed, 'left', left, 'pads', pads, 'bytes', addr-base, file=sys.stderr)
    assert addr-base <= 32*CODE_LINES_PER_WG*128
    return res

def build():
    out = ['; @launch grid=(256,1,1) block=(256,1,1) lds=163840', '; '+' '.join(sys.argv[2:]),
           '.amdgcn_target "amdgcn-amd-amdhsa--gfx950"', '.text', '.p2align 12']
    if C.shift: out.append(f'.fill {64*C.shift}, 4, 0xbf800000')
    nm = NAME+'_kernel'
    a = Asm(); kernel(a)
    lines = layout(a.lines, 0x300+256*C.shift)
    out += [f'.globl {nm}', '.p2align 8', f'.type {nm},@function', f'{nm}:', '\n'.join(lines)]
    out.append('L_code_end:')
    out.append(f'.fill ({32*CODE_LINES_PER_WG*128+256} - (L_code_end - {nm}))/4, 4, 0xbf800000')
    out.append('.section .rodata,"a"')
    out.append('.p2align 6')
    out.append(f'''.amdhsa_kernel {nm}
  .amdhsa_next_free_vgpr 512
  .amdhsa_next_free_sgpr 102
  .amdhsa_accum_offset 256
  .amdhsa_group_segment_fixed_size 0
  .amdhsa_kernarg_size 96
  .amdhsa_user_sgpr_count 2
  .amdhsa_user_sgpr_kernarg_segment_ptr 1
  .amdhsa_system_sgpr_workgroup_id_x 1
.end_amdhsa_kernel
''')
    return '\n'.join(out)
if __name__ == '__main__':
    for kv in sys.argv[2:]:
        k, v = kv.split('='); assert hasattr(C, k), k; setattr(C, k, int(v))
    HP = 56*1024+C.hpad; GP = 65536+C.gpad
    t = build()
    open(sys.argv[1], 'w').write(t)
```

```python
import sys, struct
from asmlib import *

NAME = 'parallel_sum__spectral_fnet__glu_gated_glu__prompt'
HP = 56*1024+128
GP = 65536+128
G_OFF = 0x790000
FL_OFF = 0xA00000
FLS_OFF = FL_OFF+128*128
FLG_OFF = FLS_OFF+4
NFL = 256
XS_OFF = 0xA10000
CS_OFF = 0xA50000
WS_BYTES = 0xA90000
STAMP_OFF = 0xC00000
OOB = 0x7f000000
def f2u(x): return struct.unpack('<I', struct.pack('<f', x))[0]
LOG2E = 1.4426950408889634
MF = 'v_mfma_f32_16x16x32_bf16'

class Cfg:
    stamps = 0; log = 0; align = 1
    touch = 0
    tlb = 0
    pads = 1
    shift = 0
    hrot = 0; bmap = 1; drot = 2
    cap0 = 6; cap = 5; capn = 4; bar = 2
    rate = 8; drate = 8; dslow = 0
    spoll = 8; dlag = 10; rd0 = 5; rd1 = 9
    dleft = 20; epi_dma = 1; post = 12
    look = 9; look0 = 6; gp = 0; gc = 24; gb = 40; est = 51; xb = 6; skipb = 0; snake = 1; defer = 5; lp = 8; pre = 8; mid = 4; xoff = 0; dmap = 1; dstart = 5; ddrate = 4; ddlag = 16; dearly = 0; drotd = 3; dcap = 6; xord = 1; tw = 1; tswap = 5; wsoff = 0; perm = 1; diag = 0; gearly = 1; gb2 = 2; dpre = 0; depi = 0; fpre = 6; fdot = 1; pa = 0; ool = 1; lz = 0; gfirst = 1; jit = 0; wt = 0; look1 = 2; lzu = 9; xpre = 1; hfl = 0; hoist = 1; gnew = 1; drd1 = 12; plate = 2; ftz = 0; gsl = 0
    infl = 2; pgap = 5
    outsc = 1; tpos = 3; tfl = 0; rmask = 6
    hpad = 0; gpad = 0
C = Cfg()

sMSK, sR, sCB = 3, 6, 7
sPO = 8
sDBG, sX, sG, sU, sWS, sWD, sOUT = 16, 20, 24, 28, 32, 36, 40
sW, sI, sJ, sP = 44, 45, 46, 47
sT = 48
sM0, sKX, sKW, sPITCH, sKCX, sKCW, sL, sXS = 64, 65, 66, 67, 68, 69, 70, 71
sSET, sCS, sOWN, sONE, sFV, sKD, sP2, sP7 = 80, 81, 86, 87, 4, 5, 15, 0
sM1, sM2, sM3, sMV = 88, 90, 92, 94
vLANE, vN, vG, vOUT = 1, 2, 3, 13
vXD, vWD, vD, vXA, vOA, vWA, vTR, vDBG, vSTAMP = 16, 20, 22, 26, 28, 30, 34, 46, 47
vXR, vWF, vSXo, vCS, vSQo, vACC = 48, 64, 96, 104, 120, 128
aSX, aONE, aR, aCL, aCF = 160, 168, 192, 224, 240
UN = 16384
LST = 1*UN
def acc(tf, wf): return vACC+16*tf+4*wf
def fW(p, wf): return vWF+16*p+4*wf
def fX(k): return vXR+4*(k & 3)
def S(r): return f's[{r}:{r+3}]'

class St: n = 0
def stamp(a, grp=1):
    if not (C.stamps & grp): return
    a(f's_memtime s[82:83]')
    a(f's_memrealtime s[84:85]')
    a.wait(lgkm=0)
    a(f'v_writelane_b32 v{vSTAMP}, s82, {St.n}')
    a(f'v_writelane_b32 v{vSTAMP}, s84, {32+St.n}')
    St.n += 1
LZ = [96, 18, 90, 92, 94]
def lazy(a, k):
    if C.stamps & 1: a.raw(f'    s_memrealtime s[{LZ[k]}:{LZ[k]+1}] ; s_memtime')
def lazy_flush(a, n):
    if not (C.stamps & 1): return
    a.raw('    s_waitcnt lgkmcnt(0)')
    for k in range(n):
        a(f'v_writelane_b32 v{vSTAMP}, s{LZ[k]}, {32+St.n}'); St.n += 1
def stamp_flush(a):
    if not C.stamps: return
    a.wait(vm=0)
    stamp(a, 255)
    a(f's_mov_b32 s{sWS+2}, 0x1000000')
    a(f's_lshl_b32 s82, s2, 2')
    a(f's_add_u32 s82, s82, s{sW}')
    a(f's_lshl_b32 s82, s82, 8')
    a(f's_add_u32 s82, s82, {STAMP_OFF}')
    a(f'v_lshlrev_b32 v4, 2, v{vLANE}')
    a(f'buffer_store_dword v{vSTAMP}, v4, {S(sWS)}, s82 offen')

class Jn: n = 0
def jit(a):
    if not C.jit: return
    Jn.n += 1
    for t in ['s_memtime s[82:83]', 's_waitcnt lgkmcnt(0)', 's_mul_i32 s82, s82, 0x9e3779b1', f's_lshr_b32 s82, s82, {32-C.jit}', 's_cmp_eq_u32 s82, 0', f's_cbranch_scc0 Ljit{Jn.n}', 's_sleep 100']:
        a.raw('    '+t)
    a.label(f'Ljit{Jn.n}')

def srd(a, d, ptr, nbytes):
    a(f's_mov_b64 s[{d}:{d+1}], s[{ptr}:{ptr+1}]')
    a(f's_mov_b32 s{d+2}, {nbytes}')
    a(f's_mov_b32 s{d+3}, 0x20000')

def dma_X(s):
    pre = {0: [f's_add_u32 m0, s{sM0}, {(s % 4)*UN}', f's_xor_b32 s{sKX}, s{sKX}, 512' if s & 1 else f's_lshl_b32 s{sKX}, s{sKCX}, 7']}
    if s & 1: pre[1] = [f's_add_u32 s{sKCX}, s{sKCX}, 1', f's_and_b32 s{sKCX}, s{sKCX}, 3'] + ([f's_or_b32 s{sKCX}, s{sKCX}, 4'] if C.xord else [])
    return [(('X', s), pre.get(q, []), f'buffer_load_dwordx4 v{vXD+q}, {S(sX)}, s{sKX} offen offset:{q*1024} lds') for q in range(4)]
def wunit(n, dft): return 4 + ((2*((n >> 2) & 1)+(n & 1)) if dft else n % 6)
def dma_W(n, dft):
    k = [f's_mul_i32 s{sKW}, s{sKCW}, s{sP2}', f's_add_u32 s{sKW}, s{sKW}, s{sPITCH}', f's_add_u32 s{sKW}, s{sKW}, s{sP7}', f's_add_u32 s{sKW}, s{sKW}, s{sPITCH}'][n & 3]
    pre = {0: [f's_add_u32 m0, s{sM0}, {wunit(n, dft)*UN}', k]}
    if n & 3 == 1: pre[1] = [f's_add_u32 s{sKCW}, s{sKCW}, 1', f's_and_b32 s{sKCW}, s{sKCW}, 3'] + ([f's_or_b32 s{sKCW}, s{sKCW}, 4'] if C.xord else [])
    return [(('W', n), pre.get(q, []), f'buffer_load_dwordx4 v{vWD+(q&1)}, {S(sU if q >> 1 else sG)}, s{sKW} offen offset:{q*1024} lds') for q in range(4)]
class Plan:
    def __init__(self, dft):
        if dft:
            self.units = [8, 9, 8, 9, 0, 4, 5, 6, 2, 7, 3, 9, 4, 5]
            self.avail = {}
        else:
            self.units = [0, 8, 9, 4, 5, 0, 6, 2, 8, 7, 3, 9, 4, 5]
            self.avail = {10:2, 11:3, 12:4, 13:6, 14:9}
        self.prev = {u: max(v for v in range(u) if self.units[v] == self.units[u]) for u in range(14) if self.units[u] in self.units[:u]}
    def dma(self, u):
        pre = {0: [f's_add_u32 m0, s{sM0}, {self.units[u]*UN}',
                   f's_add_u32 s{sKD}, s{sKD}, 32768' if u & 1 else f's_lshl_b32 s{sKD}, s{sPO+(u>>1)}, 5']}
        return [(('D', u), pre.get(q, []), f'buffer_load_dwordx4 v{vD+q}, {S(sWD)}, s{sKD} offen offset:{q*1024} lds') for q in range(4)]
    def reads(self, u):
        un = self.units[u]
        return [f'ds_read_b64_tr_b16 {ar(16*u+4*cbk+2*u2,2)}, v{vTR+4*(un>>2)+cbk} offset:{(un&3)*UN+2048*u2}' for cbk in range(4) for u2 in range(2)]

class Q:
    def __init__(self, a, dft=False):
        self.a = a; self.pend = []; self.last = {}; self.predone = False; self.nD = 0; self.maxD = 0; self.rd = {}
        self.plan = Plan(dft)
        self.rq = [(u, t) for u in range(14) for t in self.plan.reads(u)]; self.issued = 0; self.limit = 10**9; self.log = []; self.pos = -1
    def clone(self, dft):
        q = Q(self.a, dft); q.pend = list(self.pend); q.last = dict(self.last); q.predone = self.predone; q.issued = self.issued; q.log = list(self.log)
        return q
    def left(self): return len(self.pend) + 4*(14-self.nD)
    def ready(self):
        if not self.pend and self.nD < self.maxD:
            pv = self.plan.prev.get(self.nD)
            if pv is None or not self.rq or self.rq[0][0] > pv:
                self.pend += self.plan.dma(self.nD); self.nD += 1
        return bool(self.pend) and self.issued < self.limit
    def haspre(self): return self.ready() and self.pend[0][1] and not self.predone
    def pre(self):
        if self.ready() and not self.predone:
            for t in self.pend[0][1]: self.a(t)
            self.predone = True
    def issue(self, n=1):
        for _ in range(n):
            if not self.ready(): return
            self.pre()
            tag, pf, t = self.pend.pop(0)
            if tag[0] == 'D' and tag[1] in self.plan.prev: self.a.wait_lgkm_for(self.rd[self.plan.prev[tag[1]]])
            self.last[tag] = self.a(t); self.predone = False; self.issued += 1; self.log.append((tag, self.pos))
    def addD(self, upto): self.maxD = max(self.maxD, upto)
    def has(self, tag): return [1 for t in self.pend if t[0] == tag]
    def need(self, tag):
        assert tag in self.last and not self.has(tag), ('not issued', tag)
        self.a.wait_vm_for(self.last[tag])
    def read1(self, upto):
        if not self.rq or self.rq[0][0] >= upto: return False
        u, t = self.rq.pop(0)
        self.need(('D', u))
        self.rd[u] = self.a(t)
        return True
    def readD(self, upto):
        while self.read1(upto): pass

def x_read(k):
    n, tf = k >> 3, k & 7
    return f'ds_read_b128 {vr(fX(k),4)}, v{vXA+(n&1)} offset:{((n>>1) % 4)*UN+tf*2048}'
def w_reads(n, dft):
    if dft and n & 2:
        return [f'v_xor_b32 v{fW(n&1,0)+k}, v12, v{fW(n&1,0)+k}' for k in range(16)]
    un = wunit(n, dft)-4
    return [f'ds_read_b64_tr_b16 {vr(fW(n&1,wf)+2*u,2)}, v{vWA+2*(un>>2)+(wf&1)} offset:{(un&3)*UN+(wf>>1)*2048+u*1024}' for wf in range(4) for u in range(2)]

def master_list(dft):
    m = []
    for n in range(16):
        if n % 2 == 0: m.append(('X', n >> 1))
        if not (dft and n & 2): m.append(('W', n))
    return m
def items(t, dft=False): return dma_X(t[1]) if t[0] == 'X' else dma_W(t[1], dft)

CODE_LINES_PER_WG = 10
def prologue(a, q):
    a('s_cmp_ge_u32 s2, 256')
    a('s_cbranch_scc1 L_end')
    a('s_load_dwordx2 s[4:5], s[0:1], 0')
    a('s_load_dwordx4 s[8:11], s[0:1], 24')
    a('s_load_dwordx4 s[12:15], s[0:1], 48')
    a('s_load_dwordx8 s[72:79], s[0:1], 64')
    St.n = 0
    if C.stamps: a('s_memrealtime s[84:85]'); a('s_memtime s[82:83]')
    a.raw(f'    s_getpc_b64 s[80:81]'); a.hist.append((Ins('s_getpc_b64 s[80:81]'),1))
    a(f's_lshr_b32 s{sT}, s2, 3')
    a(f's_mul_i32 s{sT}, s{sT}, {CODE_LINES_PER_WG*128}')
    a(f'v_min_u32 v4, {CODE_LINES_PER_WG-1}, v0')
    a(f'v_lshl_add_u32 v4, v4, 7, s{sT}')
    a(f'global_load_dword v{vDBG}, v4, s[80:81]')
    a(f'v_and_b32 v{vLANE}, 63, v0')
    a(f'v_lshrrev_b32 v4, 6, v0')
    a(f'v_and_b32 v{vN}, 15, v0')
    a(f'v_readfirstlane_b32 s{sW}, v4')
    a(f'v_bfe_u32 v{vG}, v0, 4, 2')
    if C.perm:
        a(f's_lshr_b32 s{sT}, s2, 2')
        a(f's_xor_b32 s{sT}, s{sT}, s2')
        a(f's_and_b32 s{sT}, s{sT}, 1')
        a(f's_mul_i32 s{sT}, s{sT}, 5')
        a(f's_xor_b32 s2, s2, s{sT}')
    a(f's_and_b32 s{sT}, s2, 1')
    a(f's_lshl_b32 s{sT}, s{sT}, 3')
    a(f's_bfe_u32 s{sI}, s2, {3|(3<<16)}')
    a(f's_add_u32 s{sI}, s{sI}, s{sT}')
    a(f's_bfe_u32 s{sT}, s2, {1|(2<<16)}')
    a(f's_lshr_b32 s{sT+1}, s2, 6')
    if C.dmap:
        a(f's_mul_i32 s{sJ}, s{sT}, 3')
        a(f's_add_u32 s{sJ}, s{sJ}, s{sT+1}')
        a(f's_add_u32 s{sT+2}, s{sT}, 14')
        a(f's_cmp_eq_u32 s{sT+1}, 3')
        a(f's_cselect_b32 s{sT+2}, s{sT+2}, s{sJ}')
        a(f's_cmp_eq_u32 s{sT}, 3')
        a(f's_addc_u32 s{sJ}, s{sJ}, 0')
        a(f's_cmp_lt_u32 s{sT}, 2')
        a(f's_cselect_b32 s{sJ}, s{sT+2}, s{sJ}')
    else:
        a(f's_mul_i32 s{sJ}, s{sT}, 3')
        a(f's_add_u32 s{sJ}, s{sJ}, s{sT+1}')
        a(f's_lshr_b32 s{sT+2}, s2, 4')
        a(f's_xor_b32 s{sT+2}, s{sT+2}, s2')
        a(f's_and_b32 s{sT+2}, s{sT+2}, 2')
        a(f's_lshr_b32 s{sT}, s{sT}, 1')
        a(f's_add_u32 s{sT}, s{sT}, s{sT+2}')
        a(f's_add_u32 s{sT}, s{sT}, 12')
        a(f's_cmp_eq_u32 s{sT+1}, 3')
        a(f's_cselect_b32 s{sJ}, s{sT}, s{sJ}')
    a(f's_xor_b32 s{sT}, s{sI}, s{sT+1}')
    a(f's_and_b32 s{sT}, s{sT}, 1')
    a(f's_lshl_b32 s{sKCX}, s{sT}, 1')
    a(f's_lshr_b32 s{sT}, s2, 1')
    a(f's_xor_b32 s{sT}, s{sT}, s2')
    a(f's_and_b32 s{sT}, s{sT}, 1')
    a(f's_add_u32 s{sKCX}, s{sKCX}, s{sT}')
    a(f's_lshl_b32 s{sL}, s{sKCX}, 8')
    if C.rmask != 6: a(f's_and_b32 s{sKCX}, s{sKCX}, {C.rmask >> 1}')
    if C.xord: a(f's_or_b32 s{sKCX}, s{sKCX}, 4')
    a(f's_mov_b32 s{sKCW}, s{sKCX}')
    a(f's_sub_u32 s{sT+1}, 32, s{sI}')
    a(f's_cmp_eq_u32 s{sI}, 0')
    a(f's_cselect_b32 s{sT+1}, 16, s{sT+1}')
    a(f's_bitcmp1_b32 s{sW}, 1')
    a(f's_cselect_b32 s{sT}, s{sT+1}, s{sI}')
    a(f's_sub_u32 s{sT+1}, 64, s{sT}')
    a(f's_cmp_eq_u32 s{sT}, 0')
    a(f's_cselect_b32 s{sT+1}, 32, s{sT+1}')
    a(f's_add_u32 s{sT+2}, s{sT}, 32')
    a(f's_movk_i32 s{sT+6}, 3584')
    a(f's_cmp_ge_u32 s{sJ}, 14')
    a(f's_cselect_b32 s{sT+1}, s{sT+2}, s{sT+1}')
    a(f's_cselect_b32 s{sT+6}, 1024, s{sT+6}')
    a(f's_cselect_b32 s{sT+4}, 12, 0')
    a(f's_sub_u32 s{sT+4}, s{sJ}, s{sT+4}')
    a(f's_lshl_b32 s{sT+4}, s{sT+4}, 8')
    a(f's_bitcmp1_b32 s{sW}, 0')
    a(f's_cselect_b32 s{sT}, s{sT+1}, s{sT}')
    a(f's_cselect_b32 s{sT+5}, 8, 0')
    a(f's_lshl_b32 s{sT}, s{sT}, 10')
    a(f'v_lshrrev_b32 v4, 3, v{vLANE}')
    a(f'v_lshl_add_u32 v4, v4, 16, s{sT}')
    a(f'v_and_b32 v6, 7, v{vLANE}')
    a(f'v_xor_b32 v6, v6, v{vG}')
    a(f'v_lshl_add_u32 v{vXD}, v6, 4, v4')
    a(f'v_xor_b32 v7, 64, v{vXD}')
    a(f'v_add_u32 v{vXD+1}, {524288-1024}, v7')
    a(f'v_add_u32 v{vXD+2}, {2*(524288-1024)}, v{vXD}')
    a(f'v_add_u32 v{vXD+3}, {3*(524288-1024)}, v7')
    a(f's_lshl_b32 s{sM0}, s{sW}, 12')
    a(f's_lshl_b32 s{sPITCH}, s{sT+6}, 5')
    a(f's_mov_b32 s{sX+2}, {2048*1024}')
    a(f's_mov_b32 s{sX+3}, 0x20000')
    def waddr():
        a(f's_lshl_b32 s{sT+1}, s{sW}, 3')
        a(f'v_add_u32 v4, s{sT+1}, v{vG}')
        a(f'v_mul_u32_u24 v4, s{sT+6}, v4')
        a(f'v_add_u32 v4, s{sT+4}, v4')
        a(f'v_lshl_add_u32 v7, v{vG}, 1, s{sT+5}')
        a(f'v_xor_b32 v6, v{vN}, v7')
        a(f'v_lshl_add_u32 v{vWD}, v6, 4, v4')
        a(f's_lshl_b32 s{sT+1}, s{sT+6}, 2')
        a(f's_sub_u32 s{sT+1}, s{sT+1}, 1024')
        a(f'v_add_u32 v{vWD+1}, s{sT+1}, v{vWD}')
        a(f's_cmp_lt_u32 s{sJ}, 14')
        a(f's_cbranch_scc1 L_wglu')
        a(f's_lshl_b32 s{sT+1}, s{sW}, 6')
        a(f's_add_u32 s{sT+1}, s{sT+1}, s{sJ}')
        a(f's_add_u32 s{sT+1}, s{sT+1}, 242')
        a(f's_lshl_b32 s{sT+1}, s{sT+1}, 10')
        a(f'v_lshrrev_b32 v4, 3, v{vLANE}')
        a(f'v_lshl_add_u32 v4, v4, 11, s{sT+1}')
        a(f'v_and_b32 v6, 0x70, v{vXD}')
        a(f'v_add_u32 v{vWD}, v6, v4')
        a(f'v_xor_b32 v7, 64, v{vWD}')
        a(f'v_add_u32 v{vWD+1}, {16384-1024}, v7')
        a.label('L_wglu')
        a(f's_lshl_b32 s{sG+2}, s{sT+6}, 9')
        a(f's_mov_b32 s{sG+3}, 0x20000')
        a(f's_add_u32 s{sU+2}, s{sG+2}, 2048')
        a(f's_mov_b32 s{sU+3}, 0x20000')
    if C.hoist: waddr()
    sTW = 96
    if C.tw & 2:
        a(f's_lshl_b32 s{sT+1}, s2, 2')
        a(f's_add_u32 s{sT+1}, s{sT+1}, s{sW}')
        a(f's_lshl_b32 s{sT+7}, s{sT+1}, 7')
        a(f's_lshr_b32 s{sT+1}, s2, 3')
        a(f's_add_u32 s{sT+1}, s{sT+1}, s{sW}')
        a(f's_and_b32 s{sT+1}, s{sT+1}, 7')
        a(f's_min_u32 s{sT+1}, s{sT+1}, 5')
        a(f's_lshl_b32 s{sT+1}, s{sT+1}, 21')
        a(f's_add_u32 s{sT+8}, s{sT+1}, s{sT+7}')
    q.pend = items(('X',0)); q.pre()
    a.wait(lgkm=0)
    a(f's_mov_b64 s[{sX}:{sX+1}], s[4:5]')
    if C.stamps:
        a(f'v_writelane_b32 v{vSTAMP}, s84, 32'); a(f'v_writelane_b32 v{vSTAMP}, s82, 0'); St.n = 1
    if not C.tw & 4: q.issue(1)
    a(f's_cmp_ge_u32 s{sJ}, 14')
    a(f's_cselect_b64 s[{sG}:{sG+1}], s[8:9], s[12:13]')
    a(f's_cselect_b64 s[{sU}:{sU+1}], s[10:11], s[14:15]')
    if C.tw & 1:
        if C.tswap:
            a(f's_bitcmp1_b32 s2, {C.tswap}')
            a(f's_cselect_b64 s[8:9], s[{sG}:{sG+1}], s[{sU}:{sU+1}]')
            a(f's_load_dword s{sTW}, s[8:9], 0')
        else:
            a(f's_load_dword s{sTW}, s[{sG}:{sG+1}], 0')
            a(f's_load_dword s{sTW+1}, s[{sU}:{sU+1}], 0')
    if C.tw & 4: q.issue(1)
    if C.wsoff:
        a(f's_add_u32 s78, s78, {C.wsoff << 20}')
        a(f's_addc_u32 s79, s79, 0')
    if C.tw & 2:
        a(f's_load_dword s{sTW+2}, s[78:79], s{sT+8} glc')
        a(f's_load_dword s{sTW+3}, s[76:77], 128')
        a(f's_load_dword s{sTW+4}, s[72:73], 0')
        a(f's_load_dword s{sTW+5}, s[74:75], s{sT+7} glc')
    q.issue(1)
    if not C.hoist: waddr()
    a(f's_sub_u32 s{sU}, s{sU}, 2048')
    a(f's_subb_u32 s{sU+1}, s{sU+1}, 0')
    q.issue(1)
    a(f's_lshl_b32 s{sP2}, s{sPITCH}, 1')
    a(f's_cmp_ge_u32 s{sJ}, 14')
    a(f's_cselect_b32 s{sP2}, 128, s{sP2}')
    a(f's_mul_i32 s{sP7}, s{sPITCH}, {-9 if C.xord else 7}')
    q.issue(1)

def setup2(a):
    srd(a, sWS, 78, WS_BYTES)
    a(f's_cmp_eq_u32 s2, 0')
    a(f's_cselect_b32 s{sT+1}, {NFL}, 0')
    a(f's_mov_b32 s{sONE}, 1')
    a(f'v_mov_b32 v4, 0')
    a(f'v_mov_b32 v5, 0')
    a(f'v_mov_b32 v10, {OOB}')
    a(f'v_lshlrev_b32 v8, 7, v0')
    a(f'v_cmp_gt_u32 vcc, s{sT+1}, v0')
    a(f'v_mov_b32 v11, 0')
    a(f's_mov_b32 s{sT+3}, {FL_OFF}')
    a(f'v_cndmask_b32 v8, v10, v8, vcc')
    z = a(f'buffer_store_dwordx2 v[4:5], v8, {S(sWS)}, s{sT+3} offen sc1')
    srd(a, sWD, 72, 1792*1024)
    srd(a, sOUT, 74, 2048*1024)
    a(f'v_lshrrev_b32 v4, 1, v{vN}')
    a(f'v_xor_b32 v4, v4, v{vG}')
    a(f'v_lshlrev_b32 v4, 4, v4')
    a(f'v_lshl_add_u32 v{vXA}, v{vN}, 7, v4')
    a(f'v_xor_b32 v{vXA+1}, 64, v{vXA}')
    a(f'v_add_u32 v{vOA}, s{sM0}, v{vXA}')
    a(f'v_add_u32 v{vOA+1}, s{sM0}, v{vXA+1}')
    a(f'v_bfe_u32 v4, v{vLANE}, 2, 2')
    a(f'v_and_b32 v7, 3, v{vLANE}')
    a(f'v_cmp_eq_u32 s[{sM1}:{sM1+1}], 1, v7')
    a(f'v_cmp_eq_u32 s[{sM2}:{sM2+1}], 2, v7')
    a(f'v_cmp_eq_u32 s[{sM3}:{sM3+1}], 3, v7')
    a(f'v_cmp_eq_u32 s[{sMV}:{sMV+1}], v4, v{vG}')
    a(f'v_lshlrev_b32 v7, 3, v7')
    a(f'v_and_b32 v5, 1, v{vG}')
    a(f'v_lshl_add_u32 v5, v5, 2, v4')
    a(f's_lshl_b32 s{sT}, s{sW}, 1')
    a(f'v_xor_b32 v5, s{sT}, v5')
    a(f'v_lshl_add_u32 v5, v5, 5, v7')
    a(f'v_lshl_add_u32 v5, v4, 8, v5')
    a(f'v_lshl_add_u32 v5, v{vG}, 12, v5')
    a(f'v_add_u32 v{vWA}, {4*UN}, v5')
    a(f'v_xor_b32 v{vWA+1}, 32, v{vWA}')
    a(f'v_add_u32 v{vWA+2}, {4*UN}, v{vWA}')
    a(f'v_add_u32 v{vWA+3}, {4*UN}, v{vWA+1}')
    a(f'v_mov_b32 v4, 0x3f803f80')
    for d in range(4): a(f'v_accvgpr_write_b32 a{aONE+d}, v4')
    if C.bmap == 0:
        a(f's_and_b32 s{sR}, s2, 7')
        a(f's_lshl_b32 s{sR}, s{sR}, 2')
        a(f's_bfe_u32 s{sT}, s2, {3|(2<<16)}')
        a(f's_add_u32 s{sR}, s{sR}, s{sT}')
        a(f's_lshr_b32 s{sCB}, s2, 5')
    elif C.dmap:
        a(f's_and_b32 s{sR}, s2, 3')
        a(f's_lshl_b32 s{sR}, s{sR}, 3')
        a(f's_bfe_u32 s{sT}, s2, {3|(3<<16)}')
        a(f's_add_u32 s{sR}, s{sR}, s{sT}')
        a(f's_lshr_b32 s{sCB}, s2, 6')
        a(f's_xor_b32 s{sCB}, s{sCB}, 2')
        a(f's_and_b32 s{sT}, s2, 4')
        a(f's_add_u32 s{sCB}, s{sCB}, s{sT}')
        a(f's_add_u32 s{sCB}, s{sCB}, 2')
        a(f's_and_b32 s{sCB}, s{sCB}, 7')
    else:
        a(f's_bfe_u32 s{sR}, s2, {1|(2<<16)}')
        a(f's_lshl_b32 s{sR}, s{sR}, 3')
        a(f's_bfe_u32 s{sT}, s2, {3|(3<<16)}')
        a(f's_add_u32 s{sR}, s{sR}, s{sT}')
        a(f's_lshr_b32 s{sCB}, s2, 6')
        a(f's_and_b32 s{sT}, s2, 1')
        a(f's_lshl_b32 s{sT}, s{sT}, 2')
        a(f's_add_u32 s{sCB}, s{sCB}, s{sT}')
        a(f's_add_u32 s{sCB}, s{sCB}, 6')
        a(f's_and_b32 s{sCB}, s{sCB}, 7')
    return z

def late_setup_ops():
    r = []; a = r.append
    a(f'v_and_b32 v{vTR+1}, 3, v{vLANE}')
    a(f'v_bfe_u32 v{vTR}, v{vLANE}, 3, 2')
    a(f'v_lshl_add_u32 v{vTR}, v{vTR}, 2, v{vTR+1}')
    a(f'v_lshrrev_b32 v{vTR+1}, 2, v{vLANE}')
    a(f'v_lshl_add_u32 v{vTR}, v{vTR+1}, 4, v{vTR}')
    a(f'v_lshl_add_u32 v{vTR}, v{vTR}, 3, s{sM0}')
    a(f's_and_b32 s{sT}, s{sW}, 1')
    a(f's_lshl_b32 s{sT}, s{sT}, 6')
    a(f'v_xor_b32 v{vTR}, s{sT}, v{vTR}')
    for c in (1,2,3): a(f'v_xor_b32 v{vTR+c}, {32*c}, v{vTR}')
    for wnd in (1,2):
        for c in range(4): a(f'v_add_u32 v{vTR+4*wnd+c}, {wnd*4*UN}, v{vTR+c}')
    a(f's_mul_i32 s{sT}, s{sW}, {448*1024}')
    a(f's_lshl_b32 s{sT+1}, s{sCB}, 7')
    a(f's_add_u32 s{sT}, s{sT}, s{sT+1}')
    a(f'v_lshrrev_b32 v{vD+1}, 3, v{vLANE}')
    a(f'v_lshl_add_u32 v{vD+1}, v{vD+1}, 10, s{sT}')
    a(f'v_and_b32 v{vD}, 7, v{vLANE}')
    a(f'v_lshlrev_b32 v{vD+2}, 1, v{vG}')
    a(f'v_xor_b32 v{vD}, v{vD}, v{vD+2}')
    a(f'v_lshl_add_u32 v{vD}, v{vD}, 4, v{vD+1}')
    for q in (1,2,3): a(f'v_add_u32 v{vD+q}, {q*7168}, v{vD}')
    a(f's_mov_b32 s{sMSK}, 0xffff0000')
    return r

def coef_ops():
    r = []; a = r.append
    T = vACC+16
    a(f's_lshr_b32 s{sT}, s{sR}, 1')
    a(f's_sub_u32 s{sT+1}, 32, s{sT}')
    a(f's_cmp_eq_u32 s{sT}, 0')
    a(f's_cselect_b32 s{sT+1}, 16, s{sT+1}')
    a(f's_bitcmp1_b32 s{sR}, 0')
    a(f's_cselect_b32 s{sP}, s{sT+1}, s{sT}')
    a(f's_sub_u32 s{sT+1}, 64, s{sP}')
    a(f's_cmp_eq_u32 s{sP}, 0')
    a(f's_cselect_b32 s{sT+1}, 32, s{sT+1}')
    a(f's_bitcmp1_b32 s{sW}, 1')
    a(f's_cselect_b32 s{sT+2}, s{sT+1}, s{sP}')
    a(f's_cselect_b32 s{sT+10}, -1.0, 1.0')
    a(f's_cmp_eq_u32 s{sP}, 0')
    a(f's_cselect_b32 s{sT+10}, 0, s{sT+10}')
    a(f's_cmp_eq_u32 s{sT+2}, 32')
    a(f's_cselect_b32 s{sT+9}, 0, 1.0')
    a(f's_cselect_b32 s{sT+11}, 1.0, 0')
    a(f's_cmp_ge_u32 s{sCB}, 4')
    a(f's_cselect_b32 s{sT+8}, 0, 0x80008000')
    a(f'v_lshl_add_u32 v7, v{vN}, 6, s{sT+2}')
    a(f'v_cvt_f32_u32 v5, v7')
    a(f'v_cvt_f32_u32 v4, v{vG}')
    a(f'v_mul_f32 v5, {f2u(1/2048):#x}, v5')
    a(f'v_cmp_eq_u32 vcc, 0, v{vG}')
    a(f's_lshl_b32 s{sT+1}, s{sCB}, 1')
    a(f's_and_b32 s{sT}, s{sW}, 1')
    a(f's_add_u32 s{sT+1}, s{sT+1}, s{sT}')
    a(f's_lshl_b32 s{sT+1}, s{sT+1}, 6')
    a(f'v_lshl_add_u32 v7, v7, 10, s{sT+1}')
    a(f'v_and_b32 v6, 1, v{vG}')
    a(f'v_lshl_add_u32 v7, v6, 5, v7')
    a(f'v_mul_u32_u24 v9, 0x8000, v6')
    a(f'v_lshl_or_b32 v9, v9, 16, v9')
    a(f'v_lshrrev_b32 v6, 1, v{vG}')
    a(f'v_lshl_add_u32 v{vOUT}, v6, 4, v7')
    a(f'v_mov_b32 v7, {f2u(16.0):#x}')
    for kp in range(4):
        for z in range(2):
            if z == 0: a(f'v_add_f32 v6, {f2u(4.0*kp):#x}, v4')
            else:
                a(f'v_sub_f32 v6, {f2u(32.0-4*kp):#x}, v4')
                if kp == 0: a(f'v_cndmask_b32 v6, v6, v7, vcc')
            a(f'v_mul_f32 v6, v6, v5')
            a(f'v_cos_f32 v{T}, v6')
            a(f'v_sin_f32 v{T+1}, v6')
            a(f'v_mul_f32 v{T+2}, s{sT+9}, v{T}')
            a(f'v_mul_f32 v{T+3}, s{sT+11}, v{T}')
            a(f'v_fmac_f32 v{T+3}, s{sT+10}, v{T+1}')
            a(f'v_mul_f32 v{T+4}, s{sT+9}, v{T+1}')
            a(f'v_mul_f32 v{T+5}, s{sT+11}, v{T+1}')
            a(f'v_fma_f32 v{T+5}, -v{T}, s{sT+10}, v{T+5}')
            a(f'v_cvt_pk_bf16_f32 v{T+2}, v{T+2}, v{T+3}')
            a(f'v_cvt_pk_bf16_f32 v{T+4}, v{T+4}, v{T+5}')
            a(f'v_accvgpr_write_b32 a{aCF+4*kp+2*z}, v{T+2}')
            a(f'v_xor_b32 v{T+4}, s{sT+8}, v{T+4}')
            a(f'v_xor_b32 v{T+2}, v9, v{T+2}')
            a(f'v_accvgpr_write_b32 a{aCF+4*kp+2*z+1}, v{T+4}')
            a(f'v_xor_b32 v{T+4}, v9, v{T+4}')
            a(f'v_accvgpr_write_b32 a{aCL+4*kp+2*z}, v{T+2}')
            a(f'v_accvgpr_write_b32 a{aCL+4*kp+2*z+1}, v{T+4}')
    return r

def scalar_late(a, dft):
    a(f's_lshr_b32 s{sT}, s2, 3')
    a(f's_xor_b32 s{sT}, s{sT}, s2')
    a(f's_bfe_u32 s{sT+1}, s{sT}, {4|(1<<16)}')
    a(f's_bfe_u32 s{sT}, s{sT}, {2|(1<<16)}')
    a(f's_lshl_b32 s{sT+1}, s{sT+1}, 1')
    a(f's_add_u32 s{sSET}, s{sT}, s{sT+1}')
    a(f's_lshl_b32 s{sT+2}, s{sSET}, 10')
    a(f's_lshl_b32 s{sT+1}, s{sW}, 1')
    a(f's_and_b32 s{sT+1}, s{sT+1}, 2')
    a(f's_xor_b32 s{sT+1}, s{sT+1}, s{sW}')
    a(f's_cmp_eq_u32 s{sI}, 0')
    a(f's_cselect_b32 s{sT}, s{sW}, s{sT+1}')
    a(f's_cmp_ge_u32 s{sJ}, 14')
    a(f's_cselect_b32 s{sT}, s{sT}, s{sW}')
    a(f's_lshl_b32 s{sXS}, s{sI}, 2')
    a(f's_add_u32 s{sXS}, s{sXS}, s{sT}')
    a(f's_lshl_b32 s{sXS}, s{sXS}, 12')
    a(f's_add_u32 s{sXS}, s{sXS}, s{sT+2}')
    a(f's_add_u32 s{sXS}, s{sXS}, {XS_OFF}')
    a(f's_lshl_b32 s{sCS}, s{sJ}, 14')
    a(f's_add_u32 s{sCS}, s{sCS}, s{sM0}')
    a(f's_add_u32 s{sCS}, s{sCS}, s{sT+2}')
    a(f's_add_u32 s{sCS}, s{sCS}, {CS_OFF}')
    a(f's_add_u32 s{sT}, s{sJ}, 16')
    a(f's_bitcmp1_b32 s{sW}, 0')
    a(f's_cselect_b32 s{sT}, s{sT}, s{sI}')
    a(f's_lshl_b32 s{sT}, s{sT}, 2')
    a(f's_add_u32 s{sT}, s{sT}, s{sSET}')
    a(f's_lshl_b32 s{sT}, s{sT}, 7')
    a(f's_add_u32 s{sT+8}, s{sT}, {FLS_OFF}')
    drot = C.drotd if dft else C.drot
    if drot == 0: a(f's_mov_b32 s{sPO}, 0')
    elif drot == 1:
        a(f's_and_b32 s{sPO}, s{sR}, 1'); a(f's_lshl_b32 s{sPO}, s{sPO}, 13')
    else:
        a(f's_and_b32 s{sPO}, s{sR}, {3 if drot == 2 else 7}')
        a(f's_mul_i32 s{sPO}, s{sPO}, 7')
        a(f's_add_u32 s{sPO}, s{sPO}, 2')
        a(f's_lshr_b32 s{sPO}, s{sPO}, {drot}')
        if C.xoff:
            a(f's_bfe_u32 s{sT}, s2, {1|(1<<16)}')
            a(f's_add_u32 s{sPO}, s{sPO}, s{sT}')
        a(f's_lshl_b32 s{sPO}, s{sPO}, 11')
    for k in range(1, 7):
        a(f's_add_u32 s{sPO+k}, s{sPO+k-1}, 2048')
        a(f's_cmp_eq_u32 s{sPO+k}, {7*2048}')
        a(f's_cselect_b32 s{sPO+k}, 0, s{sPO+k}')

LR = 9*UN
LC = 9*UN+8192
vRT = 240
def dft_R_addr():
    r = []; a = r.append; T = vRT
    a(f's_lshl_b32 s{sT}, s{sW}, 16')
    a(f'v_lshrrev_b32 v{T+1}, 3, v{vLANE}')
    a(f'v_lshl_add_u32 v{T+1}, v{T+1}, 13, s{sT}')
    a(f'v_lshlrev_b32 v{T}, 1, v{vG}')
    a(f'v_xor_b32 v{T}, v{T}, v{vLANE}')
    a(f'v_and_b32 v{T}, 7, v{T}')
    a(f'v_lshl_add_u32 v{T}, v{T}, 4, v{T+1}')
    a(f'v_xor_b32 v{T+1}, 16, v{T}')
    a(f'v_add_u32 v{T+1}, 1024, v{T+1}')
    a(f's_lshr_b32 s{sT+9}, s{sM0}, 1')
    a(f'v_lshrrev_b32 v{T+3}, 1, v{vN}')
    a(f'v_and_b32 v{T+4}, 1, v{vN}')
    a(f'v_and_or_b32 v{T+2}, v{T+3}, 6, v{T+4}')
    a(f'v_xor_b32 v{T+2}, v{T+2}, v{vG}')
    a(f'v_lshl_add_u32 v{T+3}, v{T+4}, 3, v{T+3}')
    a(f'v_lshl_add_u32 v{T+2}, v{T+3}, 3, v{T+2}')
    a(f'v_cmp_eq_u32 vcc, 1, v{vN}')
    a(f'v_lshlrev_b32 v{T+2}, 4, v{T+2}')
    a(f'v_add_u32 v{T+2}, {LR}, v{T+2}')
    a(f'v_mov_b32 v{T+6}, {LC}')
    a(f'v_xor_b32 v{T+3}, 64, v{T+2}')
    a(f'v_cndmask_b32 v{T+4}, v{T+2}, v{T+6}, vcc')
    a(f'v_cndmask_b32 v{T+5}, v{T+3}, v{T+6}, vcc')
    for d in range(4): a(f'v_mov_b32 v{vRT+8+d}, 0xbf803f80')
    return r
def dft_R_loads():
    return [(('R',0), [f's_add_u32 m0, s{sT+9}, {LR}'], f'buffer_load_dwordx4 v{vRT}, {S(sG)}, 0 offen lds'),
            (('R',0), [], f'buffer_load_dwordx4 v{vRT+1}, {S(sU)}, 0 offen offset:1024 lds')]
def dft_R_reads():
    return [f'ds_read_b128 {ar(aR+8*jb+4*sub,4)}, v{vRT+(2 if jb else 4)+sub} offset:{2048*jb}' for jb in range(4) for sub in range(2)]

def stats_reads(n, aSX=aSX):
    return [f'ds_read_b128 {ar(aSX+4*o,4)}, v{vOA+(n&1)} offset:{(n>>1)*UN+o*2048}' for o in range(2)]
def stats_mfma(dft, n, aSX=aSX):
    r = []
    def mf(c, x, y): r.append(f'{MF} {vr(c,4)}, {x}, {y}, {vr(c,4) if n else 0}')
    for o in range(2):
        mf(vSXo+4*o, ar(aONE,4), ar(aSX+4*o,4))
        mf(vSQo+4*o, ar(aSX+4*o,4), ar(aSX+4*o,4))
    if not dft:
        for wf in range(4): mf(vCS+4*wf, ar(aONE,4), vr(fW(n&1,wf),4))
    return r
def stats_pack_ops(dft):
    r = []; a = r.append
    a(f'v_lshlrev_b32 v4, 4, v{vN}')
    a(f'v_mov_b32 v10, {OOB}')
    a(f'v_mov_b32 v{vSXo+2}, v{vSXo+4}')
    a(f'v_cndmask_b32 v4, v10, v4, s[{sMV}:{sMV+1}]')
    for o in range(2):
        sq = vSQo+4*o
        a(f'v_cndmask_b32 v{sq}, v{sq}, v{sq+1}, s[{sM1}:{sM1+1}]')
        a(f'v_cndmask_b32 v{sq}, v{sq}, v{sq+2}, s[{sM2}:{sM2+1}]')
        a(f'v_cndmask_b32 v{vSXo+1+2*o}, v{sq}, v{sq+3}, s[{sM3}:{sM3+1}]')
    if not dft:
        a(f'v_lshlrev_b32 v5, 2, v{vLANE}')
        for g, m in ((1,sM1),(2,sM2),(3,sM3)): a(f'v_cmp_eq_u32 s[{m}:{m+1}], {g}, v{vG}')
        for g, m in ((1,sM1),(2,sM2),(3,sM3)): a(f'v_cndmask_b32 v{vCS}, v{vCS}, v{vCS+4*g}, s[{m}:{m+1}]')
    a(f's_add_u32 s{sT+6}, s{sXS}, s{sL}')
    a(f's_add_u32 s{sT+7}, s{sCS}, s{sL}')
    a(f'v_lshlrev_b32 v15, 4, v{vLANE}')
    return r
def stats_reduce_ops(dft):
    r = []; a = r.append
    a(f's_lshl_b32 s{sT}, s{sW}, {7 if dft else 9}')
    a(f's_add_u32 s{sT}, s{sT}, {LST}')
    a(f'v_permlane32_swap_b32 v96, v98')
    a(f'v_permlane32_swap_b32 v97, v99')
    if not dft:
        a(f'v_permlane32_swap_b32 v112, v114')
        a(f'v_permlane32_swap_b32 v113, v115')
    a(f'v_add_f32 v100, v96, v98')
    a(f'v_add_f32 v101, v97, v99')
    a(f'v_add_f32 v96, v96, v98')
    a(f'v_add_f32 v97, v97, v99')
    if not dft:
        a(f'v_add_f32 v112, v112, v114')
        a(f'v_add_f32 v113, v113, v115')
    a(f'v_lshrrev_b32 v14, 1, v{vG}')
    a(f'v_lshl_add_u32 v14, v14, 4, v{vN}')
    a(f'v_permlane16_swap_b32 v96, v100')
    a(f'v_permlane16_swap_b32 v97, v101')
    if not dft: a(f'v_permlane16_swap_b32 v112, v113')
    a(f'v_lshl_add_u32 v14, v14, {2 if dft else 4}, s{sT}')
    a(f'v_add_f32 v96, v96, v100')
    a(f'v_add_f32 v97, v97, v101')
    if not dft:
        a(f'v_add_f32 v98, v112, v113')
        a(f's_lshl_b32 s{sT}, s{sW}, 8')
        a(f's_add_u32 s{sT}, s{sT}, {LST+4096}')
        a(f'v_lshl_add_u32 v8, v{vN}, 2, v{vG}')
        a(f'v_lshl_add_u32 v8, v8, 2, s{sT}')
        a(f'v_lshl_add_u32 v9, v{vG}, 4, s{sT}')
    a(f'v_mul_f32 v4, {f2u(-1/512):#x}, v96')
    a(f'v_mul_f32 v97, {f2u(1/512):#x}, v97')
    a(f'v_fma_f32 v97, -v4, v4, v97')
    a(f'v_max_f32 v97, 0, v97')
    a(f'v_add_f32 v97, {f2u(1e-5):#x}, v97')
    a(f'v_rsq_f32 v7, v97')
    if dft: a(f'v_lshlrev_b32 v15, 4, v{vG}')
    else:
        a(f'v_sqrt_f32 v5, v97')
        a(f'v_mul_f32 v6, {f2u(-LOG2E):#x}, v7')
        if C.ftz:
            a(f's_mov_b32 s{sM1}, {f2u(128.0-C.ftz):#x}')
            a(f'v_mul_f32 v7, {f2u(2.0**(C.ftz-128)):#x}, v5')
        a(f'v_lshlrev_b32 v15, 4, v{vN}')
    w = []
    if dft: w += [f'ds_write_b32 v14, v7']
    else:
        w.append(f'ds_write_b32 v8, v98')
        w.append(f'ds_write_b128 v14, v[4:7]')
        w += [f'ds_read_b128 {vr(vCS+4*wf,4)}, v9 offset:{64*wf}' for wf in range(4)]
    return r, w
TFO = [0, 2, 4, 6, 1, 3, 5, 7]
def rec(k): return vWF+4*k
def rec_read(k, dft): return f'ds_read_b128 {vr(rec(k),4)}, v15 offset:{LST+(64*k if dft else 256*TFO[k])}'
def epi_addr_ops(dft):
    r = []; a = r.append
    if dft:
        a(f's_lshl_b32 s{sT+2}, s{sI}, 12')
        a(f's_lshl_b32 s{sT+1}, s{sJ}, 11')
        a(f's_add_u32 s{sT+2}, s{sT+2}, s{sT+1}')
        a(f's_lshl_b32 s{sT+1}, s{sW}, 9')
        a(f's_add_u32 s{sT+2}, s{sT+2}, s{sT+1}')
        a(f'v_mul_u32_u24 v16, {2*GP}, v{vG}')
        a(f'v_lshl_add_u32 v17, v{vN}, 4, s{sT+2}')
        a(f'v_add_u32 v16, v16, v17')
        a(f's_lshr_b32 s{sT+12}, s{sI}, 2')
        a(f's_lshl_b32 s{sT+12}, s{sT+12}, 7')
        a(f's_add_u32 s{sT+12}, s{sT+12}, s{sM0}')
        a(f's_add_u32 s{sT+12}, s{sT+12}, {FLG_OFF}')
    else:
        a(f's_mul_i32 s{sT+2}, s{sI}, {8*HP}')
        a(f's_lshl_b32 s{sT+1}, s{sJ}, 2')
        a(f's_add_u32 s{sT+1}, s{sT+1}, s{sW}')
        a(f's_mul_i32 s{sT+12}, s{sT+1}, 4682')
        a(f's_lshl_b32 s{sT+1}, s{sT+1}, 10')
        a(f's_add_u32 s{sT+4}, s{sT+2}, s{sT+1}')
        a(f'v_lshlrev_b32 v16, 4, v{vLANE}')
        a(f's_lshr_b32 s{sT+12}, s{sT+12}, 16')
        a(f's_lshl_b32 s{sT+1}, s{sI}, 2')
        a(f's_add_u32 s{sT+12}, s{sT+12}, s{sT+1}')
        a(f's_lshl_b32 s{sT+12}, s{sT+12}, 8')
        a(f's_add_u32 s{sT+11}, s{sT+12}, {FL_OFF}')
        a(f's_add_u32 s{sT+12}, s{sT+12}, {FL_OFF+128}')
    return r

OOL = []
def spin(a, tag, load, test, cnt, sleep=2, gate=None):
    sl = []
    if gate:
        a(gate)
        sl = ['s_waitcnt lgkmcnt(0)'] + test + [f's_cbranch_scc1 L{tag}_ok']
    else:
        a.wait(lgkm=0)
        for t in test: a(t)
    body = load + [f's_add_u32 s{cnt}, s{cnt}, 1', 's_waitcnt lgkmcnt(0)'] + test + [f's_cbranch_scc1 L{tag}_ok'] + ([f's_sleep {sleep}'] if sleep else []) + [f's_cmp_lt_u32 s{cnt}, 0x100000', f's_cbranch_scc1 L{tag}_spin']
    blk = ['    '+t for t in sl + [f's_mov_b32 s{cnt}, 0']] + [f'L{tag}_spin:'] + ['    '+t for t in body]
    if C.ool:
        a(f's_cbranch_scc0 L{tag}_slow')
        OOL.extend([f'L{tag}_slow:'] + blk + [f'    s_branch L{tag}_ok'])
    else:
        a(f's_cbranch_scc1 L{tag}_ok')
        for l in blk: a.raw(l)
    a.label(f'L{tag}_ok')
def rare(a, tag, lines):
    if C.ool:
        a(f's_cbranch_scc0 L{tag}_rare')
        OOL.extend([f'L{tag}_rare:'] + ['    '+t for t in lines] + [f'    s_branch L{tag}_done'])
    else:
        a(f's_cbranch_scc1 L{tag}_done')
        for t in lines: a.raw('    '+t)
    a.label(f'L{tag}_done')

def phaseA(a, dft, q, z):
    tag = 'd' if dft else 'g'
    full = master_list(dft)
    master = full[4:]
    cnt = {}; c = 0
    for t in full: c += 4; cnt[t] = c
    def lastneed(n):
        return [t for t in full if (t[0] == 'W' and t[1] <= n+1) or (t[0] == 'X' and 2*t[1] <= n+1)][-1]
    def enqueue(nb):
        while master:
            t = master[0]
            if t[0] == 'W' and t[1]-((8 if t[1] < 12 else 4) if dft else 6) > nb: break
            if t[0] == 'X' and t[1] >= 4 and t[1]-4 > (nb >> 1)-1: break
            q.pend += items(master.pop(0), dft)
    def front(its):
        k = 1 if q.predone else 0
        q.pend[k:k] = its; q.limit += len(its)
        for t in cnt: cnt[t] += len(its)
    def setlimit(n):
        q.limit = cnt[lastneed(n)] + (C.dcap if dft else C.cap) if n < C.capn else 10**9
    enqueue(-1)
    if C.diag == 3:
        for t in range(24): a(f'{MF} {ar(4*(t&15),4)}, {ar(aCF+4*(t&3),4)}, {ar(aCL+4*((t>>2)&3),4)}, 0')
    a.wait(lgkm=0)
    q.need(('W',0))
    a('s_barrier')
    stamp(a, 17)
    setlimit(0)
    wr = w_reads(0, dft)
    a(wr[0]); a(wr[1]); a(x_read(0))
    for t in wr[2:]: a(t)
    a(x_read(1)); a(x_read(2))
    for t in stats_reads(0): a(t)
    fq = []
    red, redw = stats_reduce_ops(dft)
    spoll = f's_load_dword s{sFV}, s[78:79], s{sT+8} glc'
    dbgld = f's_load_dword s{sFV}, s[76:77], 0'
    rd0 = 12 if dft else C.rd0
    for n in range(16):
        s, p = n >> 1, n & 1
        wr = w_reads(n+1, dft) if n < 15 else []
        wfree = dft and (n+1) & 2
        bar_tf = C.bar if n < 15 else None
        if n == (0 if dft else 6): late = late_setup_ops() + (dft_R_addr() if dft else [])
        else: late = []
        if n == C.spoll: fq.insert(0, spoll)
        if n == 3: fq.insert(0, dbgld)
        if n == 11: fq += red
        if n == 14: fq += epi_addr_ops(dft)
        for tf in range(8):
            k = 8*n+tf; q.pos = k
            can_w = wfree or bar_tf is None or tf > bar_tf
            dpos = [[pp for t,pp in q.log if t == ('D',u)] for u in range(14)]
            dmax = min(rd0, len([1 for u,d in enumerate(dpos) if len(d) == 4 and d[3]+(C.ddlag if dft and u < 2 else C.dlag) <= k]))
            rate = 8 if n < 5 else C.rate
            if q.ready() and q.pend[0][0][0] == 'D' and q.pend[-1][0][0] == 'D':
                u = q.pend[0][0][1]
                rate = (C.ddrate if u < 4 else 8) if dft else (C.drate if u >= C.dslow else 4)
            slot = (tf*rate) % 8 < rate
            def other(cnt_):
                for _ in range(cnt_):
                    if can_w and wr: a(wr.pop(0))
                    elif dft and q.read1(dmax): pass
                    elif fq: a(fq.pop(0))
                    elif q.read1(dmax): pass
            def flush():
                while fq: a(fq.pop(0))
            if n == 4 and tf == 0:
                flush()
                its = [(('S',0), [], f'buffer_store_dwordx4 {vr(vSXo,4)}, v4, {S(sWS)}, s{sT+6} offen sc1')]
                if not dft: its.append((('S',0), [], f'buffer_store_dword v{vCS}, v5, {S(sWS)}, s{sT+7} offen sc1'))
                front(its)
            if tf == 0: fq += late
            for wf in range(4):
                w2 = 3-wf if (C.snake and tf & 1) else wf
                c = vr(acc(tf,w2),4); wfr = vr(fW(p,w2),4); xf = vr(fX(k),4)
                src = f'{xf}, {wfr}' if dft else f'{wfr}, {xf}'
                a(f'{MF} {c}, {src}, {c if n else 0}')
                if wf == 0:
                    if k+3 < 128: a(x_read(k+3)); other(1)
                    else: other(2)
                elif wf == 1:
                    if slot and q.haspre(): q.pre()
                    else: other(2)
                elif wf == 2:
                    if slot and q.ready() and not q.haspre(): q.issue(1)
                    else: other(2)
                elif tf != bar_tf: other(1)
                else:
                    q.limit = 10**9
                    while q.has(lastneed(n)): q.issue(1)
                    if n in (0, 1, 5, 9) or (n == 12 and dft): flush()
                    if n < 4 and not (C.diag == 1 and n):
                        for t in stats_mfma(dft, n): a(t)
                        if C.diag == 2 and n < 2:
                            for t in range(16): a(f'{MF} {ar(4*t,4)}, {vr(fW(p,t&3),4)}, {ar(aSX+4*(t>>3),4)}, 0')
                    if n == 0: scalar_late(a, dft)
                    if n == 1 and C.pads: a.raw(f';WARM {tag}')
                    jit(a)
                    q.need(lastneed(n))
                    if n == 5:
                        q.need(('S',0))
                        spin(a, tag+'i', [f'global_load_dword v{vDBG}, v11, s[76:77] sc1', 's_waitcnt vmcnt(0)', f'v_readfirstlane_b32 s{sFV}, v{vDBG}', 's_nop 3'], [f's_cmp_lg_u32 s{sFV}, 0'], sT+14)
                    if n == 9: spin(a, tag+'s', [spoll], [f's_cmp_eq_u32 s{sFV}, 8'], sT+14)
                    a('s_barrier')
                    if n == 0:
                        assert z not in a.vm
                        a(f's_or_b32 s{sT}, s2, s{sW}')
                        rare(a, tag+'z', [f's_atomic_add s{sONE}, s[76:77], 0'])
                    if n == 2: a.smem_out = []
                    if n == 5: a(f's_atomic_add s{sONE}, s[78:79], s{sT+8}')
                    if n == 7: a.smem_out = []
                    if n in (1,3,7,11,13): stamp(a)
                    enqueue(n); setlimit(n+1)
                    if n < 3: wr += stats_reads(n+1)
                    if n == 3: fq += stats_pack_ops(dft)
                    if n == 9:
                        g = [(('A',0), [], f'buffer_load_dwordx4 {vr(96,4)}, v15, {S(sWS)}, s{sXS} offen sc1')]
                        if not dft: g += [(('A',0), [], f'buffer_load_dwordx4 {vr(112,4)}, v15, {S(sWS)}, s{sCS} offen sc1')]
                        front(g)
                    if n == 0 and dft and C.dearly:
                        its = q.plan.dma(0) + q.plan.dma(1); q.nD = 2
                        its += [(('T',0), [], f'buffer_load_dword v14, v{vCS}, {S(sG)}, 0 offen'), (('T',0), [], f'buffer_load_dword v14, v{vCS+1}, {S(sU)}, 0 offen offset:1024')]
                        tg = [('X',2), ('W',4), ('W',5)][C.dearly-1]
                        k0 = max(i for i,t in enumerate(q.pend) if t[0] == tg)+1
                        q.pend[k0:k0] = its
                        for t in cnt:
                            if cnt[t] > cnt[tg]: cnt[t] += len(its)
                    if n == 12 and dft: q.pend += dft_R_loads()
                    for nn, up in q.plan.avail.items():
                        if nn <= n: q.addD(up)
                    if n >= 10: assert not master
                    if n == 13: fq += redw
            if n == 10 and tf == 0: assert not q.has(('A',0))
            if n == 13 and tf == 7: assert not q.has(('X',7))
            if n == 15 and tf == 5:
                flush()
                if dft: q.need(('R',0))
                a.wait(lgkm=0)
                a('s_barrier')
                fq += [rec_read(t4, dft) for t4 in range(4)]
                if dft: fq += dft_R_reads()
                q.addD(14)
        assert not wr, (n, wr)
    for t4 in range(4, 8): fq.append(rec_read(t4, dft))
    while fq: a(fq.pop(0))
    q.pos = 128
    if C.log: print(tag, ' '.join(f'{t[0]}{t[1]}@{p//8}.{p%8}' for t,p in q.log), 'reads left', len(q.rq), 'dma left', q.left(), file=sys.stderr)
    if not dft:
        q.readD(C.rd0)
        while q.left() > C.dleft: q.issue(1)

def phaseD(a, q, z):
    sSG = 16; vF = vWA+2
    q.issue(99)
    for t in dft_R_addr(): a(t)
    q.pend += dft_R_loads()
    def stage(m): return items(('X',2*m)) + items(('X',2*m+1)) + items(('W',4*m), True) + items(('W',4*m+1), True)
    q.pend += stage(1)
    q.issue(2)
    a(f'ds_write_b128 v{vRT+6}, {vr(vRT+8,4)}')
    scalar_late(a, True)
    for t in late_setup_ops(): a(t)
    for ks in range(2): a(f'v_add_u32 v{vWA+ks}, {4*UN}, v{vOA+ks}')
    a(f'v_lshl_add_u32 v{vF}, v{vLANE}, 4, s{sM0}')
    if C.wt:
        a(f's_lshl_b32 s{sT}, s{sI}, 1')
        a(f's_add_u32 s{sT}, s{sT}, s{sJ}')
        a(f's_mul_i32 s{sT+1}, s{sW}, 224')
        a(f's_add_u32 s{sT}, s{sT}, s{sT+1}')
        a(f's_sub_u32 s{sT}, s{sT}, 14')
        a(f's_lshl_b32 s{sT}, s{sT}, 11')
        a(f'v_lshl_add_u32 v9, v{vN}, 7, s{sT}')
        a(f'v_lshlrev_b32 v8, 1, v{vG}')
        a(f'v_min_u32 v8, 5, v8')
        a(f'v_mul_u32_u24 v12, 5, v{vG}')
        a(f'v_add_u32 v12, 2, v12')
        a(f'v_lshrrev_b32 v12, 1, v12')
        a(f'v_min_u32 v12, 6, v12')
        a(f'v_lshl_add_u32 v8, v8, 16, v9')
        a(f'v_lshl_add_u32 v9, v12, 16, v9')
    WT = [(('T',0), [], f'buffer_load_dword v14, v{8+k}, {S(sWD)}, 0 offen') for k in range(2)]
    a(f's_bitcmp1_b32 s{sJ}, 0')
    a(f's_cselect_b32 s{sSG}, -1.0, 1.0')
    if C.fdot:
        a(f's_or_b32 s{sSG}, s{sSG}, 0x3f80')
        a(f's_mov_b32 s{sSG+2}, 0x05040100')
        a(f's_mov_b32 s{sSG+3}, 0x07060302')
    a.wait(lgkm=0)
    stamp(a, 17)
    q.need(('X',0))
    for n in (0, 1):
        for t in stats_reads(n, 128+8*n): a(t)
    q.issue(C.dcap)
    for n in (0, 1):
        for t in stats_mfma(True, n, 128+8*n): a(t)
    if C.pads: a.raw(';WARM d')
    q.need(('X',1))
    for n in (2, 3):
        for t in stats_reads(n, 128+8*n): a(t)
    for n in (2, 3):
        for t in stats_mfma(True, n, 128+8*n): a(t)
    assert C.fdot and not C.wt
    vMU = [8, 9, 12, vWA+3]
    a(f'v_lshrrev_b32 v5, 3, v{vLANE}')
    a(f'v_lshlrev_b32 v5, 2, v5')
    a(f's_bitcmp1_b32 s{sJ}, 0')
    a(f's_cselect_b32 s{sT}, 0, {f2u(-2/128):#x}')
    for k in range(4): a(f'ds_bpermute_b32 v{vMU[k]}, v5, v{vSXo+4*(k>>1)} offset:{32*(k&1)}')
    for t in stats_pack_ops(True): a(t)
    for k in range(4): a(f'v_mul_f32 v{vMU[k]}, s{sT}, v{vMU[k]}')
    S0 = a(f'buffer_store_dwordx4 {vr(vSXo,4)}, v4, {S(sWS)}, s{sT+6} offen sc1')
    red, redw = stats_reduce_ops(True)
    spoll = f's_load_dword s{sFV}, s[78:79], s{sT+8} glc'
    dbgld = f's_load_dword s{sFV}, s[76:77], 0'
    def wrd(n):
        m, ks = n >> 1, n & 1
        return [f'ds_read_b128 {vr(fW(ks,wf),4)}, v{vWA+ks} offset:{(2*(m&1)+(wf&1))*UN+2048*(wf>>1)}' for wf in range(4)]
    def xrd(m, k): return f'ds_read_b128 {vr(fX(k),4)}, v{vXA+(k>>3)} offset:{2*(m&1)*UN+(k&7)*2048}'
    def raw(m): return [f'ds_read_b128 {vr(96+16*h+4*k,4)}, v{vF} offset:{(2*(m&1)+h)*UN+1024*k}' for k in range(4) for h in range(2)]
    fq = []
    for m in range(4):
        ua = 2*(m & 1)*UN
        jit(a)
        if m == 0: fq += raw(0)
        while fq: a(fq.pop(0))
        if m and C.wt == m:
            q.pend += WT; q.issue(2)
        if C.wt == 5 and m in (2, 3):
            q.pend += WT[m-2:m-1]; q.issue(1)
        if C.wt == 6 and m in (1, 2):
            q.pend += WT[m-1:m]; q.issue(1)
        if m: q.readD(m-1); q.addD(m)
        for d4 in range(0, 16, 4):
            q.issue(1)
            if C.fdot:
                for d in range(d4, d4+4):
                    a(f'v_perm_b32 v{4+(d&3)}, v{112+d}, v{96+d}, s{sSG+2}')
                    a(f'v_perm_b32 v{112+d}, v{112+d}, v{96+d}, s{sSG+3}')
                for d in range(d4, d4+4):
                    a(f'v_dot2_f32_bf16 v{4+(d&3)}, v{4+(d&3)}, s{sSG}, v{vMU[d4>>2]}')
                    a(f'v_dot2_f32_bf16 v{112+d}, v{112+d}, s{sSG}, v{vMU[d4>>2]}')
                for d in range(d4, d4+4): a(f'v_cvt_pk_bf16_f32 v{96+d}, v{4+(d&3)}, v{112+d}')
            else:
                for d in range(d4, d4+4):
                    a(f'v_lshlrev_b32 v4, 16, v{96+d}')
                    a(f'v_and_b32 v5, s{sMSK}, v{96+d}')
                    a(f'v_lshlrev_b32 v6, 16, v{112+d}')
                    a(f'v_and_b32 v7, s{sMSK}, v{112+d}')
                    a(f'v_pk_fma_f32 v[4:5], v[6:7], s[{sSG}:{sSG+1}], v[4:5] op_sel_hi:[1,0,1]')
                    a(f'v_cvt_pk_bf16_f32 v{96+d}, v4, v5')
            lw = a(f'ds_write_b128 v{vF}, {vr(96+d4,4)} offset:{ua+256*d4}')
        while q.has(('W',4*m+1)): q.issue(1)
        q.need(('W',4*m+1))
        for t in wrd(2*m): a(t)
        a.wait_lgkm_for(lw)
        if m == 0: q.need(('R',0))
        if m == 1:
            a.wait_vm_for(S0)
            spin(a, 'di', [f'global_load_dword v{vDBG}, v11, s[76:77] sc1', 's_waitcnt vmcnt(0)', f'v_readfirstlane_b32 s{sFV}, v{vDBG}', 's_nop 3'], [f's_cmp_lg_u32 s{sFV}, 0'], sT+14)
        if m == 3: spin(a, 'ds', [spoll], [f's_cmp_eq_u32 s{sFV}, 8'], sT+14)
        a('s_barrier')
        jit(a)
        for k in range(3): a(xrd(m, k))
        if m == 0: fq += dft_R_reads()
        if m == 1: a(f's_atomic_add s{sONE}, s[78:79], s{sT+8}')
        if m in (1, 2): q.pend += stage(m+1)
        if m == 3:
            a(f'buffer_load_dwordx4 {vr(96,4)}, v15, {S(sWS)}, s{sXS} offen sc1')
            if C.wt == 4: q.pend += WT
            q.addD(7)
            fq += epi_addr_ops(True)
        stamp(a)
        for ks in range(2):
            n = 2*m+ks
            wr = wrd(n+1) if ks == 0 else []
            if n == 1: fq.insert(0, dbgld)
            if n == 3: a.smem_out = []
            if n == 5: fq.insert(0, spoll)
            if n == 7: fq += red + redw
            for tf in range(8):
                k = 8*ks+tf; q.pos = 8*n+tf
                def other(c_):
                    for _ in range(c_):
                        if wr: a(wr.pop(0))
                        elif fq: a(fq.pop(0))
                if n == 0 and tf == 6: assert not fq
                if ks == 1 and m < 3 and tf == C.fpre:
                    q.need(('X',2*m+3)); fq += raw(m+1)
                for wf in range(4):
                    w2 = 3-wf if (C.snake and tf & 1) else wf
                    c = vr(acc(tf,w2),4)
                    a(f'{MF} {c}, {vr(fX(k),4)}, {vr(fW(ks,w2),4)}, {c if n else 0}')
                    if wf == 0:
                        if k+3 < 16: a(xrd(m, k+3)); other(1)
                        else: other(2)
                    elif wf == 1:
                        if q.haspre(): q.pre()
                        else: other(2)
                    elif wf == 2:
                        if q.ready() and not q.haspre(): q.issue(1)
                        else: other(2)
                    else: other(1)
                if n == 7 and tf == 6:
                    while fq: a(fq.pop(0))
                    a.wait(lgkm=0)
                    a('s_barrier')
                    fq += [rec_read(t4, True) for t4 in range(4)]
                    q.addD(14)
            assert not wr
    stamp(a)
    for t4 in range(4, 8): fq.append(rec_read(t4, True))
    while fq: a(fq.pop(0))
    if C.log: print('d', ' '.join(f'{t[0]}{t[1]}@{p//8}.{p%8}' for t,p in q.log), 'dma left', q.left(), file=sys.stderr)

def glu_epilogue(a, q):
    sts = []
    for k, tf in enumerate(TFO):
        R = rec(k); G = acc(tf,0); U = acc(tf,2); hb = vSXo+4*(k&1)
        ms = vr(R,2); ar_ = vr(R+2,2)
        for r in range(0,8,2): a(f'v_pk_fma_f32 {vr(G+r,2)}, {vr(vCS+r,2)}, {ms}, {vr(G+r,2)} op_sel_hi:[1,0,1]')
        for r in range(0,8,2):
            if C.ftz: a(f'v_pk_fma_f32 {vr(G+r,2)}, {vr(G+r,2)}, {ar_}, s[{sM1}:{sM1+1}] op_sel_hi:[1,0,0]')
            else: a(f'v_pk_mul_f32 {vr(G+r,2)}, {vr(G+r,2)}, {ar_} op_sel_hi:[1,0]')
        for r in range(8):
            a(f'v_exp_f32 v{G+r}, v{G+r}')
            if tf == 0 and r == 5: a.wait(lgkm=0)
        for r in range(0,8,2): a(f'v_pk_fma_f32 {vr(U+r,2)}, {vr(vCS+8+r,2)}, {ms}, {vr(U+r,2)} op_sel_hi:[1,0,1]')
        for r in range(0,8,2): a(f'v_pk_fma_f32 {vr(G+r,2)}, {vr(G+r,2)}, {ar_ if C.ftz else ms}, {ms} op_sel:[0,1,1] op_sel_hi:[1,1,1]')
        if k in (0, 3, 4, 7): jit(a)
        q.issue(C.epi_dma)
        for r in range(8): a(f'v_rcp_f32 v{G+r}, v{G+r}')
        if k: a(f's_add_u32 s{sT+4}, s{sT+4}, {2*HP}' if k != 4 else f's_sub_u32 s{sT+4}, s{sT+4}, {5*HP}')
        for r in range(0,8,2): a(f'v_pk_mul_f32 {vr(U+r,2)}, {vr(U+r,2)}, {vr(G+r,2)}')
        for d in range(4): a(f'v_cvt_pk_bf16_f32 v{hb+d}, v{U+2*d}, v{U+2*d+1}')
        sts.append(a(f'buffer_store_dwordx4 {vr(hb,4)}, v16, {S(sWS)}, s{sT+4} offen sc1'))
    a.wait_vm_for(sts[3])
    a(f's_atomic_add s{sONE}, s[78:79], s{sT+11}')
    return sts[7]

def dft_epilogue(a, q):
    Z = lambda z, sub, m: 96+16*z+8*sub+4*m
    D2 = lambda jb,z,wf: vACC+32*jb+16*z+4*wf
    nst = [0]
    def stores(jb, fb):
        out = []
        for rp in range(2):
            t = 48+4*(nst[0] & 3); nst[0] += 1
            for z in range(2):
                for m in range(2): out.append(f'v_cvt_pk_bf16_f32 v{t+2*z+m}, v{D2(jb,z,2*m+fb)+2*rp}, v{D2(jb,z,2*m+fb)+2*rp+1}')
            out.append(f's_mov_b32 s{sT+2}, {G_OFF-14*2048+(8*jb+rp)*GP}')
            out.append(f'buffer_store_dwordx4 {vr(t,4)}, v16, {S(sWS)}, s{sT+2} offen offset:{256*fb} sc1')
        return out
    pend = []
    for fb in range(2):
        for z in range(2):
            for sub in range(2):
                for m in range(2):
                    for qq in range(2):
                        tf = 4*z+2*qq+sub; A = acc(tf, 2*m+fb)
                        for r in (0,2): a(f'v_pk_mul_f32 {vr(A+r,2)}, {vr(A+r,2)}, {vr(rec(tf)+r,2)}')
                for m in range(2):
                    for r in range(4): a(f'v_cvt_pk_bf16_f32 v{Z(z,sub,m)+r}, v{acc(4*z+sub,2*m+fb)+r}, v{acc(4*z+2+sub,2*m+fb)+r}')
                if fb == 0 and z == 0 and sub == 0: a.wait(lgkm=0); a('s_nop 0')
                for t in pend[:6]: a(t)
                pend = pend[6:]
                if z == 0 and sub == 0: jit(a)
                q.issue(C.depi)
        for jb in range(4):
            n = 0
            for sub in range(2):
                for z in range(2):
                    for m in range(2):
                        c = vr(D2(jb,z,2*m+fb),4)
                        a(f'{MF} {c}, {ar(aR+8*jb+4*sub,4)}, {vr(Z(z,sub,m),4)}, {c if sub else 0}')
                        n += 1
                        if n >= 3:
                            for t in pend[:2]: a(t)
                            pend = pend[2:]
            assert not pend
            pend = stores(jb, fb)
    for t in pend: last = a(t)
    return last

vHA, vGA, vHS, vPW, vXS, vH, NH, vAC = 14, 26, 30, 15, 64, 128, 16, 192
PR = {1: 18, 2: 20, 3: 21}
sMB = sOWN
LPX = 4*UN
SEQ = [(sl, ks) for sl in range(4) for ks in range(14)]
def hload(a, n):
    sl, ks = SEQ[n]
    return a(f'buffer_load_dwordx4 {vr(vH+4*(n%NH),4)}, v{vHS+sl}, {S(sWS)}, s{sPO+(ks>>1)} offen offset:{(ks&1)*1024} {("sc1","sc1 nt","sc0 sc1","sc0 sc1 nt")[C.hfl]}')
def hpoll(r): return [f's_mov_b32 s{sFV}, 0', f's_atomic_add s{sFV}, s[78:79], s{r} glc']
GU, PU = 2, 3
GL = [f'buffer_load_dwordx4 v{vGA+k}, {S(sWS)}, 0 offen offset:{1024*k} sc1 lds' for k in range(4)]
sFG = 17
GF = lambda kp,c: 80+8*kp+4*c
GRD = [f'ds_read_b128 {vr(GF(kp,c),4)}, v{19 if c else vHA} offset:{GU*UN+4096*kp}' for kp in range(4) for c in range(2)]
GPOLL = [f's_load_dword s{sFG}, s[78:79], s{sKX} glc']
GTEST = [f's_cmp_eq_u32 s{sFG}, 8']
def presync(a, dft, q, last):
    tag = 'd' if dft else 'g'
    lazy(a, 0)
    a(f's_lshl_b32 s{sKX}, s{sR}, 2')
    a(f's_add_u32 s{sKX}, s{sKX}, s{sW}')
    a(f's_lshl_b32 s{sKX}, s{sKX}, 7')
    a(f's_add_u32 s{sKX}, s{sKX}, {FLG_OFF}')
    q.issue(C.dpre if dft else C.pre)
    a(f's_mov_b32 s{sMB}, {1<<20}')
    a(f's_lshr_b32 s{sT}, s{sR}, 1')
    a(f's_lshl_b32 s{sT}, s{sT}, 2')
    a(f's_add_u32 s{sT}, s{sT}, s{sW}')
    a(f's_lshl_b32 s{sT}, s{sT}, 8')
    a(f's_add_u32 s{sT+15}, s{sT}, {FL_OFF}')
    a(f's_add_u32 s{sT+13}, s{sT}, {FL_OFF+128}')
    if C.pa == 2 and not dft:
        for t in hpoll(sT+15) + GPOLL: a(t)
    xl = [f'buffer_load_dwordx4 {vr(48,4)}, v{vOUT}, {S(sX)}, 0 offen', f'buffer_load_dwordx4 {vr(52,4)}, v{vOUT}, {S(sX)}, s{sMB} offen']
    if C.xpre and not dft:
        for t in xl: a(t)
        xl = []
    q.readD((6 if C.wt == 4 else 7) if dft else C.rd1)
    a(f'v_lshlrev_b32 v{vHA}, 4, v{vLANE}')
    a(f's_mul_i32 s{sT+2}, s{sR}, {4*HP}')
    a(f's_mul_i32 s{sT+1}, s{sW}, {14*1024}')
    a(f's_add_u32 s{sT+2}, s{sT+2}, s{sT+1}')
    a(f's_and_b32 s{sT}, s{sW}, 2')
    a(f's_mul_i32 s{sT+1}, s{sT}, {HP}')
    a(f's_add_u32 s{sT+1}, s{sT+1}, s{sT+2}')
    a(f'v_add_u32 v{vHS+1}, s{sT+1}, v{vHA}')
    a(f's_xor_b32 s{sT}, s{sT}, 2')
    a(f's_mul_i32 s{sT+1}, s{sT}, {HP}')
    a(f's_add_u32 s{sT+1}, s{sT+1}, s{sT+2}')
    a(f'v_add_u32 v{vHS}, s{sT+1}, v{vHA}')
    a(f'v_add_u32 v{vHS+2}, {HP}, v{vHS}')
    a(f'v_add_u32 v{vHS+3}, {HP}, v{vHS+1}')
    if dft or not C.pa: a.wait(lgkm=0 if dft else 1, smem=False)
    lazy(a, 1)
    if C.pa == 1 and not dft:
        for t in hpoll(sT+15): a(t)
    if C.gearly and not dft and C.pa < 2:
        for t in GPOLL: a(t)
    if dft:
        a(f's_add_u32 s{sM1}, s78, s{sT+12}')
        a(f's_addc_u32 s{sM1+1}, s79, 0')
    a(f'v_add_u32 v{vHA}, {LPX}, v{vHA}')
    a(f'v_add_u32 v{vPW}, s{sM0}, v{vHA}')
    for k in (1,2,3): a(f'v_xor_b32 v{PR[k]}, {k*4096}, v{vPW}')
    a(f's_lshl_b32 s{sT+1}, s{sCB}, 6')
    a(f's_sub_u32 s{sT+2}, s{sT+1}, 256')
    a(f's_sub_u32 s{sT+1}, 193, s{sT+1}')
    a(f's_cmp_ge_u32 s{sCB}, 4')
    a(f's_cselect_b32 s{sT+1}, s{sT+2}, s{sT+1}')
    a(f's_cselect_b32 s{sT+3}, 0, 63')
    a(f'v_and_b32 v5, 31, v{vLANE}')
    a(f'v_lshrrev_b32 v6, 5, v{vLANE}')
    a(f'v_lshl_add_u32 v5, v5, 1, s{sT+1}')
    a(f'v_add_u32 v5, v5, v6')
    a(f's_mul_i32 s{sT}, s{sP}, {GP}')
    a(f's_lshl_b32 s{sT+1}, s{sW}, 14')
    a(f's_add_u32 s{sT}, s{sT}, s{sT+1}')
    a(f's_add_u32 s{sT}, s{sT}, {G_OFF}')
    a(f'v_cmp_gt_u32 vcc, 0x100, v5')
    a(f'v_and_b32 v6, 1, v5')
    a(f'v_lshrrev_b32 v5, 1, v5')
    a(f'v_lshl_add_u32 v5, v6, 7, v5')
    a(f'v_lshl_add_u32 v5, v5, 4, s{sT}')
    a(f's_and_b32 s{sT}, s{sW}, 1')
    a(f's_lshl_b32 s{sT}, s{sT}, 5')
    a(f'v_cndmask_b32 v{vGA}, v10, v5, vcc')
    a(f's_xor_b32 s{sT}, s{sT}, s{sT+3}')
    a(f'v_xor_b32 v4, s{sT}, v{vN}')
    for k in (1,2,3): a(f'v_add_u32 v{vGA+k}, {3072*k}, v{vGA}')
    a(f'v_and_b32 v6, 1, v4')
    a(f'v_lshrrev_b32 v4, 1, v4')
    a(f'v_lshl_add_u32 v4, v6, 5, v4')
    a(f'v_lshl_add_u32 v4, v{vG}, 6, v4')
    a(f'v_lshlrev_b32 v4, 4, v4')
    a(f'v_add_u32 v{vHA}, {LPX}, v4')
    a(f'v_xor_b32 v19, 0x80, v{vHA}')
    jit(a)
    a.wait_vm_for(last)
    if dft:
        a('s_barrier')
        for k in range(8): a(f's_atomic_add s{sONE}, s[{sM1}:{sM1+1}], {512*k}')
        lazy(a, 2)
        q.issue(99)
        a.wait(lgkm=0)
        while q.left():
            q.readD(q.rq[0][0]+1); q.issue(99)
        if C.gearly:
            q.readD(8)
            a.wait(lgkm=0)
            for t in GPOLL: a(t)
        for t in hpoll(sT+15): a(t)
    elif C.gfirst:
        assert C.gearly and not C.pa
        a.wait(lgkm=0)
        a(f's_atomic_add s{sONE}, s[78:79], s{sT+12}')
        for t in hpoll(sT+15): a(t)
        lazy(a, 2)
        while q.pend: q.issue(1)
        a(f's_add_u32 m0, s{sM0}, {LPX+GU*UN}')
        assert all(u < q.rq[0][0] for u in range(14) if q.plan.units[u] == 4+GU)
        spin(a, tag+'g', GPOLL, GTEST, sT+14, sleep=0, gate=GTEST[0])
        for t in GL: a(t)
        q.issue(99)
    else:
        if C.pa: a.wait(lgkm=0)
        a(f's_atomic_add s{sONE}, s[78:79], s{sT+12}')
        if C.pa:
            a.smem_out = []
            a(f's_cmp_eq_u32 s{sFV}, 14')
            a(f's_cselect_b32 s{sT+9}, 1, 0')
            a(f's_cbranch_scc1 Lga_ok')
            for t in hpoll(sT+15): a.raw('    '+t)
            a.label('Lga_ok')
        else:
            for t in hpoll(sT+15): a(t)
        lazy(a, 2)
        q.issue(99)
    assert not q.left()
    for t in xl: a(t)
    if dft or not C.gfirst: a(f's_add_u32 m0, s{sM0}, {LPX+GU*UN}')
    if dft: q.readD(C.lzu if C.lz else 14)
    lazy(a, 3)
    if C.gearly and (dft or not C.gfirst):
        assert all(u < (q.rq[0][0] if q.rq else 14) for u in range(14) if q.plan.units[u] == 4+GU)
        spin(a, tag+'g', GPOLL, GTEST, sT+14, sleep=0)
        for t in GL: a(t)
    ool = C.ool; C.ool = C.ool >> 1
    htest = [f's_cmp_eq_u32 s{sFV}, 14']
    if C.gb2 == -2:
        a.wait(lgkm=0)
        a(htest[0])
        a(f's_cselect_b32 s{sT+9}, 1, 0')
        a(f's_cbranch_scc0 L{tag}nh')
        l0 = len(a.lines)
        for n in range(C.look0): hload(a, n)
        hl = a.lines[l0:]
        a.wait(vm=C.look0)
        a.label(f'L{tag}nh_back')
        OOL.extend([f'L{tag}nh:'] + ['    '+t for t in hpoll(sT+15)] + ['    s_waitcnt vmcnt(0)', f'    s_branch L{tag}nh_back'])
        a('s_barrier')
        for t in GRD: a(t)
    else:
        spin(a, tag+'h', hpoll(sT+15), htest, sT+14, sleep=0, gate=f's_cmp_eq_u32 s{sT+9}, 1' if (C.pa and not dft) else None)
        lazy(a, 4)
        for n in range(C.look0): hload(a, n)
        if C.gb2 < 0:
            a.wait(vm=C.look0)
            a('s_barrier')
            for t in GRD: a(t)
    C.ool = ool
    q.readD(C.lzu if C.lz else 14)
    for pr in range(2):
        for d in range(2): a(f'v_permlane16_swap_b32 v{48+4*pr+d}, v{48+4*pr+2+d}')
    for k in range(8):
        a(f'v_lshlrev_b32 v{vXS+2*k}, 16, v{48+k}')
        a(f'v_and_b32 v{vXS+2*k+1}, s{sMSK}, v{48+k}')
    a.wait(vm=C.look0)
    if C.gb2 < 0:
        for kp in range(4):
            for (sl2, c) in ((1,0),(3,0),(3,1),(1,1)):
                d = vr(vAC+16*sl2+4*c,4)
                a(f'{MF} {d}, {vr(GF(kp,c),4)}, {ar((aCF if sl2 == 1 else aCL)+4*kp,4)}, {d if kp else vr(vXS+4*(sl2-1)+4*c,4)}')
            if kp < C.look1 and C.gb2 == -1: hload(a, C.look0+kp)
    if C.gb2 == -2:
        a(f's_cmp_eq_u32 s{sT+9}, 1')
        a(f's_cbranch_scc1 L{tag}h_go')
        c0 = C.ool; C.ool = 0
        a.raw('    s_waitcnt lgkmcnt(0)')
        spin(a, tag+'h', hpoll(sT+15), htest, sT+14, sleep=0, gate=htest[0])
        C.ool = c0
        for l in hl: a.raw(l)
        a.label(f'L{tag}h_go')
        lazy(a, 4)
    return [t for _, t in q.rq]

def phaseB(a, rest):
    AC = lambda sl,c: vAC+16*sl+4*c
    GF = lambda kp,c: 80+8*kp+4*c
    EP = [112, 120, 48]; LP = [160, 168, 176]; OB = 56
    osc = ("","sc1","nt","sc0 sc1")[C.outsc]
    def preads(P, half, srcs):
        off = {2: half*UN, 3: half*UN+2048, 1: PU*UN+2048*half}
        return [f'ds_read_b128 {vr(P[{2:0,3:1,1:2}[k]]+4*c,4)}, v{PR[k]} offset:{off[k]+1024*c}' for k in srcs for c in range(2)]
    def adds(d, s_): return [f'v_add_f32 v{d+k}, v{d+k}, v{s_+k}' for k in range(8)]
    def pack(src, ob, so):
        return ([f'v_cvt_pk_bf16_f32 v{ob+k}, v{src+2*k}, v{src+2*k+1}' for k in range(4)] + [f'v_permlane16_swap_b32 v{ob+d}, v{ob+2+d}' for d in range(2)]
                + [f'buffer_store_dwordx4 {vr(ob,4)}, v{vOUT}, {S(sOUT)}, {so} offen {osc}'])
    nl = C.look0 + (C.look1 if C.gb2 == -1 else 0)
    fillers = list(rest); gm = []; wq = []; after_g = []
    cur = [0]
    def fill(k):
        for _ in range(k):
            if fillers and not (fillers[0].startswith('buffer_store') and cur[0] < C.est): a(fillers.pop(0))
    def mf(n, c):
        cur[0] = n
        sl, ks = SEQ[n]
        assert not [1 for t in fillers if t.startswith('ds_read_b64_tr') and regs(t.split()[1].rstrip(','))[0][1] < 16*ks+16]
        d = vr(AC(sl,c),4); ci = d
        if ks == 0 and not (c < 2 and ((sl == 3 and not glate) or (sl == 1 and C.gearly))): ci = vr(vXS+4*(sl-1)+4*c,4) if (sl & 1 and c < 2) else 0
        a(f'{MF} {d}, {ar(16*ks+4*c,4)}, {vr(vH+4*(n%NH),4)}, {ci}')
    lc = 28-C.look-1
    glate = C.gb+6 > 42 and not C.gearly
    assert (not glate or C.gb+2 > 42) and C.xb >= 4 and C.lp+6 <= lc < (C.gp or C.gc) and C.gb >= 31
    nend = 56-C.defer
    for n in range(nend):
        sl, ks = SEQ[n]
        for j in range(4):
            mf(n, j)
            if j == 0:
                if nl < 56: hload(a, nl); nl += 1
                else: fill(2)
            elif j == 1 and n == C.lp:
                fill(99)
                a.wait(lgkm=0)
                for t in hpoll(sT+13): a(t)
                if not C.gp and not C.gearly:
                    for t in GPOLL: a(t)
            elif j == 1 and n == lc:
                assert nl <= 28
                spin(a, 'l', hpoll(sT+13), [f's_cmp_eq_u32 s{sFV}, 14'], sT+14, sleep=0)
            elif j == 1 and C.gp and n == C.gp and not C.gearly:
                for t in GPOLL: a(t)
            elif j == 1 and n == C.gc and not C.gearly:
                spin(a, 'g', GPOLL, GTEST, sT+14, sleep=C.gsl)
            elif j == 1 and (n == C.gb or (n == C.gb2 and C.gearly)):
                assert not wq or sl == 3
                dog = (n == C.gb2) == bool(C.gearly)
                if not C.gearly: a.wait_vm_for(gdone)
                if n == C.gb: a.wait(lgkm=0)
                a('s_barrier')
                if dog:
                    fillers = [f'ds_read_b128 {vr(GF(kp,c),4)}, v{19 if c else vHA} offset:{GU*UN+4096*kp}' for kp in range(4) for c in range(2)] + fillers
                    gstart = n+2
                    for kp in range(4):
                        for (sl2, c) in ((1,0),(3,0),(3,1),(1,1)):
                            d = vr(AC(sl2,c),4); ini = kp == 0 and ((sl2 == 3 and not glate) or C.gearly)
                            gm.append(f'{MF} {d}, {vr(GF(kp,c),4)}, {ar((aCF if sl2 == 1 else aCL)+4*kp,4)}, {vr(vXS+4*(sl2-1)+4*c,4) if ini else d}')
                if n == C.gb:
                    fillers += preads(EP, 0, (2,3,1)) + adds(EP[0], EP[1]) + adds(EP[0], EP[2])
                    after_g = adds(EP[0], AC(1,0)) + pack(EP[0], OB, 0)
                    if n == 42+C.xb:
                        assert not wq
                        fillers += preads(LP, 1, (2,3)) + adds(LP[0], LP[1])
            elif j == 1 and sl and 1 <= ks and wq: a(wq.pop(0))
            elif j == 1 and sl == 3 and ks == C.xb:
                assert not wq
                a.wait(lgkm=0); a('s_barrier')
                fillers = preads(LP, 1, (2,3)) + fillers + adds(LP[0], LP[1])
            elif j == 2 and C.gc <= n < C.gc+4 and not C.gearly: gdone = a(GL[n-C.gc])
            elif j == 2 and nl < 56 and nl-n-1 < C.look:
                hload(a, nl); nl += 1
            else: fill(1 if j == 3 else 2)
        if gm and n >= gstart:
            for t in gm[:4]: a(t); fill(2)
            gm = gm[4:]
        elif after_g and not gm: fillers += after_g; after_g = []
        if ks == 13 and sl < 3:
            assert not wq
            if sl == 1: wq = [f'ds_write_b128 v{vPW}, {vr(AC(1,2+c),4)} offset:{PU*UN+1024*c}' for c in range(2)]
            else: wq = [f'ds_write_b128 v{vPW}, {vr(AC(sl,c),4)} offset:{(sl>>1)*UN+1024*c}' for c in range(4)]
        if n in (0, 3, 13, 27, 39, 41, 46, 50): jit(a)
        if n == 0: lazy_flush(a, 5); stamp(a, 3)
        if n in (7,14,21,28,35,42,49): stamp(a, 18 if n == 7 else 2)
    assert nl == 56
    for n in range(nend, 56):
        for c in (2, 3): mf(n, c); fill(2)
        if gm:
            for t in gm[:4]: a(t); fill(2)
            gm = gm[4:]
        elif after_g: fillers += after_g; after_g = []
    assert not gm and not after_g
    fill(99)
    own = [(n, c) for n in range(nend, 56) for c in (0, 1)]
    k0 = min(3, len(own))
    for n, c in own[:k0]: mf(n, c)
    own = own[k0:]
    for c in range(2):
        a(f'ds_write_b128 v{vPW}, {vr(AC(3,2+c),4)} offset:{PU*UN+2048+1024*c}')
        if own: mf(*own.pop(0))
    if own: mf(*own.pop(0))
    a.wait(lgkm=0); a('s_barrier')
    for t in preads(LP, 1, (1,)): a(t)
    for n, c in own: mf(n, c)
    stamp(a, 3)
    for k in range(0, 8, 2): a(f'v_pk_add_f32 {vr(LP[0]+k,2)}, {vr(LP[0]+k,2)}, {vr(AC(3,0)+k,2)}')
    for k in range(0, 8, 2): a(f'v_pk_add_f32 {vr(LP[0]+k,2)}, {vr(LP[0]+k,2)}, {vr(LP[2]+k,2)}')
    for t in pack(LP[0], OB+4, f's{sMB}'): a(t)
    stamp(a)

def kernel(a):
    q = Q(a)
    prologue(a, q)
    for t in master_list(False)[1:4]: q.pend += items(t)
    assert C.cap0 <= 8
    q.issue(6)
    stamp(a)
    jit(a)
    z = setup2(a)
    for t in coef_ops(): a(t)
    q.issue(C.cap0-2)
    stamp(a)
    a(f's_cmp_ge_u32 s{sJ}, 14')
    a('s_cbranch_scc1 L_dft')
    st = a.snapshot(); n0 = St.n; q2 = q.clone(True)
    phaseA(a, False, q, z); stamp(a, 17)
    rest = presync(a, False, q, glu_epilogue(a, q))
    def state(): return ([i.text for i in a.vm], St.n)
    join = state(); jl = [i.text for i in a.lgkm]
    a.label('L_phaseB')
    a.raw(';PAD0') if C.pads else a('s_nop 0')
    phaseB(a, rest)
    stamp_flush(a)
    a.label('L_end')
    a('s_endpgm')
    a.restore(st); St.n = n0; q = q2
    a.raw('.p2align 3')
    a.label('L_dft')
    phaseD(a, q, z); stamp(a, 17)
    assert rest == presync(a, True, q, dft_epilogue(a, q))
    assert join == state(), (join, state())
    assert not a.lgkm
    a('s_branch L_phaseB')
    a.raw(';OOL')
    for l in OOL: a.raw(l)
    if a.blocked: print('waits that block on smem at lines', a.blocked, file=sys.stderr)

def layout(lines, base):
    out = []
    for l in lines:
        if l.startswith(';WARM'):
            t = l.split()[1]
            out += [f'    s_mov_b32 s1, {1 if t == "d" else 0}', '    s_mov_b64 exec, 0']
            for w in range(3): out += [f'    s_cmp_eq_u32 s{sW}, {w}', f'    s_cbranch_scc1 @{t}{w}']
            out += [f'    s_branch @{t}3']
            if t == 'g': out += ['Ltramp:', '    s_cmp_eq_u32 s1, 1', '    s_cbranch_scc1 Lret_d']
            out += [f'Lret_{t}:', '    s_mov_b64 exec, -1']
        elif l == ';PAD0': out += ['Lpad_s0:', '    s_cbranch_execz @next_s0']
        else: out.append(l)
    import re
    sz = sizes_of([re.sub(r'@\w+', 'L_end', l) for l in out])
    idx = [i for i,l in enumerate(out) if l.startswith('    ') and not l.strip().startswith((';','.'))]
    assert len(idx) == len(sz)
    size = dict(zip(idx, sz))
    res = []; addr = base; cand = None; fixed = left = 0; region = None; pads = {'g': [], 's': ['s0'], 'd': []}
    page = addr >> 12
    for i,l in enumerate(out):
        if l == 'Lret_g:': region = 'g'
        if l == 'L_phaseB:': region = 's'
        if l == 'L_end:' or l == ';OOL': region = None
        if l == 'Lret_d:': region = 'd'
        if l.startswith('.p2align 3'): addr = (addr+7)//8*8; cand = None; res.append(l); continue
        if i not in size: res.append(l); continue
        if (addr >> 12) != page:
            page = addr >> 12
            if region and C.pads and 'exec' not in l:
                nm = f'{region}{len(pads[region])}'; pads[region].append(nm)
                res += [f'Lpad_{nm}:', f'    s_cbranch_execz @next_{nm}']; addr += 4
                if C.log: print('pad', nm, 'before line', i, l.strip()[:60], file=sys.stderr)
        s = size[i]
        if s == 8 and addr % 8 == 4:
            if cand is not None and C.align:
                op = res[cand].split()[0]; res[cand] = res[cand].replace(op, op+'_e64', 1); addr += 4; fixed += 1
            elif addr % 32 == 28: left += 1
        res.append(l)
        if s == 8: cand = None
        elif l.split()[0] in PROMO and addr % 8 == 0: cand = len(res)-1
        addr += s
    tgt = {}
    sp = pads['s']
    for k, nm in enumerate(sp): tgt[f'next_{nm}'] = f'Lpad_{sp[k+1]}' if k+1 < len(sp) else 'Ltramp'
    for t in 'gd':
        own = pads[t]
        for k, nm in enumerate(own): tgt[f'next_{nm}'] = f'Lpad_{own[k+3]}' if k+3 < len(own) else f'Lret_{t}'
        for w in range(3): tgt[f'{t}{w}'] = f'Lpad_{own[w]}' if w < len(own) else f'Lret_{t}'
        tgt[f'{t}3'] = f'Lpad_{sp[0 if t == "d" or len(sp) == 1 else 1]}'
    res = [re.sub(r'@(\w+)', lambda m: tgt[m.group(1)], l) for l in res]
    print('align fixed', fixed, 'left', left, 'pads', pads, 'bytes', addr-base, file=sys.stderr)
    assert addr-base <= 32*CODE_LINES_PER_WG*128
    return res

def build():
    out = ['; @launch grid=(256,1,1) block=(256,1,1) lds=163840', '; '+' '.join(sys.argv[2:]),
           '.amdgcn_target "amdgcn-amd-amdhsa--gfx950"', '.text', '.p2align 12']
    if C.shift: out.append(f'.fill {64*C.shift}, 4, 0xbf800000')
    nm = NAME+'_kernel'
    a = Asm(); kernel(a)
    lines = layout(a.lines, 0x300+256*C.shift)
    out += [f'.globl {nm}', '.p2align 8', f'.type {nm},@function', f'{nm}:', '\n'.join(lines)]
    out.append('L_code_end:')
    out.append(f'.fill ({32*CODE_LINES_PER_WG*128+256} - (L_code_end - {nm}))/4, 4, 0xbf800000')
    out.append('.section .rodata,"a"')
    out.append('.p2align 6')
    out.append(f'''.amdhsa_kernel {nm}
  .amdhsa_next_free_vgpr 512
  .amdhsa_next_free_sgpr 102
  .amdhsa_accum_offset 256
  .amdhsa_group_segment_fixed_size 0
  .amdhsa_kernarg_size 96
  .amdhsa_user_sgpr_count 2
  .amdhsa_user_sgpr_kernarg_segment_ptr 1
  .amdhsa_system_sgpr_workgroup_id_x 1
.end_amdhsa_kernel
''')
    return '\n'.join(out)
if __name__ == '__main__':
    for kv in sys.argv[2:]:
        k, v = kv.split('='); assert hasattr(C, k), k; setattr(C, k, int(v))
    HP = 56*1024+C.hpad; GP = 65536+C.gpad
    t = build()
    open(sys.argv[1], 'w').write(t)
```

```python
import sys, struct
from asmlib import *

NAME = 'parallel_sum__spectral_fnet__glu_gated_glu__prompt'
HP = 56*1024+128
GP = 65536+128
G_OFF = 0x790000
FL_OFF = 0xA00000
FLS_OFF = FL_OFF+128*128
FLG_OFF = FLS_OFF+4
NFL = 256
XS_OFF = 0xA10000
CS_OFF = 0xA50000
WS_BYTES = 0xA90000
STAMP_OFF = 0xC00000
OOB = 0x7f000000
def f2u(x): return struct.unpack('<I', struct.pack('<f', x))[0]
LOG2E = 1.4426950408889634
MF = 'v_mfma_f32_16x16x32_bf16'

class Cfg:
    stamps = 0; log = 0; align = 1
    touch = 0
    tlb = 0
    pads = 1
    shift = 0
    hrot = 0; bmap = 1; drot = 2
    cap0 = 6; cap = 8; capn = 4; bar = 2
    rate = 8; drate = 8; dslow = 0
    spoll = 8; dlag = 10; rd0 = 3; rd1 = 6
    dleft = 20; epi_dma = 1; post = 12
    look = 10; look0 = 6; gp = 0; gc = 24; gb = 40; est = 51; xb = 6; skipb = 0; snake = 1; defer = 4; lp = 8; pre = 8; mid = 4; xoff = 0; dmap = 1; dstart = 5; ddrate = 4; ddlag = 16; dearly = 0; drotd = 3; dcap = 4; xord = 1; tw = 1; tswap = 5; wsoff = 0; perm = 1; diag = 0; gearly = 1; gb2 = 2; dpre = 8; depi = 0; fpre = 4; df = 12; d6 = 1; d7 = 2; xh = 0; ga = 1; fdot = 1; pa = 0; ool = 1; lz = 0; gfirst = 1; cs = 4; bart = 2; sh = 2; w1 = 1; rdp = 0; hl = 1; rd2 = 11; gpe = 1; rde = 0; wx = 1; chb = 1; chd = 1; nw = 0; jit = 0; wt = 0; look1 = 2; lzu = 9; xpre = 1; hfl = 0; hoist = 1; gnew = 1; drd1 = 12; plate = 2; ftz = 0; gsl = 0
    infl = 2; pgap = 5
    outsc = 1; tpos = 3; tfl = 0; rmask = 6
    hpad = 0; gpad = 0
C = Cfg()

sMSK, sR, sCB = 3, 6, 7
sPO = 8
sDBG, sX, sG, sU, sWS, sWD, sOUT = 16, 20, 24, 28, 32, 36, 40
sW, sI, sJ, sP = 44, 45, 46, 47
sT = 48
sM0, sKX, sKW, sPITCH, sKCX, sKCW, sL, sXS = 64, 65, 66, 67, 68, 69, 70, 71
sSET, sCS, sOWN, sONE, sFV, sKD, sP2, sP7 = 80, 81, 86, 87, 4, 5, 15, 0
sM1, sM2, sM3, sMV = 88, 90, 92, 94
vLANE, vN, vG, vOUT = 1, 2, 3, 13
vXD, vWD, vD, vXA, vOA, vWA, vTR, vDBG, vSTAMP = 16, 20, 22, 26, 28, 30, 34, 46, 47
vXR, vWF, vSXo, vCS, vSQo, vACC = 48, 64, 96, 104, 120, 128
aSX, aONE, aR, aCL, aCF = 160, 168, 192, 224, 240
UN = 16384
LST = 1*UN
def acc(tf, wf): return vACC+16*tf+4*wf
def fW(p, wf): return vWF+16*p+4*wf
def fX(k): return vXR+4*(k & 3)
def S(r): return f's[{r}:{r+3}]'

class St: n = 0
def stamp(a, grp=1):
    if not (C.stamps & grp): return
    a(f's_memtime s[82:83]')
    a(f's_memrealtime s[84:85]')
    a.wait(lgkm=0)
    a(f'v_writelane_b32 v{vSTAMP}, s82, {St.n}')
    a(f'v_writelane_b32 v{vSTAMP}, s84, {32+St.n}')
    St.n += 1
LZ = [96, 18, 90, 92, 94]
def lazy(a, k):
    if C.stamps & 1: a.raw(f'    s_memrealtime s[{LZ[k]}:{LZ[k]+1}] ; s_memtime')
def lazy_flush(a, n):
    if not (C.stamps & 1): return
    a.raw('    s_waitcnt lgkmcnt(0)')
    for k in range(n):
        a(f'v_writelane_b32 v{vSTAMP}, s{LZ[k]}, {32+St.n}'); St.n += 1
def stamp_flush(a):
    if not C.stamps: return
    a.wait(vm=0)
    stamp(a, 255)
    a(f's_mov_b32 s{sWS+2}, 0x1000000')
    a(f's_lshl_b32 s82, s2, 2')
    a(f's_add_u32 s82, s82, s{sW}')
    a(f's_lshl_b32 s82, s82, 8')
    a(f's_add_u32 s82, s82, {STAMP_OFF}')
    a(f'v_lshlrev_b32 v4, 2, v{vLANE}')
    a(f'buffer_store_dword v{vSTAMP}, v4, {S(sWS)}, s82 offen')

class Jn: n = 0
def jit(a):
    if not C.jit: return
    Jn.n += 1
    for t in ['s_memtime s[82:83]', 's_waitcnt lgkmcnt(0)', 's_mul_i32 s82, s82, 0x9e3779b1', f's_lshr_b32 s82, s82, {32-C.jit}', 's_cmp_eq_u32 s82, 0', f's_cbranch_scc0 Ljit{Jn.n}', 's_sleep 100']:
        a.raw('    '+t)
    a.label(f'Ljit{Jn.n}')

def srd(a, d, ptr, nbytes):
    a(f's_mov_b64 s[{d}:{d+1}], s[{ptr}:{ptr+1}]')
    a(f's_mov_b32 s{d+2}, {nbytes}')
    a(f's_mov_b32 s{d+3}, 0x20000')

def dma_X(s):
    pre = {0: [f's_add_u32 m0, s{sM0}, {(s % 4)*UN}', f's_xor_b32 s{sKX}, s{sKX}, 512' if s & 1 else f's_lshl_b32 s{sKX}, s{sKCX}, 7']}
    if s & 1: pre[1] = [f's_add_u32 s{sKCX}, s{sKCX}, 1', f's_and_b32 s{sKCX}, s{sKCX}, 3'] + ([f's_or_b32 s{sKCX}, s{sKCX}, 4'] if C.xord else [])
    return [(('X', s), pre.get(q, []), f'buffer_load_dwordx4 v{vXD+q}, {S(sX)}, s{sKX} offen offset:{q*1024} lds') for q in range(4)]
def wunit(n, dft): return 4 + ((2*((n >> 2) & 1)+(n & 1)) if dft else n % 6)
def dma_W(n, dft):
    k = [f's_mul_i32 s{sKW}, s{sKCW}, s{sP2}', f's_add_u32 s{sKW}, s{sKW}, s{sPITCH}', f's_add_u32 s{sKW}, s{sKW}, s{sP7}', f's_add_u32 s{sKW}, s{sKW}, s{sPITCH}'][n & 3]
    pre = {0: [f's_add_u32 m0, s{sM0}, {wunit(n, dft)*UN}', k]}
    if n & 3 == 1: pre[1] = [f's_add_u32 s{sKCW}, s{sKCW}, 1', f's_and_b32 s{sKCW}, s{sKCW}, 3'] + ([f's_or_b32 s{sKCW}, s{sKCW}, 4'] if C.xord else [])
    return [(('W', n), pre.get(q, []), f'buffer_load_dwordx4 v{vWD+(q&1)}, {S(sU if q >> 1 else sG)}, s{sKW} offen offset:{q*1024} lds') for q in range(4)]
class Plan:
    def __init__(self, dft):
        if dft:
            self.units = [8, 9, 8, 9, 0, 4, 5, 6, 2, 7, 3, 9, 4, 5] if C.df == 14 else [8, 9, 0, 4, 5, 6, 2, 7, 3, 8, 9, 0, 4, 5]
            self.avail = {}
        else:
            self.units = [0, 8, 9, 4, 5, 0, 6, 2, 8, 7, 3, 9, 4, 5]
            self.avail = {10:2, 11:3, 12:4, 13:6, 14:9}
            if C.cs <= 10:
                self.units = [8, 9, 0, 4, 5, 6, 8, 7, 2, 9, 3, 0, 4, 5]
                self.avail = {10:3, 11:4, 12:5, 13:7, 14:10}
        self.prev = {u: max(v for v in range(u) if self.units[v] == self.units[u]) for u in range(14) if self.units[u] in self.units[:u]}
    def dma(self, u):
        pre = {0: [f's_add_u32 m0, s{sM0}, {self.units[u]*UN}',
                   f's_add_u32 s{sKD}, s{sKD}, 32768' if u & 1 else f's_lshl_b32 s{sKD}, s{sPO+(u>>1)}, 5']}
        return [(('D', u), pre.get(q, []), f'buffer_load_dwordx4 v{vD+q}, {S(sWD)}, s{sKD} offen offset:{q*1024} lds') for q in range(4)]
    def reads(self, u):
        un = self.units[u]
        return [f'ds_read_b64_tr_b16 {ar(16*u+4*cbk+2*u2,2)}, v{vTR+4*(un>>2)+cbk} offset:{(un&3)*UN+2048*u2}' for cbk in range(4) for u2 in range(2)]

class Q:
    def __init__(self, a, dft=False):
        self.a = a; self.pend = []; self.last = {}; self.predone = False; self.nD = 0; self.maxD = 0; self.rd = {}
        self.plan = Plan(dft)
        self.rq = [(u, t) for u in range(14) for t in self.plan.reads(u)]; self.issued = 0; self.limit = 10**9; self.log = []; self.pos = -1
    def clone(self, dft):
        q = Q(self.a, dft); q.pend = list(self.pend); q.last = dict(self.last); q.predone = self.predone; q.issued = self.issued; q.log = list(self.log)
        return q
    def left(self): return len(self.pend) + 4*(14-self.nD)
    def ready(self):
        if not self.pend and self.nD < self.maxD:
            pv = self.plan.prev.get(self.nD)
            if pv is None or not self.rq or self.rq[0][0] > pv:
                self.pend += self.plan.dma(self.nD); self.nD += 1
        return bool(self.pend) and self.issued < self.limit
    def haspre(self): return self.ready() and self.pend[0][1] and not self.predone
    def pre(self):
        if self.ready() and not self.predone:
            for t in self.pend[0][1]: self.a(t)
            self.predone = True
    def issue(self, n=1):
        for _ in range(n):
            if not self.ready(): return
            self.pre()
            tag, pf, t = self.pend.pop(0)
            if tag[0] == 'D' and tag[1] in self.plan.prev: self.a.wait_lgkm_for(self.rd[self.plan.prev[tag[1]]])
            self.last[tag] = self.a(t); self.predone = False; self.issued += 1; self.log.append((tag, self.pos))
    def addD(self, upto): self.maxD = max(self.maxD, upto)
    def has(self, tag): return [1 for t in self.pend if t[0] == tag]
    def need(self, tag):
        assert tag in self.last and not self.has(tag), ('not issued', tag)
        self.a.wait_vm_for(self.last[tag])
    def read1(self, upto):
        if not self.rq or self.rq[0][0] >= upto: return False
        u, t = self.rq.pop(0)
        self.need(('D', u))
        self.rd[u] = self.a(t)
        return True
    def readD(self, upto):
        while self.read1(upto): pass

def x_read(k):
    n, tf = k >> 3, k & 7
    return f'ds_read_b128 {vr(fX(k),4)}, v{vXA+(n&1)} offset:{((n>>1) % 4)*UN+tf*2048}'
def w_reads(n, dft):
    if dft and n & 2:
        return [f'v_xor_b32 v{fW(n&1,0)+k}, v12, v{fW(n&1,0)+k}' for k in range(16)]
    un = wunit(n, dft)-4
    return [f'ds_read_b64_tr_b16 {vr(fW(n&1,wf)+2*u,2)}, v{vWA+2*(un>>2)+(wf&1)} offset:{(un&3)*UN+(wf>>1)*2048+u*1024}' for wf in range(4) for u in range(2)]

def master_list(dft):
    m = []
    for n in range(16):
        if n % 2 == 0: m.append(('X', n >> 1))
        if not (dft and n & 2): m.append(('W', n))
    return m
def items(t, dft=False): return dma_X(t[1]) if t[0] == 'X' else dma_W(t[1], dft)

CODE_LINES_PER_WG = 9
def prologue(a, q):
    a('s_cmp_ge_u32 s2, 256')
    a('s_cbranch_scc1 L_end')
    a('s_load_dwordx2 s[4:5], s[0:1], 0')
    a('s_load_dwordx4 s[8:11], s[0:1], 24')
    a('s_load_dwordx4 s[12:15], s[0:1], 48')
    a('s_load_dwordx8 s[72:79], s[0:1], 64')
    St.n = 0
    if C.stamps: a('s_memrealtime s[84:85]'); a('s_memtime s[82:83]')
    a.raw(f'    s_getpc_b64 s[80:81]'); a.hist.append((Ins('s_getpc_b64 s[80:81]'),1))
    a(f's_lshr_b32 s{sT}, s2, 3')
    a(f's_mul_i32 s{sT}, s{sT}, {CODE_LINES_PER_WG*128}')
    a(f'v_min_u32 v4, {CODE_LINES_PER_WG-1}, v0')
    a(f'v_lshl_add_u32 v4, v4, 7, s{sT}')
    a(f'global_load_dword v{vDBG}, v4, s[80:81]')
    a(f'v_and_b32 v{vLANE}, 63, v0')
    a(f'v_lshrrev_b32 v4, 6, v0')
    a(f'v_and_b32 v{vN}, 15, v0')
    a(f'v_readfirstlane_b32 s{sW}, v4')
    a(f'v_bfe_u32 v{vG}, v0, 4, 2')
    if C.perm:
        a(f's_lshr_b32 s{sT}, s2, 2')
        a(f's_xor_b32 s{sT}, s{sT}, s2')
        a(f's_and_b32 s{sT}, s{sT}, 1')
        a(f's_mul_i32 s{sT}, s{sT}, 5')
        a(f's_xor_b32 s2, s2, s{sT}')
    a(f's_and_b32 s{sT}, s2, 1')
    a(f's_lshl_b32 s{sT}, s{sT}, 3')
    a(f's_bfe_u32 s{sI}, s2, {3|(3<<16)}')
    a(f's_add_u32 s{sI}, s{sI}, s{sT}')
    a(f's_bfe_u32 s{sT}, s2, {1|(2<<16)}')
    a(f's_lshr_b32 s{sT+1}, s2, 6')
    if C.dmap:
        a(f's_mul_i32 s{sJ}, s{sT}, 3')
        a(f's_add_u32 s{sJ}, s{sJ}, s{sT+1}')
        a(f's_add_u32 s{sT+2}, s{sT}, 14')
        a(f's_cmp_eq_u32 s{sT+1}, 3')
        a(f's_cselect_b32 s{sT+2}, s{sT+2}, s{sJ}')
        a(f's_cmp_eq_u32 s{sT}, 3')
        a(f's_addc_u32 s{sJ}, s{sJ}, 0')
        a(f's_cmp_lt_u32 s{sT}, 2')
        a(f's_cselect_b32 s{sJ}, s{sT+2}, s{sJ}')
    else:
        a(f's_mul_i32 s{sJ}, s{sT}, 3')
        a(f's_add_u32 s{sJ}, s{sJ}, s{sT+1}')
        a(f's_lshr_b32 s{sT+2}, s2, 4')
        a(f's_xor_b32 s{sT+2}, s{sT+2}, s2')
        a(f's_and_b32 s{sT+2}, s{sT+2}, 2')
        a(f's_lshr_b32 s{sT}, s{sT}, 1')
        a(f's_add_u32 s{sT}, s{sT}, s{sT+2}')
        a(f's_add_u32 s{sT}, s{sT}, 12')
        a(f's_cmp_eq_u32 s{sT+1}, 3')
        a(f's_cselect_b32 s{sJ}, s{sT}, s{sJ}')
    a(f's_xor_b32 s{sT}, s{sI}, s{sT+1}')
    a(f's_and_b32 s{sT}, s{sT}, 1')
    a(f's_lshl_b32 s{sKCX}, s{sT}, 1')
    a(f's_lshr_b32 s{sT}, s2, 1')
    a(f's_xor_b32 s{sT}, s{sT}, s2')
    a(f's_and_b32 s{sT}, s{sT}, 1')
    a(f's_add_u32 s{sKCX}, s{sKCX}, s{sT}')
    a(f's_lshl_b32 s{sL}, s{sKCX}, 8')
    if C.rmask != 6: a(f's_and_b32 s{sKCX}, s{sKCX}, {C.rmask >> 1}')
    if C.xord: a(f's_or_b32 s{sKCX}, s{sKCX}, 4')
    a(f's_mov_b32 s{sKCW}, s{sKCX}')
    a(f's_sub_u32 s{sT+1}, 32, s{sI}')
    a(f's_cmp_eq_u32 s{sI}, 0')
    a(f's_cselect_b32 s{sT+1}, 16, s{sT+1}')
    a(f's_bitcmp1_b32 s{sW}, 1')
    a(f's_cselect_b32 s{sT}, s{sT+1}, s{sI}')
    a(f's_sub_u32 s{sT+1}, 64, s{sT}')
    a(f's_cmp_eq_u32 s{sT}, 0')
    a(f's_cselect_b32 s{sT+1}, 32, s{sT+1}')
    a(f's_add_u32 s{sT+2}, s{sT}, 32')
    a(f's_movk_i32 s{sT+6}, 3584')
    a(f's_cmp_ge_u32 s{sJ}, 14')
    a(f's_cselect_b32 s{sT+1}, s{sT+2}, s{sT+1}')
    a(f's_cselect_b32 s{sT+6}, 1024, s{sT+6}')
    a(f's_cselect_b32 s{sT+4}, 12, 0')
    a(f's_sub_u32 s{sT+4}, s{sJ}, s{sT+4}')
    a(f's_lshl_b32 s{sT+4}, s{sT+4}, 8')
    a(f's_bitcmp1_b32 s{sW}, 0')
    a(f's_cselect_b32 s{sT}, s{sT+1}, s{sT}')
    a(f's_cselect_b32 s{sT+5}, 8, 0')
    a(f's_lshl_b32 s{sT}, s{sT}, 10')
    a(f'v_lshrrev_b32 v4, 3, v{vLANE}')
    a(f'v_lshl_add_u32 v4, v4, 16, s{sT}')
    a(f'v_and_b32 v6, 7, v{vLANE}')
    a(f'v_xor_b32 v6, v6, v{vG}')
    a(f'v_lshl_add_u32 v{vXD}, v6, 4, v4')
    a(f'v_xor_b32 v7, 64, v{vXD}')
    a(f'v_add_u32 v{vXD+1}, {524288-1024}, v7')
    a(f'v_add_u32 v{vXD+2}, {2*(524288-1024)}, v{vXD}')
    a(f'v_add_u32 v{vXD+3}, {3*(524288-1024)}, v7')
    a(f's_lshl_b32 s{sM0}, s{sW}, 12')
    a(f's_lshl_b32 s{sPITCH}, s{sT+6}, 5')
    a(f's_mov_b32 s{sX+2}, {2048*1024}')
    a(f's_mov_b32 s{sX+3}, 0x20000')
    def waddr():
        a(f's_lshl_b32 s{sT+1}, s{sW}, 3')
        a(f'v_add_u32 v4, s{sT+1}, v{vG}')
        a(f'v_mul_u32_u24 v4, s{sT+6}, v4')
        a(f'v_add_u32 v4, s{sT+4}, v4')
        a(f'v_lshl_add_u32 v7, v{vG}, 1, s{sT+5}')
        a(f'v_xor_b32 v6, v{vN}, v7')
        a(f'v_lshl_add_u32 v{vWD}, v6, 4, v4')
        a(f's_lshl_b32 s{sT+1}, s{sT+6}, 2')
        a(f's_sub_u32 s{sT+1}, s{sT+1}, 1024')
        a(f'v_add_u32 v{vWD+1}, s{sT+1}, v{vWD}')
        a(f's_cmp_lt_u32 s{sJ}, 14')
        a(f's_cbranch_scc1 L_wglu')
        a(f's_lshl_b32 s{sT+1}, s{sW}, 6')
        a(f's_add_u32 s{sT+1}, s{sT+1}, s{sJ}')
        a(f's_add_u32 s{sT+1}, s{sT+1}, 242')
        a(f's_lshl_b32 s{sT+1}, s{sT+1}, 10')
        a(f'v_lshrrev_b32 v4, 3, v{vLANE}')
        a(f'v_lshl_add_u32 v4, v4, 11, s{sT+1}')
        a(f'v_and_b32 v6, 0x70, v{vXD}')
        a(f'v_add_u32 v{vWD}, v6, v4')
        a(f'v_xor_b32 v7, 64, v{vWD}')
        a(f'v_add_u32 v{vWD+1}, {16384-1024}, v7')
        a.label('L_wglu')
        a(f's_lshl_b32 s{sG+2}, s{sT+6}, 9')
        a(f's_mov_b32 s{sG+3}, 0x20000')
        a(f's_add_u32 s{sU+2}, s{sG+2}, 2048')
        a(f's_mov_b32 s{sU+3}, 0x20000')
    if C.hoist: waddr()
    sTW = 96
    if C.tw & 2:
        a(f's_lshl_b32 s{sT+1}, s2, 2')
        a(f's_add_u32 s{sT+1}, s{sT+1}, s{sW}')
        a(f's_lshl_b32 s{sT+7}, s{sT+1}, 7')
        a(f's_lshr_b32 s{sT+1}, s2, 3')
        a(f's_add_u32 s{sT+1}, s{sT+1}, s{sW}')
        a(f's_and_b32 s{sT+1}, s{sT+1}, 7')
        a(f's_min_u32 s{sT+1}, s{sT+1}, 5')
        a(f's_lshl_b32 s{sT+1}, s{sT+1}, 21')
        a(f's_add_u32 s{sT+8}, s{sT+1}, s{sT+7}')
    q.pend = items(('X',0)); q.pre()
    a.wait(lgkm=0)
    a(f's_mov_b64 s[{sX}:{sX+1}], s[4:5]')
    if C.stamps:
        a(f'v_writelane_b32 v{vSTAMP}, s84, 32'); a(f'v_writelane_b32 v{vSTAMP}, s82, 0'); St.n = 1
    if not C.tw & 4: q.issue(1)
    a(f's_cmp_ge_u32 s{sJ}, 14')
    a(f's_cselect_b64 s[{sG}:{sG+1}], s[8:9], s[12:13]')
    a(f's_cselect_b64 s[{sU}:{sU+1}], s[10:11], s[14:15]')
    if C.tw & 1:
        if C.tswap:
            a(f's_bitcmp1_b32 s2, {C.tswap}')
            a(f's_cselect_b64 s[8:9], s[{sG}:{sG+1}], s[{sU}:{sU+1}]')
            a(f's_load_dword s{sTW}, s[8:9], 0')
        else:
            a(f's_load_dword s{sTW}, s[{sG}:{sG+1}], 0')
            a(f's_load_dword s{sTW+1}, s[{sU}:{sU+1}], 0')
    if C.tw & 4: q.issue(1)
    if C.wsoff:
        a(f's_add_u32 s78, s78, {C.wsoff << 20}')
        a(f's_addc_u32 s79, s79, 0')
    if C.tw & 2:
        a(f's_load_dword s{sTW+2}, s[78:79], s{sT+8} glc')
        a(f's_load_dword s{sTW+3}, s[76:77], 128')
        a(f's_load_dword s{sTW+4}, s[72:73], 0')
        a(f's_load_dword s{sTW+5}, s[74:75], s{sT+7} glc')
    q.issue(1)
    if not C.hoist: waddr()
    a(f's_sub_u32 s{sU}, s{sU}, 2048')
    a(f's_subb_u32 s{sU+1}, s{sU+1}, 0')
    q.issue(1)
    a(f's_lshl_b32 s{sP2}, s{sPITCH}, 1')
    a(f's_cmp_ge_u32 s{sJ}, 14')
    a(f's_cselect_b32 s{sP2}, 128, s{sP2}')
    a(f's_mul_i32 s{sP7}, s{sPITCH}, {-9 if C.xord else 7}')
    q.issue(1)

def setup2(a):
    srd(a, sWS, 78, WS_BYTES)
    a(f's_cmp_eq_u32 s2, 0')
    a(f's_cselect_b32 s{sT+1}, {NFL}, 0')
    a(f's_mov_b32 s{sONE}, 1')
    a(f'v_mov_b32 v4, 0')
    a(f'v_mov_b32 v5, 0')
    a(f'v_mov_b32 v10, {OOB}')
    a(f'v_lshlrev_b32 v8, 7, v0')
    a(f'v_cmp_gt_u32 vcc, s{sT+1}, v0')
    a(f'v_mov_b32 v11, 0')
    a(f's_mov_b32 s{sT+3}, {FL_OFF}')
    a(f'v_cndmask_b32 v8, v10, v8, vcc')
    z = a(f'buffer_store_dwordx2 v[4:5], v8, {S(sWS)}, s{sT+3} offen sc1')
    srd(a, sWD, 72, 1792*1024)
    srd(a, sOUT, 74, 2048*1024)
    a(f'v_lshrrev_b32 v4, 1, v{vN}')
    a(f'v_xor_b32 v4, v4, v{vG}')
    a(f'v_lshlrev_b32 v4, 4, v4')
    a(f'v_lshl_add_u32 v{vXA}, v{vN}, 7, v4')
    a(f'v_xor_b32 v{vXA+1}, 64, v{vXA}')
    a(f'v_add_u32 v{vOA}, s{sM0}, v{vXA}')
    a(f'v_add_u32 v{vOA+1}, s{sM0}, v{vXA+1}')
    a(f'v_bfe_u32 v4, v{vLANE}, 2, 2')
    a(f'v_and_b32 v7, 3, v{vLANE}')
    a(f'v_cmp_eq_u32 s[{sM1}:{sM1+1}], 1, v7')
    a(f'v_cmp_eq_u32 s[{sM2}:{sM2+1}], 2, v7')
    a(f'v_cmp_eq_u32 s[{sM3}:{sM3+1}], 3, v7')
    a(f'v_cmp_eq_u32 s[{sMV}:{sMV+1}], v4, v{vG}')
    a(f'v_lshlrev_b32 v7, 3, v7')
    a(f'v_and_b32 v5, 1, v{vG}')
    a(f'v_lshl_add_u32 v5, v5, 2, v4')
    a(f's_lshl_b32 s{sT}, s{sW}, 1')
    a(f'v_xor_b32 v5, s{sT}, v5')
    a(f'v_lshl_add_u32 v5, v5, 5, v7')
    a(f'v_lshl_add_u32 v5, v4, 8, v5')
    a(f'v_lshl_add_u32 v5, v{vG}, 12, v5')
    a(f'v_add_u32 v{vWA}, {4*UN}, v5')
    a(f'v_xor_b32 v{vWA+1}, 32, v{vWA}')
    a(f'v_add_u32 v{vWA+2}, {4*UN}, v{vWA}')
    a(f'v_add_u32 v{vWA+3}, {4*UN}, v{vWA+1}')
    a(f'v_mov_b32 v4, 0x3f803f80')
    for d in range(4): a(f'v_accvgpr_write_b32 a{aONE+d}, v4')
    if C.bmap == 0:
        a(f's_and_b32 s{sR}, s2, 7')
        a(f's_lshl_b32 s{sR}, s{sR}, 2')
        a(f's_bfe_u32 s{sT}, s2, {3|(2<<16)}')
        a(f's_add_u32 s{sR}, s{sR}, s{sT}')
        a(f's_lshr_b32 s{sCB}, s2, 5')
    elif C.dmap:
        a(f's_and_b32 s{sR}, s2, 3')
        a(f's_lshl_b32 s{sR}, s{sR}, 3')
        a(f's_bfe_u32 s{sT}, s2, {3|(3<<16)}')
        a(f's_add_u32 s{sR}, s{sR}, s{sT}')
        a(f's_lshr_b32 s{sCB}, s2, 6')
        a(f's_xor_b32 s{sCB}, s{sCB}, 2')
        a(f's_and_b32 s{sT}, s2, 4')
        a(f's_add_u32 s{sCB}, s{sCB}, s{sT}')
        a(f's_add_u32 s{sCB}, s{sCB}, 2')
        a(f's_and_b32 s{sCB}, s{sCB}, 7')
    else:
        a(f's_bfe_u32 s{sR}, s2, {1|(2<<16)}')
        a(f's_lshl_b32 s{sR}, s{sR}, 3')
        a(f's_bfe_u32 s{sT}, s2, {3|(3<<16)}')
        a(f's_add_u32 s{sR}, s{sR}, s{sT}')
        a(f's_lshr_b32 s{sCB}, s2, 6')
        a(f's_and_b32 s{sT}, s2, 1')
        a(f's_lshl_b32 s{sT}, s{sT}, 2')
        a(f's_add_u32 s{sCB}, s{sCB}, s{sT}')
        a(f's_add_u32 s{sCB}, s{sCB}, 6')
        a(f's_and_b32 s{sCB}, s{sCB}, 7')
    return z

def late_setup_ops():
    r = []; a = r.append
    a(f'v_and_b32 v{vTR+1}, 3, v{vLANE}')
    a(f'v_bfe_u32 v{vTR}, v{vLANE}, 3, 2')
    a(f'v_lshl_add_u32 v{vTR}, v{vTR}, 2, v{vTR+1}')
    a(f'v_lshrrev_b32 v{vTR+1}, 2, v{vLANE}')
    a(f'v_lshl_add_u32 v{vTR}, v{vTR+1}, 4, v{vTR}')
    a(f'v_lshl_add_u32 v{vTR}, v{vTR}, 3, s{sM0}')
    a(f's_and_b32 s{sT}, s{sW}, 1')
    a(f's_lshl_b32 s{sT}, s{sT}, 6')
    a(f'v_xor_b32 v{vTR}, s{sT}, v{vTR}')
    for c in (1,2,3): a(f'v_xor_b32 v{vTR+c}, {32*c}, v{vTR}')
    for wnd in (1,2):
        for c in range(4): a(f'v_add_u32 v{vTR+4*wnd+c}, {wnd*4*UN}, v{vTR+c}')
    a(f's_mul_i32 s{sT}, s{sW}, {448*1024}')
    a(f's_lshl_b32 s{sT+1}, s{sCB}, 7')
    a(f's_add_u32 s{sT}, s{sT}, s{sT+1}')
    a(f'v_lshrrev_b32 v{vD+1}, 3, v{vLANE}')
    a(f'v_lshl_add_u32 v{vD+1}, v{vD+1}, 10, s{sT}')
    a(f'v_and_b32 v{vD}, 7, v{vLANE}')
    a(f'v_lshlrev_b32 v{vD+2}, 1, v{vG}')
    a(f'v_xor_b32 v{vD}, v{vD}, v{vD+2}')
    a(f'v_lshl_add_u32 v{vD}, v{vD}, 4, v{vD+1}')
    for q in (1,2,3): a(f'v_add_u32 v{vD+q}, {q*7168}, v{vD}')
    a(f's_mov_b32 s{sMSK}, 0xffff0000')
    return r

def coef_ops():
    r = []; a = r.append
    T = vACC+16
    a(f's_lshr_b32 s{sT}, s{sR}, 1')
    a(f's_sub_u32 s{sT+1}, 32, s{sT}')
    a(f's_cmp_eq_u32 s{sT}, 0')
    a(f's_cselect_b32 s{sT+1}, 16, s{sT+1}')
    a(f's_bitcmp1_b32 s{sR}, 0')
    a(f's_cselect_b32 s{sP}, s{sT+1}, s{sT}')
    a(f's_sub_u32 s{sT+1}, 64, s{sP}')
    a(f's_cmp_eq_u32 s{sP}, 0')
    a(f's_cselect_b32 s{sT+1}, 32, s{sT+1}')
    a(f's_bitcmp1_b32 s{sW}, 1')
    a(f's_cselect_b32 s{sT+2}, s{sT+1}, s{sP}')
    a(f's_cselect_b32 s{sT+10}, -1.0, 1.0')
    a(f's_cmp_eq_u32 s{sP}, 0')
    a(f's_cselect_b32 s{sT+10}, 0, s{sT+10}')
    a(f's_cmp_eq_u32 s{sT+2}, 32')
    a(f's_cselect_b32 s{sT+9}, 0, 1.0')
    a(f's_cselect_b32 s{sT+11}, 1.0, 0')
    a(f's_cmp_ge_u32 s{sCB}, 4')
    a(f's_cselect_b32 s{sT+8}, 0, 0x80008000')
    a(f'v_lshl_add_u32 v7, v{vN}, 6, s{sT+2}')
    a(f'v_cvt_f32_u32 v5, v7')
    a(f'v_cvt_f32_u32 v4, v{vG}')
    a(f'v_mul_f32 v5, {f2u(1/2048):#x}, v5')
    a(f'v_cmp_eq_u32 vcc, 0, v{vG}')
    a(f's_lshl_b32 s{sT+1}, s{sCB}, 1')
    a(f's_and_b32 s{sT}, s{sW}, 1')
    a(f's_add_u32 s{sT+1}, s{sT+1}, s{sT}')
    a(f's_lshl_b32 s{sT+1}, s{sT+1}, 6')
    a(f'v_lshl_add_u32 v7, v7, 10, s{sT+1}')
    a(f'v_and_b32 v6, 1, v{vG}')
    a(f'v_lshl_add_u32 v7, v6, 5, v7')
    a(f'v_mul_u32_u24 v9, 0x8000, v6')
    a(f'v_lshl_or_b32 v9, v9, 16, v9')
    a(f'v_lshrrev_b32 v6, 1, v{vG}')
    a(f'v_lshl_add_u32 v{vOUT}, v6, 4, v7')
    a(f'v_mov_b32 v7, {f2u(16.0):#x}')
    for kp in range(4):
        for z in range(2):
            if z == 0: a(f'v_add_f32 v6, {f2u(4.0*kp):#x}, v4')
            else:
                a(f'v_sub_f32 v6, {f2u(32.0-4*kp):#x}, v4')
                if kp == 0: a(f'v_cndmask_b32 v6, v6, v7, vcc')
            a(f'v_mul_f32 v6, v6, v5')
            a(f'v_cos_f32 v{T}, v6')
            a(f'v_sin_f32 v{T+1}, v6')
            a(f'v_mul_f32 v{T+2}, s{sT+9}, v{T}')
            a(f'v_mul_f32 v{T+3}, s{sT+11}, v{T}')
            a(f'v_fmac_f32 v{T+3}, s{sT+10}, v{T+1}')
            a(f'v_mul_f32 v{T+4}, s{sT+9}, v{T+1}')
            a(f'v_mul_f32 v{T+5}, s{sT+11}, v{T+1}')
            a(f'v_fma_f32 v{T+5}, -v{T}, s{sT+10}, v{T+5}')
            a(f'v_cvt_pk_bf16_f32 v{T+2}, v{T+2}, v{T+3}')
            a(f'v_cvt_pk_bf16_f32 v{T+4}, v{T+4}, v{T+5}')
            a(f'v_accvgpr_write_b32 a{aCF+4*kp+2*z}, v{T+2}')
            a(f'v_xor_b32 v{T+4}, s{sT+8}, v{T+4}')
            a(f'v_xor_b32 v{T+2}, v9, v{T+2}')
            a(f'v_accvgpr_write_b32 a{aCF+4*kp+2*z+1}, v{T+4}')
            a(f'v_xor_b32 v{T+4}, v9, v{T+4}')
            a(f'v_accvgpr_write_b32 a{aCL+4*kp+2*z}, v{T+2}')
            a(f'v_accvgpr_write_b32 a{aCL+4*kp+2*z+1}, v{T+4}')
    return r

def scalar_late(a, dft):
    a(f's_lshr_b32 s{sT}, s2, 3')
    a(f's_xor_b32 s{sT}, s{sT}, s2')
    a(f's_bfe_u32 s{sT+1}, s{sT}, {4|(1<<16)}')
    a(f's_bfe_u32 s{sT}, s{sT}, {2|(1<<16)}')
    a(f's_lshl_b32 s{sT+1}, s{sT+1}, 1')
    a(f's_add_u32 s{sSET}, s{sT}, s{sT+1}')
    a(f's_lshl_b32 s{sT+2}, s{sSET}, 10')
    a(f's_lshl_b32 s{sT+1}, s{sW}, 1')
    a(f's_and_b32 s{sT+1}, s{sT+1}, 2')
    a(f's_xor_b32 s{sT+1}, s{sT+1}, s{sW}')
    a(f's_cmp_eq_u32 s{sI}, 0')
    a(f's_cselect_b32 s{sT}, s{sW}, s{sT+1}')
    a(f's_cmp_ge_u32 s{sJ}, 14')
    a(f's_cselect_b32 s{sT}, s{sT}, s{sW}')
    a(f's_lshl_b32 s{sXS}, s{sI}, 2')
    a(f's_add_u32 s{sXS}, s{sXS}, s{sT}')
    a(f's_lshl_b32 s{sXS}, s{sXS}, 12')
    a(f's_and_b32 s{sT+1}, s{sT+2}, {0x800 if C.xh else 0xc00}')
    a(f's_add_u32 s{sXS}, s{sXS}, s{sT+1}')
    a(f's_add_u32 s{sXS}, s{sXS}, {XS_OFF}')
    a(f's_lshl_b32 s{sCS}, s{sJ}, 14')
    a(f's_add_u32 s{sCS}, s{sCS}, s{sM0}')
    a(f's_add_u32 s{sCS}, s{sCS}, s{sT+2}')
    a(f's_add_u32 s{sCS}, s{sCS}, {CS_OFF}')
    a(f's_add_u32 s{sT}, s{sJ}, 16')
    a(f's_bitcmp1_b32 s{sW}, 0')
    a(f's_cselect_b32 s{sT}, s{sT}, s{sI}')
    a(f's_cselect_b32 s{sT+1}, 3, {2 if C.xh else 3}')
    a(f's_cselect_b32 s{sT+5}, 0, {4 if C.xh else 0}')
    a(f's_and_b32 s{sT+1}, s{sT+1}, s{sSET}')
    a(f's_and_b32 s{sT+5}, s{sT+5}, s2')
    a(f's_cselect_b32 s{sT+5}, 0, 1')
    a(f's_lshl_b32 s{sT}, s{sT}, 2')
    a(f's_add_u32 s{sT}, s{sT}, s{sT+1}')
    a(f's_lshl_b32 s{sT}, s{sT}, 7')
    a(f's_add_u32 s{sT+8}, s{sT}, {FLS_OFF}')
    drot = C.drotd if dft else C.drot
    if drot == 0: a(f's_mov_b32 s{sPO}, 0')
    elif drot == 1:
        a(f's_and_b32 s{sPO}, s{sR}, 1'); a(f's_lshl_b32 s{sPO}, s{sPO}, 13')
    else:
        a(f's_and_b32 s{sPO}, s{sR}, {3 if drot == 2 else 7}')
        a(f's_mul_i32 s{sPO}, s{sPO}, 7')
        a(f's_add_u32 s{sPO}, s{sPO}, 2')
        a(f's_lshr_b32 s{sPO}, s{sPO}, {drot}')
        if C.xoff:
            a(f's_bfe_u32 s{sT}, s2, {1|(1<<16)}')
            a(f's_add_u32 s{sPO}, s{sPO}, s{sT}')
        a(f's_lshl_b32 s{sPO}, s{sPO}, 11')
    for k in range(1, 7):
        a(f's_add_u32 s{sPO+k}, s{sPO+k-1}, 2048')
        a(f's_cmp_eq_u32 s{sPO+k}, {7*2048}')
        a(f's_cselect_b32 s{sPO+k}, 0, s{sPO+k}')

LR = 9*UN
LC = 9*UN+8192
vRT = 240
def dft_R_addr():
    r = []; a = r.append; T = vRT
    a(f's_lshl_b32 s{sT}, s{sW}, 16')
    a(f'v_lshrrev_b32 v{T+1}, 3, v{vLANE}')
    a(f'v_lshl_add_u32 v{T+1}, v{T+1}, 13, s{sT}')
    a(f'v_lshlrev_b32 v{T}, 1, v{vG}')
    a(f'v_xor_b32 v{T}, v{T}, v{vLANE}')
    a(f'v_and_b32 v{T}, 7, v{T}')
    a(f'v_lshl_add_u32 v{T}, v{T}, 4, v{T+1}')
    a(f'v_xor_b32 v{T+1}, 16, v{T}')
    a(f'v_add_u32 v{T+1}, 1024, v{T+1}')
    a(f's_lshr_b32 s{sT+9}, s{sM0}, 1')
    a(f'v_lshrrev_b32 v{T+3}, 1, v{vN}')
    a(f'v_and_b32 v{T+4}, 1, v{vN}')
    a(f'v_and_or_b32 v{T+2}, v{T+3}, 6, v{T+4}')
    a(f'v_xor_b32 v{T+2}, v{T+2}, v{vG}')
    a(f'v_lshl_add_u32 v{T+3}, v{T+4}, 3, v{T+3}')
    a(f'v_lshl_add_u32 v{T+2}, v{T+3}, 3, v{T+2}')
    a(f'v_cmp_eq_u32 vcc, 1, v{vN}')
    a(f'v_lshlrev_b32 v{T+2}, 4, v{T+2}')
    a(f'v_add_u32 v{T+2}, {LR}, v{T+2}')
    a(f'v_mov_b32 v{T+6}, {LC}')
    a(f'v_xor_b32 v{T+3}, 64, v{T+2}')
    a(f'v_cndmask_b32 v{T+4}, v{T+2}, v{T+6}, vcc')
    a(f'v_cndmask_b32 v{T+5}, v{T+3}, v{T+6}, vcc')
    for d in range(4): a(f'v_mov_b32 v{vRT+8+d}, 0xbf803f80')
    return r
def dft_R_loads():
    return [(('R',0), [f's_add_u32 m0, s{sT+9}, {LR}'], f'buffer_load_dwordx4 v{vRT}, {S(sG)}, 0 offen lds'),
            (('R',0), [], f'buffer_load_dwordx4 v{vRT+1}, {S(sU)}, 0 offen offset:1024 lds')]
def dft_R_reads():
    return [f'ds_read_b128 {ar(aR+8*jb+4*sub,4)}, v{vRT+(2 if jb else 4)+sub} offset:{2048*jb}' for jb in range(4) for sub in range(2)]

def stats_reads(n, aSX=aSX):
    return [f'ds_read_b128 {ar(aSX+4*o,4)}, v{vOA+(n&1)} offset:{(n>>1)*UN+o*2048}' for o in range(2)]
def stats_mfma(dft, n, aSX=aSX):
    r = []
    def mf(c, x, y): r.append(f'{MF} {vr(c,4)}, {x}, {y}, {vr(c,4) if n else 0}')
    for o in range(2):
        mf(vSXo+4*o, ar(aONE,4), ar(aSX+4*o,4))
        mf(vSQo+4*o, ar(aSX+4*o,4), ar(aSX+4*o,4))
    if not dft:
        for wf in range(4): mf(vCS+4*wf, ar(aONE,4), vr(fW(n&1,wf),4))
    return r
def stats_pack_ops(dft):
    r = []; a = r.append
    a(f'v_lshlrev_b32 v4, 4, v{vN}')
    a(f'v_mov_b32 v10, {OOB}')
    a(f'v_mov_b32 v{vSXo+2}, v{vSXo+4}')
    a(f'v_cndmask_b32 v4, v10, v4, s[{sMV}:{sMV+1}]')
    for o in range(2):
        sq = vSQo+4*o
        a(f'v_cndmask_b32 v{sq}, v{sq}, v{sq+1}, s[{sM1}:{sM1+1}]')
        a(f'v_cndmask_b32 v{sq}, v{sq}, v{sq+2}, s[{sM2}:{sM2+1}]')
        a(f'v_cndmask_b32 v{vSXo+1+2*o}, v{sq}, v{sq+3}, s[{sM3}:{sM3+1}]')
    if not dft:
        a(f'v_lshlrev_b32 v5, 2, v{vLANE}')
        for g, m in ((1,sM1),(2,sM2),(3,sM3)): a(f'v_cmp_eq_u32 s[{m}:{m+1}], {g}, v{vG}')
        for g, m in ((1,sM1),(2,sM2),(3,sM3)): a(f'v_cndmask_b32 v{vCS}, v{vCS}, v{vCS+4*g}, s[{m}:{m+1}]')
    a(f's_add_u32 s{sT+6}, s{sXS}, s{sL}')
    if C.xh and not dft:
        a(f's_and_b32 s{sT+7}, s2, 4')
        a(f's_lshl_b32 s{sT+7}, s{sT+7}, 26')
        a(f's_add_u32 s{sT+6}, s{sT+6}, s{sT+7}')
    a(f's_add_u32 s{sT+7}, s{sCS}, s{sL}')
    a(f'v_lshlrev_b32 v15, 4, v{vLANE}')
    return r
def stats_reduce_ops(dft):
    r = []; a = r.append
    a(f's_lshl_b32 s{sT}, s{sW}, {7 if dft else 9}')
    a(f's_add_u32 s{sT}, s{sT}, {LST}')
    a(f'v_permlane32_swap_b32 v96, v98')
    a(f'v_permlane32_swap_b32 v97, v99')
    if not dft:
        a(f'v_permlane32_swap_b32 v112, v114')
        a(f'v_permlane32_swap_b32 v113, v115')
    a(f'v_add_f32 v100, v96, v98')
    a(f'v_add_f32 v101, v97, v99')
    a(f'v_add_f32 v96, v96, v98')
    a(f'v_add_f32 v97, v97, v99')
    if not dft:
        a(f'v_add_f32 v112, v112, v114')
        a(f'v_add_f32 v113, v113, v115')
    a(f'v_lshrrev_b32 v14, 1, v{vG}')
    a(f'v_lshl_add_u32 v14, v14, 4, v{vN}')
    a(f'v_permlane16_swap_b32 v96, v100')
    a(f'v_permlane16_swap_b32 v97, v101')
    if not dft: a(f'v_permlane16_swap_b32 v112, v113')
    a(f'v_lshl_add_u32 v14, v14, {2 if dft else 4}, s{sT}')
    a(f'v_add_f32 v96, v96, v100')
    a(f'v_add_f32 v97, v97, v101')
    if not dft:
        a(f'v_add_f32 v98, v112, v113')
        a(f's_lshl_b32 s{sT}, s{sW}, 8')
        a(f's_add_u32 s{sT}, s{sT}, {LST+4096}')
        a(f'v_lshl_add_u32 v8, v{vN}, 2, v{vG}')
        a(f'v_lshl_add_u32 v8, v8, 2, s{sT}')
        a(f'v_lshl_add_u32 v9, v{vG}, 4, s{sT}')
    a(f'v_mul_f32 v4, {f2u(-1/512):#x}, v96')
    a(f'v_mul_f32 v97, {f2u(1/512):#x}, v97')
    a(f'v_fma_f32 v97, -v4, v4, v97')
    a(f'v_max_f32 v97, 0, v97')
    a(f'v_add_f32 v97, {f2u(1e-5):#x}, v97')
    a(f'v_rsq_f32 v7, v97')
    if dft: a(f'v_lshlrev_b32 v15, 4, v{vG}')
    else:
        a(f'v_sqrt_f32 v5, v97')
        a(f'v_mul_f32 v6, {f2u(-LOG2E):#x}, v7')
        if C.ftz:
            a(f's_mov_b32 s{sM1}, {f2u(128.0-C.ftz):#x}')
            a(f'v_mul_f32 v7, {f2u(2.0**(C.ftz-128)):#x}, v5')
        a(f'v_lshlrev_b32 v15, 4, v{vN}')
    w = []
    if dft: w += [f'ds_write_b32 v14, v7']
    else:
        w.append(f'ds_write_b32 v8, v98')
        w.append(f'ds_write_b128 v14, v[4:7]')
        w += [f'ds_read_b128 {vr(vCS+4*wf,4)}, v9 offset:{64*wf}' for wf in range(4)]
    return r, w
TFO = [0, 2, 4, 6, 1, 3, 5, 7]
def rec(k): return vWF+4*k
def rec_read(k, dft): return f'ds_read_b128 {vr(rec(k),4)}, v15 offset:{LST+(64*k if dft else 256*TFO[k])}'
def epi_addr_ops(dft):
    r = []; a = r.append
    if dft:
        a(f's_lshl_b32 s{sT+2}, s{sI}, 12')
        a(f's_lshl_b32 s{sT+1}, s{sJ}, 11')
        a(f's_add_u32 s{sT+2}, s{sT+2}, s{sT+1}')
        a(f's_lshl_b32 s{sT+1}, s{sW}, 9')
        a(f's_add_u32 s{sT+2}, s{sT+2}, s{sT+1}')
        a(f'v_mul_u32_u24 v16, {2*GP}, v{vG}')
        a(f'v_lshl_add_u32 v17, v{vN}, 4, s{sT+2}')
        a(f'v_add_u32 v16, v16, v17')
        a(f's_lshr_b32 s{sT+12}, s{sI}, 2')
        a(f's_lshl_b32 s{sT+12}, s{sT+12}, 7')
        a(f's_add_u32 s{sT+12}, s{sT+12}, s{sM0}')
        a(f's_add_u32 s{sT+12}, s{sT+12}, {FLG_OFF}')
    else:
        a(f's_mul_i32 s{sT+2}, s{sI}, {8*HP}')
        a(f's_lshl_b32 s{sT+1}, s{sJ}, 2')
        a(f's_add_u32 s{sT+1}, s{sT+1}, s{sW}')
        a(f's_mul_i32 s{sT+12}, s{sT+1}, 4682')
        a(f's_lshl_b32 s{sT+1}, s{sT+1}, 10')
        a(f's_add_u32 s{sT+4}, s{sT+2}, s{sT+1}')
        a(f'v_lshlrev_b32 v16, 4, v{vLANE}')
        a(f's_lshr_b32 s{sT+12}, s{sT+12}, 16')
        a(f's_lshl_b32 s{sT+1}, s{sI}, 2')
        a(f's_add_u32 s{sT+12}, s{sT+12}, s{sT+1}')
        a(f's_lshl_b32 s{sT+12}, s{sT+12}, 8')
        a(f's_add_u32 s{sT+11}, s{sT+12}, {FL_OFF}')
        a(f's_add_u32 s{sT+12}, s{sT+12}, {FL_OFF+128}')
    return r

OOL = []
def spin(a, tag, load, test, cnt, sleep=2, gate=None):
    sl = []
    if gate == 'nowait':
        a.smem_out = []; gate = test[0]
    if gate:
        a(gate)
        sl = ['s_waitcnt lgkmcnt(0)'] + test + [f's_cbranch_scc1 L{tag}_ok']
    else:
        a.wait(lgkm=0)
        for t in test: a(t)
    body = load + [f's_add_u32 s{cnt}, s{cnt}, 1', 's_waitcnt lgkmcnt(0)'] + test + [f's_cbranch_scc1 L{tag}_ok'] + ([f's_sleep {sleep}'] if sleep else []) + [f's_cmp_lt_u32 s{cnt}, 0x100000', f's_cbranch_scc1 L{tag}_spin']
    blk = ['    '+t for t in sl + [f's_mov_b32 s{cnt}, 0']] + [f'L{tag}_spin:'] + ['    '+t for t in body]
    if C.ool:
        a(f's_cbranch_scc0 L{tag}_slow')
        OOL.extend([f'L{tag}_slow:'] + blk + [f'    s_branch L{tag}_ok'])
    else:
        a(f's_cbranch_scc1 L{tag}_ok')
        for l in blk: a.raw(l)
    a.label(f'L{tag}_ok')
def rare(a, tag, lines):
    if C.ool:
        a(f's_cbranch_scc0 L{tag}_rare')
        OOL.extend([f'L{tag}_rare:'] + ['    '+t for t in lines] + [f'    s_branch L{tag}_done'])
    else:
        a(f's_cbranch_scc1 L{tag}_done')
        for t in lines: a.raw('    '+t)
    a.label(f'L{tag}_done')

aW, aX = 96, 172
def gW(n, wf): return aW+16*(n & 3)+4*wf
def gw_reads(n):
    un = n % 6
    return [f'ds_read_b64_tr_b16 {ar(gW(n,wf)+2*u,2)}, v{vWA+2*(un>>2)+(wf&1)} offset:{(un&3)*UN+(wf>>1)*2048+u*1024}' for wf in range(4) for u in range(2)]
def phaseA(a, q, z):
    tag = 'g'; CS = C.cs
    assert CS % 2 == 0 and CS >= 4 and C.rd0 <= 6
    full = master_list(False)
    if C.wx:
        for s_ in range(CS//2+1, 8):
            i_ = full.index(('X', s_)); full[i_], full[i_+1] = full[i_+1], full[i_]
    master = full[4:]
    cnt = {}; c = 0
    for t in full: c += 4; cnt[t] = c
    def ahead(n): return min(15, n+2 if n >= CS-1 else n+1)
    def lastneed(n):
        return [t for t in full if (t[0] == 'W' and t[1] <= ahead(n)) or (t[0] == 'X' and 2*t[1] <= n+1)][-1]
    def enqueue(nb):
        while master:
            t = master[0]
            if t[0] == 'W' and t[1]-6 > (ahead(nb-1) if nb > 0 else nb): break
            if t[0] == 'X' and t[1] >= 4 and t[1]-4 > (nb >> 1)-1: break
            q.pend += items(master.pop(0))
    def front(its):
        k = 1 if q.predone else 0
        q.pend[k:k] = its; q.limit += len(its)
        for t in cnt: cnt[t] += len(its)
    def setlimit(n):
        q.limit = cnt[('W', n+1)] + C.cap if n < C.capn else 10**9
    def tfo(k): return TFO[(k & 15) >> 1] if k >= 112 else (k & 15) >> 1
    def xfrag(k):
        return (k >> 3, k & 7) if k < 8*CS else (2*(k >> 4)+(k & 1), tfo(k))
    def xreg(k): return ar(aX+4*(k % 6), 4)
    def xrd(k):
        n, tf = xfrag(k)
        return f'ds_read_b128 {xreg(k)}, v{vXA+(n&1)} offset:{((n>>1) % 4)*UN+tf*2048}'
    enqueue(-1)
    a.wait(lgkm=0)
    q.need(('W',0))
    a('s_barrier')
    stamp(a, 17)
    setlimit(0)
    wr = gw_reads(0)
    a(wr[0]); a(wr[1]); a(xrd(0))
    for t in wr[2:]: a(t)
    for k in (1, 2, 3): a(xrd(k))
    for t in stats_reads(0): a(t)
    fq = []
    red, redw = stats_reduce_ops(False)
    spoll = f's_load_dword s{sFV}, s[78:79], s{sT+8} glc'
    dbgld = f's_load_dword s{sFV}, s[76:77], 0'
    nread = 0; lastw = [None]
    eq = []; eq2 = []
    assert not C.sh or CS <= 14
    for ph in range(C.sh):
        kk, part = ((0,0),(0,1),(1,0),(1,1))[ph]
        R = rec(kk); G = acc(TFO[kk],0); U = acc(TFO[kk],2); k0 = 112+2*kk+3
        if part == 0:
            eq += [(k0, f'v_fmac_f32 v{G+r}, v{vCS+r}, v{R}') for r in range(8)] + [(k0, f'v_mul_f32 v{G+r}, v{G+r}, v{R+2}') for r in range(8)]
            eq += [(k0, f'v_exp_f32 v{G+r}, v{G+r}') for r in range(8)]
        else:
            eq2 += [(k0, f'v_fmac_f32 v{U+r}, v{vCS+8+r}, v{R}') for r in range(8)]
            eq += [(k0, f'v_fma_f32 v{G+r}, v{G+r}, v{R+1}, v{R+1}') for r in range(8)] + [(k0, f'v_rcp_f32 v{G+r}, v{G+r}') for r in range(8)] + [(k0, 'U')]
    for n in range(16):
        wr = []
        while nread < ahead(n): nread += 1; wr += gw_reads(nread)
        bar_tf = (C.bar if len(wr) <= 8 else C.bart) if n < 15 else None
        if n == 6: fq += late_setup_ops()
        if n == C.spoll: fq.insert(0, spoll)
        if n == 3: fq.insert(0, dbgld)
        if n == 11: fq += red
        if n == (13 if C.sh else 14): fq += epi_addr_ops(False)
        for tq in range(8):
            k = 8*n+tq; q.pos = k
            can_w = bar_tf is None or tq > bar_tf
            dpos = [[pp for t,pp in q.log if t == ('D',u)] for u in range(14)]
            dmax = min(C.rd0, len([1 for u,d in enumerate(dpos) if len(d) == 4 and d[3]+C.dlag <= k]))
            rate = 8 if n < 5 else C.rate
            if q.ready() and q.pend[0][0][0] == 'D': rate = C.drate if q.pend[0][0][1] >= C.dslow else 4
            slot = (tq*rate) % 8 < rate
            def other(cnt_):
                while cnt_ > 0:
                    cnt_ -= 1
                    if can_w and wr: lastw[0] = a(wr.pop(0))
                    elif fq: a(fq.pop(0))
                    elif q.read1(dmax): pass
                    elif eq and eq[0][0] <= k:
                        tr = eq[0][1].startswith(('v_exp', 'v_rcp'))
                        if tr and cnt_ == 0:
                            alt = [e for e in eq2 if e[0] <= k]
                            if alt: eq2.remove(alt[0]); a(alt[0][1])
                            continue
                        if eq[0][1] == 'U':
                            eq.pop(0); mine = [e for e in eq2 if e[0] == eq2[0][0]] if eq2 and eq2[0][0] <= k else []
                            eq[0:0] = mine
                            for e in mine: eq2.remove(e)
                            cnt_ += 1; continue
                        a(eq.pop(0)[1]); cnt_ -= tr
            def flush():
                while fq: a(fq.pop(0))
            if n == 4 and tq == 0:
                flush()
                front([(('S',0), [], f'buffer_store_dwordx4 {vr(vSXo,4)}, v4, {S(sWS)}, s{sT+6} offen sc1'),
                       (('S',0), [], f'buffer_store_dword v{vCS}, v5, {S(sWS)}, s{sT+7} offen sc1')])
            for j in range(4):
                if n < CS:
                    tf = tq; w2 = 3-j if tf & 1 else j; kx = k; nn = n
                else:
                    tf = tfo(k); w2 = 2*(k & 1)+(j >> 1); h = (j ^ (j >> 1)) & 1
                    if k & 2: w2 = 3-w2
                    kx = (k & ~1)+h; nn = (n & ~1)+h
                c = vr(acc(tf,w2),4)
                if n >= CS and j == 0 and not k & 1 and C.w1:
                    a.wait_lgkm_for([i for i in [None]+a.lgkm if i is None or i.text == xrd(k+1)][-1])
                a(f'{MF} {c}, {ar(gW(nn,w2),4)}, {xreg(kx)}, {c if n else 0}')
                if j == 0:
                    if k+4 < 128: a(xrd(k+4)); other(1)
                    else: other(2)
                elif j == 1:
                    if slot and q.haspre(): q.pre()
                    else: other(2)
                elif j == 2:
                    if slot and q.ready() and not q.haspre(): q.issue(1)
                    else: other(2)
                elif tq != bar_tf: other(2 if (n >= CS and not k & 1) else 1)
                else:
                    q.limit = 10**9
                    while q.has(lastneed(n)): q.issue(1)
                    if n in (0, 1, 5, 9): flush()
                    if n == 13 and C.sh:
                        while redw[1] in fq: lastw[0] = a(fq.pop(0))
                        a.wait_lgkm_for([i for i in [None]+a.lgkm if i is None or i.text == redw[1]][-1])
                    if n < 4 and not (C.diag & 1 and n):
                        for t in stats_mfma(True, n): a(t)
                        for wf in range(4): a(f'{MF} {vr(vCS+4*wf,4)}, {ar(aONE,4)}, {ar(gW(n,wf),4)}, {vr(vCS+4*wf,4) if n else 0}')
                    if n == 0: scalar_late(a, False)
                    if n == 1 and C.pads: a.raw(f';WARM {tag}')
                    jit(a)
                    q.need(lastneed(n))
                    if lastw[0]: a.wait_lgkm_for(lastw[0])
                    if n == 5:
                        q.need(('S',0))
                        spin(a, tag+'i', [f'global_load_dword v{vDBG}, v11, s[76:77] sc1', 's_waitcnt vmcnt(0)', f'v_readfirstlane_b32 s{sFV}, v{vDBG}', 's_nop 3'], [f's_cmp_lg_u32 s{sFV}, 0'], sT+14)
                    if n == 9: spin(a, tag+'s', [spoll], [f's_cmp_eq_u32 s{sFV}, 8'], sT+14)
                    a('s_barrier')
                    if n == 0:
                        assert z not in a.vm
                        a(f's_or_b32 s{sT}, s2, s{sW}')
                        rare(a, tag+'z', [f's_atomic_add s{sONE}, s[76:77], 0'])
                    if n == 5: a(f's_atomic_add s{sONE}, s[78:79], s{sT+8}')
                    if n == 7: a.smem_out = []
                    if n in (1,3,7,11,13): stamp(a)
                    enqueue(n); setlimit(n+1)
                    if n < 3: wr += stats_reads(n+1)
                    if n == 3: fq += stats_pack_ops(False)
                    if n == 9:
                        front([(('A',0), [], f'buffer_load_dwordx4 {vr(96,4)}, v15, {S(sWS)}, s{sXS} offen sc1'),
                               (('A',0), [], f'buffer_load_dwordx4 {vr(112,4)}, v15, {S(sWS)}, s{sCS} offen sc1')])
                    for nn2, up in q.plan.avail.items():
                        if nn2 <= n: q.addD(up)
                    if n >= 10: assert not master
                    if n == (12 if C.sh else 13): fq += redw
                    if n == 13 and C.sh: fq += [rec_read(t4, False) for t4 in range(8)]
            if n == 10 and tq == 0: assert not q.has(('A',0))
            if n == 12 and tq == 7: assert not q.has(('X',7))
            if n == 15 and tq == 4:
                flush()
                a.wait(lgkm=0)
                a('s_barrier')
                if not C.sh: fq += [rec_read(t4, False) for t4 in range(8)]
                q.addD(14)
        while wr: lastw[0] = a(wr.pop(0))
    while fq: a(fq.pop(0))
    if C.log: print('epilogue ops left', len(eq), len(eq2), file=sys.stderr)
    for e in eq+eq2:
        if e[1] != 'U': a(e[1])
    q.pos = 128
    if C.log: print(tag, ' '.join(f'{t[0]}{t[1]}@{p//8}.{p%8}' for t,p in q.log), 'reads left', len(q.rq), 'dma left', q.left(), file=sys.stderr)
    q.readD(C.rd0)
    while q.left() > C.dleft: q.issue(1)

def phaseD(a, q, z):
    sSG = 16; vF = vWA+2
    q.issue(99)
    for t in dft_R_addr(): a(t)
    q.pend += dft_R_loads()
    def stage(m): return items(('X',2*m)) + items(('X',2*m+1)) + items(('W',4*m), True) + items(('W',4*m+1), True)
    q.pend += stage(1)
    q.issue(2)
    a(f'ds_write_b128 v{vRT+6}, {vr(vRT+8,4)}')
    scalar_late(a, True)
    for t in late_setup_ops(): a(t)
    for ks in range(2): a(f'v_add_u32 v{vWA+ks}, {4*UN}, v{vOA+ks}')
    a(f'v_lshl_add_u32 v{vF}, v{vLANE}, 4, s{sM0}')
    if C.wt:
        a(f's_lshl_b32 s{sT}, s{sI}, 1')
        a(f's_add_u32 s{sT}, s{sT}, s{sJ}')
        a(f's_mul_i32 s{sT+1}, s{sW}, 224')
        a(f's_add_u32 s{sT}, s{sT}, s{sT+1}')
        a(f's_sub_u32 s{sT}, s{sT}, 14')
        a(f's_lshl_b32 s{sT}, s{sT}, 11')
        a(f'v_lshl_add_u32 v9, v{vN}, 7, s{sT}')
        a(f'v_lshlrev_b32 v8, 1, v{vG}')
        a(f'v_min_u32 v8, 5, v8')
        a(f'v_mul_u32_u24 v12, 5, v{vG}')
        a(f'v_add_u32 v12, 2, v12')
        a(f'v_lshrrev_b32 v12, 1, v12')
        a(f'v_min_u32 v12, 6, v12')
        a(f'v_lshl_add_u32 v8, v8, 16, v9')
        a(f'v_lshl_add_u32 v9, v12, 16, v9')
    WT = [(('T',0), [], f'buffer_load_dword v14, v{8+k}, {S(sWD)}, 0 offen') for k in range(2)]
    a(f's_bitcmp1_b32 s{sJ}, 0')
    a(f's_cselect_b32 s{sSG}, -1.0, 1.0')
    if C.fdot:
        a(f's_or_b32 s{sSG}, s{sSG}, 0x3f80')
        a(f's_mov_b32 s{sSG+2}, 0x05040100')
        a(f's_mov_b32 s{sSG+3}, 0x07060302')
    a.wait(lgkm=0)
    stamp(a, 17)
    q.need(('X',0))
    for n in (0, 1):
        for t in stats_reads(n, 128+8*n): a(t)
    q.issue(C.dcap)
    for n in (0, 1):
        for t in stats_mfma(True, n, 128+8*n): a(t)
    if C.pads: a.raw(';WARM d')
    q.need(('X',1))
    for n in (2, 3):
        for t in stats_reads(n, 128+8*n): a(t)
    for n in (2, 3):
        for t in stats_mfma(True, n, 128+8*n): a(t)
    assert C.fdot and not C.wt
    vMU = [8, 9, 12, vWA+3]
    a(f'v_lshrrev_b32 v5, 3, v{vLANE}')
    a(f'v_lshlrev_b32 v5, 2, v5')
    a(f's_bitcmp1_b32 s{sJ}, 0')
    a(f's_cselect_b32 s{sT}, 0, {f2u(-2/128):#x}')
    for k in range(4): a(f'ds_bpermute_b32 v{vMU[k]}, v5, v{vSXo+4*(k>>1)} offset:{32*(k&1)}')
    for t in stats_pack_ops(True): a(t)
    for k in range(4): a(f'v_mul_f32 v{vMU[k]}, s{sT}, v{vMU[k]}')
    S0 = a(f'buffer_store_dwordx4 {vr(vSXo,4)}, v4, {S(sWS)}, s{sT+6} offen sc1')
    red, redw = stats_reduce_ops(True)
    a(f's_lshl_b32 s{sT+10}, s{sI}, 2')
    a(f's_and_b32 s{sT+1}, s{sSET}, {2 if C.xh else 3}')
    a(f's_add_u32 s{sT+10}, s{sT+10}, s{sT+1}')
    a(f's_lshl_b32 s{sT+10}, s{sT+10}, 7')
    a(f's_add_u32 s{sT+10}, s{sT+10}, {FLS_OFF}')
    spoll = f's_load_dword s{sFV}, s[78:79], s{sT+10} glc'
    dbgld = f's_load_dword s{sFV}, s[76:77], 0'
    def wrd(n):
        m, ks = n >> 1, n & 1
        return [f'ds_read_b128 {vr(fW(ks,wf),4)}, v{vWA+ks} offset:{(2*(m&1)+(wf&1))*UN+2048*(wf>>1)}' for wf in range(4)]
    def xrd(m, k): return f'ds_read_b128 {vr(fX(k),4)}, v{vXA+(k>>3)} offset:{2*(m&1)*UN+(k&7)*2048}'
    def raw(m): return [f'ds_read_b128 {vr(96+16*h+4*k,4)}, v{vF} offset:{(2*(m&1)+h)*UN+1024*k}' for k in range(4) for h in range(2)]
    fq = []
    for m in range(4):
        ua = 2*(m & 1)*UN
        jit(a)
        if m == 0: fq += raw(0)
        while fq: a(fq.pop(0))
        if m and C.wt == m:
            q.pend += WT; q.issue(2)
        if C.wt == 5 and m in (2, 3):
            q.pend += WT[m-2:m-1]; q.issue(1)
        if C.wt == 6 and m in (1, 2):
            q.pend += WT[m-1:m]; q.issue(1)
        if C.df == 14 and m: q.readD(m-1)
        if C.df >> m & 1: q.addD(q.maxD+1)
        for d4 in range(0, 16, 4):
            q.issue(1)
            if C.diag & 4: pass
            elif C.fdot:
                for d in range(d4, d4+4):
                    a(f'v_perm_b32 v{4+(d&3)}, v{112+d}, v{96+d}, s{sSG+2}')
                    a(f'v_perm_b32 v{112+d}, v{112+d}, v{96+d}, s{sSG+3}')
                for d in range(d4, d4+4):
                    a(f'v_dot2_f32_bf16 v{4+(d&3)}, v{4+(d&3)}, s{sSG}, v{vMU[d4>>2]}')
                    a(f'v_dot2_f32_bf16 v{112+d}, v{112+d}, s{sSG}, v{vMU[d4>>2]}')
                for d in range(d4, d4+4): a(f'v_cvt_pk_bf16_f32 v{96+d}, v{4+(d&3)}, v{112+d}')
            else:
                for d in range(d4, d4+4):
                    a(f'v_lshlrev_b32 v4, 16, v{96+d}')
                    a(f'v_and_b32 v5, s{sMSK}, v{96+d}')
                    a(f'v_lshlrev_b32 v6, 16, v{112+d}')
                    a(f'v_and_b32 v7, s{sMSK}, v{112+d}')
                    a(f'v_pk_fma_f32 v[4:5], v[6:7], s[{sSG}:{sSG+1}], v[4:5] op_sel_hi:[1,0,1]')
                    a(f'v_cvt_pk_bf16_f32 v{96+d}, v4, v5')
            lw = a(f'ds_write_b128 v{vF}, {vr(96+d4,4)} offset:{ua+256*d4}')
        while q.has(('W',4*m+1)): q.issue(1)
        q.need(('W',4*m+1))
        for t in wrd(2*m): a(t)
        a.wait_lgkm_for(lw)
        if m == 0: q.need(('R',0))
        if m == 1:
            a.wait_vm_for(S0)
            spin(a, 'di', [f'global_load_dword v{vDBG}, v11, s[76:77] sc1', 's_waitcnt vmcnt(0)', f'v_readfirstlane_b32 s{sFV}, v{vDBG}', 's_nop 3'], [f's_cmp_lg_u32 s{sFV}, 0'], sT+14)
        if m == 3 and not C.ga: spin(a, 'ds', [spoll], [f's_cmp_eq_u32 s{sFV}, 8'], sT+14)
        a('s_barrier')
        jit(a)
        for k in range(3): a(xrd(m, k))
        if m == 0: fq += dft_R_reads()
        if m == 1: a(f's_atomic_add s{sONE}, s[78:79], s{sT+8}')
        if m in (1, 2): q.pend += stage(m+1)
        if m == 3:
            if C.ga: fq += [f'v_accvgpr_read_b32 v{96+k}, a{aSX+k}' for k in range(4)] + red + redw
            else: a(f'buffer_load_dwordx4 {vr(96,4)}, v15, {S(sWS)}, s{sXS} offen sc1')
            fq += epi_addr_ops(True)
        stamp(a)
        for ks in range(2):
            n = 2*m+ks
            wr = wrd(n+1) if ks == 0 else []
            if n == 1: fq.insert(0, dbgld)
            if n == 3: a.smem_out = []
            if n == 5 and not C.ga: fq.insert(0, spoll)
            if n == 7 and not C.ga: fq += red + redw
            if n >= 6: q.addD(min(q.maxD+(C.d6 if n == 6 else C.d7), 7 if C.df == 14 else 5))
            for tf in range(8):
                k = 8*ks+tf; q.pos = 8*n+tf
                def other(c_):
                    for _ in range(c_):
                        if wr: a(wr.pop(0))
                        elif fq: a(fq.pop(0))
                if n == 0 and tf == 6: assert not fq
                if C.ga and n == 4 and tf == 4: fq.insert(0, spoll)
                if ks == 1 and m < 3 and tf == C.fpre:
                    q.need(('X',2*m+3)); fq += raw(m+1)
                for wf in range(4):
                    w2 = 3-wf if (C.snake and tf & 1) else wf
                    c = vr(acc(tf,w2),4)
                    a(f'{MF} {c}, {vr(fX(k),4)}, {vr(fW(ks,w2),4)}, {c if n else 0}')
                    if wf == 0:
                        if k+3 < 16: a(xrd(m, k+3)); other(1)
                        else: other(2)
                    elif wf == 1:
                        if q.haspre(): q.pre()
                        else: other(2)
                    elif wf == 2:
                        if q.ready() and not q.haspre(): q.issue(1)
                        else: other(2)
                    else: other(1)
                if n == 7 and tf == 6:
                    while fq: a(fq.pop(0))
                    a.wait(lgkm=0)
                    a('s_barrier')
                    fq += [rec_read(t4, True) for t4 in range(4)]
            assert not wr
        if m == 2 and C.ga:
            spin(a, 'ds', [spoll], [f's_cmp_eq_u32 s{sFV}, 8'], sT+14)
            a(f'buffer_load_dwordx4 {ar(aSX,4)}, v15, {S(sWS)}, s{sXS} offen sc1')
    stamp(a)
    for t4 in range(4, 8): fq.append(rec_read(t4, True))
    while fq: a(fq.pop(0))
    while q.pend: q.issue(1)
    q.nmain = q.nD
    q.addD(14)
    if C.log: print('d', ' '.join(f'{t[0]}{t[1]}@{p//8}.{p%8}' for t,p in q.log), 'dma left', q.left(), file=sys.stderr)

def glu_epilogue(a, q):
    sts = []
    for k, tf in enumerate(TFO):
        R = rec(k); G = acc(tf,0); U = acc(tf,2); hb = vSXo+4*(k&1)
        ms = vr(R,2); ar_ = vr(R+2,2)
        if C.sh <= 2*k:
            for r in range(0,8,2): a(f'v_pk_fma_f32 {vr(G+r,2)}, {vr(vCS+r,2)}, {ms}, {vr(G+r,2)} op_sel_hi:[1,0,1]')
            for r in range(0,8,2): a(f'v_pk_mul_f32 {vr(G+r,2)}, {vr(G+r,2)}, {ar_} op_sel_hi:[1,0]')
            for r in range(8):
                a(f'v_exp_f32 v{G+r}, v{G+r}')
                if r == 5: a.wait(lgkm=0)
        if C.sh <= 2*k+1:
            for r in range(0,8,2): a(f'v_pk_fma_f32 {vr(U+r,2)}, {vr(vCS+8+r,2)}, {ms}, {vr(U+r,2)} op_sel_hi:[1,0,1]')
            for r in range(0,8,2): a(f'v_pk_fma_f32 {vr(G+r,2)}, {vr(G+r,2)}, {ms}, {ms} op_sel:[0,1,1] op_sel_hi:[1,1,1]')
        if k in (0, 3, 4, 7): jit(a)
        if k == 6: q.readD(C.rde)
        q.issue(C.epi_dma)
        if C.sh <= 2*k+1:
            for r in range(8): a(f'v_rcp_f32 v{G+r}, v{G+r}')
        if k: a(f's_add_u32 s{sT+4}, s{sT+4}, {2*HP}' if k != 4 else f's_sub_u32 s{sT+4}, s{sT+4}, {5*HP}')
        for r in range(0,8,2): a(f'v_pk_mul_f32 {vr(U+r,2)}, {vr(U+r,2)}, {vr(G+r,2)}')
        for d in range(4): a(f'v_cvt_pk_bf16_f32 v{hb+d}, v{U+2*d}, v{U+2*d+1}')
        sts.append(a(f'buffer_store_dwordx4 {vr(hb,4)}, v16, {S(sWS)}, s{sT+4} offen sc1'))
    a.wait_vm_for(sts[3])
    a(f's_atomic_add s{sONE}, s[78:79], s{sT+11}')
    return sts[7]

def dft_epilogue(a, q):
    Z = lambda z, sub, m: 96+16*z+8*sub+4*m
    D2 = lambda jb,z,wf: vACC+32*jb+16*z+4*wf
    nst = [0]
    def stores(jb, fb):
        out = []
        for rp in range(2):
            t = 48+4*(nst[0] & 3); nst[0] += 1
            for z in range(2):
                for m in range(2): out.append(f'v_cvt_pk_bf16_f32 v{t+2*z+m}, v{D2(jb,z,2*m+fb)+2*rp}, v{D2(jb,z,2*m+fb)+2*rp+1}')
            out.append(f's_mov_b32 s{sT+2}, {G_OFF-14*2048+(8*jb+rp)*GP}')
            out.append(f'buffer_store_dwordx4 {vr(t,4)}, v16, {S(sWS)}, s{sT+2} offen offset:{256*fb} sc1')
        return out
    pend = []
    for fb in range(2):
        for z in range(2):
            for sub in range(2):
                for m in range(2):
                    for qq in range(2):
                        tf = 4*z+2*qq+sub; A = acc(tf, 2*m+fb)
                        for r in (0,2): a(f'v_pk_mul_f32 {vr(A+r,2)}, {vr(A+r,2)}, {vr(rec(tf)+r,2)}')
                for m in range(2):
                    for r in range(4): a(f'v_cvt_pk_bf16_f32 v{Z(z,sub,m)+r}, v{acc(4*z+sub,2*m+fb)+r}, v{acc(4*z+2+sub,2*m+fb)+r}')
                if fb == 0 and z == 0 and sub == 0: a.wait(lgkm=0); a('s_nop 0')
                for t in pend[:6]: a(t)
                pend = pend[6:]
                if z == 0 and sub == 0: jit(a)
                q.issue(C.depi)
        for jb in range(4):
            n = 0
            for sub in range(2):
                for z in range(2):
                    for m in range(2):
                        c = vr(D2(jb,z,2*m+fb),4)
                        a(f'{MF} {c}, {ar(aR+8*jb+4*sub,4)}, {vr(Z(z,sub,m),4)}, {c if sub else 0}')
                        n += 1
                        if n >= 3:
                            for t in pend[:2]: a(t)
                            pend = pend[2:]
            assert not pend
            pend = stores(jb, fb)
    for t in pend: last = a(t)
    return last

vHA, vGA, vHS, vPW, vXS, vH, NH, vAC = 14, 26, 30, 15, 64, 128, 16, 192
PR = {1: 18, 2: 20, 3: 21}
sMB = sOWN
LPX = 4*UN
SEQ = [(sl, ks) for sl in range(4) for ks in range(14)]
def hload(a, n):
    sl, ks = SEQ[n]
    return a(f'buffer_load_dwordx4 {vr(vH+4*(n%NH),4)}, v{vHS+sl}, {S(sWS)}, s{sPO+(ks>>1)} offen offset:{(ks&1)*1024} {("sc1","sc1 nt","sc0 sc1","sc0 sc1 nt")[C.hfl]}')
def hpoll(r): return [f's_mov_b32 s{sFV}, 0', f's_atomic_add s{sFV}, s[78:79], s{r} glc']
GU, PU = 2, 3
GL = [f'buffer_load_dwordx4 v{vGA+k}, {S(sWS)}, 0 offen offset:{1024*k} sc1 lds' for k in range(4)]
sFG = 17
GF = lambda kp,c: 80+8*kp+4*c
GRD = [f'ds_read_b128 {vr(GF(kp,c),4)}, v{19 if c else vHA} offset:{GU*UN+4096*kp}' for kp in range(4) for c in range(2)]
GPOLL = [f's_load_dword s{sFG}, s[78:79], s{sKX} glc']
GTEST = [f's_cmp_eq_u32 s{sFG}, 8']
def presync(a, dft, q, last):
    tag = 'd' if dft else 'g'
    lazy(a, 0)
    a(f's_lshl_b32 s{sKX}, s{sR}, 2')
    a(f's_add_u32 s{sKX}, s{sKX}, s{sW}')
    a(f's_lshl_b32 s{sKX}, s{sKX}, 7')
    a(f's_add_u32 s{sKX}, s{sKX}, {FLG_OFF}')
    if C.gpe and not dft:
        for t in GPOLL: a(t)
    if not dft: q.readD(C.rdp)
    q.issue(C.dpre if dft else C.pre)
    a(f's_mov_b32 s{sMB}, {1<<20}')
    a(f's_lshr_b32 s{sT}, s{sR}, 1')
    a(f's_lshl_b32 s{sT}, s{sT}, 2')
    a(f's_add_u32 s{sT}, s{sT}, s{sW}')
    a(f's_lshl_b32 s{sT}, s{sT}, 8')
    a(f's_add_u32 s{sT+15}, s{sT}, {FL_OFF}')
    a(f's_add_u32 s{sT+13}, s{sT}, {FL_OFF+128}')
    if C.pa == 2 and not dft:
        for t in hpoll(sT+15) + GPOLL: a(t)
    xl = [f'buffer_load_dwordx4 {vr(48,4)}, v{vOUT}, {S(sX)}, 0 offen', f'buffer_load_dwordx4 {vr(52,4)}, v{vOUT}, {S(sX)}, s{sMB} offen']
    if C.xpre and not dft:
        for t in xl: a(t)
        xl = []
    q.readD(q.nmain if dft else C.rd1)
    def haddr():
        a(f'v_lshlrev_b32 v7, 4, v{vLANE}')
        a(f's_mul_i32 s{sT+2}, s{sR}, {4*HP}')
        a(f's_mul_i32 s{sT+1}, s{sW}, {14*1024}')
        a(f's_add_u32 s{sT+2}, s{sT+2}, s{sT+1}')
        a(f's_and_b32 s{sT}, s{sW}, 2')
        a(f's_mul_i32 s{sT+1}, s{sT}, {HP}')
        a(f's_add_u32 s{sT+1}, s{sT+1}, s{sT+2}')
        a(f'v_add_u32 v{vHS+1}, s{sT+1}, v7')
        a(f's_xor_b32 s{sT}, s{sT}, 2')
        a(f's_mul_i32 s{sT+1}, s{sT}, {HP}')
        a(f's_add_u32 s{sT+1}, s{sT+1}, s{sT+2}')
        a(f'v_add_u32 v{vHS}, s{sT+1}, v7')
        a(f'v_add_u32 v{vHS+2}, {HP}, v{vHS}')
        a(f'v_add_u32 v{vHS+3}, {HP}, v{vHS+1}')
        a(f'v_add_u32 v7, {LPX}, v7')
        a(f'v_add_u32 v{vPW}, s{sM0}, v7')
        for k in (1,2,3): a(f'v_xor_b32 v{PR[k]}, {k*4096}, v{vPW}')
    if dft or not C.hl: haddr()
    if dft or not (C.pa or C.gpe): a.wait(lgkm=0 if dft else 1, smem=False)
    lazy(a, 1)
    if C.pa == 1 and not dft:
        for t in hpoll(sT+15): a(t)
    if C.gearly and not dft and C.pa < 2 and not C.gpe:
        for t in GPOLL: a(t)
    if dft:
        a(f's_add_u32 s{sM1}, s78, s{sT+12}')
        a(f's_addc_u32 s{sM1+1}, s79, 0')
    a(f's_lshl_b32 s{sT+1}, s{sCB}, 6')
    a(f's_sub_u32 s{sT+2}, s{sT+1}, 256')
    a(f's_sub_u32 s{sT+1}, 193, s{sT+1}')
    a(f's_cmp_ge_u32 s{sCB}, 4')
    a(f's_cselect_b32 s{sT+1}, s{sT+2}, s{sT+1}')
    a(f's_cselect_b32 s{sT+3}, 0, 63')
    a(f'v_and_b32 v5, 31, v{vLANE}')
    a(f'v_lshrrev_b32 v6, 5, v{vLANE}')
    a(f'v_lshl_add_u32 v5, v5, 1, s{sT+1}')
    a(f'v_add_u32 v5, v5, v6')
    a(f's_mul_i32 s{sT}, s{sP}, {GP}')
    a(f's_lshl_b32 s{sT+1}, s{sW}, 14')
    a(f's_add_u32 s{sT}, s{sT}, s{sT+1}')
    a(f's_add_u32 s{sT}, s{sT}, {G_OFF}')
    a(f'v_cmp_gt_u32 vcc, 0x100, v5')
    a(f'v_and_b32 v6, 1, v5')
    a(f'v_lshrrev_b32 v5, 1, v5')
    a(f'v_lshl_add_u32 v5, v6, 7, v5')
    a(f'v_lshl_add_u32 v5, v5, 4, s{sT}')
    a(f's_and_b32 s{sT}, s{sW}, 1')
    a(f's_lshl_b32 s{sT}, s{sT}, 5')
    a(f'v_cndmask_b32 v{vGA}, v10, v5, vcc')
    a(f's_xor_b32 s{sT}, s{sT}, s{sT+3}')
    a(f'v_xor_b32 v4, s{sT}, v{vN}')
    for k in (1,2,3): a(f'v_add_u32 v{vGA+k}, {3072*k}, v{vGA}')
    a(f'v_and_b32 v6, 1, v4')
    a(f'v_lshrrev_b32 v4, 1, v4')
    a(f'v_lshl_add_u32 v4, v6, 5, v4')
    a(f'v_lshl_add_u32 v4, v{vG}, 6, v4')
    a(f'v_lshlrev_b32 v4, 4, v4')
    a(f'v_add_u32 v{vHA}, {LPX}, v4')
    a(f'v_xor_b32 v19, 0x80, v{vHA}')
    jit(a)
    a.wait_vm_for(last)
    if dft:
        a('s_barrier')
        for k in range(8): a(f's_atomic_add s{sONE}, s[{sM1}:{sM1+1}], {512*k}')
        lazy(a, 2)
        q.issue(99)
        a.wait(lgkm=0)
        while q.left():
            q.readD(q.rq[0][0]+1); q.issue(99)
        if C.gearly:
            q.readD(8)
            a.wait(lgkm=0)
            for t in GPOLL: a(t)
        for t in hpoll(sT+15): a(t)
    elif C.gfirst:
        assert C.gearly and not C.pa
        a.wait(lgkm=0)
        a(f's_atomic_add s{sONE}, s[78:79], s{sT+12}')
        for t in hpoll(sT+15): a(t)
        lazy(a, 2)
        while q.pend: q.issue(1)
        a(f's_add_u32 m0, s{sM0}, {LPX+GU*UN}')
        assert all(u < q.rq[0][0] for u in range(14) if q.plan.units[u] == 4+GU)
        spin(a, tag+'g', GPOLL, GTEST, sT+14, sleep=0, gate=GTEST[0])
        for t in GL: a(t)
        q.issue(99)
        if C.hl: haddr()
        q.readD(C.rd2)
    else:
        if C.pa: a.wait(lgkm=0)
        a(f's_atomic_add s{sONE}, s[78:79], s{sT+12}')
        if C.pa:
            a.smem_out = []
            a(f's_cmp_eq_u32 s{sFV}, 14')
            a(f's_cselect_b32 s{sT+9}, 1, 0')
            a(f's_cbranch_scc1 Lga_ok')
            for t in hpoll(sT+15): a.raw('    '+t)
            a.label('Lga_ok')
        else:
            for t in hpoll(sT+15): a(t)
        lazy(a, 2)
        q.issue(99)
    assert not q.left()
    for t in xl: a(t)
    if dft or not C.gfirst: a(f's_add_u32 m0, s{sM0}, {LPX+GU*UN}')
    if dft: q.readD(C.lzu if C.lz else 14)
    lazy(a, 3)
    if C.gearly and (dft or not C.gfirst):
        assert all(u < (q.rq[0][0] if q.rq else 14) for u in range(14) if q.plan.units[u] == 4+GU)
        spin(a, tag+'g', GPOLL, GTEST, sT+14, sleep=0)
        for t in GL: a(t)
    ool = C.ool; C.ool = C.ool >> 1
    htest = [f's_cmp_eq_u32 s{sFV}, 14']
    if C.gb2 == -2:
        a.wait(lgkm=0)
        a(htest[0])
        a(f's_cselect_b32 s{sT+9}, 1, 0')
        a(f's_cbranch_scc0 L{tag}nh')
        l0 = len(a.lines)
        for n in range(C.look0): hload(a, n)
        hl = a.lines[l0:]
        a.wait(vm=C.look0)
        a.label(f'L{tag}nh_back')
        OOL.extend([f'L{tag}nh:'] + ['    '+t for t in hpoll(sT+15)] + ['    s_waitcnt vmcnt(0)', f'    s_branch L{tag}nh_back'])
        a('s_barrier')
        for t in GRD: a(t)
    else:
        spin(a, tag+'h', hpoll(sT+15), htest, sT+14, sleep=0, gate=f's_cmp_eq_u32 s{sT+9}, 1' if (C.pa and not dft) else None)
        lazy(a, 4)
        for n in range(C.look0): hload(a, n)
        if C.gb2 < 0:
            a.wait(vm=C.look0)
            a('s_barrier')
            for t in GRD: a(t)
    C.ool = ool
    q.readD(C.lzu if C.lz else 14)
    for pr in range(2):
        for d in range(2): a(f'v_permlane16_swap_b32 v{48+4*pr+d}, v{48+4*pr+2+d}')
    for k in range(8):
        a(f'v_lshlrev_b32 v{vXS+2*k}, 16, v{48+k}')
        a(f'v_and_b32 v{vXS+2*k+1}, s{sMSK}, v{48+k}')
    a.wait(vm=C.look0)
    if C.gb2 < 0:
        for kp in range(4):
            for (sl2, c) in ((1,0),(3,0),(3,1),(1,1)):
                d = vr(vAC+16*sl2+4*c,4)
                a(f'{MF} {d}, {vr(GF(kp,c),4)}, {ar((aCF if sl2 == 1 else aCL)+4*kp,4)}, {d if kp else vr(vXS+4*(sl2-1)+4*c,4)}')
            if kp < C.look1 and C.gb2 == -1: hload(a, C.look0+kp)
    if C.gb2 == -2:
        a(f's_cmp_eq_u32 s{sT+9}, 1')
        a(f's_cbranch_scc1 L{tag}h_go')
        c0 = C.ool; C.ool = 0
        a.raw('    s_waitcnt lgkmcnt(0)')
        spin(a, tag+'h', hpoll(sT+15), htest, sT+14, sleep=0, gate=htest[0])
        C.ool = c0
        for l in hl: a.raw(l)
        a.label(f'L{tag}h_go')
        lazy(a, 4)
    return [t for _, t in q.rq]

def phaseB(a, rest):
    AC = lambda sl,c: vAC+16*sl+4*c
    GF = lambda kp,c: 80+8*kp+4*c
    EP = [112, 120, 48]; LP = [160, 168, 176]; OB = 56
    osc = ("","sc1","nt","sc0 sc1")[C.outsc]
    def preads(P, half, srcs):
        off = {2: half*UN, 3: half*UN+2048, 1: PU*UN+2048*half}
        return [f'ds_read_b128 {vr(P[{2:0,3:1,1:2}[k]]+4*c,4)}, v{PR[k]} offset:{off[k]+1024*c}' for k in srcs for c in range(2)]
    def adds(d, s_): return [f'v_add_f32 v{d+k}, v{d+k}, v{s_+k}' for k in range(8)]
    def pack(src, ob, so):
        return ([f'v_cvt_pk_bf16_f32 v{ob+k}, v{src+2*k}, v{src+2*k+1}' for k in range(4)] + [f'v_permlane16_swap_b32 v{ob+d}, v{ob+2+d}' for d in range(2)]
                + [f'buffer_store_dwordx4 {vr(ob,4)}, v{vOUT}, {S(sOUT)}, {so} offen {osc}'])
    nl = C.look0 + (C.look1 if C.gb2 == -1 else 0)
    fillers = list(rest); gm = []; wq = []; after_g = []
    cur = [0]
    def fill(k):
        for _ in range(k):
            if fillers and not (fillers[0].startswith('buffer_store') and cur[0] < C.est): a(fillers.pop(0))
    def mf(n, c, first=None):
        cur[0] = n
        sl, ks = SEQ[n]
        assert not [1 for t in fillers if t.startswith('ds_read_b64_tr') and regs(t.split()[1].rstrip(','))[0][1] < 16*ks+16]
        d = vr(AC(sl,c),4); ci = d
        if (ks == 0 if first is None else first) and not (c < 2 and ((sl == 3 and not glate) or (sl == 1 and C.gearly))): ci = vr(vXS+4*(sl-1)+4*c,4) if (sl & 1 and c < 2) else 0
        a(f'{MF} {d}, {ar(16*ks+4*c,4)}, {vr(vH+4*(n%NH),4)}, {ci}')
    lc = 28-C.look-1
    glate = C.gb+6 > 42 and not C.gearly
    assert (not glate or C.gb+2 > 42) and C.xb >= 4 and C.lp+6 <= lc < (C.gp or C.gc) and C.gb >= 31
    nend = 56-C.defer
    for n in range(nend):
        sl, ks = SEQ[n]
        for j in range(4):
            if C.chb and (n | 1) < nend:
                h = (j ^ (j >> 1)) & 1
                mf((n & ~1)+h, 2*(n & 1)+(j >> 1), first=(ks < 2 and not j & 1)); cur[0] = n
            else: mf(n, j)
            if j == 0:
                if nl < 56: hload(a, nl); nl += 1
                else: fill(2)
            elif j == 1 and n == C.lp:
                fill(99)
                a.wait(lgkm=0)
                for t in hpoll(sT+13): a(t)
                if not C.gp and not C.gearly:
                    for t in GPOLL: a(t)
            elif j == 1 and n == lc:
                assert nl <= 28
                spin(a, 'l', hpoll(sT+13), [f's_cmp_eq_u32 s{sFV}, 14'], sT+14, sleep=0, gate='nowait' if C.nw & 2 else None)
            elif j == 1 and C.gp and n == C.gp and not C.gearly:
                for t in GPOLL: a(t)
            elif j == 1 and n == C.gc and not C.gearly:
                spin(a, 'g', GPOLL, GTEST, sT+14, sleep=C.gsl)
            elif j == 1 and (n == C.gb or (n == C.gb2 and C.gearly)):
                assert not wq or sl == 3
                dog = (n == C.gb2) == bool(C.gearly)
                if not C.gearly: a.wait_vm_for(gdone)
                if n == C.gb: a.wait(lgkm=0)
                a('s_barrier')
                if dog:
                    fillers = [f'ds_read_b128 {vr(GF(kp,c),4)}, v{19 if c else vHA} offset:{GU*UN+4096*kp}' for kp in range(4) for c in range(2)] + fillers
                    gstart = n+2
                    for kp in range(4):
                        for (sl2, c) in ((1,0),(3,0),(3,1),(1,1)):
                            d = vr(AC(sl2,c),4); ini = kp == 0 and ((sl2 == 3 and not glate) or C.gearly)
                            gm.append(f'{MF} {d}, {vr(GF(kp,c),4)}, {ar((aCF if sl2 == 1 else aCL)+4*kp,4)}, {vr(vXS+4*(sl2-1)+4*c,4) if ini else d}')
                if n == C.gb:
                    fillers += preads(EP, 0, (2,3,1)) + adds(EP[0], EP[1]) + adds(EP[0], EP[2])
                    after_g = adds(EP[0], AC(1,0)) + pack(EP[0], OB, 0)
                    if n == 42+C.xb:
                        assert not wq
                        fillers += preads(LP, 1, (2,3)) + adds(LP[0], LP[1])
            elif j == 1 and sl and 1 <= ks and wq: a(wq.pop(0))
            elif j == 1 and sl == 3 and ks == C.xb:
                assert not wq
                a.wait(lgkm=0); a('s_barrier')
                fillers = preads(LP, 1, (2,3)) + fillers + adds(LP[0], LP[1])
            elif j == 2 and C.gc <= n < C.gc+4 and not C.gearly: gdone = a(GL[n-C.gc])
            elif j == 2 and nl < 56 and nl-n-1 < C.look:
                hload(a, nl); nl += 1
            else: fill(1 if j == 3 else 2)
        if gm and n >= gstart:
            for t in gm[:4]: a(t); fill(2)
            gm = gm[4:]
        elif after_g and not gm: fillers += after_g; after_g = []
        if ks == 13 and sl < 3:
            assert not wq
            if sl == 1: wq = [f'ds_write_b128 v{vPW}, {vr(AC(1,2+c),4)} offset:{PU*UN+1024*c}' for c in range(2)]
            else: wq = [f'ds_write_b128 v{vPW}, {vr(AC(sl,c),4)} offset:{(sl>>1)*UN+1024*c}' for c in range(4)]
        if n in (0, 3, 13, 27, 39, 41, 46, 50): jit(a)
        if n == 0: lazy_flush(a, 5); stamp(a, 3)
        if n in (7,14,21,28,35,42,49): stamp(a, 18 if n == 7 else 2)
    assert nl == 56
    tail = [(n, c) for n in range(nend, 56) for c in (2, 3)]
    if C.chb: tail = [(n+h, c) for n in range(nend, 55, 2) for c, h in ((2,0),(2,1),(3,1),(3,0))] + ([(55,2),(55,3)] if C.defer & 1 else [])
    for n in range(nend, 56):
        for _ in range(2): mf(*tail.pop(0)); cur[0] = n; fill(2)
        if gm:
            for t in gm[:4]: a(t); fill(2)
            gm = gm[4:]
        elif after_g: fillers += after_g; after_g = []
    assert not gm and not after_g
    fill(99)
    own = [(n, c) for n in range(nend, 56) for c in (0, 1)]
    if C.chb: own = [(n, c) for c in (0, 1) for n in range(nend, 56)]
    k0 = min(3, len(own))
    for n, c in own[:k0]: mf(n, c)
    own = own[k0:]
    for c in range(2):
        a(f'ds_write_b128 v{vPW}, {vr(AC(3,2+c),4)} offset:{PU*UN+2048+1024*c}')
        if own: mf(*own.pop(0))
    if own: mf(*own.pop(0))
    a.wait(lgkm=0); a('s_barrier')
    for t in preads(LP, 1, (1,)): a(t)
    for n, c in own: mf(n, c)
    stamp(a, 3)
    for k in range(0, 8, 2): a(f'v_pk_add_f32 {vr(LP[0]+k,2)}, {vr(LP[0]+k,2)}, {vr(AC(3,0)+k,2)}')
    for k in range(0, 8, 2): a(f'v_pk_add_f32 {vr(LP[0]+k,2)}, {vr(LP[0]+k,2)}, {vr(LP[2]+k,2)}')
    for t in pack(LP[0], OB+4, f's{sMB}'): a(t)
    stamp(a)

def kernel(a):
    q = Q(a)
    prologue(a, q)
    for t in master_list(False)[1:4]: q.pend += items(t)
    assert C.cap0 <= 8
    q.issue(6)
    stamp(a)
    jit(a)
    z = setup2(a)
    for t in coef_ops(): a(t)
    q.issue(C.cap0-2)
    stamp(a)
    a(f's_cmp_ge_u32 s{sJ}, 14')
    a('s_cbranch_scc1 L_dft')
    st = a.snapshot(); n0 = St.n; q2 = q.clone(True)
    phaseA(a, q, z); stamp(a, 17)
    rest = presync(a, False, q, glu_epilogue(a, q))
    def state(): return ([i.text for i in a.vm], St.n)
    join = state(); jl = [i.text for i in a.lgkm]
    a.label('L_phaseB')
    a.raw(';PAD0') if C.pads else a('s_nop 0')
    phaseB(a, rest)
    stamp_flush(a)
    a.label('L_end')
    a('s_endpgm')
    a.restore(st); St.n = n0; q = q2
    a.raw('.p2align 3')
    a.label('L_dft')
    phaseD(a, q, z); stamp(a, 17)
    assert rest == presync(a, True, q, dft_epilogue(a, q))
    assert join == state(), (join, state())
    assert not a.lgkm
    a('s_branch L_phaseB')
    a.raw(';OOL')
    for l in OOL: a.raw(l)
    if a.blocked: print('waits that block on smem at lines', a.blocked, file=sys.stderr)

def layout(lines, base):
    out = []
    for l in lines:
        if l.startswith(';WARM'):
            t = l.split()[1]
            out += [f'    s_mov_b32 s1, {1 if t == "d" else 0}', '    s_mov_b64 exec, 0']
            for w in range(3): out += [f'    s_cmp_eq_u32 s{sW}, {w}', f'    s_cbranch_scc1 @{t}{w}']
            out += [f'    s_branch @{t}3']
            if t == 'g': out += ['Ltramp:', '    s_cmp_eq_u32 s1, 1', '    s_cbranch_scc1 Lret_d']
            out += [f'Lret_{t}:', '    s_mov_b64 exec, -1']
        elif l == ';PAD0': out += ['Lpad_s0:', '    s_cbranch_execz @next_s0']
        else: out.append(l)
    import re
    sz = sizes_of([re.sub(r'@\w+', 'L_end', l) for l in out])
    idx = [i for i,l in enumerate(out) if l.startswith('    ') and not l.strip().startswith((';','.'))]
    assert len(idx) == len(sz)
    size = dict(zip(idx, sz))
    res = []; addr = base; cand = None; fixed = left = 0; region = None; pads = {'g': [], 's': ['s0'], 'd': []}
    page = addr >> 12
    for i,l in enumerate(out):
        if l == 'Lret_g:': region = 'g'
        if l == 'L_phaseB:': region = 's'
        if l == 'L_end:' or l == ';OOL': region = None
        if l == 'Lret_d:': region = 'd'
        if l.startswith('.p2align 3'): addr = (addr+7)//8*8; cand = None; res.append(l); continue
        if i not in size: res.append(l); continue
        if (addr >> 12) != page:
            page = addr >> 12
            if region and C.pads and 'exec' not in l:
                nm = f'{region}{len(pads[region])}'; pads[region].append(nm)
                res += [f'Lpad_{nm}:', f'    s_cbranch_execz @next_{nm}']; addr += 4
                if C.log: print('pad', nm, 'before line', i, l.strip()[:60], file=sys.stderr)
        s = size[i]
        if s == 8 and addr % 8 == 4:
            if cand is not None and C.align:
                op = res[cand].split()[0]; res[cand] = res[cand].replace(op, op+'_e64', 1); addr += 4; fixed += 1
            elif addr % 32 == 28: left += 1
        res.append(l)
        if s == 8: cand = None
        elif l.split()[0] in PROMO and addr % 8 == 0: cand = len(res)-1
        addr += s
    tgt = {}
    sp = pads['s']
    for k, nm in enumerate(sp): tgt[f'next_{nm}'] = f'Lpad_{sp[k+1]}' if k+1 < len(sp) else 'Ltramp'
    for t in 'gd':
        own = pads[t]
        for k, nm in enumerate(own): tgt[f'next_{nm}'] = f'Lpad_{own[k+3]}' if k+3 < len(own) else f'Lret_{t}'
        for w in range(3): tgt[f'{t}{w}'] = f'Lpad_{own[w]}' if w < len(own) else f'Lret_{t}'
        tgt[f'{t}3'] = f'Lpad_{sp[0 if t == "d" or len(sp) == 1 else 1]}'
    res = [re.sub(r'@(\w+)', lambda m: tgt[m.group(1)], l) for l in res]
    print('align fixed', fixed, 'left', left, 'pads', pads, 'bytes', addr-base, file=sys.stderr)
    assert addr-base <= 32*CODE_LINES_PER_WG*128
    return res

def build():
    out = ['; @launch grid=(256,1,1) block=(256,1,1) lds=163840', '; '+' '.join(sys.argv[2:]),
           '.amdgcn_target "amdgcn-amd-amdhsa--gfx950"', '.text', '.p2align 12']
    if C.shift: out.append(f'.fill {64*C.shift}, 4, 0xbf800000')
    nm = NAME+'_kernel'
    a = Asm(); kernel(a)
    lines = layout(a.lines, 0x300+256*C.shift)
    out += [f'.globl {nm}', '.p2align 8', f'.type {nm},@function', f'{nm}:', '\n'.join(lines)]
    out.append('L_code_end:')
    out.append(f'.fill ({32*CODE_LINES_PER_WG*128+256} - (L_code_end - {nm}))/4, 4, 0xbf800000')
    out.append('.section .rodata,"a"')
    out.append('.p2align 6')
    out.append(f'''.amdhsa_kernel {nm}
  .amdhsa_next_free_vgpr 512
  .amdhsa_next_free_sgpr 102
  .amdhsa_accum_offset 256
  .amdhsa_group_segment_fixed_size 0
  .amdhsa_kernarg_size 96
  .amdhsa_user_sgpr_count 2
  .amdhsa_user_sgpr_kernarg_segment_ptr 1
  .amdhsa_system_sgpr_workgroup_id_x 1
.end_amdhsa_kernel
''')
    return '\n'.join(out)
if __name__ == '__main__':
    for kv in sys.argv[2:]:
        k, v = kv.split('='); assert hasattr(C, k), k; setattr(C, k, int(v))
    HP = 56*1024+C.hpad; GP = 65536+C.gpad
    t = build()
    open(sys.argv[1], 'w').write(t)
```
